```python
import torch

def _softmax(x, axis=-1):
    return torch.softmax(x, dim=axis)
def _gelu(x):
    return torch.nn.functional.gelu(x, approximate="tanh")
def _silu(x):
    return torch.nn.functional.silu(x)
def _sigmoid(x):
    return torch.sigmoid(x)
def _layernorm(x, axis=-1, eps=1e-5):
    m = x.mean(dim=axis, keepdim=True)
    v = x.var(dim=axis, keepdim=True, unbiased=False)
    return (x - m) / torch.sqrt(v + eps)
def _scatter_add(tgt, idx, src, axis=0):
    return tgt.clone().index_add_(axis, idx, src)
def _segment_sum(src, seg, n):
    out = torch.zeros((n,) + src.shape[1:], dtype=src.dtype)
    return out.index_add_(0, seg, src)
def _pad(x, pw):
    flat = tuple(v for pair in reversed(pw) for v in pair)
    return torch.nn.functional.pad(x, flat)

kernel_name = 'parallel_sum__softmax_full_mha__mixer_s_mlp__prompt'

def setup_inputs():

    _w = (lambda a: (lambda t: t.to(torch.bfloat16) if t.is_floating_point() else t)(torch.as_tensor(a)))
    def _A_setup():
        B, S, D = 1, 2048, 512
        return {
            "x": _w((lambda *s: torch.randn(*s, dtype=torch.bfloat16) * 0.05)(B, S, D)),
            "wqkv": _w((lambda *s: torch.randn(*s, dtype=torch.bfloat16) * 0.1)(D, 3 * D)),
            "wo": _w((lambda *s: torch.randn(*s, dtype=torch.bfloat16) * 0.05)(D, D)),
        }
    _A_in = _A_setup()

    def _B_setup():
        B, S, D, F = 1, 2048, 512, 1376
        return {
            "x":  _w((lambda *s: torch.randn(*s, dtype=torch.bfloat16) * 0.05)(B, S, D)),
            "w1": _w((lambda *s: torch.randn(*s, dtype=torch.bfloat16) * 3.2)(D, D) * (D ** -0.5)),
            "w2": _w((lambda *s: torch.randn(*s, dtype=torch.bfloat16) * 3.2)(D, D) * (D ** -0.5)),
            "w3": _w((lambda *s: torch.randn(*s, dtype=torch.bfloat16) * 3.2)(D, F) * (D ** -0.5)),
            "w4": _w((lambda *s: torch.randn(*s, dtype=torch.bfloat16) * 3.2)(F, D) * (F ** -0.5)),
        }
    _B_in = _B_setup()

    return {
        "A_x": _A_in["x"],
        "A_wqkv": _A_in["wqkv"],
        "A_wo": _A_in["wo"],
        "B_x": _B_in["x"],
        "B_w1": _B_in["w1"],
        "B_w2": _B_in["w2"],
        "B_w3": _B_in["w3"],
        "B_w4": _B_in["w4"],
    }

def reference(A_x, A_wqkv, A_wo, B_x, B_w1, B_w2, B_w3, B_w4):
    def _A_ref(x, wqkv, wo):
        B, S, D = x.shape
        H = 32; Dh = D // H
        qkv = (lambda x, *d: x.permute(*d))((x @ wqkv).reshape(B, S, 3, H, Dh), 2, 0, 3, 1, 4)
        q, k, v = qkv[0], qkv[1], qkv[2]
        scale = Dh ** -0.5
        scores = torch.einsum("bhqd,bhkd->bhqk", q, k) * scale
        p = _softmax(scores, axis=-1)
        o = torch.einsum("bhqk,bhkd->bhqd", p, v)
        return (lambda x, *d: x.permute(*d))(o, 0, 2, 1, 3).reshape(B, S, D) @ wo

    def _B_ref(x, w1, w2, w3, w4):
        B, S, D = x.shape
        h = _gelu(_layernorm(x, axis=-1) @ w1)
        c = D // 4
        g0 = _pad(h[:, :, 0*c:1*c], ((0, 0), (1, 0), (0, 0)))[:, :S, :]
        g1 = _pad(h[:, :, 1*c:2*c], ((0, 0), (0, 1), (0, 0)))[:, 1:, :]
        g2 = _pad(h[:, :, 2*c:3*c], ((0, 0), (2, 0), (0, 0)))[:, :S, :]
        g3 = _pad(h[:, :, 3*c:   ], ((0, 0), (0, 2), (0, 0)))[:, 2:, :]
        hs = torch.concatenate([g0, g1, g2, g3], axis=-1) @ w2
        x1 = x + hs
        h2 = _gelu(_layernorm(x1, axis=-1) @ w3) @ w4
        return x1 + h2

    x = A_x
    xn = _layernorm(x, axis=-1)
    return x + _A_ref(xn, A_wqkv, A_wo) + _B_ref(xn, B_w1, B_w2, B_w3, B_w4)
```

```python
import struct

def f32bits(x):
    return struct.unpack('<I', struct.pack('<f', x))[0]

class Asm:
    def __init__(self):
        self.lines = []
        self.uid = 0
    def __call__(self, s):
        for l in s.split('\n'):
            l = l.strip()
            if l:
                self.lines.append('    ' + l)
    def label(self, l):
        self.lines.append(l + ':')
    def raw(self, s):
        self.lines.append(s)
    def comment(self, s):
        self.lines.append('    ; ' + s)
    def newlabel(self, p='L'):
        self.uid += 1
        return f'{p}_{self.uid}'
    def text(self):
        return '\n'.join(self.lines) + '\n'

def V(b, n=1):
    return f'v{b}' if n == 1 else f'v[{b}:{b+n-1}]'
def S(b, n=1):
    return f's{b}' if n == 1 else f's[{b}:{b+n-1}]'

class RegAlloc:
    def __init__(self, start, limit):
        self.n = start; self.limit = limit; self.hi = start
    def __call__(self, cnt=1, align=None):
        if align is None:
            align = 1 if cnt == 1 else (2 if cnt == 2 else 4)
        b = (self.n + align - 1) // align * align
        self.n = b + cnt
        assert self.n <= self.limit, f'out of registers {self.n} > {self.limit}'
        self.hi = max(self.hi, self.n)
        return b
    def mark(self): return self.n
    def release(self, m): self.n = m

def kernel_header(a, name):
    a.raw('.text')
    a.raw(f'.globl {name}')
    a.raw('.p2align 8')
    a.raw(f'.type {name},@function')
    a.label(name)

def kernel_desc(name, nvgpr, nsgpr=100):
    acc = (nvgpr + 3) // 4 * 4
    return f'''.amdhsa_kernel {name}
  .amdhsa_next_free_vgpr {nvgpr}
  .amdhsa_next_free_sgpr {nsgpr}
  .amdhsa_accum_offset {acc}
  .amdhsa_group_segment_fixed_size 0
  .amdhsa_kernarg_size 88
  .amdhsa_user_sgpr_count 2
  .amdhsa_user_sgpr_kernarg_segment_ptr 1
  .amdhsa_system_sgpr_workgroup_id_x 1
.end_amdhsa_kernel
'''
```

```python
import sys, math, os
from asmlib import *

NAME = 'parallel_sum__softmax_full_mha__mixer_s_mlp__prompt'

QF  = 0x000000
KF  = 0x200000
VF  = 0x400000
HF  = 0x600000
X1F = 0x800000
OF  = 0xA00000
H3F = 0xC00000
YF  = 0x1200000
ST  = 0x1600000
PS  = 0x1610000
CS1 = 0x1650000
CS3 = 0x1660000
FLG = 0x1680000
WS_BYTES = 0x1800000
OOB = 0x7F000000

LOG2E = 1.4426950408889634
QSCALE = 0.25 * LOG2E
EPS = 1e-5
GC1 = -2.0 * 0.7978845608028654 * LOG2E
GC2 = GC1 * 0.044715

sXSRD, sWSRD, sWS, sAUX, sDBG = 4, 8, 12, 16, 20

class Opt:
    stamps = os.environ.get('STAMPS', '0') == '1'
STAMP_OFF = 0x1700000

def srd(a, d, base, nbytes):
    a(f's_mov_b32 s{d}, s{base}')
    a(f's_and_b32 s{d+1}, s{base+1}, 0xffff')
    a(f's_mov_b32 s{d+2}, {hex(nbytes)}')
    a(f's_mov_b32 s{d+3}, 0x20000')

def bf16_round(a, v):
    a(f'v_cvt_pk_bf16_f32 v{v}, v{v}, v{v}')
    a(f'v_lshlrev_b32 v{v}, 16, v{v}')

def stamp(a, idx):
    if not Opt.stamps: return
    a(f's_memtime s[{64+4*idx}:{65+4*idx}]')
    a(f's_memrealtime s[{66+4*idx}:{67+4*idx}]')
def stamp_flush(a, n, slot):
    if not Opt.stamps: return
    a('s_waitcnt lgkmcnt(0) vmcnt(0)')
    stamp(a, n)
    a('s_waitcnt lgkmcnt(0)')
    a('s_mov_b64 exec, -1')
    a('v_cmp_eq_u32 vcc, 0, v0')
    a('s_and_saveexec_b64 s[62:63], vcc')
    lab = a.newlabel('Lstamp')
    a(f's_cbranch_execz {lab}')
    a(f's_lshl_b32 s61, s2, 6')
    a(f's_add_u32 s61, s61, {hex(STAMP_OFF + slot * 0x10000)}')
    a('v_mov_b32 v2, 0')
    for i in range(n + 1):
        a(f'v_mov_b32 v4, s{64+4*i}')
        a(f'v_mov_b32 v5, s{66+4*i}')
        a(f'buffer_store_dwordx2 v[4:5], v2, s[{sWS}:{sWS+3}], s61 offen offset:{8*i}')
        a('s_nop 1')
    a.label(lab)

class G:
    pass

def wave_lane(a, sW, vLane):
    a(f'v_lshrrev_b32 v{vLane}, 6, v0')
    a('s_nop 0')
    a(f'v_readfirstlane_b32 s{sW}, v{vLane}')
    a(f'v_and_b32 v{vLane}, 63, v0')

def gemm_setup(a, va, p):
    TT, FT, WR, WC, NST = p.TT, p.FT, p.WR, p.WC, p.NST
    NW = WR * WC
    G2 = NW // 4
    TW, FW = TT // WR, FT // WC
    p.TW, p.FW, p.NW, p.G2 = TW, FW, NW, G2
    XS, WSZ = TT * 4096, FT * 4096
    XW = getattr(p, 'lds_base', 0) + NST * XS
    p.XS, p.WSZ, p.XW = XS, WSZ, XW
    p.lds_bytes = getattr(p, 'lds_base', 0) + NST * (XS + WSZ)
    sT0, sT1, sM0x, sM0w, sWr, sWc, sS, sGr = [p.stmp + i for i in range(8)]
    p.sT0, p.sT1, p.sM0x, p.sM0w, p.sWr, p.sWc, p.sS, p.sGr = sT0, sT1, sM0x, sM0w, sWr, sWc, sS, sGr
    l = p.vLane
    t0 = va(); t1 = va(); t2 = va()
    p.t = (t0, t1, t2)
    lg = int(math.log2(WC))
    a(f's_lshr_b32 s{sWr}, s{p.sW}, {lg}')
    a(f's_and_b32 s{sWc}, s{p.sW}, {WC-1}')
    a(f's_and_b32 s{sS}, s{p.sW}, 3')
    a(f's_lshr_b32 s{sGr}, s{p.sW}, 2')
    assert TT % G2 == 0
    p.TD = TT // G2
    p.FD = (FT + G2 - 1) // G2
    assert FT % G2 == 0
    a(f's_lshl_b32 s{sM0x}, s{sS}, 10')
    a(f's_add_u32 s{sM0w}, s{sM0x}, {XW}')
    if getattr(p, 'lds_base', 0): a(f's_add_u32 s{sM0x}, s{sM0x}, {p.lds_base}')
    if G2 > 1:
        a(f's_mul_i32 s{sT0}, s{sGr}, {p.TD * 4096}')
        a(f's_add_u32 s{sM0x}, s{sM0x}, s{sT0}')
        a(f's_mul_i32 s{sT0}, s{sGr}, {p.FD * 4096}')
        a(f's_add_u32 s{sM0w}, s{sM0w}, s{sT0}')
    vW = va(); p.vW = vW
    a(f'v_lshrrev_b32 v{t0}, 2, v{l}')
    a(f's_mov_b32 s{sT0}, {p.rowbytes}')
    a(f'v_mul_lo_u32 v{vW}, v{t0}, s{sT0}')
    a(f'v_and_b32 v{t0}, 3, v{l}')
    a(f'v_lshl_add_u32 v{vW}, v{t0}, 4, v{vW}')
    vL16 = va(); p.vL16 = vL16
    a(f'v_lshlrev_b32 v{vL16}, 4, v{l}')
    if p.xmode == 'row':
        vX = va(); p.vX = vX
        a(f's_and_b32 s{sT0}, s{p.sW}, 1')
        a(f's_lshl_b32 s{sT0}, s{sT0}, 2')
        a(f'v_lshrrev_b32 v{t0}, 4, v{l}')
        a(f'v_add_u32 v{t0}, s{sT0}, v{t0}')
        a(f'v_and_b32 v{t1}, 7, v{l}')
        a(f'v_xor_b32 v{t0}, v{t0}, v{t1}')
        a(f'v_lshrrev_b32 v{t1}, 3, v{l}')
        a(f'v_lshlrev_b32 v{t1}, 10, v{t1}')
        a(f'v_lshl_add_u32 v{vX}, v{t0}, 4, v{t1}')
    elif p.xmode == 'shift':
        assert G2 == 1 and p.xtile == 32768
        vSh = [[va() for g in range(4)] for T in range(TT)]
        p.vSh = vSh
        shifts = [-1, 1, -2, 2]
        a(f'v_and_b32 v{t0}, 31, v{l}')
        a(f'v_add_u32 v{t0}, s{p.sRow0}, v{t0}')
        a(f'v_lshrrev_b32 v{t1}, 5, v{l}')
        a(f'v_lshlrev_b32 v{t1}, 9, v{t1}')
        a(f's_mov_b32 s{sT0}, 2048')
        a(f's_mov_b32 s{sT1}, {hex(OOB)}')
        for T in range(TT):
            for g in range(4):
                r = vSh[T][g]
                d = 32 * T + shifts[g]
                a(f'v_add_u32 v{t2}, {d}, v{t0}')
                a(f'v_cmp_gt_u32 vcc, s{sT0}, v{t2}')
                a(f'v_lshrrev_b32 v{r}, 5, v{t2}')
                a(f'v_lshlrev_b32 v{r}, 15, v{r}')
                a(f'v_and_b32 v{t2}, 31, v{t2}')
                a(f'v_lshl_add_u32 v{r}, v{t2}, 4, v{r}')
                a(f'v_add_u32 v{r}, v{r}, v{t1}')
                a(f'v_mov_b32 v{t2}, s{sT1}')
                a(f'v_cndmask_b32 v{r}, v{t2}, v{r}, vcc')
    base = getattr(p, 'lds_base', 0)
    if p.xmode == 'row':
        vXr = [va() for s in range(4)]; p.vXr = vXr
        a(f'v_and_b32 v{t0}, 31, v{l}')
        a(f'v_lshrrev_b32 v{t1}, 1, v{t0}')
        a(f'v_and_b32 v{t1}, 7, v{t1}')
        a(f'v_lshrrev_b32 v{t2}, 5, v{l}')
        a(f'v_xor_b32 v{t1}, v{t1}, v{t2}')
        a(f'v_lshlrev_b32 v{t0}, 7, v{t0}')
        a(f's_mul_i32 s{sT0}, s{sWr}, {TW * 4096}')
        if base: a(f's_add_u32 s{sT0}, s{sT0}, {base}')
        a(f'v_add_u32 v{t0}, s{sT0}, v{t0}')
        for s in range(4):
            a(f'v_xor_b32 v{t2}, {2*s}, v{t1}')
            a(f'v_lshl_add_u32 v{vXr[s]}, v{t2}, 4, v{t0}')
    else:
        vXb = va(); p.vXb = vXb
        a(f's_mul_i32 s{sT0}, s{sWr}, {TW * 4096}')
        if base: a(f's_add_u32 s{sT0}, s{sT0}, {base}')
        a(f'v_add_u32 v{vXb}, s{sT0}, v{vL16}')
    vWb = va(); p.vWb = vWb
    a(f'v_lshrrev_b32 v{t0}, 5, v{l}')
    a(f'v_lshlrev_b32 v{t0}, 9, v{t0}')
    a(f'v_bfe_u32 v{t1}, v{l}, 2, 2')
    a(f'v_lshl_add_u32 v{t0}, v{t1}, 6, v{t0}')
    a(f'v_bfe_u32 v{t1}, v{l}, 4, 1')
    a(f'v_lshl_add_u32 v{t0}, v{t1}, 5, v{t0}')
    a(f'v_and_b32 v{t1}, 3, v{l}')
    a(f'v_lshl_add_u32 v{t0}, v{t1}, 3, v{t0}')
    a(f's_mul_i32 s{sT0}, s{sWc}, {FW * 4096}')
    a(f's_add_u32 s{sT0}, s{sT0}, {XW}')
    a(f'v_add_u32 v{vWb}, s{sT0}, v{t0}')

def gemm_main(a, va, p):
    TT, FT, WR, WC, KS, NST = p.TT, p.FT, p.WR, p.WC, p.KS, p.NST
    TW, FW, XS, WSZ = p.TW, p.FW, p.XS, p.WSZ
    NCH = (KS + 3) // 4
    sT0, sT1 = p.sT0, p.sT1
    vm = []
    p.vm = vm

    def dma_ops(c):
        st = c % NST
        ops = []
        for T in range(p.TD):
            def f(T=T):
                a(f's_add_u32 m0, s{p.sM0x}, {st * XS + T * 4096}')
                if p.xmode == 'row':
                    a(f's_add_u32 s{sT0}, s{p.sXoff}, {T * 32768 + c * 128}'); vo = p.vX
                elif p.xmode == 'shift':
                    a(f's_add_u32 s{sT0}, s{p.sXoff}, {c * 4096}'); vo = p.vSh[T][c // 2]
                else:
                    a(f's_add_u32 s{sT0}, s{p.sXoff}, {T * p.xtile + c * 4096}'); vo = p.vL16
                a(f'buffer_load_dwordx4 v{vo}, s[{p.xsrd}:{p.xsrd+3}], s{sT0} offen {p.ldflags} lds')
                vm.append(c)
            ops.append(f)
        for F in range(p.FD):
            def f(F=F):
                a(f's_add_u32 m0, s{p.sM0w}, {st * WSZ + F * 4096}')
                a(f's_add_u32 s{sT1}, s{p.sWoff}, {c * 64 * p.rowbytes + F * 64}')
                a(f'buffer_load_dwordx4 v{p.vW}, s[{sWSRD}:{sWSRD+3}], s{sT1} offen lds')
                vm.append(c)
            ops.append(f)
        return ops

    acc = [[va(16, 4) for F in range(FW)] for T in range(TW)]
    xf = [[va(4) for T in range(TW)] for b in range(2)]
    wf = [[va(4) for F in range(FW)] for b in range(2)]
    p.acc = acc
    xstats = getattr(p, 'xstats', False); wsum_on = getattr(p, 'wsum', False)
    if xstats:
        xs = [[va(), va()] for T in range(TW)]; p.xs = xs
    if wsum_on:
        wsum = [va() for F in range(FW)]; p.wsumr = wsum
    for c in range(min(NST, NCH)):
        for f in dma_ops(c): f()
    nxt = min(NST, NCH)
    pending = []
    if getattr(p, 'acc_init', None):
        p.acc_init(acc)
    else:
        for T in range(TW):
            for F in range(FW):
                for i in range(16):
                    a(f'v_mov_b32 v{acc[T][F]+i}, 0')
    if xstats:
        for T in range(TW):
            a(f'v_mov_b32 v{xs[T][0]}, 0'); a(f'v_mov_b32 v{xs[T][1]}, 0')
    if wsum_on:
        for F in range(FW):
            a(f'v_mov_b32 v{wsum[F]}, 0')
    sOnes = p.stmp + 8
    if xstats or wsum_on:
        a(f's_mov_b32 s{sOnes}, 0x3f803f80')
    if getattr(p, 'after_issue', None): p.after_issue()

    def reads(i):
        c, s = i // 4, i % 4
        st = c % NST; b = i % 2
        n = 0
        for T in range(TW):
            if p.xmode == 'row':
                a(f'ds_read_b128 {V(xf[b][T],4)}, v{p.vXr[s]} offset:{st * XS + T * 4096}')
            else:
                a(f'ds_read_b128 {V(xf[b][T],4)}, v{p.vXb} offset:{st * XS + T * 4096 + s * 1024}')
            n += 1
        for F in range(FW):
            o = st * WSZ + F * 4096 + s * 1024
            a(f'ds_read_b64_tr_b16 {V(wf[b][F],2)}, v{p.vWb} offset:{o}')
            a(f'ds_read_b64_tr_b16 {V(wf[b][F]+2,2)}, v{p.vWb} offset:{o+256}')
            n += 2
        return n

    def sync(c):
        nonlocal nxt, pending
        for f in pending: f()
        pending = []
        last = max(i for i, v in enumerate(vm) if v == c)
        n = len(vm) - 1 - last
        assert n <= 63
        a(f's_waitcnt vmcnt({n}) lgkmcnt(0)')
        a('s_barrier')
        if c >= 1 and nxt < NCH:
            pending = dma_ops(nxt); nxt += 1
        if getattr(p, 'after_sync', None): p.after_sync(c)

    def compute(i):
        nonlocal pending
        b = i % 2
        k = 0
        per = (len(pending) + 3) // 4 if pending else 0
        for T in range(TW):
            for F in range(FW):
                A_, B_ = (wf[b][F], xf[b][T]) if p.orient == 'T' else (xf[b][T], wf[b][F])
                a(f'v_mfma_f32_32x32x16_bf16 {V(acc[T][F],16)}, {V(A_,4)}, {V(B_,4)}, {V(acc[T][F],16)}')
        n = max(1, (p.TD + p.FD + 3) // 4)
        for f in pending[:n]: f()
        pending = pending[n:]
        if xstats:
            lab = None
            if WC > 1:
                lab = a.newlabel('Lxs')
                a(f's_cmp_lg_u32 s{p.sWc}, {i % WC}')
                a(f's_cbranch_scc1 {lab}')
            for T in range(TW):
                for j in range(4):
                    a(f'v_dot2_f32_bf16 v{xs[T][0]}, v{xf[b][T]+j}, s{sOnes}, v{xs[T][0]}')
                    a(f'v_dot2_f32_bf16 v{xs[T][1]}, v{xf[b][T]+j}, v{xf[b][T]+j}, v{xs[T][1]}')
            if lab: a.label(lab)
        if wsum_on:
            lab = None
            if WR > 1:
                lab = a.newlabel('Lws')
                a(f's_cmp_lg_u32 s{p.sWr}, {i % WR}')
                a(f's_cbranch_scc1 {lab}')
            for F in range(FW):
                for j in range(4):
                    a(f'v_dot2_f32_bf16 v{wsum[F]}, v{wf[b][F]+j}, s{sOnes}, v{wsum[F]}')
            if lab: a.label(lab)

    sync(0)
    stamp(a, 1)
    reads(0)
    for i in range(KS):
        if i + 1 < KS:
            if (i + 1) % 4 == 0:
                sync((i + 1) // 4)
                reads(i + 1)
            else:
                n = reads(i + 1)
                a(f's_waitcnt lgkmcnt({n})')
        else:
            a('s_waitcnt lgkmcnt(0)')
        compute(i)
    assert not pending
    stamp(a, 2)
    return acc

def gelu_scalar(a, base, n, tmp, sC1, vC2):
    for i in range(n):
        a(f'v_mul_f32 v{tmp+i}, v{base+i}, v{base+i}')
    for i in range(n):
        a(f'v_fma_f32 v{tmp+i}, v{tmp+i}, v{vC2}, s{sC1}')
    for i in range(n):
        a(f'v_mul_f32 v{tmp+i}, v{tmp+i}, v{base+i}')
    for i in range(n):
        a(f'v_exp_f32 v{tmp+i}, v{tmp+i}')
    a('s_nop 0')
    for i in range(n):
        a(f'v_add_f32 v{tmp+i}, 1.0, v{tmp+i}')
    for i in range(n):
        a(f'v_rcp_f32 v{tmp+i}, v{tmp+i}')
    a('s_nop 0')
    for i in range(n):
        a(f'v_mul_f32 v{base+i}, v{base+i}, v{tmp+i}')

def dpp_wave_sum(a, regs, tmp):
    steps = ['row_shr:1', 'row_shr:2', 'row_shr:4', 'row_shr:8', 'row_bcast:15 row_mask:0xa', 'row_bcast:31 row_mask:0xc']
    for st in steps:
        if len(regs) < 3: a('s_nop 1')
        for r in regs:
            m = st if 'row_mask' in st else st + ' row_mask:0xf'
            a(f'v_add_f32_dpp v{r}, v{r}, v{r} {m} bank_mask:0xf bound_ctrl:0' if False else f'v_add_f32_dpp v{r}, v{r}, v{r} {m} bank_mask:0xf')

def build(kernels, out):
    descs = []
    launches = []
    body = Asm()
    for fn, grid, block in kernels:
        name, nv, lds = fn(body)
        descs.append(kernel_desc(name, nv))
        launches.append(f'; @launch kernel={name} grid=({grid},1,1) block=({block},1,1) lds={lds}')
    txt = '\n'.join(launches) + '\n.amdgcn_target "amdgcn-amd-amdhsa--gfx950"\n' + body.text()
    txt += '.section .rodata,"a"\n' + ''.join('.p2align 6\n' + d for d in descs)
    open(out, 'w').write(txt)
```

```python
from core import *

ATT_BUF = 24576
ATT_LDS = 3 * ATT_BUF

def R(b, n): return V(b, n)
MF = 'v_mfma_f32_32x32x16_bf16'

def att_body(a, sId):
    va = RegAlloc(2, 256)
    sW, sHead, sTT, sKoff, sVoff, sC, sBc, sBn, sBnn, T0, T1, sM0, sFb = range(36, 49)
    sEx = 50
    sExC = 52
    vLane = 1
    wave_lane(a, sW, vLane)
    ws = f's[{sWS}:{sWS+3}]'
    a(f's_and_b32 s{T0}, s{sId}, 7')
    a(f's_lshl_b32 s{sHead}, s{T0}, 2')
    a(f's_lshr_b32 s{T0}, s{sId}, 3')
    a(f's_and_b32 s{T0}, s{T0}, 3')
    a(f's_add_u32 s{sHead}, s{sHead}, s{T0}')
    a(f's_lshr_b32 s{sTT}, s{sId}, 5')
    a(f's_lshl_b32 s{sTT}, s{sTT}, 3')
    a(f's_lshl_b32 s{T0}, s{sW}, 1')
    a(f's_add_u32 s{sTT}, s{sTT}, s{T0}')
    a(f's_mov_b32 s{sEx}, 0x0000ffff'); a(f's_mov_b32 s{sEx+1}, 0x0000ffff')
    a(f's_mov_b32 s{sExC}, 0xffff0000'); a(f's_mov_b32 s{sExC+1}, 0xffff0000')
    vL16 = va(); vVo = va(); vBc = va(); vBn = va(); t0 = va(); t1 = va()
    SA, SB, NA, NB, OA, OB = [va(16, 4) for _ in range(6)]
    P = va(8, 4); QA = va(4); QB = va(4)
    K = [va(4), va(4)]; Vv = [va(8, 4), va(8, 4)]
    a(f'v_lshlrev_b32 v{vL16}, 4, v{vLane}')
    a(f'v_and_b32 v{vVo}, 15, v{vLane}')
    a(f'v_lshlrev_b32 v{vVo}, 4, v{vVo}')
    a(f'v_lshrrev_b32 v{t0}, 5, v{vLane}')
    a(f'v_lshl_add_u32 v{vVo}, v{t0}, 8, v{vVo}')
    a(f's_lshl_b32 s{T0}, s{sTT}, 5')
    a(f's_add_u32 s{T0}, s{T0}, s{sHead}')
    a(f's_lshl_b32 s{T0}, s{T0}, 10')
    a(f'buffer_load_dwordx4 {R(QA,4)}, v{vL16}, {ws}, s{T0} offen')
    a(f's_add_u32 s{T0}, s{T0}, 32768')
    a(f'buffer_load_dwordx4 {R(QB,4)}, v{vL16}, {ws}, s{T0} offen')
    a(f's_lshl_b32 s{sKoff}, s{sW}, 6')
    a(f's_add_u32 s{sKoff}, s{sKoff}, s{sHead}')
    a(f's_lshl_b32 s{sKoff}, s{sKoff}, 10')
    a(f's_add_u32 s{sVoff}, s{sKoff}, {hex(VF)}')
    a(f's_add_u32 s{sKoff}, s{sKoff}, {hex(KF)}')

    def dma_chunk(sBuf):
        a(f's_lshl_b32 s{sM0}, s{sW}, 11')
        a(f's_add_u32 s{sM0}, s{sM0}, s{sBuf}')
        for j in range(2):
            a(f's_add_u32 m0, s{sM0}, {j*1024}')
            a(f's_add_u32 s{T0}, s{sKoff}, {j*32768}')
            a(f'buffer_load_dwordx4 v{vL16}, {ws}, s{T0} offen lds')
        a(f's_lshl_b32 s{sM0}, s{sW}, 12')
        a(f's_add_u32 s{sM0}, s{sM0}, s{sBuf}')
        a(f's_mov_b64 exec, s[{sEx}:{sEx+1}]')
        for j in range(2):
            for f in range(2):
                a(f's_add_u32 m0, s{sM0}, {8192 + j*2048 + f*1024}')
                a(f's_add_u32 s{T0}, s{sVoff}, {j*32768 + f*512}')
                a(f'buffer_load_dwordx4 v{vVo}, {ws}, s{T0} offen lds')
        a('s_mov_b64 exec, -1')
        a(f's_add_u32 s{sKoff}, s{sKoff}, {8*32768}')
        a(f's_add_u32 s{sVoff}, s{sVoff}, {8*32768}')

    a(f's_mov_b32 s{sBc}, 0'); a(f's_mov_b32 s{sBn}, {ATT_BUF}'); a(f's_mov_b32 s{sBnn}, {2*ATT_BUF}')
    dma_chunk(sBc)
    dma_chunk(sBn)
    a(f'v_and_b32 v{t0}, 31, v{vLane}')
    a(f'v_cmp_eq_u32 vcc, 16, v{t0}')
    a(f'v_mov_b32 v{t1}, 0x3f803f80')
    a('s_nop 0')
    for i in range(4):
        a(f'v_cndmask_b32 v{P+i}, 0, v{t1}, vcc')
    a(f's_lshl_b32 s{T0}, s{sW}, 12')
    a(f'v_add_u32 v{t0}, s{T0}, v{vL16}')
    a(f's_mov_b64 exec, s[{sExC}:{sExC+1}]')
    for b in range(3):
        for j in range(4):
            a(f'ds_write_b128 v{t0}, {R(P,4)} offset:{b*ATT_BUF + 8192 + j*1024}')
    a('s_mov_b64 exec, -1')
    for i in range(16):
        a(f'v_mov_b32 v{OA+i}, 0'); a(f'v_mov_b32 v{OB+i}, 0')
    for i in range(4):
        a(f'v_mov_b32 v{P+4+i}, 0')
        a(f'v_mov_b32 v{Vv[1]+4+i}, 0')
    a(f'v_mov_b32 v{vBc}, v{vL16}')
    a(f'v_add_u32 v{vBn}, {ATT_BUF}, v{vL16}')
    a(f's_mov_b32 s{sFb}, 0')
    a('s_waitcnt vmcnt(6) lgkmcnt(0)')
    a('s_barrier')
    stamp(a, 1)
    a(f'ds_read_b128 {R(K[0],4)}, v{vBc}')
    a(f'ds_read_b128 {R(K[1],4)}, v{vBc} offset:1024')
    a(f'ds_read_b128 {R(Vv[0],4)}, v{vBc} offset:8192')
    a(f'ds_read_b128 {R(Vv[0]+4,4)}, v{vBc} offset:9216')
    a('s_waitcnt lgkmcnt(3)')
    a(f'{MF} {R(SA,16)}, {R(K[0],4)}, {R(QA,4)}, 0')
    a(f'{MF} {R(SB,16)}, {R(K[0],4)}, {R(QB,4)}, 0')
    a('s_nop 10')

    def rowmax_to_neg(S_, N_):
        a(f'v_max3_f32 v{t0}, v{S_}, v{S_+1}, v{S_+2}')
        for i in range(3, 15, 2):
            a(f'v_max3_f32 v{t0}, v{t0}, v{S_+i}, v{S_+i+1}')
        a(f'v_max_f32 v{t0}, v{t0}, v{S_+15}')
        a(f'v_mov_b32 v{t1}, v{t0}')
        a('s_nop 1')
        a(f'v_permlane32_swap_b32 v{t0}, v{t1}')
        a('s_nop 1')
        a(f'v_max_f32 v{t0}, v{t0}, v{t1}')
        for i in range(16):
            a(f'v_sub_f32 v{N_+i}, 0, v{t0}')
    rowmax_to_neg(SA, NA)
    rowmax_to_neg(SB, NB)
    a('s_nop 1')
    a(f'{MF} {R(SA,16)}, {R(K[0],4)}, {R(QA,4)}, {R(NA,16)}')
    a(f's_mov_b32 s{sC}, 0')
    a('s_waitcnt lgkmcnt(0)')
    a('s_nop 8')
    a.label('att_loop')
    for t in range(8):
        Kc, Kn = K[t % 2], K[(t + 1) % 2]
        Vc, Vn = Vv[t % 2], Vv[(t + 1) % 2]
        for sub in range(2):
            cur = [SA, SB][sub]
            if sub == 0:
                qk = f'{MF} {R(SB,16)}, {R(Kc,4)}, {R(QB,4)}, {R(NB,16)}'
                pv1 = f'{MF} {R(OB,16)}, {R(Vn+4,4)}, {R(P+4,4)}, {R(OB,16)}'
            else:
                qk = f'{MF} {R(SA,16)}, {R(Kn,4)}, {R(QA,4)}, {R(NA,16)}'
                pv1 = f'{MF} {R(OA,16)}, {R(Vc+4,4)}, {R(P+4,4)}, {R(OA,16)}'
            Oc = [OA, OB][sub]
            pv0 = f'{MF} {R(Oc,16)}, {R(Vc,4)}, {R(P,4)}, {R(Oc,16)}'
            ex = [f'v_exp_f32 v{cur+i}, v{cur+i}' for i in range(16)]
            cv = [f'v_cvt_pk_bf16_f32 v{P+i}, v{cur+2*i}, v{cur+2*i+1}' for i in range(8)]
            a(qk)
            for s in ex[0:6]: a(s)
            a(pv1)
            if sub == 0:
                if t == 6:
                    l1 = a.newlabel('att_nosync');
                    a(f's_cmp_ge_u32 s{sC}, 7')
                    a(f's_cbranch_scc1 {l1}')
                    a('s_waitcnt vmcnt(0)')
                    a('s_barrier')
                    a(f's_cmp_ge_u32 s{sC}, 6')
                    a(f's_cbranch_scc1 {l1}')
                    dma_chunk(sBnn)
                    a.label(l1)
                a('s_waitcnt lgkmcnt(0)')
                kb = vBc if t + 2 < 8 else vBn
                vb = vBc if t + 1 < 8 else vBn
                a(f'ds_read_b128 {R(Kc,4)}, v{kb} offset:{((t+2)%8)*1024}')
                a(f'ds_read_b128 {R(Vn,4)}, v{vb} offset:{8192 + ((t+1)%8)*2048}')
                a(f'ds_read_b128 {R(Vn+4,4)}, v{vb} offset:{8192 + ((t+1)%8)*2048 + 1024}')
            for s in ex[6:8] + cv[0:4] + ex[8:10]: a(s)
            a(pv0)
            for s in ex[10:16] + cv[4:8]: a(s)
    a(f's_mov_b32 s{T0}, s{sBc}')
    a(f's_mov_b32 s{sBc}, s{sBn}')
    a(f's_mov_b32 s{sBn}, s{sBnn}')
    a(f's_mov_b32 s{sBnn}, s{T0}')
    a(f'v_mov_b32 v{vBc}, v{vBn}')
    a(f'v_add_u32 v{vBn}, s{sBn}, v{vL16}')
    a(f's_add_u32 s{sC}, s{sC}, 1')
    a(f's_cmp_lt_u32 s{sC}, 8')
    a('s_cbranch_scc1 att_loop')
    a(f'{MF} {R(OB,16)}, {R(Vv[1]+4,4)}, {R(P+4,4)}, {R(OB,16)}')
    stamp(a, 2)
    a('s_waitcnt lgkmcnt(0)')
    a.label('att_fin')
    a('s_nop 12')
    LA, LB = SA, SA + 2
    for L_, O_ in ((LA, OA), (LB, OB)):
        a(f'v_mov_b32 v{L_}, v{O_+8}')
        a(f'v_mov_b32 v{L_+1}, v{O_+8}')
    a('s_nop 1')
    a(f'v_permlane32_swap_b32 v{LA}, v{LA+1}')
    a(f'v_permlane32_swap_b32 v{LB}, v{LB+1}')
    lok = a.newlabel('att_ok')
    a(f's_cmp_lg_u32 s{sFb}, 0')
    a(f's_cbranch_scc1 {lok}')
    a(f'v_min_f32 v{t0}, v{LA}, v{LB}')
    a(f'v_max_f32 v{t1}, v{LA}, v{LB}')
    a(f'v_add_f32 v{SA+4}, v{LA}, v{LB}')
    a(f's_mov_b32 s{T0}, {hex(f32bits(2.0**-60))}')
    a(f's_mov_b32 s{T1}, {hex(f32bits(2.0**60))}')
    a(f'v_cmp_gt_f32 vcc, s{T0}, v{t0}')
    a(f'v_cmp_lt_f32 s[54:55], s{T1}, v{t1}')
    a(f'v_cmp_u_f32 s[56:57], v{SA+4}, v{SA+4}')
    a('s_or_b64 vcc, vcc, s[54:55]')
    a('s_or_b64 vcc, vcc, s[56:57]')
    a('s_cbranch_scc1 att_fallback')
    a.label(lok)
    a(f'v_rcp_f32 v{LA}, v{LA}')
    a(f'v_rcp_f32 v{LB}, v{LB}')
    vSt = t0
    a(f'v_and_b32 v{vSt}, 31, v{vLane}')
    a(f'v_lshlrev_b32 v{vSt}, 4, v{vSt}')
    a(f'v_lshrrev_b32 v{t1}, 5, v{vLane}')
    a(f'v_lshl_add_u32 v{vSt}, v{t1}, 3, v{vSt}')
    a(f's_lshl_b32 s{T0}, s{sTT}, 5')
    a(f's_add_u32 s{T0}, s{T0}, s{sHead}')
    a(f's_lshl_b32 s{T0}, s{T0}, 10')
    a(f's_add_u32 s{T0}, s{T0}, {hex(OF)}')
    for n, (L_, O_) in enumerate(((LA, OA), (LB, OB))):
        for i in range(8):
            a(f'v_mul_f32 v{O_+i}, v{O_+i}, v{L_}')
        for i in range(4):
            a(f'v_cvt_pk_bf16_f32 v{P+4*n+i}, v{O_+2*i}, v{O_+2*i+1}')
        if n: a(f's_add_u32 s{T0}, s{T0}, 32768')
        for q in range(2):
            a(f'buffer_store_dwordx2 {R(P+4*n+2*q,2)}, v{vSt}, {ws}, s{T0} offen offset:{q*512}')
    stamp_flush(a, 3, 1)
    a('s_endpgm')

    a.label('att_fallback')
    a(f's_mov_b32 s{sFb}, 1')
    a(f's_lshl_b32 s{sKoff}, s{sHead}, 10')
    a(f's_add_u32 s{sVoff}, s{sKoff}, {hex(VF)}')
    a(f's_add_u32 s{sKoff}, s{sKoff}, {hex(KF)}')
    mA, mB = NA, NB
    for i in range(16):
        a(f'v_mov_b32 v{mA+i}, 0xff800000'); a(f'v_mov_b32 v{mB+i}, 0xff800000')
    a(f's_mov_b32 s{sC}, 0')
    a(f's_mov_b32 s{T0}, s{sKoff}')
    a.label('att_fb1')
    a(f'buffer_load_dwordx4 {R(K[0],4)}, v{vL16}, {ws}, s{T0} offen')
    a('s_waitcnt vmcnt(0)')
    a(f'{MF} {R(SA,16)}, {R(K[0],4)}, {R(QA,4)}, 0')
    a(f'{MF} {R(SB,16)}, {R(K[0],4)}, {R(QB,4)}, 0')
    a('s_nop 12')
    for i in range(16):
        a(f'v_max_f32 v{mA+i}, v{mA+i}, v{SA+i}')
    for i in range(16):
        a(f'v_max_f32 v{mB+i}, v{mB+i}, v{SB+i}')
    a(f's_add_u32 s{T0}, s{T0}, 32768')
    a(f's_add_u32 s{sC}, s{sC}, 1')
    a(f's_cmp_lt_u32 s{sC}, 64')
    a('s_cbranch_scc1 att_fb1')
    for i in range(16):
        a(f'v_mov_b32 v{SA+i}, v{mA+i}'); a(f'v_mov_b32 v{SB+i}, v{mB+i}')
    rowmax_to_neg(SA, NA)
    rowmax_to_neg(SB, NB)
    for i in range(16):
        a(f'v_mov_b32 v{OA+i}, 0'); a(f'v_mov_b32 v{OB+i}, 0')
    a(f'v_and_b32 v{t0}, 31, v{vLane}')
    a(f'v_cmp_eq_u32 vcc, 16, v{t0}')
    a(f'v_mov_b32 v{t1}, 0x3f803f80')
    a('s_nop 0')
    for i in range(8):
        a(f'v_cndmask_b32 v{Vv[0]+i}, 0, v{t1}, vcc')
    a(f's_mov_b32 s{sC}, 0')
    a.label('att_fb2')
    a(f'buffer_load_dwordx4 {R(K[0],4)}, v{vL16}, {ws}, s{sKoff} offen')
    a(f's_mov_b64 exec, s[{sEx}:{sEx+1}]')
    a(f'buffer_load_dwordx4 {R(Vv[0],4)}, v{vVo}, {ws}, s{sVoff} offen')
    a(f'buffer_load_dwordx4 {R(Vv[0]+4,4)}, v{vVo}, {ws}, s{sVoff} offen offset:512')
    a('s_mov_b64 exec, -1')
    a('s_waitcnt vmcnt(0)')
    a(f'{MF} {R(SA,16)}, {R(K[0],4)}, {R(QA,4)}, {R(NA,16)}')
    a(f'{MF} {R(SB,16)}, {R(K[0],4)}, {R(QB,4)}, {R(NB,16)}')
    a('s_nop 12')
    for S_, O_ in ((SA, OA), (SB, OB)):
        for i in range(16):
            a(f'v_exp_f32 v{S_+i}, v{S_+i}')
        a('s_nop 0')
        for i in range(8):
            a(f'v_cvt_pk_bf16_f32 v{P+i}, v{S_+2*i}, v{S_+2*i+1}')
        a('s_nop 1')
        a(f'{MF} {R(O_,16)}, {R(Vv[0],4)}, {R(P,4)}, {R(O_,16)}')
        a(f'{MF} {R(O_,16)}, {R(Vv[0]+4,4)}, {R(P+4,4)}, {R(O_,16)}')
    a(f's_add_u32 s{sKoff}, s{sKoff}, 32768')
    a(f's_add_u32 s{sVoff}, s{sVoff}, 32768')
    a(f's_add_u32 s{sC}, s{sC}, 1')
    a(f's_cmp_lt_u32 s{sC}, 64')
    a('s_nop 7')
    a('s_nop 7')
    a('s_cbranch_scc1 att_fb2')
    a('s_branch att_fin')
    return va.hi

def att_kernel(a):
    name = 'att_kernel'
    kernel_header(a, name)
    a('s_cmp_ge_u32 s2, 256')
    a('s_cbranch_scc1 att_end')
    stamp(a, 0)
    a('s_load_dwordx2 s[34:35], s[0:1], 80')
    a('s_waitcnt lgkmcnt(0)')
    srd(a, sWS, 34, WS_BYTES)
    hi = att_body(a, 2)
    a.label('att_end')
    a('s_endpgm')
    return name, hi, ATT_LDS
```

```python
from core import *

ST_MR1, ST_R1 = ST, ST + 0x2000
SCR = 4 * 32768
G1_LDS = SCR + 16384

def unpack8(a, src, dst):
    for j in range(4):
        a(f'v_lshlrev_b32 v{dst+2*j}, 16, v{src+j}')
        a(f'v_and_b32 v{dst+2*j+1}, 0xffff0000, v{src+j}')

def g1_kernel(a):
    name = 'g1_kernel'
    kernel_header(a, name)
    a('s_cmp_ge_u32 s2, 256')
    a('s_cbranch_scc1 g1_end')
    stamp(a, 0)
    a('s_load_dwordx4 s[24:27], s[0:1], 0')
    a('s_load_dwordx2 s[28:29], s[0:1], 32')
    a('s_load_dwordx2 s[30:31], s[0:1], 48')
    a('s_load_dwordx2 s[34:35], s[0:1], 80')
    sW, sRB, sCB, sXoff, sWoff, sCol0 = 36, 37, 38, 39, 40, 41
    T0, T1, T2, T3 = 43, 44, 45, 46
    vLane = 1
    wave_lane(a, sW, vLane)
    a(f's_and_b32 s{T0}, s2, 7')
    a(f's_lshr_b32 s{T1}, s2, 3')
    a(f's_lshr_b32 s{T2}, s{T0}, 1')
    a(f's_lshl_b32 s{T2}, s{T2}, 2')
    a(f's_and_b32 s{T3}, s{T1}, 3')
    a(f's_add_u32 s{sRB}, s{T2}, s{T3}')
    a(f's_and_b32 s{T2}, s{T0}, 1')
    a(f's_lshl_b32 s{T2}, s{T2}, 3')
    a(f's_lshr_b32 s{T3}, s{T1}, 2')
    a(f's_add_u32 s{sCB}, s{T2}, s{T3}')
    a('s_waitcnt lgkmcnt(0)')
    srd(a, sXSRD, 24, 2048 * 1024)
    srd(a, sWS, 34, WS_BYTES)
    srd(a, sAUX, 30, 512 * 2752)
    a(f's_lshl_b32 s{sXoff}, s{sRB}, 17')
    a(f's_lshl_b32 s{T0}, s{sW}, 13')
    a(f's_add_u32 s{sXoff}, s{sXoff}, s{T0}')
    a(f's_cmp_ge_u32 s{sCB}, 12')
    a('s_cbranch_scc1 g1_w1')
    srd(a, sWSRD, 26, 512 * 3072)
    a(f's_lshl_b32 s{sCol0}, s{sCB}, 8')
    a(f's_cmp_ge_u32 s{sCB}, 8')
    a('s_cbranch_scc1 g1_v')
    hi = 0
    for kind in ('qk', 'v', 'w1'):
        if kind == 'v': a.label('g1_v')
        if kind == 'w1':
            a.label('g1_w1')
            srd(a, sWSRD, 28, 512 * 1024)
            a(f's_sub_u32 s{sCol0}, s{sCB}, 12')
            a(f's_lshl_b32 s{sCol0}, s{sCol0}, 8')
        va = RegAlloc(2, 256)
        p = G()
        p.TT, p.FT, p.WR, p.WC, p.KS, p.NST = 4, 4, 2, 2, 32, 4
        p.xmode = 'row'; p.rowbytes = 1024 if kind == 'w1' else 3072
        p.orient = 'N' if kind == 'v' else 'T'
        p.xstats = True; p.wsum = True
        p.sW, p.sXoff, p.sWoff, p.vLane, p.xsrd, p.ldflags, p.stmp = sW, sXoff, sWoff, vLane, sXSRD, '', 48
        p.xtile = 32768
        a(f's_mul_i32 s{sWoff}, s{sW}, {16 * p.rowbytes}')
        a(f's_add_u32 s{sWoff}, s{sWoff}, s{sCol0}')
        gemm_setup(a, va, p)
        l3 = [va(4), va(4)]; u = va(8, 4); tA = va(); tB = va()

        def after_issue():
            lab = a.newlabel('Lz')
            a('s_cmp_lg_u32 s2, 255')
            a(f's_cbranch_scc1 {lab}')
            a(f'v_lshlrev_b32 v{tA}, 5, v0')
            a(f'v_mov_b32 v{tB}, 0')
            a(f's_mov_b32 s{T0}, {hex(FLG)}')
            a(f'buffer_store_dword v{tB}, v{tA}, s[{sWS}:{sWS+3}], s{T0} offen')
            a.label(lab)
            a(f's_and_b32 s{T0}, s2, 15')
            a(f's_mul_i32 s{T0}, s{T0}, {32 * 2752}')
            a(f's_lshr_b32 s{T1}, s2, 4')
            a(f's_min_u32 s{T1}, s{T1}, 10')
            a(f's_lshl_b32 s{T1}, s{T1}, 8')
            a(f's_add_u32 s{T0}, s{T0}, s{T1}')
            a(f'v_lshrrev_b32 v{tA}, 4, v0')
            a(f's_mov_b32 s{T1}, 2752')
            a(f'v_mul_lo_u32 v{tA}, v{tA}, s{T1}')
            a(f'v_and_b32 v{tB}, 15, v0')
            a(f'v_lshl_add_u32 v{tA}, v{tB}, 4, v{tA}')
            a(f'buffer_load_dwordx4 {V(l3[0],4)}, v{tA}, s[{sAUX}:{sAUX+3}], s{T0} offen')
            a(f's_add_u32 s{T0}, s{T0}, {16 * 2752}')
            a(f'buffer_load_dwordx4 {V(l3[1],4)}, v{tA}, s[{sAUX}:{sAUX+3}], s{T0} offen')
            p.vm.append('x'); p.vm.append('x')
        p.after_issue = after_issue

        def after_sync(c):
            if c == 4:
                a(f'v_lshrrev_b32 v{tA}, 4, v0')
                a(f'v_lshlrev_b32 v{tA}, 9, v{tA}')
                a(f'v_and_b32 v{tB}, 15, v0')
                a(f'v_lshl_add_u32 v{tA}, v{tB}, 5, v{tA}')
                a(f'v_add_u32 v{tA}, {SCR}, v{tA}')
                for hf in range(2):
                    unpack8(a, l3[hf], u)
                    a(f'ds_write_b128 v{tA}, {V(u,4)} offset:{hf*8192}')
                    a(f'ds_write_b128 v{tA}, {V(u+4,4)} offset:{hf*8192+16}')
            if c == 5:
                lab = a.newlabel('Lc3')
                a(f's_cmp_ge_u32 s{sW}, 2')
                a(f's_cbranch_scc1 {lab}')
                a('s_cmp_ge_u32 s2, 176')
                a(f's_cbranch_scc1 {lab}')
                a(f'v_lshlrev_b32 v{tA}, 2, v0')
                a(f'v_add_u32 v{tB}, {SCR}, v{tA}')
                acc_ = l3[0]
                for blk in range(4):
                    for r in range(8):
                        a(f'ds_read_b32 v{u+r}, v{tB} offset:{(blk*8+r)*512}')
                    a('s_waitcnt lgkmcnt(0)')
                    for r in range(8):
                        if blk == 0 and r == 0: a(f'v_mov_b32 v{acc_}, v{u}')
                        else: a(f'v_add_f32 v{acc_}, v{acc_}, v{u+r}')
                a(f's_and_b32 s{T0}, s2, 15')
                a(f's_mul_i32 s{T0}, s{T0}, {1408 * 4}')
                a(f's_lshr_b32 s{T1}, s2, 4')
                a(f's_lshl_b32 s{T1}, s{T1}, 9')
                a(f's_add_u32 s{T0}, s{T0}, s{T1}')
                a(f's_add_u32 s{T0}, s{T0}, {hex(CS3)}')
                a(f'buffer_store_dword v{acc_}, v{tA}, s[{sWS}:{sWS+3}], s{T0} offen')
                a.label(lab)
        p.after_sync = after_sync
        acc = gemm_main(a, va, p)
        g1_epilogue(a, va, p, acc, kind, sRB, sCB, (T0, T1, T2, T3))
        stamp_flush(a, 3, 0)
        a('s_endpgm')
        hi = max(hi, va.hi)
    a.label('g1_end')
    a('s_endpgm')
    return name, hi, G1_LDS

def ln_scalars(a, mean, ex2, q, n):
    var, m1, s1, rs = q[0], q[1], q[2], q[3]
    a(f'v_mul_f32 v{mean}, {hex(f32bits(1/n))}, v{mean}')
    a(f'v_mul_f32 v{ex2}, {hex(f32bits(1/n))}, v{ex2}')
    a(f'v_fma_f32 v{var}, -v{mean}, v{mean}, v{ex2}')
    a(f'v_max_f32 v{var}, 0, v{var}')
    a(f'v_mov_b32 v{m1}, v{mean}'); bf16_round(a, m1)
    a(f'v_mov_b32 v{s1}, v{var}'); bf16_round(a, s1)
    a(f'v_add_f32 v{s1}, {hex(f32bits(EPS))}, v{s1}'); bf16_round(a, s1)
    a(f'v_sqrt_f32 v{s1}, v{s1}'); a('s_nop 0'); bf16_round(a, s1)
    a(f'v_rcp_f32 v{rs}, v{s1}'); a('s_nop 0')

def ln_finalize(a, va, p, mode, sQ, sRB, sCB, T):
    T0, T1, T2, T3 = T
    t0, t1, t2 = p.t
    TW, FW = p.TW, p.FW
    m = va.mark()
    a('s_barrier')
    vL4 = va()
    a(f'v_lshlrev_b32 v{vL4}, 2, v{p.vLane}')
    a(f's_mul_i32 s{T0}, s{p.sWc}, {p.TT}')
    a(f's_mul_i32 s{T1}, s{p.sWr}, {TW}')
    a(f's_add_u32 s{T0}, s{T0}, s{T1}')
    a(f's_lshl_b32 s{T0}, s{T0}, 9')
    a(f'v_add_u32 v{t0}, s{T0}, v{vL4}')
    a('s_nop 1')
    for Tt in range(TW):
        for wh in range(2):
            a(f'ds_write_b32 v{t0}, v{p.xs[Tt][wh]} offset:{(Tt*2+wh)*256}')
    a(f's_mul_i32 s{T0}, s{p.sWr}, {p.FT}')
    a(f's_mul_i32 s{T1}, s{p.sWc}, {FW}')
    a(f's_add_u32 s{T0}, s{T0}, s{T1}')
    a(f's_lshl_b32 s{T0}, s{T0}, 8')
    a(f'v_add_u32 v{t0}, s{T0}, v{vL4}')
    for F in range(FW):
        a(f'ds_write_b32 v{t0}, v{p.wsumr[F]} offset:{4096 + F*256}')
    a('s_waitcnt lgkmcnt(0)')
    a('s_barrier')
    lf = a.newlabel('Lfeat'); ld = a.newlabel('Ldone')
    a(f's_cmp_ge_u32 s{p.sW}, 2')
    a(f's_cbranch_scc1 {lf}')
    q = [va() for _ in range(8)]
    z = [va() for _ in range(6)]
    a(f'v_lshrrev_b32 v{t0}, 5, v0')
    a(f'v_lshlrev_b32 v{t0}, 9, v{t0}')
    a(f'v_and_b32 v{t1}, 31, v0')
    a(f'v_lshl_add_u32 v{t0}, v{t1}, 2, v{t0}')
    k = 0
    for wh in range(2):
        for wc in range(p.WC):
            for h in range(2):
                a(f'ds_read_b32 v{q[k]}, v{t0} offset:{wc*p.TT*512 + wh*256 + h*128}'); k += 1
    a('s_waitcnt lgkmcnt(0)')
    npart = 2 * p.WC
    for wh in range(2):
        b = q[wh * npart]
        for j in range(1, npart):
            a(f'v_add_f32 v{b}, v{b}, v{q[wh*npart+j]}')
    mean, ex2 = q[0], q[npart]
    ln_scalars(a, mean, ex2, z, 512)
    var, m1, s1, rs, m2, s2 = z
    if mode == 'ln2':
        ls = a.newlabel('Lst')
        a(f's_cmp_lg_u32 s{sCB}, 12')
        a(f's_cbranch_scc1 {ls}')
        a(f's_lshl_b32 s{T0}, s{sRB}, 9')
        a(f's_add_u32 s{T0}, s{T0}, {hex(ST_MR1)}')
        a(f'v_lshlrev_b32 v{t1}, 2, v0')
        a(f'v_mul_f32 v{m2}, v{m1}, v{rs}')
        a(f'v_sub_f32 v{m2}, 0, v{m2}')
        a(f'buffer_store_dword v{m2}, v{t1}, s[{sWS}:{sWS+3}], s{T0} offen')
        a(f's_add_u32 s{T0}, s{T0}, 0x2000')
        a(f'buffer_store_dword v{rs}, v{t1}, s[{sWS}:{sWS+3}], s{T0} offen')
        a.label(ls)
        a(f'v_sub_f32 v{m2}, v{mean}, v{m1}')
        a(f'v_mul_f32 v{m2}, v{m2}, v{rs}'); bf16_round(a, m2)
        a(f'v_mul_f32 v{s2}, v{var}, v{rs}')
        a(f'v_mul_f32 v{s2}, v{s2}, v{rs}'); bf16_round(a, s2)
        a(f'v_add_f32 v{s2}, {hex(f32bits(EPS))}, v{s2}'); bf16_round(a, s2)
        a(f'v_sqrt_f32 v{s2}, v{s2}'); a('s_nop 0'); bf16_round(a, s2)
        a(f'v_rcp_f32 v{s2}, v{s2}'); a('s_nop 0')
        a(f'v_fma_f32 v{m1}, v{m2}, v{s1}, v{m1}')
        a(f'v_mul_f32 v{q[1]}, v{rs}, v{s2}')
        rs = q[1]
    if sQ is not None:
        a(f'v_mul_f32 v{rs}, s{sQ}, v{rs}')
    a(f'v_mul_f32 v{m1}, v{m1}, v{rs}')
    a(f'v_sub_f32 v{m1}, 0, v{m1}')
    a(f'v_lshlrev_b32 v{t1}, 2, v0')
    a(f'ds_write_b32 v{t1}, v{m1} offset:8192')
    a(f'ds_write_b32 v{t1}, v{rs} offset:8704')
    a(f's_branch {ld}')
    a.label(lf)
    a(f'v_subrev_u32 v{t2}, 128, v0')
    a(f'v_lshrrev_b32 v{t0}, 5, v{t2}')
    a(f'v_lshlrev_b32 v{t0}, 8, v{t0}')
    a(f'v_and_b32 v{t1}, 31, v{t2}')
    a(f'v_lshl_add_u32 v{t0}, v{t1}, 2, v{t0}')
    k = 0
    for wr in range(p.WR):
        for h in range(2):
            a(f'ds_read_b32 v{q[k]}, v{t0} offset:{4096 + wr*p.FT*256 + h*128}'); k += 1
    a('s_waitcnt lgkmcnt(0)')
    for j in range(1, k):
        a(f'v_add_f32 v{q[0]}, v{q[0]}, v{q[j]}')
    a(f'v_lshlrev_b32 v{t1}, 2, v{t2}')
    a(f'ds_write_b32 v{t1}, v{q[0]} offset:9216')
    a.label(ld)
    a('s_waitcnt lgkmcnt(0)')
    a('s_barrier')
    va.release(m)

def g1_epilogue(a, va, p, acc, kind, sRB, sCB, T):
    T0, T1, T2, T3 = T
    t0, t1, t2 = p.t
    TW, FW = 2, 2
    sQ = None
    if kind == 'qk':
        sQ = T2
        a(f's_mov_b32 s{T2}, 1.0')
        a(f's_mov_b32 s{T3}, {hex(f32bits(QSCALE))}')
        a(f's_cmp_lt_u32 s{sCB}, 4')
        a(f's_cselect_b32 s{T2}, s{T3}, s{T2}')
    ln_finalize(a, va, p, 'ln2' if kind == 'w1' else 'ln1', sQ, sRB, sCB, T)
    l = p.vLane
    vec = va(16, 4); vec2 = va(16, 4)
    sc = [va(), va(), va(), va()]
    tmp = va(16, 4)
    pk = [va(8, 4), va(8, 4)]
    ws = f's[{sWS}:{sWS+3}]'
    a(f'v_and_b32 v{t0}, 31, v{l}')
    a(f'v_lshlrev_b32 v{t0}, 2, v{t0}')
    a(f'v_lshrrev_b32 v{t1}, 5, v{l}')
    a(f'v_lshlrev_b32 v{t1}, 4, v{t1}')
    vSt = va()
    a(f's_lshl_b32 s{T0}, s{sRB}, 2')
    a(f's_lshl_b32 s{T1}, s{p.sWr}, 1')
    a(f's_add_u32 s{T0}, s{T0}, s{T1}')
    a(f's_lshl_b32 s{T0}, s{T0}, 5')
    a(f's_and_b32 s{T1}, s{sCB}, 3')
    a(f's_lshl_b32 s{T1}, s{T1}, 3')
    a(f's_add_u32 s{T0}, s{T0}, s{T1}')
    a(f's_lshl_b32 s{T1}, s{p.sWc}, 2')
    a(f's_add_u32 s{T0}, s{T0}, s{T1}')
    a(f's_lshl_b32 s{T0}, s{T0}, 10')
    a(f's_lshr_b32 s{T1}, s{sCB}, 2')
    a(f's_lshl_b32 s{T1}, s{T1}, 21')
    a(f's_add_u32 s{T0}, s{T0}, s{T1}')
    n = 0
    if kind != 'v':
        if kind == 'w1':
            vC2 = va()
            a(f'v_mov_b32 v{vC2}, {hex(f32bits(GC2))}')
            a(f's_mov_b32 s{T2}, {hex(f32bits(GC1))}')
        a(f'v_and_b32 v{vSt}, 31, v{l}')
        a(f'v_lshlrev_b32 v{vSt}, 4, v{vSt}')
        a(f'v_lshrrev_b32 v{t2}, 5, v{l}')
        a(f'v_lshl_add_u32 v{vSt}, v{t2}, 3, v{vSt}')
        a(f's_lshl_b32 s{T1}, s{p.sWr}, 8')
        a(f'v_add_u32 v{t0}, s{T1}, v{t0}')
        a(f's_lshl_b32 s{T1}, s{p.sWc}, 8')
        a(f'v_add_u32 v{t1}, s{T1}, v{t1}')
        cs = [vec, vec2]
        for F in range(FW):
            for q in range(4):
                a(f'ds_read_b128 {V(cs[F]+4*q,4)}, v{t1} offset:{9216 + F*128 + q*32}')
        for Tt in range(TW):
            a(f'ds_read_b32 v{sc[2*Tt]}, v{t0} offset:{8192 + Tt*128}')
            a(f'ds_read_b32 v{sc[2*Tt+1]}, v{t0} offset:{8704 + Tt*128}')
        a('s_waitcnt lgkmcnt(0)')
        for Tt in range(TW):
            for F in range(FW):
                ac = acc[Tt][F]
                for i in range(16):
                    a(f'v_mul_f32 v{ac+i}, v{ac+i}, v{sc[2*Tt+1]}')
                for i in range(16):
                    a(f'v_fma_f32 v{ac+i}, v{sc[2*Tt]}, v{cs[F]+i}, v{ac+i}')
                if kind == 'w1':
                    gelu_scalar(a, ac, 16, tmp, T2, vC2)
                pp = pk[n % 2]; n += 1
                for i in range(8):
                    a(f'v_cvt_pk_bf16_f32 v{pp+i}, v{ac+2*i}, v{ac+2*i+1}')
                a(f's_add_u32 s{T1}, s{T0}, {Tt*32768 + F*2048}')
                for q in range(4):
                    a(f'buffer_store_dwordx2 {V(pp+2*q,2)}, v{vSt}, {ws}, s{T1} offen offset:{q*512}')
    else:
        a(f'v_and_b32 v{vSt}, 15, v{l}')
        a(f'v_lshlrev_b32 v{vSt}, 4, v{vSt}')
        a(f'v_lshrrev_b32 v{t2}, 5, v{l}')
        a(f'v_lshl_add_u32 v{vSt}, v{t2}, 8, v{vSt}')
        a(f'v_bfe_u32 v{t2}, v{l}, 4, 1')
        a(f'v_lshl_add_u32 v{vSt}, v{t2}, 10, v{vSt}')
        a(f's_lshl_b32 s{T1}, s{p.sWc}, 8')
        a(f'v_add_u32 v{t0}, s{T1}, v{t0}')
        a(f's_lshl_b32 s{T1}, s{p.sWr}, 8')
        a(f'v_add_u32 v{t1}, s{T1}, v{t1}')
        for F in range(FW):
            a(f'ds_read_b32 v{sc[F]}, v{t0} offset:{9216 + F*128}')
        for Tt in range(TW):
            for q in range(4):
                a(f'ds_read_b128 {V(vec+4*q,4)}, v{t1} offset:{8192 + Tt*128 + q*32}')
                a(f'ds_read_b128 {V(vec2+4*q,4)}, v{t1} offset:{8704 + Tt*128 + q*32}')
            a('s_waitcnt lgkmcnt(0)')
            for F in range(FW):
                ac = acc[Tt][F]
                for i in range(16):
                    a(f'v_mul_f32 v{ac+i}, v{ac+i}, v{vec2+i}')
                for i in range(16):
                    a(f'v_fma_f32 v{ac+i}, v{vec+i}, v{sc[F]}, v{ac+i}')
                pp = pk[n % 2]; n += 1
                for i in range(8):
                    a(f'v_cvt_pk_bf16_f32 v{pp+i}, v{ac+2*i}, v{ac+2*i+1}')
                a(f's_add_u32 s{T1}, s{T0}, {Tt*32768 + F*2048}')
                for f in range(2):
                    a(f'buffer_store_dwordx4 {V(pp+4*f,4)}, v{vSt}, {ws}, s{T1} offen offset:{f*512}')
```

```python
from core import *
from k_g1 import ST_MR1, ST_R1, ln_scalars

sW, sRB, sCB, sXoff, sWoff, sRow0 = 36, 37, 38, 39, 40, 41
T0, T1, T2, T3 = 43, 44, 45, 46
ws = f's[{sWS}:{sWS+3}]'

def load_ptrs(a):
    a('s_load_dwordx2 s[24:25], s[0:1], 0')
    a('s_load_dwordx2 s[26:27], s[0:1], 16')
    a('s_load_dwordx4 s[28:31], s[0:1], 40')
    a('s_load_dwordx2 s[32:33], s[0:1], 56')
    a('s_load_dwordx2 s[58:59], s[0:1], 64')
    a('s_load_dwordx2 s[34:35], s[0:1], 80')

def lane_store_off(a, v, l, t):
    a(f'v_and_b32 v{v}, 31, v{l}')
    a(f'v_lshlrev_b32 v{v}, 4, v{v}')
    a(f'v_lshrrev_b32 v{t}, 5, v{l}')
    a(f'v_lshl_add_u32 v{v}, v{t}, 3, v{v}')

def map_64x64(a, sId):
    a(f's_and_b32 s{T0}, s{sId}, 7')
    a(f's_lshr_b32 s{T1}, s{sId}, 3')
    a(f's_lshl_b32 s{sRB}, s{T0}, 2')
    a(f's_and_b32 s{T2}, s{T1}, 3')
    a(f's_add_u32 s{sRB}, s{sRB}, s{T2}')
    a(f's_lshr_b32 s{sCB}, s{T1}, 2')

def x_rowmajor_loads(a, va, p, l, srdn):
    t0, t1, t2 = p.t
    xr = va(8, 4)
    vo = va()
    a(f'v_and_b32 v{vo}, 31, v{l}')
    a(f'v_lshlrev_b32 v{vo}, 10, v{vo}')
    a(f'v_lshrrev_b32 v{t0}, 5, v{l}')
    a(f'v_lshl_add_u32 v{vo}, v{t0}, 3, v{vo}')
    a(f's_lshl_b32 s{T0}, s{sRB}, 16')
    a(f's_lshl_b32 s{T1}, s{p.sWr}, 15')
    a(f's_add_u32 s{T0}, s{T0}, s{T1}')
    a(f's_lshl_b32 s{T1}, s{sCB}, 7')
    a(f's_add_u32 s{T0}, s{T0}, s{T1}')
    a(f's_lshl_b32 s{T1}, s{p.sWc}, 6')
    a(f's_add_u32 s{T0}, s{T0}, s{T1}')
    for q in range(4):
        a(f'buffer_load_dwordx2 {V(xr+2*q,2)}, v{vo}, s[{srdn}:{srdn+3}], s{T0} offen offset:{q*16}')
    return xr, vo

def frag_tile_off(a, sDst, p, base, nks):
    a(f's_lshl_b32 s{sDst}, s{sRB}, 1')
    a(f's_add_u32 s{sDst}, s{sDst}, s{p.sWr}')
    a(f's_mul_i32 s{sDst}, s{sDst}, {nks}')
    a(f's_lshl_b32 s{T3}, s{sCB}, 2')
    a(f's_add_u32 s{sDst}, s{sDst}, s{T3}')
    a(f's_lshl_b32 s{T3}, s{p.sWc}, 1')
    a(f's_add_u32 s{sDst}, s{sDst}, s{T3}')
    a(f's_lshl_b32 s{sDst}, s{sDst}, 10')
    a(f's_add_u32 s{sDst}, s{sDst}, {hex(base)}')

def base_params(vLane):
    p = G()
    p.sW, p.sXoff, p.sWoff, p.vLane, p.stmp = sW, sXoff, sWoff, vLane, 48
    p.xsrd = sWS; p.ldflags = ''; p.orient = 'T'; p.sRow0 = sRow0
    return p

def g2_body(a, va, sId, stf='', ldf=''):
    vLane = 1
    map_64x64(a, sId)
    srd(a, sWSRD, 28, 512 * 1024)
    srd(a, sAUX, 24, 2048 * 1024)
    p = base_params(vLane)
    p.TT, p.FT, p.WR, p.WC, p.KS, p.NST = 2, 2, 2, 2, 32, 4
    p.xmode = 'shift'; p.rowbytes = 1024; p.xtile = 32768
    a(f's_lshl_b32 s{sRow0}, s{sRB}, 6')
    a(f's_lshl_b32 s{sXoff}, s{sW}, 10')
    a(f's_add_u32 s{sXoff}, s{sXoff}, {hex(HF)}')
    a(f's_lshl_b32 s{sWoff}, s{sW}, 14')
    a(f's_lshl_b32 s{T0}, s{sCB}, 7')
    a(f's_add_u32 s{sWoff}, s{sWoff}, s{T0}')
    gemm_setup(a, va, p)
    t0, t1, t2 = p.t
    xr, vo = x_rowmajor_loads(a, va, p, vLane, sAUX)
    mr = va(); rr = va()
    a(f'v_and_b32 v{t0}, 31, v{vLane}')
    a(f'v_lshlrev_b32 v{t0}, 2, v{t0}')
    a(f's_lshl_b32 s{T0}, s{sRB}, 8')
    a(f's_lshl_b32 s{T1}, s{p.sWr}, 7')
    a(f's_add_u32 s{T0}, s{T0}, s{T1}')
    a(f's_add_u32 s{T0}, s{T0}, {hex(ST_MR1)}')
    a(f'buffer_load_dword v{mr}, v{t0}, {ws}, s{T0} offen')
    a(f's_add_u32 s{T0}, s{T0}, 0x2000')
    a(f'buffer_load_dword v{rr}, v{t0}, {ws}, s{T0} offen')
    acc = gemm_main(a, va, p)
    ac = acc[0][0]
    xf = va(16, 4); pk = va(8, 4); vSt = va(); s1 = va(); s2 = va(); s1b = va(); s2b = va()
    for j in range(8):
        a(f'v_lshlrev_b32 v{xf+2*j}, 16, v{xr+j}')
        a(f'v_and_b32 v{xf+2*j+1}, 0xffff0000, v{xr+j}')
    for i in range(16):
        a(f'v_fma_f32 v{xf+i}, v{xf+i}, v{rr}, v{mr}')
    lane_store_off(a, vSt, vLane, t0)
    frag_tile_off(a, T0, p, X1F, 32)
    for i in range(16):
        a(f'v_add_f32 v{ac+i}, v{ac+i}, v{xf+i}')
    for i in range(8):
        a(f'v_cvt_pk_bf16_f32 v{pk+i}, v{ac+2*i}, v{ac+2*i+1}')
    for q in range(4):
        a(f'buffer_store_dwordx2 {V(pk+2*q,2)}, v{vSt}, {ws}, s{T0} offen offset:{q*512} {stf}')
    for j in range(8):
        a(f'v_lshlrev_b32 v{xf+2*j}, 16, v{pk+j}')
        a(f'v_and_b32 v{xf+2*j+1}, 0xffff0000, v{pk+j}')
    a(f'v_add_f32 v{s1}, v{xf}, v{xf+1}')
    a(f'v_mul_f32 v{s2}, v{xf}, v{xf}')
    a(f'v_fma_f32 v{s2}, v{xf+1}, v{xf+1}, v{s2}')
    for i in range(2, 16):
        a(f'v_add_f32 v{s1}, v{s1}, v{xf+i}')
        a(f'v_fma_f32 v{s2}, v{xf+i}, v{xf+i}, v{s2}')
    a(f'v_mov_b32 v{s1b}, v{s1}'); a(f'v_mov_b32 v{s2b}, v{s2}')
    a('s_nop 1')
    a(f'v_permlane32_swap_b32 v{s1}, v{s1b}')
    a(f'v_permlane32_swap_b32 v{s2}, v{s2b}')
    a('s_nop 1')
    pr = va(2)
    a(f'v_add_f32 v{pr}, v{s1}, v{s1b}')
    a(f'v_add_f32 v{pr+1}, v{s2}, v{s2b}')
    a(f's_lshl_b32 s{T0}, s{sCB}, 1')
    a(f's_add_u32 s{T0}, s{T0}, s{p.sWc}')
    a(f's_lshl_b32 s{T0}, s{T0}, 14')
    a(f's_lshl_b32 s{T1}, s{sRB}, 9')
    a(f's_add_u32 s{T0}, s{T0}, s{T1}')
    a(f's_lshl_b32 s{T1}, s{p.sWr}, 8')
    a(f's_add_u32 s{T0}, s{T0}, s{T1}')
    a(f's_add_u32 s{T0}, s{T0}, {hex(PS)}')
    a(f'v_lshlrev_b32 v{t0}, 3, v{vLane}')
    a('s_mov_b32 exec_hi, 0')
    a(f'buffer_store_dwordx2 {V(pr,2)}, v{t0}, {ws}, s{T0} offen {stf}')
    a('s_mov_b64 exec, -1')
    return p.lds_bytes

def g3_body(a, va, sId, stf='', ldf='', endlabel=None):
    vLane = 1
    a(f's_and_b32 s{T0}, s{sId}, 7')
    a(f's_lshr_b32 s{T1}, s{sId}, 3')
    a(f's_lshl_b32 s{sRB}, s{T0}, 1')
    a(f's_and_b32 s{T2}, s{T1}, 1')
    a(f's_add_u32 s{sRB}, s{sRB}, s{T2}')
    a(f's_lshr_b32 s{sCB}, s{T1}, 1')
    a(f's_cmp_ge_u32 s{sCB}, 15')
    a(f's_cbranch_scc1 {endlabel}')
    srd(a, sWSRD, 30, 512 * 2752)
    p = base_params(vLane)
    p.TT, p.FT, p.WR, p.WC, p.KS, p.NST = 4, 3, 4, 1, 32, 2
    p.xmode = 'frag'; p.rowbytes = 2752; p.xtile = 32768; p.ldflags = ldf
    a(f's_lshl_b32 s{sXoff}, s{sRB}, 17')
    a(f's_lshl_b32 s{T0}, s{sW}, 10')
    a(f's_add_u32 s{sXoff}, s{sXoff}, s{T0}')
    a(f's_add_u32 s{sXoff}, s{sXoff}, {hex(X1F)}')
    a(f's_mul_i32 s{sWoff}, s{sW}, {16 * 2752}')
    a(f's_mul_i32 s{T0}, s{sCB}, 192')
    a(f's_add_u32 s{sWoff}, s{sWoff}, s{T0}')
    gemm_setup(a, va, p)
    t0, t1, t2 = p.t
    ps = va(16, 4)
    a(f'v_and_b32 v{t0}, 31, v{vLane}')
    a(f'v_lshlrev_b32 v{t0}, 3, v{t0}')
    a(f'v_lshrrev_b32 v{t1}, 5, v{vLane}')
    a(f'v_lshl_add_u32 v{t0}, v{t1}, 17, v{t0}')
    a(f's_lshl_b32 s{T0}, s{sRB}, 10')
    a(f's_lshl_b32 s{T1}, s{sW}, 8')
    a(f's_add_u32 s{T0}, s{T0}, s{T1}')
    a(f's_add_u32 s{T0}, s{T0}, {hex(PS)}')
    for f in range(8):
        a(f'buffer_load_dwordx2 {V(ps+2*f,2)}, v{t0}, {ws}, s{T0} offen {ldf}')
        a(f's_add_u32 s{T0}, s{T0}, 16384')
    CSL = p.lds_bytes
    cp = va(16, 4)
    a(f'v_lshlrev_b32 v{t1}, 2, v0')
    a(f's_mul_i32 s{T0}, s{sCB}, 384')
    a(f's_add_u32 s{T0}, s{T0}, {hex(CS3)}')
    for k in range(16):
        a(f'buffer_load_dword v{cp+k}, v{t1}, {ws}, s{T0} offen')
        a(f's_add_u32 s{T0}, s{T0}, {1408*4}')
    mr = va(); rr = va(); z = [va() for _ in range(4)]
    def after_issue():
        a(f's_waitcnt vmcnt({len(p.vm)})')
        for k in range(1, 16):
            a(f'v_add_f32 v{cp}, v{cp}, v{cp+k}')
        a(f'v_add_u32 v{t1}, {CSL}, v{t1}')
        a(f'ds_write_b32 v{t1}, v{cp}')
        for f in range(1, 8):
            a(f'v_add_f32 v{ps}, v{ps}, v{ps+2*f}')
            a(f'v_add_f32 v{ps+1}, v{ps+1}, v{ps+2*f+1}')
        a(f'v_mov_b32 v{ps+2}, v{ps}'); a(f'v_mov_b32 v{ps+3}, v{ps+1}')
        a('s_nop 1')
        a(f'v_permlane32_swap_b32 v{ps}, v{ps+2}')
        a(f'v_permlane32_swap_b32 v{ps+1}, v{ps+3}')
        a('s_nop 1')
        a(f'v_add_f32 v{ps}, v{ps}, v{ps+2}')
        a(f'v_add_f32 v{ps+1}, v{ps+1}, v{ps+3}')
        ln_scalars(a, ps, ps + 1, z, 512)
        a(f'v_mov_b32 v{rr}, v{z[3]}')
        a(f'v_mul_f32 v{mr}, v{z[1]}, v{z[3]}')
        a(f'v_sub_f32 v{mr}, 0, v{mr}')
    p.after_issue = after_issue
    acc = gemm_main(a, va, p)
    tmp = ps; cs = cp
    pk = [va(8, 4), va(8, 4)]; vSt = va(); vC2 = va()
    lane_store_off(a, vSt, vLane, t0)
    a(f'v_mov_b32 v{vC2}, {hex(f32bits(GC2))}')
    a(f's_mov_b32 s{T2}, {hex(f32bits(GC1))}')
    a(f'v_lshrrev_b32 v{t1}, 5, v{vLane}')
    a(f'v_lshlrev_b32 v{t1}, 4, v{t1}')
    a(f'v_add_u32 v{t1}, {CSL}, v{t1}')
    a(f's_lshl_b32 s{T0}, s{sRB}, 2')
    a(f's_add_u32 s{T0}, s{T0}, s{sW}')
    a(f's_mul_i32 s{T0}, s{T0}, 86')
    a(f's_mul_i32 s{T1}, s{sCB}, 6')
    a(f's_add_u32 s{T0}, s{T0}, s{T1}')
    a(f's_lshl_b32 s{T0}, s{T0}, 10')
    a(f's_add_u32 s{T0}, s{T0}, {hex(H3F)}')
    lskip = a.newlabel('g3_skip')
    for F in range(3):
        if F == 1:
            a(f's_cmp_eq_u32 s{sCB}, 14')
            a(f's_cbranch_scc1 {lskip}')
        for q in range(4):
            a(f'ds_read_b128 {V(cs+4*q,4)}, v{t1} offset:{F*128 + q*32}')
        ac = acc[0][F]
        if F == 0: a('s_nop 4')
        for i in range(16):
            a(f'v_mul_f32 v{ac+i}, v{ac+i}, v{rr}')
        a('s_waitcnt lgkmcnt(0)')
        for i in range(16):
            a(f'v_fma_f32 v{ac+i}, v{mr}, v{cs+i}, v{ac+i}')
        gelu_scalar(a, ac, 16, tmp, T2, vC2)
        pp = pk[F % 2]
        for i in range(8):
            a(f'v_cvt_pk_bf16_f32 v{pp+i}, v{ac+2*i}, v{ac+2*i+1}')
        a(f's_add_u32 s{T1}, s{T0}, {F*2048}')
        for q in range(4):
            a(f'buffer_store_dwordx2 {V(pp+2*q,2)}, v{vSt}, {ws}, s{T1} offen offset:{q*512} {stf}')
    a.label(lskip)
    return p.lds_bytes + 1024

def g4_body(a, va, sId, stf='', ldf=''):
    vLane = 1
    map_64x64(a, sId)
    srd(a, sWSRD, 32, 1376 * 1024)
    srd(a, sAUX, 24, 2048 * 1024)
    p = base_params(vLane)
    p.TT, p.FT, p.WR, p.WC, p.KS, p.NST = 2, 2, 2, 2, 86, 4
    p.xmode = 'frag'; p.rowbytes = 1024; p.xtile = 86 * 1024; p.ldflags = ldf
    a(f's_mul_i32 s{sXoff}, s{sRB}, {2 * 86 * 1024}')
    a(f's_lshl_b32 s{T0}, s{sW}, 10')
    a(f's_add_u32 s{sXoff}, s{sXoff}, s{T0}')
    a(f's_add_u32 s{sXoff}, s{sXoff}, {hex(H3F)}')
    a(f's_lshl_b32 s{sWoff}, s{sW}, 14')
    a(f's_lshl_b32 s{T0}, s{sCB}, 7')
    a(f's_add_u32 s{sWoff}, s{sWoff}, s{T0}')
    gemm_setup(a, va, p)
    t0, t1, t2 = p.t
    xr, vo = x_rowmajor_loads(a, va, p, vLane, sAUX)
    x1r = va(8, 4); vSt = va()
    lane_store_off(a, vSt, vLane, t0)
    frag_tile_off(a, T0, p, X1F, 32)
    for q in range(4):
        a(f'buffer_load_dwordx2 {V(x1r+2*q,2)}, v{vSt}, {ws}, s{T0} offen offset:{q*512} {ldf}')
    def acc_init(acc):
        ac = acc[0][0]
        a(f's_waitcnt vmcnt({len(p.vm)})')
        for j in range(8):
            a(f'v_lshlrev_b32 v{ac+2*j}, 16, v{xr+j}')
            a(f'v_and_b32 v{ac+2*j+1}, 0xffff0000, v{xr+j}')
            a(f'v_lshlrev_b32 v{t0}, 16, v{x1r+j}')
            a(f'v_and_b32 v{t1}, 0xffff0000, v{x1r+j}')
            a(f'v_add_f32 v{ac+2*j}, v{ac+2*j}, v{t0}')
            a(f'v_add_f32 v{ac+2*j+1}, v{ac+2*j+1}, v{t1}')
    p.acc_init = acc_init
    acc = gemm_main(a, va, p)
    ac = acc[0][0]
    a(f's_lshl_b32 s{T0}, s{sRB}, 3')
    a(f's_add_u32 s{T0}, s{T0}, s{sCB}')
    a(f's_lshl_b32 s{T0}, s{T0}, 2')
    a(f's_add_u32 s{T0}, s{T0}, s{sW}')
    a(f's_lshl_b32 s{T0}, s{T0}, 12')
    a(f's_add_u32 s{T0}, s{T0}, {hex(YF)}')
    a('s_nop 7')
    for q in range(4):
        a(f'buffer_store_dwordx4 {V(ac+4*q,4)}, v{p.vL16}, {ws}, s{T0} offen offset:{q*1024}')
    return p.lds_bytes

def g5_body(a, va, sId):
    vLane = 1
    map_64x64(a, sId)
    srd(a, sWSRD, 26, 512 * 1024)
    srd(a, sAUX, 58, 2048 * 1024)
    p = base_params(vLane)
    p.TT, p.FT, p.WR, p.WC, p.KS, p.NST = 2, 2, 2, 2, 32, 8
    p.xmode = 'frag'; p.rowbytes = 1024; p.xtile = 32768
    a(f's_lshl_b32 s{sXoff}, s{sRB}, 16')
    a(f's_lshl_b32 s{T0}, s{sW}, 10')
    a(f's_add_u32 s{sXoff}, s{sXoff}, s{T0}')
    a(f's_add_u32 s{sXoff}, s{sXoff}, {hex(OF)}')
    a(f's_lshl_b32 s{sWoff}, s{sW}, 14')
    a(f's_lshl_b32 s{T0}, s{sCB}, 7')
    a(f's_add_u32 s{sWoff}, s{sWoff}, s{T0}')
    gemm_setup(a, va, p)
    t0, t1, t2 = p.t
    m = va.mark()
    acc0 = (va.n + 3) // 4 * 4
    a(f's_lshl_b32 s{T0}, s{sRB}, 3')
    a(f's_add_u32 s{T0}, s{T0}, s{sCB}')
    a(f's_lshl_b32 s{T0}, s{T0}, 2')
    a(f's_add_u32 s{T0}, s{T0}, s{sW}')
    a(f's_lshl_b32 s{T0}, s{T0}, 12')
    a(f's_add_u32 s{T0}, s{T0}, {hex(YF)}')
    for q in range(4):
        a(f'buffer_load_dwordx4 {V(acc0+4*q,4)}, v{p.vL16}, {ws}, s{T0} offen offset:{q*1024}')
    def acc_init(acc):
        assert acc[0][0] == acc0
    p.acc_init = acc_init
    acc = gemm_main(a, va, p)
    ac = acc[0][0]
    pk = va(8, 4); vo = va()
    a(f'v_and_b32 v{vo}, 31, v{vLane}')
    a(f'v_lshlrev_b32 v{vo}, 10, v{vo}')
    a(f'v_lshrrev_b32 v{t0}, 5, v{vLane}')
    a(f'v_lshl_add_u32 v{vo}, v{t0}, 4, v{vo}')
    a(f's_lshl_b32 s{T0}, s{sRB}, 16')
    a(f's_lshl_b32 s{T1}, s{p.sWr}, 15')
    a(f's_add_u32 s{T0}, s{T0}, s{T1}')
    a(f's_lshl_b32 s{T1}, s{sCB}, 7')
    a(f's_add_u32 s{T0}, s{T0}, s{T1}')
    a(f's_lshl_b32 s{T1}, s{p.sWc}, 6')
    a(f's_add_u32 s{T0}, s{T0}, s{T1}')
    a('s_nop 3')
    for i in range(8):
        a(f'v_cvt_pk_bf16_f32 v{pk+i}, v{ac+2*i}, v{ac+2*i+1}')
    a('s_nop 1')
    for pr in range(2):
        b = pk + 4 * pr
        a(f'v_permlane32_swap_b32 v{b}, v{b+2}')
        a(f'v_permlane32_swap_b32 v{b+1}, v{b+3}')
    a('s_nop 1')
    for pr in range(2):
        a(f'buffer_store_dwordx4 {V(pk+4*pr,4)}, v{vo}, s[{sAUX}:{sAUX+3}], s{T0} offen offset:{pr*32}')
    return p.lds_bytes

def simple_kernel(name, body, slot, **kw):
    def k(a):
        kernel_header(a, name)
        end = name + '_end'
        a('s_cmp_ge_u32 s2, 256')
        a(f's_cbranch_scc1 {end}')
        stamp(a, 0)
        load_ptrs(a)
        wave_lane(a, sW, 1)
        a('s_waitcnt lgkmcnt(0)')
        srd(a, sWS, 34, WS_BYTES)
        va = RegAlloc(2, 256)
        if body is g3_body: kw['endlabel'] = end
        lds = body(a, va, 2, **kw)
        stamp_flush(a, 3, slot)
        a.label(end)
        a('s_endpgm')
        return name, va.hi, lds
    return k
```

```python
import sys
from core import *
from k_g1 import g1_kernel
from k_att import att_kernel
from k_gb import *
if __name__ == '__main__':
    build([(g1_kernel, 256, 256), (att_kernel, 256, 256),
           (simple_kernel('g2_kernel', g2_body, 2), 256, 256),
           (simple_kernel('g3_kernel', g3_body, 3), 256, 256),
           (simple_kernel('g4_kernel', g4_body, 4), 256, 256),
           (simple_kernel('g5_kernel', g5_body, 5), 256, 256)], sys.argv[1])
```

```python
import sys, math, os
from asmlib import *

NAME = 'parallel_sum__softmax_full_mha__mixer_s_mlp__prompt'

QF  = 0x000000
KF  = 0x200000
VF  = 0x400000
HF  = 0x600000
X1F = 0x800000
OF  = 0xA00000
H3F = 0xC00000
YF  = 0x1200000
ST  = 0x1600000
PS  = 0x1610000
CS1 = 0x1650000
CS3 = 0x1660000
FLG = 0x1680000
WS_BYTES = 0x1800000
OOB = 0x7F000000

LOG2E = 1.4426950408889634
QSCALE = 0.25 * LOG2E
EPS = 1e-5
GC1 = -2.0 * 0.7978845608028654 * LOG2E
GC2 = GC1 * 0.044715

sXSRD, sWSRD, sWS, sAUX, sDBG = 4, 8, 12, 16, 20

class Opt:
    stamps = os.environ.get('STAMPS', '0') == '1'
STAMP_OFF = 0x1700000

def srd(a, d, base, nbytes):
    a(f's_mov_b32 s{d}, s{base}')
    a(f's_and_b32 s{d+1}, s{base+1}, 0xffff')
    a(f's_mov_b32 s{d+2}, {hex(nbytes)}')
    a(f's_mov_b32 s{d+3}, 0x20000')

def bf16_round(a, v):
    a(f'v_cvt_pk_bf16_f32 v{v}, v{v}, v{v}')
    a(f'v_lshlrev_b32 v{v}, 16, v{v}')

def stamp(a, idx):
    if not Opt.stamps: return
    a(f's_memtime s[{64+4*idx}:{65+4*idx}]')
    a(f's_memrealtime s[{66+4*idx}:{67+4*idx}]')
def stamp_flush(a, n, slot):
    if not Opt.stamps: return
    a('s_waitcnt lgkmcnt(0) vmcnt(0)')
    stamp(a, n)
    a('s_waitcnt lgkmcnt(0)')
    a('s_mov_b64 exec, -1')
    a('v_cmp_eq_u32 vcc, 0, v0')
    a('s_and_saveexec_b64 s[62:63], vcc')
    lab = a.newlabel('Lstamp')
    a(f's_cbranch_execz {lab}')
    a(f's_lshl_b32 s61, s2, 6')
    a(f's_add_u32 s61, s61, {hex(STAMP_OFF + slot * 0x10000)}')
    a('v_mov_b32 v2, 0')
    for i in range(n + 1):
        a(f'v_mov_b32 v4, s{64+4*i}')
        a(f'v_mov_b32 v5, s{66+4*i}')
        a(f'buffer_store_dwordx2 v[4:5], v2, s[{sWS}:{sWS+3}], s61 offen offset:{8*i}')
        a('s_nop 1')
    a.label(lab)

class G:
    pass

def wave_lane(a, sW, vLane):
    a(f'v_lshrrev_b32 v{vLane}, 6, v0')
    a('s_nop 0')
    a(f'v_readfirstlane_b32 s{sW}, v{vLane}')
    a(f'v_and_b32 v{vLane}, 63, v0')

def gemm_setup(a, va, p):
    TT, FT, WR, WC, NST = p.TT, p.FT, p.WR, p.WC, p.NST
    NW = WR * WC
    G2 = NW // 4
    TW, FW = TT // WR, FT // WC
    p.TW, p.FW, p.NW, p.G2 = TW, FW, NW, G2
    XS, WSZ = TT * 4096, FT * 4096
    XW = getattr(p, 'lds_base', 0) + NST * XS
    p.XS, p.WSZ, p.XW = XS, WSZ, XW
    p.lds_bytes = getattr(p, 'lds_base', 0) + NST * (XS + WSZ)
    sT0, sT1, sM0x, sM0w, sWr, sWc, sS, sGr = [p.stmp + i for i in range(8)]
    p.sT0, p.sT1, p.sM0x, p.sM0w, p.sWr, p.sWc, p.sS, p.sGr = sT0, sT1, sM0x, sM0w, sWr, sWc, sS, sGr
    l = p.vLane
    t0 = va(); t1 = va(); t2 = va()
    p.t = (t0, t1, t2)
    lg = int(math.log2(WC))
    a(f's_lshr_b32 s{sWr}, s{p.sW}, {lg}')
    a(f's_and_b32 s{sWc}, s{p.sW}, {WC-1}')
    a(f's_and_b32 s{sS}, s{p.sW}, 3')
    a(f's_lshr_b32 s{sGr}, s{p.sW}, 2')
    assert TT % G2 == 0
    p.TD = TT // G2
    p.FD = (FT + G2 - 1) // G2
    assert FT % G2 == 0
    a(f's_lshl_b32 s{sM0x}, s{sS}, 10')
    a(f's_add_u32 s{sM0w}, s{sM0x}, {XW}')
    if getattr(p, 'lds_base', 0): a(f's_add_u32 s{sM0x}, s{sM0x}, {p.lds_base}')
    if G2 > 1:
        a(f's_mul_i32 s{sT0}, s{sGr}, {p.TD * 4096}')
        a(f's_add_u32 s{sM0x}, s{sM0x}, s{sT0}')
        a(f's_mul_i32 s{sT0}, s{sGr}, {p.FD * 4096}')
        a(f's_add_u32 s{sM0w}, s{sM0w}, s{sT0}')
    vW = va(); p.vW = vW
    a(f'v_lshrrev_b32 v{t0}, 2, v{l}')
    a(f's_mov_b32 s{sT0}, {p.rowbytes}')
    a(f'v_mul_lo_u32 v{vW}, v{t0}, s{sT0}')
    a(f'v_and_b32 v{t0}, 3, v{l}')
    a(f'v_lshl_add_u32 v{vW}, v{t0}, 4, v{vW}')
    vL16 = va(); p.vL16 = vL16
    a(f'v_lshlrev_b32 v{vL16}, 4, v{l}')
    if p.xmode == 'row':
        vX = va(); p.vX = vX
        a(f's_and_b32 s{sT0}, s{p.sW}, 1')
        a(f's_lshl_b32 s{sT0}, s{sT0}, 2')
        a(f'v_lshrrev_b32 v{t0}, 4, v{l}')
        a(f'v_add_u32 v{t0}, s{sT0}, v{t0}')
        a(f'v_and_b32 v{t1}, 7, v{l}')
        a(f'v_xor_b32 v{t0}, v{t0}, v{t1}')
        a(f'v_lshrrev_b32 v{t1}, 3, v{l}')
        a(f'v_lshlrev_b32 v{t1}, 10, v{t1}')
        a(f'v_lshl_add_u32 v{vX}, v{t0}, 4, v{t1}')
    elif p.xmode == 'shift':
        assert G2 == 1 and p.xtile == 32768
        vSh = [[va() for g in range(4)] for T in range(TT)]
        p.vSh = vSh
        shifts = [-1, 1, -2, 2]
        a(f'v_and_b32 v{t0}, 31, v{l}')
        a(f'v_add_u32 v{t0}, s{p.sRow0}, v{t0}')
        a(f'v_lshrrev_b32 v{t1}, 5, v{l}')
        a(f'v_lshlrev_b32 v{t1}, 9, v{t1}')
        a(f's_mov_b32 s{sT0}, 2048')
        a(f's_mov_b32 s{sT1}, {hex(OOB)}')
        for T in range(TT):
            for g in range(4):
                r = vSh[T][g]
                d = 32 * T + shifts[g]
                a(f'v_add_u32 v{t2}, {d}, v{t0}')
                a(f'v_cmp_gt_u32 vcc, s{sT0}, v{t2}')
                a(f'v_lshrrev_b32 v{r}, 5, v{t2}')
                a(f'v_lshlrev_b32 v{r}, 15, v{r}')
                a(f'v_and_b32 v{t2}, 31, v{t2}')
                a(f'v_lshl_add_u32 v{r}, v{t2}, 4, v{r}')
                a(f'v_add_u32 v{r}, v{r}, v{t1}')
                a(f'v_mov_b32 v{t2}, s{sT1}')
                a(f'v_cndmask_b32 v{r}, v{t2}, v{r}, vcc')
    base = getattr(p, 'lds_base', 0)
    if p.xmode == 'row':
        vXr = [va() for s in range(4)]; p.vXr = vXr
        a(f'v_and_b32 v{t0}, 31, v{l}')
        a(f'v_lshrrev_b32 v{t1}, 1, v{t0}')
        a(f'v_and_b32 v{t1}, 7, v{t1}')
        a(f'v_lshrrev_b32 v{t2}, 5, v{l}')
        a(f'v_xor_b32 v{t1}, v{t1}, v{t2}')
        a(f'v_lshlrev_b32 v{t0}, 7, v{t0}')
        a(f's_mul_i32 s{sT0}, s{sWr}, {TW * 4096}')
        if base: a(f's_add_u32 s{sT0}, s{sT0}, {base}')
        a(f'v_add_u32 v{t0}, s{sT0}, v{t0}')
        for s in range(4):
            a(f'v_xor_b32 v{t2}, {2*s}, v{t1}')
            a(f'v_lshl_add_u32 v{vXr[s]}, v{t2}, 4, v{t0}')
    else:
        vXb = va(); p.vXb = vXb
        a(f's_mul_i32 s{sT0}, s{sWr}, {TW * 4096}')
        if base: a(f's_add_u32 s{sT0}, s{sT0}, {base}')
        a(f'v_add_u32 v{vXb}, s{sT0}, v{vL16}')
    vWb = va(); p.vWb = vWb
    a(f'v_lshrrev_b32 v{t0}, 5, v{l}')
    a(f'v_lshlrev_b32 v{t0}, 9, v{t0}')
    a(f'v_bfe_u32 v{t1}, v{l}, 2, 2')
    a(f'v_lshl_add_u32 v{t0}, v{t1}, 6, v{t0}')
    a(f'v_bfe_u32 v{t1}, v{l}, 4, 1')
    a(f'v_lshl_add_u32 v{t0}, v{t1}, 5, v{t0}')
    a(f'v_and_b32 v{t1}, 3, v{l}')
    a(f'v_lshl_add_u32 v{t0}, v{t1}, 3, v{t0}')
    a(f's_mul_i32 s{sT0}, s{sWc}, {FW * 4096}')
    a(f's_add_u32 s{sT0}, s{sT0}, {XW}')
    a(f'v_add_u32 v{vWb}, s{sT0}, v{t0}')

def gemm_main(a, va, p):
    TT, FT, WR, WC, KS, NST = p.TT, p.FT, p.WR, p.WC, p.KS, p.NST
    TW, FW, XS, WSZ = p.TW, p.FW, p.XS, p.WSZ
    NCH = (KS + 3) // 4
    sT0, sT1 = p.sT0, p.sT1
    vm = []
    p.vm = vm
    rot = getattr(p, 'sRot', None) is not None

    def dma_ops(c):
        st = c % NST
        ops = []
        for T in range(p.TD):
            def f(T=T):
                a(f's_add_u32 m0, s{p.sM0x}, {st * XS + T * 4096}')
                if p.xmode == 'row' and rot:
                    if T == 0:
                        a(f's_add_u32 s{p.sRotC}, s{p.sRot}, {c}')
                        a(f's_and_b32 s{p.sRotC}, s{p.sRotC}, {NCH-1}')
                        a(f's_lshl_b32 s{p.sRotX}, s{p.sRotC}, 7')
                        a(f's_add_u32 s{p.sRotX}, s{p.sRotX}, s{p.sXoff}')
                        a(f's_mul_i32 s{p.sRotW}, s{p.sRotC}, {64 * p.rowbytes}')
                        a(f's_add_u32 s{p.sRotW}, s{p.sRotW}, s{p.sWoff}')
                    a(f's_add_u32 s{sT0}, s{p.sRotX}, {T * 32768}'); vo = p.vX
                elif p.xmode == 'row':
                    a(f's_add_u32 s{sT0}, s{p.sXoff}, {T * 32768 + c * 128}'); vo = p.vX
                elif p.xmode == 'shift':
                    a(f's_add_u32 s{sT0}, s{p.sXoff}, {c * 4096}'); vo = p.vSh[T][c // 2]
                else:
                    a(f's_add_u32 s{sT0}, s{p.sXoff}, {T * p.xtile + c * 4096}'); vo = p.vL16
                a(f'buffer_load_dwordx4 v{vo}, s[{p.xsrd}:{p.xsrd+3}], s{sT0} offen {p.ldflags} lds')
                vm.append(c)
            ops.append(f)
        for F in range(p.FD):
            def f(F=F):
                a(f's_add_u32 m0, s{p.sM0w}, {st * WSZ + F * 4096}')
                if rot: a(f's_add_u32 s{sT1}, s{p.sRotW}, {F * 64}')
                else: a(f's_add_u32 s{sT1}, s{p.sWoff}, {c * 64 * p.rowbytes + F * 64}')
                a(f'buffer_load_dwordx4 v{p.vW}, s[{sWSRD}:{sWSRD+3}], s{sT1} offen lds')
                vm.append(c)
            ops.append(f)
        return ops

    acc = [[va(16, 4) for F in range(FW)] for T in range(TW)]
    xf = [[va(4) for T in range(TW)] for b in range(2)]
    wf = [[va(4) for F in range(FW)] for b in range(2)]
    p.acc = acc
    xstats = getattr(p, 'xstats', False); wsum_on = getattr(p, 'wsum', False)
    if xstats:
        xs = [[va(), va()] for T in range(TW)]; p.xs = xs
    if wsum_on:
        wsum = [va() for F in range(FW)]; p.wsumr = wsum
    ninit = min(getattr(p, 'init_chunks', NST), NCH)
    for c in range(ninit):
        for f in dma_ops(c): f()
    nxt = ninit
    pending = []
    if getattr(p, 'acc_init', None):
        p.acc_init(acc)
    else:
        for T in range(TW):
            for F in range(FW):
                for i in range(16):
                    a(f'v_mov_b32 v{acc[T][F]+i}, 0')
    if xstats:
        for T in range(TW):
            a(f'v_mov_b32 v{xs[T][0]}, 0'); a(f'v_mov_b32 v{xs[T][1]}, 0')
    if wsum_on:
        for F in range(FW):
            a(f'v_mov_b32 v{wsum[F]}, 0')
    sOnes = p.stmp + 8
    if xstats or wsum_on:
        a(f's_mov_b32 s{sOnes}, 0x3f803f80')
    if getattr(p, 'after_issue', None): p.after_issue()

    def read_ops(i):
        c, s = i // 4, i % 4
        st = c % NST; b = i % 2
        def rx(T):
            if p.xmode == 'row':
                return f'ds_read_b128 {V(xf[b][T],4)}, v{p.vXr[s]} offset:{st * XS + T * 4096}'
            return f'ds_read_b128 {V(xf[b][T],4)}, v{p.vXb} offset:{st * XS + T * 4096 + s * 1024}'
        ops = [(rx(0), ('x', i, 0))]
        for F in range(FW):
            o = st * WSZ + F * 4096 + s * 1024
            ops.append((f'ds_read_b64_tr_b16 {V(wf[b][F],2)}, v{p.vWb} offset:{o}', ('w', i, F)))
            ops.append((f'ds_read_b64_tr_b16 {V(wf[b][F]+2,2)}, v{p.vWb} offset:{o+256}', ('w', i, F)))
        for T in range(1, TW):
            ops.append((rx(T), ('x', i, T)))
        return ops
    lg = []
    def emit_read(op):
        a(op[0]); lg.append(op[1])
    def wait_lds(tags):
        idx = [k for k, t in enumerate(lg) if t in tags]
        if not idx: return
        n = len(lg) - 1 - max(idx)
        a(f's_waitcnt lgkmcnt({n})')
        del lg[:max(idx) + 1]

    INIT = getattr(p, 'init_chunks', NST)
    def sync(c):
        nonlocal nxt, pending
        for f in pending: f()
        pending = []
        last = max(i for i, v in enumerate(vm) if v == c)
        n = len(vm) - 1 - last
        assert n <= 63
        a(f's_waitcnt vmcnt({n}) lgkmcnt(0)')
        lg.clear()
        a('s_barrier')
        while nxt < NCH and nxt <= c + NST - 1 and len(pending) < (2 if c == 0 else 1) * (p.TD + p.FD):
            pending += dma_ops(nxt); nxt += 1
        if getattr(p, 'after_sync', None):
            p.after_sync(c); lg.append('other')

    def compute(i, rops):
        nonlocal pending
        b = i % 2
        nm = TW * FW
        per_r = (len(rops) + nm - 1) // nm
        ndma = (len(pending) + (3 - i % 4)) // (4 - i % 4) if pending else 0
        if (i + 1) % 4 == 0: ndma = (len(pending) + 3) // 4
        k = 0
        for T in range(TW):
            for F in range(FW):
                wait_lds({('x', i, T), ('w', i, F)})
                A_, B_ = (wf[b][F], xf[b][T]) if p.orient == 'T' else (xf[b][T], wf[b][F])
                a(f'v_mfma_f32_32x32x16_bf16 {V(acc[T][F],16)}, {V(A_,4)}, {V(B_,4)}, {V(acc[T][F],16)}')
                for op in rops[k * per_r:(k + 1) * per_r]: emit_read(op)
                k += 1
                if k >= nm - 1 or nm == 1:
                    take = (ndma + 1) // 2 if k == nm - 1 else ndma
                    for f in pending[:take]: f()
                    pending = pending[take:]; ndma -= take
        if xstats or wsum_on:
            lab = a.newlabel('Lst')
            a(f's_cmp_lg_u32 s{p.sPar}, {i % 2}')
            a(f's_cbranch_scc1 {lab}')
            for T in range(TW):
                for j in range(4):
                    a(f'v_dot2_f32_bf16 v{xs[T][0]}, v{xf[b][T]+j}, s{sOnes}, v{xs[T][0]}')
                    a(f'v_dot2_f32_bf16 v{xs[T][1]}, v{xf[b][T]+j}, v{xf[b][T]+j}, v{xs[T][1]}')
            for F in range(FW):
                for j in range(4):
                    a(f'v_dot2_f32_bf16 v{wsum[F]}, v{wf[b][F]+j}, s{sOnes}, v{wsum[F]}')
            a.label(lab)

    if xstats or wsum_on:
        assert WR == 2 and WC == 2
        p.sPar = p.stmp + 9
        a(f's_xor_b32 s{p.sPar}, s{p.sWr}, s{p.sWc}')
    sync(0)
    stamp(a, 1)
    for op in read_ops(0): emit_read(op)
    for i in range(KS):
        rops = []
        if i + 1 < KS:
            if (i + 1) % 4 == 0:
                sync((i + 1) // 4)
            rops = read_ops(i + 1)
        compute(i, rops)
    assert not pending
    a('s_waitcnt lgkmcnt(0)')
    stamp(a, 2)
    return acc

def gelu_scalar(a, base, n, tmp, sC1, vC2):
    for i in range(n):
        a(f'v_mul_f32 v{tmp+i}, v{base+i}, v{base+i}')
    for i in range(n):
        a(f'v_fma_f32 v{tmp+i}, v{tmp+i}, v{vC2}, s{sC1}')
    for i in range(n):
        a(f'v_mul_f32 v{tmp+i}, v{tmp+i}, v{base+i}')
    for i in range(n):
        a(f'v_exp_f32 v{tmp+i}, v{tmp+i}')
    a('s_nop 0')
    for i in range(n):
        a(f'v_add_f32 v{tmp+i}, 1.0, v{tmp+i}')
    for i in range(n):
        a(f'v_rcp_f32 v{tmp+i}, v{tmp+i}')
    a('s_nop 0')
    for i in range(n):
        a(f'v_mul_f32 v{base+i}, v{base+i}, v{tmp+i}')

def dpp_wave_sum(a, regs, tmp):
    steps = ['row_shr:1', 'row_shr:2', 'row_shr:4', 'row_shr:8', 'row_bcast:15 row_mask:0xa', 'row_bcast:31 row_mask:0xc']
    for st in steps:
        if len(regs) < 3: a('s_nop 1')
        for r in regs:
            m = st if 'row_mask' in st else st + ' row_mask:0xf'
            a(f'v_add_f32_dpp v{r}, v{r}, v{r} {m} bank_mask:0xf bound_ctrl:0' if False else f'v_add_f32_dpp v{r}, v{r}, v{r} {m} bank_mask:0xf')

def build(kernels, out):
    descs = []
    launches = []
    body = Asm()
    for fn, grid, block in kernels:
        name, nv, lds = fn(body)
        descs.append(kernel_desc(name, nv))
        launches.append(f'; @launch kernel={name} grid=({grid},1,1) block=({block},1,1) lds={lds}')
    txt = '\n'.join(launches) + '\n.amdgcn_target "amdgcn-amd-amdhsa--gfx950"\n' + body.text()
    txt += '.section .rodata,"a"\n' + ''.join('.p2align 6\n' + d for d in descs)
    open(out, 'w').write(txt)
```

```python
from core import *
MF = 'v_mfma_f32_32x32x16_bf16'

def trbase(a, v, l, t):
    a(f'v_lshrrev_b32 v{v}, 5, v{l}')
    a(f'v_lshlrev_b32 v{v}, 9, v{v}')
    a(f'v_bfe_u32 v{t}, v{l}, 2, 2')
    a(f'v_lshl_add_u32 v{v}, v{t}, 6, v{v}')
    a(f'v_bfe_u32 v{t}, v{l}, 4, 1')
    a(f'v_lshl_add_u32 v{v}, v{t}, 5, v{v}')
    a(f'v_and_b32 v{t}, 3, v{l}')
    a(f'v_lshl_add_u32 v{v}, v{t}, 3, v{v}')

def wdma_voff(a, v, l, t, rowbytes, sT):
    a(f'v_lshrrev_b32 v{t}, 2, v{l}')
    a(f's_mov_b32 s{sT}, {rowbytes}')
    a(f'v_mul_lo_u32 v{v}, v{t}, s{sT}')
    a(f'v_and_b32 v{t}, 3, v{l}')
    a(f'v_lshl_add_u32 v{v}, v{t}, 4, v{v}')

class VM:
    def __init__(self): self.l = []
    def add(self, tag='x'): self.l.append(tag)
    def wait_for(self, tag):
        last = max(i for i, v in enumerate(self.l) if v == tag)
        n = len(self.l) - 1 - last
        assert n <= 63, n
        return n

class WSK:
    def __init__(self, a, va, sW, vLane, stmp, D, vm, lds_base=0, ring_bytes=16384):
        self.a, self.va, self.sW, self.l, self.D, self.vm = a, va, sW, vLane, D, vm
        self.sT0, self.sT1, self.sM0, self.sWr, self.sWc = [stmp + i for i in range(5)]
        self.ring = ring_bytes; self.base = lds_base
        assert D * 2048 <= ring_bytes
        self.t0 = va(); self.t1 = va(); self.t2 = va()
        self.t = (self.t0, self.t1, self.t2)
        self.vL16 = va(); self.vTr = va(); self.vW = va()
        a(f's_lshr_b32 s{self.sWr}, s{sW}, 1')
        a(f's_and_b32 s{self.sWc}, s{sW}, 1')
        a(f's_mul_i32 s{self.sM0}, s{sW}, {ring_bytes}')
        if lds_base: a(f's_add_u32 s{self.sM0}, s{self.sM0}, {lds_base}')
        a(f'v_lshlrev_b32 v{self.vL16}, 4, v{vLane}')
        trbase(a, self.vTr, vLane, self.t0)
        a(f'v_add_u32 v{self.vTr}, s{self.sM0}, v{self.vTr}')
        wdma_voff(a, self.vW, vLane, self.t0, 1024, self.sT0)
        self.acc = [[va(16, 4) for F in range(2)] for T in range(2)]
        self.xr = [[va(4) for T in range(2)] for d in range(D)]
        self.wf = [[va(4) for F in range(2)] for b in range(2)]
        self.steps = []

    def zero_acc(self, skip00=False):
        for T in range(2):
            for F in range(2):
                if skip00 and T == 0 and F == 0: continue
                for i in range(16):
                    self.a(f'v_mov_b32 v{self.acc[T][F]+i}, 0')

    def add_segment(self, n, xsrd, sX, xvoff, xflags, wsrd, sWo, sJx, sJw, sN, last_cond=None):
        a = self.a
        def adv(sJ):
            a(f's_add_u32 s{sJ}, s{sJ}, 1')
            if isinstance(sN, int) and (sN & (sN - 1)) == 0:
                a(f's_and_b32 s{sJ}, s{sJ}, {sN-1}')
            else:
                a(f's_cmp_lt_u32 s{sJ}, {sN if isinstance(sN, int) else "s%d" % sN[0]}')
                a(f's_cselect_b32 s{sJ}, s{sJ}, 0')
        for j in range(n):
            idx = len(self.steps)
            slot = idx % self.D
            def ix(T, slot=slot, idx=idx):
                a(f's_lshl_b32 s{self.sT1}, s{sJx}, 12')
                a(f's_add_u32 s{self.sT0}, s{sX[T]}, s{self.sT1}')
                a(f'buffer_load_dwordx4 {V(self.xr[slot][T],4)}, v{xvoff}, s[{xsrd}:{xsrd+3}], s{self.sT0} offen {xflags}')
                self.vm.add(('x', idx))
                if T == 1: adv(sJx)
            def iw(F, slot=slot, idx=idx):
                a(f's_add_u32 m0, s{self.sM0}, {slot * 2048 + F * 1024}')
                a(f's_lshl_b32 s{self.sT0}, s{sJw}, 16')
                a(f's_add_u32 s{self.sT1}, s{sWo[F]}, s{self.sT0}')
                a(f'buffer_load_dwordx4 v{self.vW}, s[{wsrd}:{wsrd+3}], s{self.sT1} offen lds')
                self.vm.add(('w', idx))
                if F == 1: adv(sJw)
            self.steps.append((ix, iw, last_cond if j == n - 1 else None))

    def issue_w(self, i):
        self.steps[i][1](0); self.steps[i][1](1)
    def issue_x(self, i):
        self.steps[i][0](0); self.steps[i][0](1)

    def _reads(self, idx):
        a = self.a
        slot = idx % self.D; b = idx % 2
        a(f's_waitcnt vmcnt({self.vm.wait_for(("w", idx))})')
        for F in range(2):
            o = slot * 2048 + F * 1024
            a(f'ds_read_b64_tr_b16 {V(self.wf[b][F],2)}, v{self.vTr} offset:{o}')
            a(f'ds_read_b64_tr_b16 {V(self.wf[b][F]+2,2)}, v{self.vTr} offset:{o+256}')

    def run(self, lo, hi, xlimit=None, wlimit=None, pre_issued_x=0, pre_issued_w=0):
        a = self.a
        N = len(self.steps)
        if xlimit is None: xlimit = N
        if wlimit is None: wlimit = N
        def issue_upto(done):
            while self.nw < min(wlimit, done + self.D):
                self.issue_w(self.nw); self.nw += 1
                if self.nx < min(xlimit, done + self.D) and self.nx < self.nw:
                    self.issue_x(self.nx); self.nx += 1
            while self.nx < min(xlimit, done + self.D):
                self.issue_x(self.nx); self.nx += 1
        issue_upto(lo)
        if getattr(self, 'after_issue', None):
            self.after_issue(); self.after_issue = None
        self._reads(lo)
        for idx in range(lo, hi):
            b = idx % 2; slot = idx % self.D
            cond = self.steps[idx][2]
            if idx + 1 < hi:
                self._reads(idx + 1)
                a(f's_waitcnt vmcnt({self.vm.wait_for(("x", idx))}) lgkmcnt(4)')
            else:
                a(f's_waitcnt vmcnt({self.vm.wait_for(("x", idx))}) lgkmcnt(0)')
            dow = self.nw == idx + self.D and self.nw < wlimit
            dox = self.nx == idx + self.D and self.nx < xlimit
            mf = [f'{MF} {V(self.acc[T][F],16)}, {V(self.wf[b][F],4)}, {V(self.xr[slot][T],4)}, {V(self.acc[T][F],16)}' for T in range(2) for F in range(2)]
            if cond:
                lab = a.newlabel('Lsk'); cond(lab)
                for m in mf: a(m)
                a.label(lab)
            else:
                a(mf[0])
                if dow: self.steps[self.nw][1](0)
                a(mf[1])
                if dow: self.steps[self.nw][1](1); self.nw += 1
                a(mf[2])
                if dox: self.steps[self.nx][0](0)
                a(mf[3])
                if dox: self.steps[self.nx][0](1); self.nx += 1
            issue_upto(idx + 1)
    nx = 0; nw = 0

    def reduce(self):
        a = self.a
        vW_ = self.t0; vR = self.t1
        a(f'v_add_u32 v{vW_}, s{self.sM0}, v{self.vL16}')
        a('s_nop 10')
        for q in range(1, 4):
            ac = self.acc[q >> 1][q & 1]
            for i in range(4):
                a(f'ds_write_b128 v{vW_}, {V(ac+4*i,4)} offset:{(q-1)*4096 + i*1024}')
        a('s_waitcnt lgkmcnt(0)')
        a('s_barrier')
        for q in range(1, 4):
            ac = self.acc[q >> 1][q & 1]
            a(f's_xor_b32 s{self.sT0}, s{self.sW}, {q}')
            a(f's_mul_i32 s{self.sT0}, s{self.sT0}, {self.ring}')
            if self.base: a(f's_add_u32 s{self.sT0}, s{self.sT0}, {self.base}')
            a(f'v_add_u32 v{vR}, s{self.sT0}, v{self.vL16}')
            for i in range(4):
                a(f'ds_read_b128 {V(ac+4*i,4)}, v{vR} offset:{(q-1)*4096 + i*1024}')
        o = self.acc[0][0]
        for q in range(1, 4):
            ac = self.acc[q >> 1][q & 1]
            a(f's_waitcnt lgkmcnt({(3-q)*4})')
            for i in range(16):
                a(f'v_add_f32 v{o+i}, v{o+i}, v{ac+i}')
        return o
```

```python
from core import *

VT = 1056
ATT_BUF = 8192 + 8 * VT
NBUF = 4
ATT_LDS = NBUF * ATT_BUF

def R(b, n): return V(b, n)
MF = 'v_mfma_f32_32x32x16_bf16'

def att_body(a, sId, chain=False):
    va = RegAlloc(2, 256)
    sW, sHead, sTT, sKoff, sVoff, sC, sBn, sBd, T0, T1, sM0, sFb = range(36, 48)
    sEx = 50
    vLane = 1
    if chain: a('s_setprio 3')
    wave_lane(a, sW, vLane)
    ws = f's[{sWS}:{sWS+3}]'
    a(f's_and_b32 s{T0}, s{sId}, 7')
    a(f's_lshl_b32 s{sHead}, s{T0}, 2')
    a(f's_lshr_b32 s{T0}, s{sId}, 3')
    a(f's_and_b32 s{T0}, s{T0}, 3')
    a(f's_add_u32 s{sHead}, s{sHead}, s{T0}')
    a(f's_lshr_b32 s{sTT}, s{sId}, 5')
    a(f's_lshl_b32 s{sTT}, s{sTT}, 3')
    a(f's_lshl_b32 s{T0}, s{sW}, 1')
    a(f's_add_u32 s{sTT}, s{sTT}, s{T0}')
    a(f's_mov_b32 s{sEx}, 0x0000ffff'); a(f's_mov_b32 s{sEx+1}, 0x0000ffff')
    vL16 = va(); vVo = va(); t0 = va(); t1 = va()
    vK = [va(), va()]; vV0 = [va(), va()]; vV1 = [va(), va()]
    vV0b = va(); vV1b = va()
    SA, SB, NA, NB, OA, OB = [va(16, 4) for _ in range(6)]
    P = va(8, 4); QA = va(4); QB = va(4)
    K = [va(4), va(4)]; Vv = [va(8, 4), va(8, 4)]
    a(f'v_lshlrev_b32 v{vL16}, 4, v{vLane}')
    a(f's_lshl_b32 s{sKoff}, s{sW}, 6')
    a(f's_add_u32 s{sKoff}, s{sKoff}, s{sHead}')
    a(f's_lshl_b32 s{sKoff}, s{sKoff}, 10')
    a(f's_add_u32 s{sVoff}, s{sKoff}, {hex(VF)}')
    a(f's_add_u32 s{sKoff}, s{sKoff}, {hex(KF)}')
    sMK, sMV = 48, 49
    a(f's_lshl_b32 s{sMK}, s{sW}, 11')
    a(f's_mul_i32 s{sMV}, s{sW}, {2*VT}')
    a(f's_add_u32 s{sMV}, s{sMV}, 8192')

    def dma_one(i, sBuf):
        j = i // 2
        if i % 2 == 0:
            a(f's_add_u32 s{sM0}, s{sMK}, s{sBuf}')
            a(f's_add_u32 m0, s{sM0}, {j*1024}')
            a(f's_add_u32 s{T0}, s{sKoff}, {j*32768}')
        else:
            a(f's_add_u32 s{sM0}, s{sMV}, s{sBuf}')
            a(f's_add_u32 m0, s{sM0}, {j*VT}')
            a(f's_add_u32 s{T0}, s{sVoff}, {j*32768}')
        a(f'buffer_load_dwordx4 v{vL16}, {ws}, s{T0} offen lds')
        if i == 3:
            a(f's_add_u32 s{sKoff}, s{sKoff}, {8*32768}')
            a(f's_add_u32 s{sVoff}, s{sVoff}, {8*32768}')

    a(f's_mov_b32 s{sBd}, 0')
    for i in range(4): dma_one(i, sBd)
    a(f's_lshl_b32 s{T0}, s{sTT}, 5')
    a(f's_add_u32 s{T0}, s{T0}, s{sHead}')
    a(f's_lshl_b32 s{T0}, s{T0}, 10')
    a(f'buffer_load_dwordx4 {R(QA,4)}, v{vL16}, {ws}, s{T0} offen')
    a(f's_add_u32 s{T0}, s{T0}, 32768')
    a(f'buffer_load_dwordx4 {R(QB,4)}, v{vL16}, {ws}, s{T0} offen')
    for b in (1, 2):
        a(f's_mov_b32 s{sBd}, {b*ATT_BUF}')
        for i in range(4): dma_one(i, sBd)
    a(f's_mov_b32 s{sBd}, {3*ATT_BUF}')
    a(f's_mov_b32 s{sBn}, {ATT_BUF}')
    a(f'v_and_b32 v{vVo}, 15, v{vLane}')
    a(f'v_lshlrev_b32 v{vVo}, 4, v{vVo}')
    a(f'v_lshrrev_b32 v{t0}, 5, v{vLane}')
    a(f'v_lshl_add_u32 v{vVo}, v{t0}, 8, v{vVo}')
    a(f'v_and_b32 v{t0}, 31, v{vLane}')
    a(f'v_cmp_eq_u32 vcc, 16, v{t0}')
    a(f'v_mov_b32 v{t1}, {8192+1040}')
    a(f'v_mov_b32 v{vV0b}, {8192+1024}')
    a(f'v_cndmask_b32 v{t1}, v{t1}, v{vV0b}, vcc')
    a(f'v_cmp_gt_u32 vcc, 16, v{t0}')
    a(f'v_add_u32 v{vV0b}, 8192, v{vVo}')
    a(f'v_add_u32 v{vV1b}, {8192+512}, v{vVo}')
    a(f'v_cndmask_b32 v{vV0b}, v{t1}, v{vV0b}, vcc')
    a(f'v_cndmask_b32 v{vV1b}, v{t1}, v{vV1b}, vcc')
    lpad = a.newlabel('att_pad')
    a(f's_cmp_lg_u32 s{sW}, 0')
    a(f's_cbranch_scc1 {lpad}')
    a(f'v_and_b32 v{t0}, 1, v{vLane}')
    a(f'v_cmp_eq_u32 vcc, 0, v{t0}')
    a(f'v_mov_b32 v{t1}, 0x3f803f80')
    a(f'v_lshlrev_b32 v{t0}, 4, v{t0}')
    for i in range(4):
        a(f'v_cndmask_b32 v{P+i}, 0, v{t1}, vcc')
    a(f'v_lshrrev_b32 v{t1}, 4, v{vLane}')
    a(f's_mov_b32 s{T0}, {ATT_BUF}')
    a(f'v_mul_lo_u32 v{t1}, v{t1}, s{T0}')
    a(f'v_add_u32 v{t0}, v{t0}, v{t1}')
    a(f'v_bfe_u32 v{t1}, v{vLane}, 1, 3')
    a(f's_mov_b32 s{T0}, {VT}')
    a(f'v_mul_lo_u32 v{t1}, v{t1}, s{T0}')
    a(f'v_add_u32 v{t0}, v{t0}, v{t1}')
    a(f'ds_write_b128 v{t0}, {R(P,4)} offset:{8192+1024}')
    a.label(lpad)
    for i in range(16):
        a(f'v_mov_b32 v{OA+i}, 0'); a(f'v_mov_b32 v{OB+i}, 0')
    for i in range(4):
        a(f'v_mov_b32 v{P+4+i}, 0')
        a(f'v_mov_b32 v{Vv[1]+4+i}, 0')
    a(f'v_mov_b32 v{vK[0]}, v{vL16}'); a(f'v_mov_b32 v{vV0[0]}, v{vV0b}'); a(f'v_mov_b32 v{vV1[0]}, v{vV1b}')
    a(f'v_add_u32 v{vK[1]}, {ATT_BUF}, v{vL16}')
    a(f'v_add_u32 v{vV0[1]}, {ATT_BUF}, v{vV0b}')
    a(f'v_add_u32 v{vV1[1]}, {ATT_BUF}, v{vV1b}')
    a(f's_mov_b32 s{sFb}, 0')
    a('s_waitcnt vmcnt(8) lgkmcnt(0)')
    a('s_barrier')
    stamp(a, 1)
    a(f'ds_read_b128 {R(K[0],4)}, v{vK[0]}')
    a(f'ds_read_b128 {R(K[1],4)}, v{vK[0]} offset:1024')
    a(f'ds_read_b128 {R(Vv[0],4)}, v{vV0[0]}')
    a(f'ds_read_b128 {R(Vv[0]+4,4)}, v{vV1[0]}')
    a('s_waitcnt lgkmcnt(3)')
    a(f'{MF} {R(SA,16)}, {R(K[0],4)}, {R(QA,4)}, 0')
    a(f'{MF} {R(SB,16)}, {R(K[0],4)}, {R(QB,4)}, 0')
    a('s_nop 10')

    def rowmax_to_neg(S_, N_):
        a(f'v_max3_f32 v{t0}, v{S_}, v{S_+1}, v{S_+2}')
        for i in range(3, 15, 2):
            a(f'v_max3_f32 v{t0}, v{t0}, v{S_+i}, v{S_+i+1}')
        a(f'v_max_f32 v{t0}, v{t0}, v{S_+15}')
        a(f'v_mov_b32 v{t1}, v{t0}')
        a('s_nop 1')
        a(f'v_permlane32_swap_b32 v{t0}, v{t1}')
        a('s_nop 1')
        a(f'v_max_f32 v{t0}, v{t0}, v{t1}')
        for i in range(16):
            a(f'v_sub_f32 v{N_+i}, 0, v{t0}')
    rowmax_to_neg(SA, NA)
    rowmax_to_neg(SB, NB)
    a('s_nop 1')
    a(f'{MF} {R(SA,16)}, {R(K[0],4)}, {R(QA,4)}, {R(NA,16)}')
    a(f's_mov_b32 s{sC}, 0')
    a('s_waitcnt lgkmcnt(0)')
    a('s_nop 8')
    if chain: a('s_setprio 0')
    a.label('att_loop')
    for t in range(8):
        Kc, Kn = K[t % 2], K[(t + 1) % 2]
        Vc, Vn = Vv[t % 2], Vv[(t + 1) % 2]
        for sub in range(2):
            cur = [SA, SB][sub]
            if sub == 0:
                qk = f'{MF} {R(SB,16)}, {R(Kc,4)}, {R(QB,4)}, {R(NB,16)}'
                pv1 = f'{MF} {R(OB,16)}, {R(Vn+4,4)}, {R(P+4,4)}, {R(OB,16)}'
            else:
                qk = f'{MF} {R(SA,16)}, {R(Kn,4)}, {R(QA,4)}, {R(NA,16)}'
                pv1 = f'{MF} {R(OA,16)}, {R(Vc+4,4)}, {R(P+4,4)}, {R(OA,16)}'
            Oc = [OA, OB][sub]
            pv0 = f'{MF} {R(Oc,16)}, {R(Vc,4)}, {R(P,4)}, {R(Oc,16)}'
            ex = [f'v_exp_f32 v{cur+i}, v{cur+i}' for i in range(16)]
            cv = [f'v_cvt_pk_bf16_f32 v{P+i}, v{cur+2*i}, v{cur+2*i+1}' for i in range(8)]
            a(qk)
            for s in ex[0:6]: a(s)
            a(pv1)
            if sub == 0:
                if t == 6:
                    l1 = a.newlabel('att_nosync')
                    a(f's_cmp_ge_u32 s{sC}, 7')
                    a(f's_cbranch_scc1 {l1}')
                    l2 = a.newlabel('att_w0'); l3 = a.newlabel('att_w1')
                    a(f's_cmp_ge_u32 s{sC}, 6')
                    a(f's_cbranch_scc1 {l2}')
                    a('s_waitcnt vmcnt(4)')
                    a(f's_branch {l3}')
                    a.label(l2)
                    a('s_waitcnt vmcnt(0)')
                    a.label(l3)
                    a('s_barrier')
                    a.label(l1)
                a('s_waitcnt lgkmcnt(0)')
                kb = vK[0] if t + 2 < 8 else vK[1]
                b_ = 0 if t + 1 < 8 else 1
                a(f'ds_read_b128 {R(Kc,4)}, v{kb} offset:{((t+2)%8)*1024}')
                a(f'ds_read_b128 {R(Vn,4)}, v{vV0[b_]} offset:{((t+1)%8)*VT}')
                a(f'ds_read_b128 {R(Vn+4,4)}, v{vV1[b_]} offset:{((t+1)%8)*VT}')
            else:
                if 1 <= t <= 4:
                    l1 = a.newlabel('att_nodma')
                    a(f's_sub_u32 s{T0}, s{sC}, 1')
                    a(f's_cmp_ge_u32 s{T0}, 5')
                    a(f's_cbranch_scc1 {l1}')
                    if chain: a('s_setprio 3')
                    dma_one(t - 1, sBd)
                    if chain: a('s_setprio 0')
                    a.label(l1)
            for s in ex[6:8] + cv[0:4] + ex[8:10]: a(s)
            a(pv0)
            for s in ex[10:16] + cv[4:8]: a(s)
    a(f'v_mov_b32 v{vK[0]}, v{vK[1]}'); a(f'v_mov_b32 v{vV0[0]}, v{vV0[1]}'); a(f'v_mov_b32 v{vV1[0]}, v{vV1[1]}')
    a(f's_add_u32 s{sBn}, s{sBn}, {ATT_BUF}')
    a(f's_cmp_eq_u32 s{sBn}, {NBUF*ATT_BUF}')
    a(f's_cselect_b32 s{sBn}, 0, s{sBn}')
    a(f'v_add_u32 v{vK[1]}, s{sBn}, v{vL16}')
    a(f'v_add_u32 v{vV0[1]}, s{sBn}, v{vV0b}')
    a(f'v_add_u32 v{vV1[1]}, s{sBn}, v{vV1b}')
    a(f's_add_u32 s{T0}, s{sC}, 3')
    a(f's_and_b32 s{T0}, s{T0}, 3')
    a(f's_mul_i32 s{sBd}, s{T0}, {ATT_BUF}')
    a(f's_add_u32 s{sC}, s{sC}, 1')
    a(f's_cmp_lt_u32 s{sC}, 8')
    a('s_cbranch_scc1 att_loop')
    a(f'{MF} {R(OB,16)}, {R(Vv[1]+4,4)}, {R(P+4,4)}, {R(OB,16)}')
    stamp(a, 2)
    a('s_waitcnt lgkmcnt(0)')
    a.label('att_fin')
    a('s_nop 12')
    LA, LB = SA, SA + 2
    for L_, O_ in ((LA, OA), (LB, OB)):
        a(f'v_mov_b32 v{L_}, v{O_+8}')
        a(f'v_mov_b32 v{L_+1}, v{O_+8}')
    a('s_nop 1')
    a(f'v_permlane32_swap_b32 v{LA}, v{LA+1}')
    a(f'v_permlane32_swap_b32 v{LB}, v{LB+1}')
    lok = a.newlabel('att_ok')
    a(f's_cmp_lg_u32 s{sFb}, 0')
    a(f's_cbranch_scc1 {lok}')
    a(f'v_min_f32 v{t0}, v{LA}, v{LB}')
    a(f'v_max_f32 v{t1}, v{LA}, v{LB}')
    a(f'v_add_f32 v{SA+4}, v{LA}, v{LB}')
    a(f's_mov_b32 s{T0}, {hex(f32bits(2.0**-60))}')
    a(f's_mov_b32 s{T1}, {hex(f32bits(2.0**60))}')
    a(f'v_cmp_gt_f32 vcc, s{T0}, v{t0}')
    a(f'v_cmp_lt_f32 s[54:55], s{T1}, v{t1}')
    a(f'v_cmp_u_f32 s[56:57], v{SA+4}, v{SA+4}')
    a('s_or_b64 vcc, vcc, s[54:55]')
    a('s_or_b64 vcc, vcc, s[56:57]')
    a('s_cbranch_scc1 att_fallback')
    a.label(lok)
    a(f'v_rcp_f32 v{LA}, v{LA}')
    a(f'v_rcp_f32 v{LB}, v{LB}')
    a(f's_lshl_b32 s{T0}, s{sTT}, 5')
    a(f's_add_u32 s{T0}, s{T0}, s{sHead}')
    a(f's_lshl_b32 s{T0}, s{T0}, 10')
    a(f's_add_u32 s{T0}, s{T0}, {hex(OF)}')
    for n, (L_, O_) in enumerate(((LA, OA), (LB, OB))):
        for i in range(8):
            a(f'v_mul_f32 v{O_+i}, v{O_+i}, v{L_}')
        for i in range(4):
            a(f'v_cvt_pk_bf16_f32 v{P+4*n+i}, v{O_+2*i}, v{O_+2*i+1}')
        if n: a(f's_add_u32 s{T0}, s{T0}, 32768')
        a('s_nop 1')
        b = P + 4 * n
        a(f'v_permlane32_swap_b32 v{b}, v{b+2}')
        a(f'v_permlane32_swap_b32 v{b+1}, v{b+3}')
        a('s_nop 1')
        a(f'buffer_store_dwordx4 {R(b,4)}, v{vL16}, {ws}, s{T0} offen {"sc1" if chain else ""}')
    if chain:
        a('s_waitcnt vmcnt(0)')
        a('s_barrier')
        lab = a.newlabel('Lsig')
        a(f's_cmp_lg_u32 s{sW}, 0')
        a(f's_cbranch_scc1 {lab}')
        a(f's_lshr_b32 s{T0}, s{sId}, 5')
        a(f's_lshl_b32 s{T0}, s{T0}, 7')
        a(f's_add_u32 s{T0}, s{T0}, {hex(FLG + 48 * 128)}')
        a(f'v_mov_b32 v{t0}, 0')
        a(f'v_mov_b32 v{t1}, 1')
        a('s_mov_b64 exec, 1')
        a(f'buffer_atomic_add v{t1}, v{t0}, {ws}, s{T0} offen sc1')
        a('s_mov_b64 exec, -1')
        a.label(lab)
    stamp_flush(a, 3, 1)
    a('s_endpgm')

    a.label('att_fallback')
    a(f's_mov_b32 s{sFb}, 1')
    a(f's_lshl_b32 s{sKoff}, s{sHead}, 10')
    a(f's_add_u32 s{sVoff}, s{sKoff}, {hex(VF)}')
    a(f's_add_u32 s{sKoff}, s{sKoff}, {hex(KF)}')
    mA, mB = NA, NB
    for i in range(16):
        a(f'v_mov_b32 v{mA+i}, 0xff800000'); a(f'v_mov_b32 v{mB+i}, 0xff800000')
    a(f's_mov_b32 s{sC}, 0')
    a(f's_mov_b32 s{T0}, s{sKoff}')
    a.label('att_fb1')
    a(f'buffer_load_dwordx4 {R(K[0],4)}, v{vL16}, {ws}, s{T0} offen')
    a('s_waitcnt vmcnt(0)')
    a(f'{MF} {R(SA,16)}, {R(K[0],4)}, {R(QA,4)}, 0')
    a(f'{MF} {R(SB,16)}, {R(K[0],4)}, {R(QB,4)}, 0')
    a('s_nop 12')
    for i in range(16):
        a(f'v_max_f32 v{mA+i}, v{mA+i}, v{SA+i}')
    for i in range(16):
        a(f'v_max_f32 v{mB+i}, v{mB+i}, v{SB+i}')
    a(f's_add_u32 s{T0}, s{T0}, 32768')
    a(f's_add_u32 s{sC}, s{sC}, 1')
    a(f's_cmp_lt_u32 s{sC}, 64')
    a('s_cbranch_scc1 att_fb1')
    for i in range(16):
        a(f'v_mov_b32 v{SA+i}, v{mA+i}'); a(f'v_mov_b32 v{SB+i}, v{mB+i}')
    rowmax_to_neg(SA, NA)
    rowmax_to_neg(SB, NB)
    for i in range(16):
        a(f'v_mov_b32 v{OA+i}, 0'); a(f'v_mov_b32 v{OB+i}, 0')
    a(f'v_and_b32 v{t0}, 31, v{vLane}')
    a(f'v_cmp_eq_u32 vcc, 16, v{t0}')
    a(f'v_mov_b32 v{t1}, 0x3f803f80')
    a('s_nop 0')
    for i in range(8):
        a(f'v_cndmask_b32 v{Vv[0]+i}, 0, v{t1}, vcc')
    a(f's_mov_b32 s{sC}, 0')
    a.label('att_fb2')
    a(f'buffer_load_dwordx4 {R(K[0],4)}, v{vL16}, {ws}, s{sKoff} offen')
    a(f's_mov_b64 exec, s[{sEx}:{sEx+1}]')
    a(f'buffer_load_dwordx4 {R(Vv[0],4)}, v{vVo}, {ws}, s{sVoff} offen')
    a(f'buffer_load_dwordx4 {R(Vv[0]+4,4)}, v{vVo}, {ws}, s{sVoff} offen offset:512')
    a('s_mov_b64 exec, -1')
    a('s_waitcnt vmcnt(0)')
    a(f'{MF} {R(SA,16)}, {R(K[0],4)}, {R(QA,4)}, {R(NA,16)}')
    a(f'{MF} {R(SB,16)}, {R(K[0],4)}, {R(QB,4)}, {R(NB,16)}')
    a('s_nop 12')
    for S_, O_ in ((SA, OA), (SB, OB)):
        for i in range(16):
            a(f'v_exp_f32 v{S_+i}, v{S_+i}')
        a('s_nop 0')
        for i in range(8):
            a(f'v_cvt_pk_bf16_f32 v{P+i}, v{S_+2*i}, v{S_+2*i+1}')
        a('s_nop 1')
        a(f'{MF} {R(O_,16)}, {R(Vv[0],4)}, {R(P,4)}, {R(O_,16)}')
        a(f'{MF} {R(O_,16)}, {R(Vv[0]+4,4)}, {R(P+4,4)}, {R(O_,16)}')
    a(f's_add_u32 s{sKoff}, s{sKoff}, 32768')
    a(f's_add_u32 s{sVoff}, s{sVoff}, 32768')
    a(f's_add_u32 s{sC}, s{sC}, 1')
    a(f's_cmp_lt_u32 s{sC}, 64')
    a('s_nop 7')
    a('s_nop 7')
    a('s_cbranch_scc1 att_fb2')
    a('s_branch att_fin')
    return va.hi

def att_kernel(a):
    name = 'att_kernel'
    kernel_header(a, name)
    a('s_cmp_ge_u32 s2, 256')
    a('s_cbranch_scc1 att_end')
    stamp(a, 0)
    a('s_load_dwordx2 s[34:35], s[0:1], 80')
    a('s_waitcnt lgkmcnt(0)')
    srd(a, sWS, 34, WS_BYTES)
    hi = att_body(a, 2)
    a.label('att_end')
    a('s_endpgm')
    return name, hi, ATT_LDS
```

```python
from core import *

VT = 1056
ATT_BUF = 8192 + 8 * VT
NBUF = 3
ATT_LDS = NBUF * ATT_BUF
def R(b, n): return V(b, n)
MF = 'v_mfma_f32_32x32x16_bf16'

def att_body(a, sId, chain=False):
    va = RegAlloc(2, 256)
    sW, sHead, sTT, sKoff, sVoff, sC, sBn, sBd, T0, T1, sM0, sFb = range(36, 48)
    sMK, sMV = 48, 49
    sEx = 50
    vLane = 1
    if chain: a('s_setprio 3')
    wave_lane(a, sW, vLane)
    ws = f's[{sWS}:{sWS+3}]'
    a(f's_and_b32 s{T0}, s{sId}, 7')
    a(f's_lshl_b32 s{sHead}, s{T0}, 2')
    a(f's_lshr_b32 s{T0}, s{sId}, 3')
    a(f's_and_b32 s{T0}, s{T0}, 3')
    a(f's_add_u32 s{sHead}, s{sHead}, s{T0}')
    a(f's_lshr_b32 s{sTT}, s{sId}, 5')
    a(f's_lshl_b32 s{sTT}, s{sTT}, 2')
    a(f's_add_u32 s{sTT}, s{sTT}, s{sW}')
    a(f's_mov_b32 s{sEx}, 0x0000ffff'); a(f's_mov_b32 s{sEx+1}, 0x0000ffff')
    vL16 = va(); vVo = va(); t0 = va(); t1 = va()
    vK = [va(), va()]; vV0 = [va(), va()]; vV1 = [va(), va()]
    vV0b = va(); vV1b = va()
    S0, S1, N, O = [va(16, 4) for _ in range(4)]
    Sb = [S0, S1]
    P = va(8, 4); Q = va(4)
    K = [va(4), va(4)]; Vv = [va(8, 4), va(8, 4)]
    a(f'v_lshlrev_b32 v{vL16}, 4, v{vLane}')
    a(f's_lshl_b32 s{sKoff}, s{sW}, 6')
    a(f's_add_u32 s{sKoff}, s{sKoff}, s{sHead}')
    a(f's_lshl_b32 s{sKoff}, s{sKoff}, 10')
    a(f's_add_u32 s{sVoff}, s{sKoff}, {hex(VF)}')
    a(f's_add_u32 s{sKoff}, s{sKoff}, {hex(KF)}')
    a(f's_lshl_b32 s{sMK}, s{sW}, 11')
    a(f's_mul_i32 s{sMV}, s{sW}, {2*VT}')
    a(f's_add_u32 s{sMV}, s{sMV}, 8192')

    def dma_one(i, sBuf):
        j = i // 2
        if i % 2 == 0:
            a(f's_add_u32 s{sM0}, s{sMK}, s{sBuf}')
            a(f's_add_u32 m0, s{sM0}, {j*1024}')
            a(f's_add_u32 s{T0}, s{sKoff}, {j*32768}')
        else:
            a(f's_add_u32 s{sM0}, s{sMV}, s{sBuf}')
            a(f's_add_u32 m0, s{sM0}, {j*VT}')
            a(f's_add_u32 s{T0}, s{sVoff}, {j*32768}')
        a(f'buffer_load_dwordx4 v{vL16}, {ws}, s{T0} offen lds')
        if i == 3:
            a(f's_add_u32 s{sKoff}, s{sKoff}, {8*32768}')
            a(f's_add_u32 s{sVoff}, s{sVoff}, {8*32768}')

    a(f's_mov_b32 s{sBd}, 0')
    for i in range(4): dma_one(i, sBd)
    a(f's_lshl_b32 s{T0}, s{sTT}, 5')
    a(f's_add_u32 s{T0}, s{T0}, s{sHead}')
    a(f's_lshl_b32 s{T0}, s{T0}, 10')
    a(f'buffer_load_dwordx4 {R(Q,4)}, v{vL16}, {ws}, s{T0} offen')
    a(f's_mov_b32 s{sBd}, {ATT_BUF}')
    for i in range(4): dma_one(i, sBd)
    a(f's_mov_b32 s{sBd}, {2*ATT_BUF}')
    a(f's_mov_b32 s{sBn}, {ATT_BUF}')
    a(f'v_and_b32 v{vVo}, 15, v{vLane}')
    a(f'v_lshlrev_b32 v{vVo}, 4, v{vVo}')
    a(f'v_lshrrev_b32 v{t0}, 5, v{vLane}')
    a(f'v_lshl_add_u32 v{vVo}, v{t0}, 8, v{vVo}')
    a(f'v_and_b32 v{t0}, 31, v{vLane}')
    a(f'v_cmp_eq_u32 vcc, 16, v{t0}')
    a(f'v_mov_b32 v{t1}, {8192+1040}')
    a(f'v_mov_b32 v{vV0b}, {8192+1024}')
    a(f'v_cndmask_b32 v{t1}, v{t1}, v{vV0b}, vcc')
    a(f'v_cmp_gt_u32 vcc, 16, v{t0}')
    a(f'v_add_u32 v{vV0b}, 8192, v{vVo}')
    a(f'v_add_u32 v{vV1b}, {8192+512}, v{vVo}')
    a(f'v_cndmask_b32 v{vV0b}, v{t1}, v{vV0b}, vcc')
    a(f'v_cndmask_b32 v{vV1b}, v{t1}, v{vV1b}, vcc')
    lpad = a.newlabel('att_pad')
    a(f's_cmp_lg_u32 s{sW}, 0')
    a(f's_cbranch_scc1 {lpad}')
    a(f'v_and_b32 v{t0}, 1, v{vLane}')
    a(f'v_cmp_eq_u32 vcc, 0, v{t0}')
    a(f'v_mov_b32 v{t1}, 0x3f803f80')
    a(f'v_lshlrev_b32 v{t0}, 4, v{t0}')
    for i in range(4):
        a(f'v_cndmask_b32 v{P+i}, 0, v{t1}, vcc')
    a(f'v_lshrrev_b32 v{t1}, 4, v{vLane}')
    a(f's_mov_b32 s{T0}, {ATT_BUF}')
    a(f'v_mul_lo_u32 v{t1}, v{t1}, s{T0}')
    a(f'v_add_u32 v{t0}, v{t0}, v{t1}')
    a(f'v_bfe_u32 v{t1}, v{vLane}, 1, 3')
    a(f's_mov_b32 s{T0}, {VT}')
    a(f'v_mul_lo_u32 v{t1}, v{t1}, s{T0}')
    a(f'v_add_u32 v{t0}, v{t0}, v{t1}')
    a(f's_mov_b32 exec_hi, 0x0000ffff')
    a(f'ds_write_b128 v{t0}, {R(P,4)} offset:{8192+1024}')
    a('s_mov_b64 exec, -1')
    a.label(lpad)
    for i in range(16): a(f'v_mov_b32 v{O+i}, 0')
    for i in range(4):
        a(f'v_mov_b32 v{P+4+i}, 0')
        a(f'v_mov_b32 v{Vv[1]+4+i}, 0')
    a(f'v_mov_b32 v{vK[0]}, v{vL16}'); a(f'v_mov_b32 v{vV0[0]}, v{vV0b}'); a(f'v_mov_b32 v{vV1[0]}, v{vV1b}')
    a(f'v_add_u32 v{vK[1]}, {ATT_BUF}, v{vL16}')
    a(f'v_add_u32 v{vV0[1]}, {ATT_BUF}, v{vV0b}')
    a(f'v_add_u32 v{vV1[1]}, {ATT_BUF}, v{vV1b}')
    a(f's_mov_b32 s{sFb}, 0')
    a('s_waitcnt vmcnt(4) lgkmcnt(0)')
    a('s_barrier')
    stamp(a, 1)
    a(f'ds_read_b128 {R(K[0],4)}, v{vK[0]}')
    a(f'ds_read_b128 {R(K[1],4)}, v{vK[0]} offset:1024')
    a(f'ds_read_b128 {R(Vv[0],4)}, v{vV0[0]}')
    a(f'ds_read_b128 {R(Vv[0]+4,4)}, v{vV1[0]}')
    a('s_waitcnt lgkmcnt(3)')
    a(f'{MF} {R(S0,16)}, {R(K[0],4)}, {R(Q,4)}, 0')
    a('s_nop 11')

    def rowmax_to_neg(S_, N_):
        a(f'v_max3_f32 v{t0}, v{S_}, v{S_+1}, v{S_+2}')
        for i in range(3, 15, 2):
            a(f'v_max3_f32 v{t0}, v{t0}, v{S_+i}, v{S_+i+1}')
        a(f'v_max_f32 v{t0}, v{t0}, v{S_+15}')
        a(f'v_mov_b32 v{t1}, v{t0}')
        a('s_nop 1')
        a(f'v_permlane32_swap_b32 v{t0}, v{t1}')
        a('s_nop 1')
        a(f'v_max_f32 v{t0}, v{t0}, v{t1}')
        for i in range(16):
            a(f'v_sub_f32 v{N_+i}, 0, v{t0}')
    rowmax_to_neg(S0, N)
    a('s_nop 1')
    a(f'{MF} {R(S0,16)}, {R(K[0],4)}, {R(Q,4)}, {R(N,16)}')
    a(f's_mov_b32 s{sC}, 0')
    a('s_waitcnt lgkmcnt(0)')
    a(f'ds_read_b128 {R(K[0],4)}, v{vK[0]} offset:2048')
    a('s_nop 7')
    if chain: a('s_setprio 0')
    a.label('att_loop')
    for t in range(8):
        cur, nxt = Sb[t % 2], Sb[(t + 1) % 2]
        Kn = K[(t + 1) % 2]
        Vc, Vn = Vv[t % 2], Vv[(t + 1) % 2]
        qk = f'{MF} {R(nxt,16)}, {R(Kn,4)}, {R(Q,4)}, {R(N,16)}'
        pv1 = f'{MF} {R(O,16)}, {R(Vn+4,4)}, {R(P+4,4)}, {R(O,16)}'
        pv0 = f'{MF} {R(O,16)}, {R(Vc,4)}, {R(P,4)}, {R(O,16)}'
        ex = [f'v_exp_f32 v{cur+i}, v{cur+i}' for i in range(16)]
        cv = [f'v_cvt_pk_bf16_f32 v{P+i}, v{cur+2*i}, v{cur+2*i+1}' for i in range(8)]
        a(qk)
        for s in ex[0:6]: a(s)
        a(pv1)
        if t == 5:
            l1 = a.newlabel('att_nosync')
            a(f's_cmp_ge_u32 s{sC}, 7')
            a(f's_cbranch_scc1 {l1}')
            a('s_waitcnt vmcnt(0)')
            a('s_barrier')
            a.label(l1)
        a('s_waitcnt lgkmcnt(0)')
        kb = vK[0] if t + 3 < 8 else vK[1]
        b_ = 0 if t + 1 < 8 else 1
        a(f'ds_read_b128 {R(Kn,4)}, v{kb} offset:{((t+3)%8)*1024}')
        a(f'ds_read_b128 {R(Vn,4)}, v{vV0[b_]} offset:{((t+1)%8)*VT}')
        a(f'ds_read_b128 {R(Vn+4,4)}, v{vV1[b_]} offset:{((t+1)%8)*VT}')
        for s in ex[6:8] + cv[0:4] + ex[8:10]: a(s)
        a(pv0)
        if t in (5, 6, 7) or t == 0:
            piece = {5: 0, 6: 1, 7: 2, 0: 3}[t]
            l1 = a.newlabel('att_nodma')
            if t == 0:
                a(f's_sub_u32 s{T0}, s{sC}, 1')
                a(f's_cmp_ge_u32 s{T0}, 6')
            else:
                a(f's_cmp_ge_u32 s{sC}, 6')
            a(f's_cbranch_scc1 {l1}')
            if chain: a('s_setprio 3')
            dma_one(piece, sBd)
            if chain: a('s_setprio 0')
            if t == 0:
                a(f's_add_u32 s{sBd}, s{sBd}, {ATT_BUF}')
                a(f's_cmp_eq_u32 s{sBd}, {NBUF*ATT_BUF}')
                a(f's_cselect_b32 s{sBd}, 0, s{sBd}')
            a.label(l1)
        for s in ex[10:16] + cv[4:8]: a(s)
    a(f'v_mov_b32 v{vK[0]}, v{vK[1]}'); a(f'v_mov_b32 v{vV0[0]}, v{vV0[1]}'); a(f'v_mov_b32 v{vV1[0]}, v{vV1[1]}')
    a(f's_add_u32 s{sBn}, s{sBn}, {ATT_BUF}')
    a(f's_cmp_eq_u32 s{sBn}, {NBUF*ATT_BUF}')
    a(f's_cselect_b32 s{sBn}, 0, s{sBn}')
    a(f'v_add_u32 v{vK[1]}, s{sBn}, v{vL16}')
    a(f'v_add_u32 v{vV0[1]}, s{sBn}, v{vV0b}')
    a(f'v_add_u32 v{vV1[1]}, s{sBn}, v{vV1b}')
    a(f's_add_u32 s{sC}, s{sC}, 1')
    a(f's_cmp_lt_u32 s{sC}, 8')
    a('s_cbranch_scc1 att_loop')
    a(f'{MF} {R(O,16)}, {R(Vv[1]+4,4)}, {R(P+4,4)}, {R(O,16)}')
    stamp(a, 2)
    a('s_waitcnt lgkmcnt(0)')
    a.label('att_fin')
    a('s_nop 12')
    L = S0
    a(f'v_mov_b32 v{L}, v{O+8}')
    a(f'v_mov_b32 v{L+1}, v{O+8}')
    a('s_nop 1')
    a(f'v_permlane32_swap_b32 v{L}, v{L+1}')
    lok = a.newlabel('att_ok')
    a(f's_cmp_lg_u32 s{sFb}, 0')
    a(f's_cbranch_scc1 {lok}')
    a(f's_mov_b32 s{T0}, {hex(f32bits(2.0**-60))}')
    a(f's_mov_b32 s{T1}, {hex(f32bits(2.0**60))}')
    a(f'v_cmp_nle_f32 vcc, s{T0}, v{L}')
    a(f'v_cmp_nge_f32 s[54:55], s{T1}, v{L}')
    a('s_or_b64 vcc, vcc, s[54:55]')
    a('s_cbranch_scc1 att_fallback')
    a.label(lok)
    a(f'v_rcp_f32 v{L}, v{L}')
    a(f's_lshl_b32 s{T0}, s{sTT}, 5')
    a(f's_add_u32 s{T0}, s{T0}, s{sHead}')
    a(f's_lshl_b32 s{T0}, s{T0}, 10')
    a(f's_add_u32 s{T0}, s{T0}, {hex(OF)}')
    for i in range(8):
        a(f'v_mul_f32 v{O+i}, v{O+i}, v{L}')
    for i in range(4):
        a(f'v_cvt_pk_bf16_f32 v{P+i}, v{O+2*i}, v{O+2*i+1}')
    a('s_nop 1')
    a(f'v_permlane32_swap_b32 v{P}, v{P+2}')
    a(f'v_permlane32_swap_b32 v{P+1}, v{P+3}')
    a('s_nop 1')
    a(f'buffer_store_dwordx4 {R(P,4)}, v{vL16}, {ws}, s{T0} offen {"sc1" if chain else ""}')
    if chain:
        a('s_waitcnt vmcnt(0)')
        a('s_barrier')
        lab = a.newlabel('Lsig')
        a(f's_cmp_lg_u32 s{sW}, 0')
        a(f's_cbranch_scc1 {lab}')
        a(f's_lshr_b32 s{T0}, s{sId}, 5')
        a(f's_lshl_b32 s{T0}, s{T0}, 7')
        a(f's_add_u32 s{T0}, s{T0}, {hex(FLG + 48 * 128)}')
        a(f'v_mov_b32 v{t0}, 0')
        a(f'v_mov_b32 v{t1}, 1')
        a('s_mov_b64 exec, 1')
        a(f'buffer_atomic_add v{t1}, v{t0}, {ws}, s{T0} offen sc1')
        a('s_mov_b64 exec, -1')
        a.label(lab)
    stamp_flush(a, 3, 1)
    a('s_endpgm')

    a.label('att_fallback')
    a(f's_mov_b32 s{sFb}, 1')
    a(f's_lshl_b32 s{sKoff}, s{sHead}, 10')
    a(f's_add_u32 s{sVoff}, s{sKoff}, {hex(VF)}')
    a(f's_add_u32 s{sKoff}, s{sKoff}, {hex(KF)}')
    for i in range(16): a(f'v_mov_b32 v{S1+i}, 0xff800000')
    a(f's_mov_b32 s{sC}, 0')
    a(f's_mov_b32 s{T0}, s{sKoff}')
    a.label('att_fb1')
    a(f'buffer_load_dwordx4 {R(K[0],4)}, v{vL16}, {ws}, s{T0} offen')
    a('s_waitcnt vmcnt(0)')
    a(f'{MF} {R(S0,16)}, {R(K[0],4)}, {R(Q,4)}, 0')
    a('s_nop 12')
    for i in range(16): a(f'v_max_f32 v{S1+i}, v{S1+i}, v{S0+i}')
    a(f's_add_u32 s{T0}, s{T0}, 32768')
    a(f's_add_u32 s{sC}, s{sC}, 1')
    a(f's_cmp_lt_u32 s{sC}, 64')
    a('s_cbranch_scc1 att_fb1')
    rowmax_to_neg(S1, N)
    for i in range(16): a(f'v_mov_b32 v{O+i}, 0')
    a(f'v_and_b32 v{t0}, 31, v{vLane}')
    a(f'v_cmp_eq_u32 vcc, 16, v{t0}')
    a(f'v_mov_b32 v{t1}, 0x3f803f80')
    a('s_nop 0')
    for i in range(8): a(f'v_cndmask_b32 v{Vv[0]+i}, 0, v{t1}, vcc')
    a(f's_mov_b32 s{sC}, 0')
    a.label('att_fb2')
    a(f'buffer_load_dwordx4 {R(K[0],4)}, v{vL16}, {ws}, s{sKoff} offen')
    a(f's_mov_b64 exec, s[{sEx}:{sEx+1}]')
    a(f'buffer_load_dwordx4 {R(Vv[0],4)}, v{vVo}, {ws}, s{sVoff} offen')
    a(f'buffer_load_dwordx4 {R(Vv[0]+4,4)}, v{vVo}, {ws}, s{sVoff} offen offset:512')
    a('s_mov_b64 exec, -1')
    a('s_waitcnt vmcnt(0)')
    a(f'{MF} {R(S0,16)}, {R(K[0],4)}, {R(Q,4)}, {R(N,16)}')
    a('s_nop 12')
    for i in range(16): a(f'v_exp_f32 v{S0+i}, v{S0+i}')
    a('s_nop 0')
    for i in range(8): a(f'v_cvt_pk_bf16_f32 v{P+i}, v{S0+2*i}, v{S0+2*i+1}')
    a('s_nop 1')
    a(f'{MF} {R(O,16)}, {R(Vv[0],4)}, {R(P,4)}, {R(O,16)}')
    a(f'{MF} {R(O,16)}, {R(Vv[0]+4,4)}, {R(P+4,4)}, {R(O,16)}')
    a(f's_add_u32 s{sKoff}, s{sKoff}, 32768')
    a(f's_add_u32 s{sVoff}, s{sVoff}, 32768')
    a(f's_add_u32 s{sC}, s{sC}, 1')
    a(f's_cmp_lt_u32 s{sC}, 64')
    a('s_nop 7')
    a('s_nop 7')
    a('s_cbranch_scc1 att_fb2')
    a('s_branch att_fin')
    return va.hi
```

```python
from core import *

ST_MR1, ST_R1 = ST, ST + 0x2000
SCR = 4 * 32768
G1HELP = os.environ.get('G1HELP', '1') == '1'
G1_LDS = SCR + 16384

def unpack8(a, src, dst):
    for j in range(4):
        a(f'v_lshlrev_b32 v{dst+2*j}, 16, v{src+j}')
        a(f'v_and_b32 v{dst+2*j+1}, 0xffff0000, v{src+j}')

def g1_kernel(a):
    name = 'g1_kernel'
    kernel_header(a, name)
    a('s_cmp_ge_u32 s2, 256')
    a('s_cbranch_scc1 g1_end')
    stamp(a, 0)
    a('s_load_dwordx4 s[24:27], s[0:1], 0')
    a('s_load_dwordx2 s[28:29], s[0:1], 32')
    a('s_load_dwordx2 s[30:31], s[0:1], 48')
    a('s_load_dwordx2 s[34:35], s[0:1], 80')
    sW, sRB, sCB, sXoff, sWoff, sCol0 = 36, 37, 38, 39, 40, 41
    T0, T1, T2, T3 = 43, 44, 45, 46
    vLane = 1
    wave_lane(a, sW, vLane)
    a(f's_and_b32 s{T0}, s2, 7')
    a(f's_lshr_b32 s{T1}, s2, 3')
    a(f's_lshr_b32 s{T2}, s{T0}, 1')
    a(f's_lshl_b32 s{T2}, s{T2}, 2')
    a(f's_and_b32 s{T3}, s{T1}, 3')
    a(f's_add_u32 s{sRB}, s{T2}, s{T3}')
    a(f's_and_b32 s{T2}, s{T0}, 1')
    a(f's_lshl_b32 s{T2}, s{T2}, 3')
    a(f's_lshr_b32 s{T3}, s{T1}, 2')
    a(f's_add_u32 s{sCB}, s{T2}, s{T3}')
    a('s_waitcnt lgkmcnt(0)')
    srd(a, sXSRD, 24, 2048 * 1024)
    srd(a, sWS, 34, WS_BYTES)
    srd(a, sAUX, 30, 512 * 2752)
    a(f's_lshl_b32 s{sXoff}, s{sRB}, 17')
    a(f's_lshl_b32 s{T0}, s{sW}, 13')
    a(f's_add_u32 s{sXoff}, s{sXoff}, s{T0}')
    a(f's_cmp_ge_u32 s{sCB}, 12')
    a('s_cbranch_scc1 g1_w1')
    srd(a, sWSRD, 26, 512 * 3072)
    a(f's_lshl_b32 s{sCol0}, s{sCB}, 8')
    a(f's_cmp_ge_u32 s{sCB}, 8')
    a('s_cbranch_scc1 g1_v')
    hi = 0
    for kind in ('qk', 'v', 'w1'):
        if kind == 'v': a.label('g1_v')
        if kind == 'w1':
            a.label('g1_w1')
            srd(a, sWSRD, 28, 512 * 1024)
            a(f's_sub_u32 s{sCol0}, s{sCB}, 12')
            a(f's_lshl_b32 s{sCol0}, s{sCol0}, 8')
        va = RegAlloc(2, 256)
        p = G()
        p.TT, p.FT, p.WR, p.WC, p.KS, p.NST = 4, 4, 2, 2, 32, 4
        p.xmode = 'row'; p.rowbytes = 1024 if kind == 'w1' else 3072
        p.orient = 'N' if kind == 'v' else 'T'
        p.xstats = True; p.wsum = True
        p.sW, p.sXoff, p.sWoff, p.vLane, p.xsrd, p.ldflags, p.stmp = sW, sXoff, sWoff, vLane, sXSRD, '', 48
        p.xtile = 32768
        p.sRot, p.sRotC, p.sRotX, p.sRotW = 42, 58, 59, 60
        p.init_chunks = int(os.environ.get('G1INIT', '2'))
        a(f's_and_b32 s{T0}, s{sRB}, 3')
        a(f's_lshl_b32 s{T0}, s{T0}, 1')
        a(f's_add_u32 s{p.sRot}, s{T0}, s{sCB}')
        if os.environ.get('G1ROT', '1') == '0': a(f's_mov_b32 s{p.sRot}, 0')
        if os.environ.get('G1ROT', '1') == '2':
            a(f's_and_b32 s{p.sRot}, s{p.sRot}, 1')
            a(f's_lshl_b32 s{p.sRot}, s{p.sRot}, 2')
        a(f's_mul_i32 s{sWoff}, s{sW}, {16 * p.rowbytes}')
        a(f's_add_u32 s{sWoff}, s{sWoff}, s{sCol0}')
        if G1HELP:
            lh = a.newlabel('Lnoh')
            a(f's_cmp_lt_u32 s{sW}, 4')
            a(f's_cbranch_scc1 {lh}')
            vT, vD = 2, 4
            a(f'v_lshrrev_b32 v{vT}, 1, v{vLane}')
            a(f's_mov_b32 s{T0}, {p.rowbytes}')
            a(f'v_mul_lo_u32 v{vT}, v{vT}, s{T0}')
            a(f'v_and_b32 v{vD}, 1, v{vLane}')
            a(f'v_lshl_add_u32 v{vT}, v{vD}, 7, v{vT}')
            a(f's_and_b32 s{T0}, s{sRB}, 3')
            a(f's_mul_i32 s{T0}, s{T0}, {128 * p.rowbytes}')
            a(f's_add_u32 s{T0}, s{T0}, s{sCol0}')
            a(f'v_lshlrev_b32 v3, 10, v{vLane}')
            a(f's_lshl_b32 s{T2}, s{sRB}, 17')
            a(f's_and_b32 s{T1}, s{sCB}, 7')
            a(f's_lshl_b32 s{T1}, s{T1}, 7')
            a(f's_add_u32 s{T2}, s{T2}, s{T1}')
            a('s_barrier')
            for i in range(4):
                a(f'buffer_load_dword v{vD+i}, v{vT}, s[{sWSRD}:{sWSRD+3}], s{T0} offen')
                a(f's_add_u32 s{T0}, s{T0}, {32 * p.rowbytes}')
                if i % 2 == 0:
                    a(f'buffer_load_dword v{vD+4+i}, v3, s[{sXSRD}:{sXSRD+3}], s{T2} offen')
                    a(f's_add_u32 s{T2}, s{T2}, 65536')
            a('s_endpgm')
            a.label(lh)
        gemm_setup(a, va, p)
        l3 = [va(4), va(4)]; u = va(8, 4); tA = va(); tB = va()

        def after_issue():
            if G1HELP: a('s_barrier')
            lab = a.newlabel('Lz')
            a('s_cmp_lg_u32 s2, 255')
            a(f's_cbranch_scc1 {lab}')
            a(f'v_lshlrev_b32 v{tA}, 5, v0')
            a(f'v_mov_b32 v{tB}, 0')
            a(f's_mov_b32 s{T0}, {hex(FLG)}')
            a(f'buffer_store_dword v{tB}, v{tA}, s[{sWS}:{sWS+3}], s{T0} offen')
            a.label(lab)
            a(f's_and_b32 s{T0}, s2, 15')
            a(f's_mul_i32 s{T0}, s{T0}, {32 * 2752}')
            a(f's_lshr_b32 s{T1}, s2, 4')
            a(f's_min_u32 s{T1}, s{T1}, 10')
            a(f's_lshl_b32 s{T1}, s{T1}, 8')
            a(f's_add_u32 s{T0}, s{T0}, s{T1}')
            a(f'v_lshrrev_b32 v{tA}, 4, v0')
            a(f's_mov_b32 s{T1}, 2752')
            a(f'v_mul_lo_u32 v{tA}, v{tA}, s{T1}')
            a(f'v_and_b32 v{tB}, 15, v0')
            a(f'v_lshl_add_u32 v{tA}, v{tB}, 4, v{tA}')
            a(f'buffer_load_dwordx4 {V(l3[0],4)}, v{tA}, s[{sAUX}:{sAUX+3}], s{T0} offen')
            a(f's_add_u32 s{T0}, s{T0}, {16 * 2752}')
            a(f'buffer_load_dwordx4 {V(l3[1],4)}, v{tA}, s[{sAUX}:{sAUX+3}], s{T0} offen')
            p.vm.append('x'); p.vm.append('x')
        p.after_issue = after_issue

        def after_sync(c):
            if c == 4:
                a(f'v_lshrrev_b32 v{tA}, 4, v0')
                a(f'v_lshlrev_b32 v{tA}, 9, v{tA}')
                a(f'v_and_b32 v{tB}, 15, v0')
                a(f'v_lshl_add_u32 v{tA}, v{tB}, 5, v{tA}')
                a(f'v_add_u32 v{tA}, {SCR}, v{tA}')
                for hf in range(2):
                    unpack8(a, l3[hf], u)
                    a(f'ds_write_b128 v{tA}, {V(u,4)} offset:{hf*8192}')
                    a(f'ds_write_b128 v{tA}, {V(u+4,4)} offset:{hf*8192+16}')
            if c == 5:
                lab = a.newlabel('Lc3')
                a(f's_cmp_ge_u32 s{sW}, 2')
                a(f's_cbranch_scc1 {lab}')
                a('s_cmp_ge_u32 s2, 176')
                a(f's_cbranch_scc1 {lab}')
                a(f'v_lshlrev_b32 v{tA}, 2, v0')
                a(f'v_add_u32 v{tB}, {SCR}, v{tA}')
                acc_ = l3[0]
                for blk in range(4):
                    for r in range(8):
                        a(f'ds_read_b32 v{u+r}, v{tB} offset:{(blk*8+r)*512}')
                    a('s_waitcnt lgkmcnt(0)')
                    for r in range(8):
                        if blk == 0 and r == 0: a(f'v_mov_b32 v{acc_}, v{u}')
                        else: a(f'v_add_f32 v{acc_}, v{acc_}, v{u+r}')
                a(f's_and_b32 s{T0}, s2, 15')
                a(f's_mul_i32 s{T0}, s{T0}, {1408 * 4}')
                a(f's_lshr_b32 s{T1}, s2, 4')
                a(f's_lshl_b32 s{T1}, s{T1}, 9')
                a(f's_add_u32 s{T0}, s{T0}, s{T1}')
                a(f's_add_u32 s{T0}, s{T0}, {hex(CS3)}')
                a(f'buffer_store_dword v{acc_}, v{tA}, s[{sWS}:{sWS+3}], s{T0} offen')
                a.label(lab)
        p.after_sync = after_sync
        acc = gemm_main(a, va, p)
        g1_epilogue(a, va, p, acc, kind, sRB, sCB, (T0, T1, T2, T3))
        stamp_flush(a, 3, 0)
        a('s_endpgm')
        hi = max(hi, va.hi)
    a.label('g1_end')
    a('s_endpgm')
    return name, hi, G1_LDS

def ln_scalars(a, mean, ex2, q, n):
    var, m1, s1, rs = q[0], q[1], q[2], q[3]
    a(f'v_mul_f32 v{mean}, {hex(f32bits(1/n))}, v{mean}')
    a(f'v_mul_f32 v{ex2}, {hex(f32bits(1/n))}, v{ex2}')
    a(f'v_fma_f32 v{var}, -v{mean}, v{mean}, v{ex2}')
    a(f'v_max_f32 v{var}, 0, v{var}')
    a(f'v_mov_b32 v{m1}, v{mean}'); bf16_round(a, m1)
    a(f'v_mov_b32 v{s1}, v{var}'); bf16_round(a, s1)
    a(f'v_add_f32 v{s1}, {hex(f32bits(EPS))}, v{s1}'); bf16_round(a, s1)
    a(f'v_sqrt_f32 v{s1}, v{s1}'); a('s_nop 0'); bf16_round(a, s1)
    a(f'v_rcp_f32 v{rs}, v{s1}'); a('s_nop 0')

def ln_finalize(a, va, p, mode, sQ, sRB, sCB, T):
    T0, T1, T2, T3 = T
    t0, t1, t2 = p.t
    TW, FW = p.TW, p.FW
    m = va.mark()
    a('s_barrier')
    vL4 = va()
    a(f'v_lshlrev_b32 v{vL4}, 2, v{p.vLane}')
    a(f's_mul_i32 s{T0}, s{p.sWc}, {p.TT}')
    a(f's_mul_i32 s{T1}, s{p.sWr}, {TW}')
    a(f's_add_u32 s{T0}, s{T0}, s{T1}')
    a(f's_lshl_b32 s{T0}, s{T0}, 9')
    a(f'v_add_u32 v{t0}, s{T0}, v{vL4}')
    a('s_nop 1')
    for Tt in range(TW):
        for wh in range(2):
            a(f'ds_write_b32 v{t0}, v{p.xs[Tt][wh]} offset:{(Tt*2+wh)*256}')
    a(f's_mul_i32 s{T0}, s{p.sWr}, {p.FT}')
    a(f's_mul_i32 s{T1}, s{p.sWc}, {FW}')
    a(f's_add_u32 s{T0}, s{T0}, s{T1}')
    a(f's_lshl_b32 s{T0}, s{T0}, 8')
    a(f'v_add_u32 v{t0}, s{T0}, v{vL4}')
    for F in range(FW):
        a(f'ds_write_b32 v{t0}, v{p.wsumr[F]} offset:{4096 + F*256}')
    a('s_waitcnt lgkmcnt(0)')
    a('s_barrier')
    lf = a.newlabel('Lfeat'); ld = a.newlabel('Ldone')
    a(f's_cmp_ge_u32 s{p.sW}, 2')
    a(f's_cbranch_scc1 {lf}')
    q = [va() for _ in range(8)]
    z = [va() for _ in range(6)]
    a(f'v_lshrrev_b32 v{t0}, 5, v0')
    a(f'v_lshlrev_b32 v{t0}, 9, v{t0}')
    a(f'v_and_b32 v{t1}, 31, v0')
    a(f'v_lshl_add_u32 v{t0}, v{t1}, 2, v{t0}')
    k = 0
    for wh in range(2):
        for wc in range(p.WC):
            for h in range(2):
                a(f'ds_read_b32 v{q[k]}, v{t0} offset:{wc*p.TT*512 + wh*256 + h*128}'); k += 1
    a('s_waitcnt lgkmcnt(0)')
    npart = 2 * p.WC
    for wh in range(2):
        b = q[wh * npart]
        for j in range(1, npart):
            a(f'v_add_f32 v{b}, v{b}, v{q[wh*npart+j]}')
    mean, ex2 = q[0], q[npart]
    ln_scalars(a, mean, ex2, z, 512)
    var, m1, s1, rs, m2, s2 = z
    if mode == 'ln2':
        ls = a.newlabel('Lst')
        a(f's_cmp_lg_u32 s{sCB}, 12')
        a(f's_cbranch_scc1 {ls}')
        a(f's_lshl_b32 s{T0}, s{sRB}, 9')
        a(f's_add_u32 s{T0}, s{T0}, {hex(ST_MR1)}')
        a(f'v_lshlrev_b32 v{t1}, 2, v0')
        a(f'v_mul_f32 v{m2}, v{m1}, v{rs}')
        a(f'v_sub_f32 v{m2}, 0, v{m2}')
        a(f'buffer_store_dword v{m2}, v{t1}, s[{sWS}:{sWS+3}], s{T0} offen')
        a(f's_add_u32 s{T0}, s{T0}, 0x2000')
        a(f'buffer_store_dword v{rs}, v{t1}, s[{sWS}:{sWS+3}], s{T0} offen')
        a.label(ls)
        a(f'v_sub_f32 v{m2}, v{mean}, v{m1}')
        a(f'v_mul_f32 v{m2}, v{m2}, v{rs}'); bf16_round(a, m2)
        a(f'v_mul_f32 v{s2}, v{var}, v{rs}')
        a(f'v_mul_f32 v{s2}, v{s2}, v{rs}'); bf16_round(a, s2)
        a(f'v_add_f32 v{s2}, {hex(f32bits(EPS))}, v{s2}'); bf16_round(a, s2)
        a(f'v_sqrt_f32 v{s2}, v{s2}'); a('s_nop 0'); bf16_round(a, s2)
        a(f'v_rcp_f32 v{s2}, v{s2}'); a('s_nop 0')
        a(f'v_fma_f32 v{m1}, v{m2}, v{s1}, v{m1}')
        a(f'v_mul_f32 v{q[1]}, v{rs}, v{s2}')
        rs = q[1]
    if sQ is not None:
        a(f'v_mul_f32 v{rs}, s{sQ}, v{rs}')
    a(f'v_mul_f32 v{m1}, v{m1}, v{rs}')
    a(f'v_sub_f32 v{m1}, 0, v{m1}')
    a(f'v_lshlrev_b32 v{t1}, 2, v0')
    a(f'ds_write_b32 v{t1}, v{m1} offset:8192')
    a(f'ds_write_b32 v{t1}, v{rs} offset:8704')
    a(f's_branch {ld}')
    a.label(lf)
    a(f'v_subrev_u32 v{t2}, 128, v0')
    a(f'v_lshrrev_b32 v{t0}, 5, v{t2}')
    a(f'v_lshlrev_b32 v{t0}, 8, v{t0}')
    a(f'v_and_b32 v{t1}, 31, v{t2}')
    a(f'v_lshl_add_u32 v{t0}, v{t1}, 2, v{t0}')
    k = 0
    for wr in range(p.WR):
        for h in range(2):
            a(f'ds_read_b32 v{q[k]}, v{t0} offset:{4096 + wr*p.FT*256 + h*128}'); k += 1
    a('s_waitcnt lgkmcnt(0)')
    for j in range(1, k):
        a(f'v_add_f32 v{q[0]}, v{q[0]}, v{q[j]}')
    a(f'v_lshlrev_b32 v{t1}, 2, v{t2}')
    a(f'ds_write_b32 v{t1}, v{q[0]} offset:9216')
    a.label(ld)
    a('s_waitcnt lgkmcnt(0)')
    a('s_barrier')
    va.release(m)

def g1_epilogue(a, va, p, acc, kind, sRB, sCB, T):
    T0, T1, T2, T3 = T
    t0, t1, t2 = p.t
    TW, FW = 2, 2
    sQ = None
    if kind == 'qk':
        sQ = T2
        a(f's_mov_b32 s{T2}, 1.0')
        a(f's_mov_b32 s{T3}, {hex(f32bits(QSCALE))}')
        a(f's_cmp_lt_u32 s{sCB}, 4')
        a(f's_cselect_b32 s{T2}, s{T3}, s{T2}')
    ln_finalize(a, va, p, 'ln2' if kind == 'w1' else 'ln1', sQ, sRB, sCB, T)
    l = p.vLane
    vec = va(16, 4); vec2 = va(16, 4)
    sc = [va(), va(), va(), va()]
    tmp = va(16, 4)
    pk = [va(8, 4), va(8, 4)]
    ws = f's[{sWS}:{sWS+3}]'
    a(f'v_and_b32 v{t0}, 31, v{l}')
    a(f'v_lshlrev_b32 v{t0}, 2, v{t0}')
    a(f'v_lshrrev_b32 v{t1}, 5, v{l}')
    a(f'v_lshlrev_b32 v{t1}, 4, v{t1}')
    vSt = va()
    a(f's_lshl_b32 s{T0}, s{sRB}, 2')
    a(f's_lshl_b32 s{T1}, s{p.sWr}, 1')
    a(f's_add_u32 s{T0}, s{T0}, s{T1}')
    a(f's_lshl_b32 s{T0}, s{T0}, 5')
    a(f's_and_b32 s{T1}, s{sCB}, 3')
    a(f's_lshl_b32 s{T1}, s{T1}, 3')
    a(f's_add_u32 s{T0}, s{T0}, s{T1}')
    a(f's_lshl_b32 s{T1}, s{p.sWc}, 2')
    a(f's_add_u32 s{T0}, s{T0}, s{T1}')
    a(f's_lshl_b32 s{T0}, s{T0}, 10')
    a(f's_lshr_b32 s{T1}, s{sCB}, 2')
    a(f's_lshl_b32 s{T1}, s{T1}, 21')
    a(f's_add_u32 s{T0}, s{T0}, s{T1}')
    n = 0
    if kind != 'v':
        if kind == 'w1':
            vC2 = va()
            a(f'v_mov_b32 v{vC2}, {hex(f32bits(GC2))}')
            a(f's_mov_b32 s{T2}, {hex(f32bits(GC1))}')
        vStT = [vSt, vSt]
        if kind == 'qk':
            a(f'v_lshlrev_b32 v{vSt}, 4, v{l}')
        else:
            vStT = [vSt, va()]
            a(f's_sub_u32 s{T1}, s{sCB}, 12')
            a(f's_lshr_b32 s{T3}, s{T1}, 1')
            a(f's_add_u32 s{T3}, s{T3}, 1')
            a(f's_sub_u32 s61, 0, s{T3}')
            a(f's_and_b32 s{T1}, s{T1}, 1')
            a(f's_cmp_eq_u32 s{T1}, 0')
            a(f's_cselect_b32 s{T3}, s{T3}, s61')
            a(f's_lshl_b32 s{T1}, s{sRB}, 7')
            a(f's_add_u32 s{T3}, s{T3}, s{T1}')
            a(f's_lshl_b32 s{T1}, s{p.sWr}, 6')
            a(f's_add_u32 s{T3}, s{T3}, s{T1}')
            a(f's_mov_b32 s61, 2048')
            for Tt in range(2):
                r = vStT[Tt]
                a(f'v_and_b32 v{t2}, 31, v{l}')
                a(f'v_add_u32 v{t2}, s{T3}, v{t2}')
                if Tt: a(f'v_add_u32 v{t2}, 32, v{t2}')
                a(f'v_cmp_gt_u32 vcc, s61, v{t2}')
                a(f'v_lshrrev_b32 v{r}, 5, v{t2}')
                a(f'v_lshlrev_b32 v{r}, 15, v{r}')
                a(f'v_and_b32 v{t2}, 31, v{t2}')
                a(f'v_lshl_add_u32 v{r}, v{t2}, 4, v{r}')
                a(f'v_lshrrev_b32 v{t2}, 5, v{l}')
                a(f'v_lshl_add_u32 v{r}, v{t2}, 9, v{r}')
                a(f'v_mov_b32 v{t2}, {hex(OOB)}')
                a(f'v_cndmask_b32 v{r}, v{t2}, v{r}, vcc')
            a(f's_and_b32 s{T0}, s{sCB}, 3')
            a(f's_lshl_b32 s{T0}, s{T0}, 3')
            a(f's_lshl_b32 s{T1}, s{p.sWc}, 2')
            a(f's_add_u32 s{T0}, s{T0}, s{T1}')
            a(f's_lshl_b32 s{T0}, s{T0}, 10')
            a(f's_add_u32 s{T0}, s{T0}, {hex(HF)}')
            lz = a.newlabel('Lzf')
            a(f's_cmp_lg_u32 s{p.sWr}, 0')
            a(f's_cbranch_scc1 {lz}')
            a(f's_and_b32 s{T1}, s{sCB}, 1')
            a(f's_mul_i32 s{T1}, s{T1}, 15')
            a(f's_cmp_lg_u32 s{sRB}, s{T1}')
            a(f's_cbranch_scc1 {lz}')
            a(f's_sub_u32 s{T1}, s{sCB}, 12')
            a(f's_lshr_b32 s61, s{T1}, 1')
            a(f's_add_u32 s61, s61, 1')
            a(f'v_and_b32 v{t2}, 31, v{l}')
            a(f'v_cmp_gt_u32 vcc, s61, v{t2}')
            a(f's_and_b32 s{T1}, s{T1}, 1')
            a(f's_mul_i32 s61, s{T1}, 31')
            a(f'v_xor_b32 v{t2}, s61, v{t2}')
            a(f'v_lshlrev_b32 v{t2}, 4, v{t2}')
            a(f's_mul_i32 s61, s{T1}, {63 * 32768}')
            a(f'v_add_u32 v{t2}, s61, v{t2}')
            a(f'v_lshrrev_b32 v{tmp}, 5, v{l}')
            a(f'v_lshl_add_u32 v{t2}, v{tmp}, 9, v{t2}')
            for i in range(4): a(f'v_mov_b32 v{tmp+i}, 0')
            a('s_and_saveexec_b64 s[62:63], vcc')
            for kk in range(4):
                a(f'buffer_store_dwordx4 {V(tmp,4)}, v{t2}, {ws}, s{T0} offen offset:{kk*1024}')
            a('s_mov_b64 exec, -1')
            a.label(lz)
        a(f's_lshl_b32 s{T1}, s{p.sWr}, 8')
        a(f'v_add_u32 v{t0}, s{T1}, v{t0}')
        a(f's_lshl_b32 s{T1}, s{p.sWc}, 8')
        a(f'v_add_u32 v{t1}, s{T1}, v{t1}')
        cs = [vec, vec2]
        for F in range(FW):
            for q in range(4):
                a(f'ds_read_b128 {V(cs[F]+4*q,4)}, v{t1} offset:{9216 + F*128 + q*32}')
        for Tt in range(TW):
            a(f'ds_read_b32 v{sc[2*Tt]}, v{t0} offset:{8192 + Tt*128}')
            a(f'ds_read_b32 v{sc[2*Tt+1]}, v{t0} offset:{8704 + Tt*128}')
        a('s_waitcnt lgkmcnt(0)')
        for Tt in range(TW):
            for F in range(FW):
                ac = acc[Tt][F]
                for i in range(16):
                    a(f'v_mul_f32 v{ac+i}, v{ac+i}, v{sc[2*Tt+1]}')
                for i in range(16):
                    a(f'v_fma_f32 v{ac+i}, v{sc[2*Tt]}, v{cs[F]+i}, v{ac+i}')
                if kind == 'w1':
                    gelu_scalar(a, ac, 16, tmp, T2, vC2)
                pp = pk[n % 2]; n += 1
                for i in range(8):
                    a(f'v_cvt_pk_bf16_f32 v{pp+i}, v{ac+2*i}, v{ac+2*i+1}')
                a(f's_add_u32 s{T1}, s{T0}, {(Tt*32768 if kind == "qk" else 0) + F*2048}')
                a('s_nop 0')
                for pr in range(2):
                    b = pp + 4 * pr
                    a(f'v_permlane32_swap_b32 v{b}, v{b+2}')
                    a(f'v_permlane32_swap_b32 v{b+1}, v{b+3}')
                a('s_nop 1')
                for pr in range(2):
                    a(f'buffer_store_dwordx4 {V(pp+4*pr,4)}, v{vStT[Tt]}, {ws}, s{T1} offen offset:{pr*1024}')
    else:
        a(f'v_and_b32 v{vSt}, 15, v{l}')
        a(f'v_lshlrev_b32 v{vSt}, 4, v{vSt}')
        a(f'v_lshrrev_b32 v{t2}, 5, v{l}')
        a(f'v_lshl_add_u32 v{vSt}, v{t2}, 8, v{vSt}')
        a(f'v_bfe_u32 v{t2}, v{l}, 4, 1')
        a(f'v_lshl_add_u32 v{vSt}, v{t2}, 10, v{vSt}')
        a(f's_lshl_b32 s{T1}, s{p.sWc}, 8')
        a(f'v_add_u32 v{t0}, s{T1}, v{t0}')
        a(f's_lshl_b32 s{T1}, s{p.sWr}, 8')
        a(f'v_add_u32 v{t1}, s{T1}, v{t1}')
        for F in range(FW):
            a(f'ds_read_b32 v{sc[F]}, v{t0} offset:{9216 + F*128}')
        for Tt in range(TW):
            for q in range(4):
                a(f'ds_read_b128 {V(vec+4*q,4)}, v{t1} offset:{8192 + Tt*128 + q*32}')
                a(f'ds_read_b128 {V(vec2+4*q,4)}, v{t1} offset:{8704 + Tt*128 + q*32}')
            a('s_waitcnt lgkmcnt(0)')
            for F in range(FW):
                ac = acc[Tt][F]
                for i in range(16):
                    a(f'v_mul_f32 v{ac+i}, v{ac+i}, v{vec2+i}')
                for i in range(16):
                    a(f'v_fma_f32 v{ac+i}, v{vec+i}, v{sc[F]}, v{ac+i}')
                pp = pk[n % 2]; n += 1
                for i in range(8):
                    a(f'v_cvt_pk_bf16_f32 v{pp+i}, v{ac+2*i}, v{ac+2*i+1}')
                a(f's_add_u32 s{T1}, s{T0}, {Tt*32768 + F*2048}')
                for f in range(2):
                    a(f'buffer_store_dwordx4 {V(pp+4*f,4)}, v{vSt}, {ws}, s{T1} offen offset:{f*512}')
```

```python
from core2 import *
from k_g1 import ST_MR1, ST_R1, ln_scalars
import k_att, k_att2
VB = os.environ.get('VB', '1') == '1'
WD = 6 if VB else 8
WRING = 12288 if VB else 16384

sW, sRB, sCB, sRow0 = 36, 37, 38, 39
sX0, sX1, sW0, sW1 = 40, 41, 42, 47
T0, T1, T2, T3 = 43, 44, 45, 46
STMP = 48
sW2SRD = 20
ws = f's[{sWS}:{sWS+3}]'
C2, C3, CA = FLG, FLG + 32 * 128, FLG + 48 * 128
MID_LDS = 50176 if VB else 74752

def load_ptrs(a):
    a('s_load_dwordx2 s[24:25], s[0:1], 0')
    a('s_load_dwordx2 s[26:27], s[0:1], 16')
    a('s_load_dwordx4 s[28:31], s[0:1], 40')
    a('s_load_dwordx2 s[32:33], s[0:1], 56')
    a('s_load_dwordx2 s[58:59], s[0:1], 64')
    a('s_load_dwordx2 s[34:35], s[0:1], 80')

def map_64x64(a, sId):
    a(f's_and_b32 s{T0}, s{sId}, 7')
    a(f's_lshr_b32 s{T1}, s{sId}, 3')
    a(f's_lshl_b32 s{sRB}, s{T0}, 2')
    a(f's_and_b32 s{T2}, s{T1}, 3')
    a(f's_add_u32 s{sRB}, s{sRB}, s{T2}')
    a(f's_lshr_b32 s{sCB}, s{T1}, 2')

sJ0, sJ1, sJ2, sJ3, sNN = 60, 61, 62, 63, 57
def rot8(a, d0, d1, mul=1):
    a(f's_and_b32 s{T0}, s{sRB}, 3')
    a(f's_lshl_b32 s{T0}, s{T0}, 1')
    a(f's_add_u32 s{T0}, s{T0}, s{sCB}')
    a(f's_and_b32 s{d0}, s{T0}, 7')
    if mul != 1:
        a(f's_mul_i32 s{d0}, s{d0}, {mul}')
        a(f's_lshr_b32 s{d0}, s{d0}, 1')
    a(f's_mov_b32 s{d1}, s{d0}')

def signal(a, sOff, vA, vB):
    a('s_waitcnt vmcnt(0)')
    a('s_barrier')
    lab = a.newlabel('Lsig')
    a(f's_cmp_lg_u32 s{sW}, 0')
    a(f's_cbranch_scc1 {lab}')
    a(f'v_mov_b32 v{vA}, 0')
    a(f'v_mov_b32 v{vB}, 1')
    a('s_mov_b64 exec, 1')
    a(f'buffer_atomic_add v{vB}, v{vA}, {ws}, s{sOff} offen sc1')
    a('s_mov_b64 exec, -1')
    a.label(lab)

def wait_flags(a, offs, target, vA, vB, drain=True):
    lab = a.newlabel('Lwt'); lp = a.newlabel('Lpoll')
    a(f's_cmp_lg_u32 s{sW}, 0')
    a(f's_cbranch_scc1 {lab}')
    a(f'v_mov_b32 v{vA}, 0')
    a.label(lp)
    for i, o in enumerate(offs):
        a(f'buffer_load_dword v{vB+i}, v{vA}, {ws}, s{o} offen sc1')
    a('s_waitcnt vmcnt(0)')
    if len(offs) == 2:
        a(f'v_min_u32 v{vB}, v{vB}, v{vB+1}')
    a('s_nop 0')
    a(f'v_readfirstlane_b32 s{T3}, v{vB}')
    a(f's_cmp_ge_u32 s{T3}, {target}')
    a(f's_cbranch_scc1 {lab}')
    a('s_sleep 4')
    a(f's_branch {lp}')
    a.label(lab)
    a('s_barrier')

def pack_swap_store(a, ac, pk, vL16, sOff, flags, srdn=sWS):
    for i in range(8):
        a(f'v_cvt_pk_bf16_f32 v{pk+i}, v{ac+2*i}, v{ac+2*i+1}')
    a('s_nop 1')
    for pr in range(2):
        b = pk + 4 * pr
        a(f'v_permlane32_swap_b32 v{b}, v{b+2}')
        a(f'v_permlane32_swap_b32 v{b+1}, v{b+3}')
    a('s_nop 1')
    for pr in range(2):
        a(f'buffer_store_dwordx4 {V(pk+4*pr,4)}, v{vL16}, s[{srdn}:{srdn+3}], s{sOff} offen offset:{pr*1024} {flags}')

def x_rowmajor_off(a, g, sDst):
    a(f's_lshl_b32 s{sDst}, s{sRB}, 16')
    a(f's_lshl_b32 s{T1}, s{g.sWr}, 15')
    a(f's_add_u32 s{sDst}, s{sDst}, s{T1}')
    a(f's_lshl_b32 s{T1}, s{sCB}, 7')
    a(f's_add_u32 s{sDst}, s{sDst}, s{T1}')
    a(f's_lshl_b32 s{T1}, s{g.sWc}, 6')
    a(f's_add_u32 s{sDst}, s{sDst}, s{T1}')

def x_rowmajor_loads(a, va, g, l, srdn, vm):
    xr = va(8, 4); vo = va()
    a(f'v_and_b32 v{vo}, 31, v{l}')
    a(f'v_lshlrev_b32 v{vo}, 10, v{vo}')
    a(f'v_lshrrev_b32 v{g.t0}, 5, v{l}')
    a(f'v_lshl_add_u32 v{vo}, v{g.t0}, 3, v{vo}')
    x_rowmajor_off(a, g, T0)
    for q in range(4):
        a(f'buffer_load_dwordx2 {V(xr+2*q,2)}, v{vo}, s[{srdn}:{srdn+3}], s{T0} offen offset:{q*16}')
        vm.add('pre')
    return xr

def frag_tile_off(a, sDst, g, base, nks):
    a(f's_lshl_b32 s{sDst}, s{sRB}, 1')
    a(f's_add_u32 s{sDst}, s{sDst}, s{g.sWr}')
    a(f's_mul_i32 s{sDst}, s{sDst}, {nks}')
    a(f's_lshl_b32 s{T3}, s{sCB}, 2')
    a(f's_add_u32 s{sDst}, s{sDst}, s{T3}')
    a(f's_lshl_b32 s{T3}, s{g.sWc}, 1')
    a(f's_add_u32 s{sDst}, s{sDst}, s{T3}')
    a(f's_lshl_b32 s{sDst}, s{sDst}, 10')
    a(f's_add_u32 s{sDst}, s{sDst}, {hex(base)}')

def wsk_woffs(a, g):
    a(f's_lshl_b32 s{sW0}, s{sW}, 14')
    a(f's_lshl_b32 s{T0}, s{sCB}, 7')
    a(f's_add_u32 s{sW0}, s{sW0}, s{T0}')
    a(f's_lshl_b32 s{T0}, s{g.sWc}, 6')
    a(f's_xor_b32 s{T1}, s{T0}, 64')
    a(f's_add_u32 s{sW1}, s{sW0}, s{T1}')
    a(f's_add_u32 s{sW0}, s{sW0}, s{T0}')

def wsk_xoffs(a, g, base, xtile):
    a(f's_lshl_b32 s{T0}, s{sRB}, 1')
    a(f's_add_u32 s{T1}, s{T0}, s{g.sWr}')
    a(f's_mul_i32 s{sX0}, s{T1}, {xtile}')
    a(f's_xor_b32 s{T1}, s{T1}, 1')
    a(f's_mul_i32 s{sX1}, s{T1}, {xtile}')
    a(f's_lshl_b32 s{T0}, s{sW}, 10')
    a(f's_add_u32 s{T0}, s{T0}, {hex(base)}')
    a(f's_add_u32 s{sX0}, s{sX0}, s{T0}')
    a(f's_add_u32 s{sX1}, s{sX1}, s{T0}')

def g2_stage(a, sId, chain):
    va = RegAlloc(2, 256); vLane = 1; vm = VM()
    stf = 'sc1' if chain else ''
    map_64x64(a, sId)
    srd(a, sWSRD, 28, 512 * 1024)
    srd(a, sAUX, 24, 2048 * 1024)
    g = WSK(a, va, sW, vLane, STMP, WD, vm, ring_bytes=WRING)
    t0, t1, t2 = g.t
    wsk_woffs(a, g)
    wsk_xoffs(a, g, HF, 32768)
    rot8(a, sJ0, sJ1)
    g.add_segment(8, sWS, [sX0, sX1], g.vL16, '', sWSRD, [sW0, sW1], sJ0, sJ1, 8)
    ep = G()
    def after_issue():
        ep.xr = x_rowmajor_loads(a, va, g, vLane, sAUX, vm)
        ep.mr = va(); ep.rr = va()
        a(f'v_and_b32 v{t0}, 31, v{vLane}')
        a(f'v_lshlrev_b32 v{t0}, 2, v{t0}')
        a(f's_lshl_b32 s{T0}, s{sRB}, 8')
        a(f's_lshl_b32 s{T1}, s{g.sWr}, 7')
        a(f's_add_u32 s{T0}, s{T0}, s{T1}')
        a(f's_add_u32 s{T0}, s{T0}, {hex(ST_MR1)}')
        a(f'buffer_load_dword v{ep.mr}, v{t0}, {ws}, s{T0} offen'); vm.add('pre')
        a(f's_add_u32 s{T0}, s{T0}, 0x2000')
        a(f'buffer_load_dword v{ep.rr}, v{t0}, {ws}, s{T0} offen'); vm.add('pre')
        g.zero_acc()
    g.after_issue = after_issue
    g.run(0, 8)
    ac = g.reduce()
    xf = g.acc[0][1]; pk = g.acc[1][0]; s1, s2, s1b, s2b, pr = [g.acc[1][1] + i for i in (0, 1, 2, 3, 4)]
    xr, mr, rr = ep.xr, ep.mr, ep.rr
    a('s_waitcnt vmcnt(0)')
    for j in range(8):
        a(f'v_lshlrev_b32 v{xf+2*j}, 16, v{xr+j}')
        a(f'v_and_b32 v{xf+2*j+1}, 0xffff0000, v{xr+j}')
    for i in range(16):
        a(f'v_fma_f32 v{xf+i}, v{xf+i}, v{rr}, v{mr}')
    frag_tile_off(a, T0, g, X1F, 32)
    for i in range(16):
        a(f'v_add_f32 v{ac+i}, v{ac+i}, v{xf+i}')
    pack_swap_store(a, ac, pk, g.vL16, T0, stf)
    for j in range(8):
        a(f'v_lshlrev_b32 v{xf+2*j}, 16, v{pk+j}')
        a(f'v_and_b32 v{xf+2*j+1}, 0xffff0000, v{pk+j}')
    a(f'v_add_f32 v{s1}, v{xf}, v{xf+1}')
    a(f'v_mul_f32 v{s2}, v{xf}, v{xf}')
    a(f'v_fma_f32 v{s2}, v{xf+1}, v{xf+1}, v{s2}')
    for i in range(2, 16):
        a(f'v_add_f32 v{s1}, v{s1}, v{xf+i}')
        a(f'v_fma_f32 v{s2}, v{xf+i}, v{xf+i}, v{s2}')
    a(f'v_mov_b32 v{s1b}, v{s1}'); a(f'v_mov_b32 v{s2b}, v{s2}')
    a('s_nop 1')
    a(f'v_permlane32_swap_b32 v{s1}, v{s1b}')
    a(f'v_permlane32_swap_b32 v{s2}, v{s2b}')
    a('s_nop 1')
    a(f'v_add_f32 v{pr}, v{s1}, v{s1b}')
    a(f'v_add_f32 v{pr+1}, v{s2}, v{s2b}')
    a(f's_lshl_b32 s{T0}, s{sCB}, 1')
    a(f's_add_u32 s{T0}, s{T0}, s{g.sWc}')
    a(f's_lshl_b32 s{T0}, s{T0}, 14')
    a(f's_lshl_b32 s{T1}, s{sRB}, 9')
    a(f's_add_u32 s{T0}, s{T0}, s{T1}')
    a(f's_lshl_b32 s{T1}, s{g.sWr}, 8')
    a(f's_add_u32 s{T0}, s{T0}, s{T1}')
    a(f's_add_u32 s{T0}, s{T0}, {hex(PS)}')
    a(f'v_lshlrev_b32 v{t0}, 3, v{vLane}')
    a('s_mov_b32 exec_hi, 0')
    a(f'buffer_store_dwordx2 {V(pr,2)}, v{t0}, {ws}, s{T0} offen {stf}')
    a('s_mov_b64 exec, -1')
    if chain:
        a(f's_lshl_b32 s{T0}, s{sRB}, 7')
        a(f's_add_u32 s{T0}, s{T0}, {hex(C2)}')
        signal(a, T0, t0, t1)
    return va.hi

def g3_stage(a, sId, chain, endlabel):
    va = RegAlloc(2, 256); vLane = 1; vm = VM()
    stf = 'sc1' if chain else ''; ldf = stf
    a(f's_and_b32 s{T0}, s{sId}, 7')
    a(f's_lshr_b32 s{T1}, s{sId}, 3')
    a(f's_lshl_b32 s{sRB}, s{T0}, 1')
    a(f's_and_b32 s{T2}, s{T1}, 1')
    a(f's_add_u32 s{sRB}, s{sRB}, s{T2}')
    a(f's_lshr_b32 s{sCB}, s{T1}, 1')
    a(f's_cmp_ge_u32 s{sCB}, 15')
    a(f's_cbranch_scc1 {endlabel}')
    srd(a, sWSRD, 30, 512 * 2752)
    D = 12; CK = 8; NST = 2 if VB else 3; STG = CK * 3 * 1024; CSL = NST * STG
    sT0, sT1, sM0 = STMP, STMP + 1, STMP + 2
    t0 = va(); t1 = va(); t2 = va(); vL16 = va(); vTr = va(); vW = va()
    a(f'v_lshlrev_b32 v{vL16}, 4, v{vLane}')
    trbase(a, vTr, vLane, t0)
    wdma_voff(a, vW, vLane, t0, 2752, sT0)
    acc = [va(16, 4) for F in range(3)]
    xr = [va(4) for d in range(D)]
    wf = [[va(4) for F in range(3)] for b in range(2)]
    ps = va(16, 4); cp = va(16, 4)
    mr = va(); rr = va(); z = [va() for _ in range(4)]
    a(f's_mul_i32 s{sW0}, s{sW}, {16 * 2752}')
    a(f's_mul_i32 s{T0}, s{sCB}, 192')
    a(f's_add_u32 s{sW0}, s{sW0}, s{T0}')
    a(f's_mul_i32 s{sM0}, s{sW}, 3072')
    a(f's_and_b32 s{T0}, s{sRB}, 1')
    a(f's_lshl_b32 s{T0}, s{T0}, 1')
    a(f's_add_u32 s{sJ0}, s{T0}, s{sCB}')
    def wdma(c):
        a(f's_add_u32 s{sJ1}, s{sJ0}, {c}')
        a(f's_and_b32 s{sJ1}, s{sJ1}, 3')
        a(f's_mul_i32 s{sJ1}, s{sJ1}, {128 * 2752}')
        a(f's_add_u32 s{sJ1}, s{sJ1}, s{sW0}')
        for hh in range(2):
            for F in range(3):
                a(f's_add_u32 m0, s{sM0}, {(c % NST) * STG + hh * 4 * 3072 + F * 1024}')
                a(f's_add_u32 s{sT1}, s{sJ1}, {(hh * 4) * 16 * 2752 + F * 64}')
                a(f'buffer_load_dwordx4 v{vW}, s[{sWSRD}:{sWSRD+3}], s{sT1} offen lds')
                vm.add(('w', c))
    if chain: a('s_barrier')
    for c in range(NST): wdma(c)
    a(f'v_lshlrev_b32 v{t1}, 2, v0')
    a(f's_mul_i32 s{T0}, s{sCB}, 384')
    a(f's_add_u32 s{T0}, s{T0}, {hex(CS3)}')
    for k in range(16):
        a(f'buffer_load_dword v{cp+k}, v{t1}, {ws}, s{T0} offen'); vm.add('cs')
        a(f's_add_u32 s{T0}, s{T0}, {1408*4}')
    for F in range(3):
        for i in range(16): a(f'v_mov_b32 v{acc[F]+i}, 0')
    if chain:
        a(f's_lshl_b32 s{T0}, s{sRB}, 8')
        a(f's_add_u32 s{T0}, s{T0}, {hex(C2)}')
        a(f's_add_u32 s{T1}, s{T0}, 128')
        wait_flags(a, [T0, T1], 8, t0, z[0])
        cstamp(a)
    a(f's_lshl_b32 s{sX0}, s{sRB}, 2')
    a(f's_add_u32 s{sX0}, s{sX0}, s{sW}')
    a(f's_lshl_b32 s{sX0}, s{sX0}, 15')
    a(f's_add_u32 s{sX0}, s{sX0}, {hex(X1F)}')
    def xld(ks):
        if ks % 8 == 0:
            a(f's_add_u32 s{sJ2}, s{sJ0}, {ks // 8}')
            a(f's_and_b32 s{sJ2}, s{sJ2}, 3')
            a(f's_lshl_b32 s{sJ2}, s{sJ2}, 13')
            a(f's_add_u32 s{sJ2}, s{sJ2}, s{sX0}')
        a(f's_add_u32 s{sT0}, s{sJ2}, {(ks % 8) * 1024}')
        a(f'buffer_load_dwordx4 {V(xr[ks % D],4)}, v{vL16}, {ws}, s{sT0} offen {ldf}')
        vm.add(('x', ks))
    for ks in range(4): xld(ks)
    a(f'v_and_b32 v{t0}, 31, v{vLane}')
    a(f'v_lshlrev_b32 v{t0}, 3, v{t0}')
    a(f'v_lshrrev_b32 v{t2}, 5, v{vLane}')
    a(f'v_lshl_add_u32 v{t0}, v{t2}, 17, v{t0}')
    a(f's_lshl_b32 s{T0}, s{sRB}, 10')
    a(f's_lshl_b32 s{T1}, s{sW}, 8')
    a(f's_add_u32 s{T0}, s{T0}, s{T1}')
    a(f's_add_u32 s{T0}, s{T0}, {hex(PS)}')
    for f in range(8):
        a(f'buffer_load_dwordx2 {V(ps+2*f,2)}, v{t0}, {ws}, s{T0} offen {ldf}'); vm.add('ps')
        a(f's_add_u32 s{T0}, s{T0}, 16384')
    for ks in range(4, D): xld(ks)
    a(f's_waitcnt vmcnt({vm.wait_for("cs")})')
    for k in range(1, 16):
        a(f'v_add_f32 v{cp}, v{cp}, v{cp+k}')
    a(f'v_add_u32 v{t1}, {CSL}, v{t1}')
    a(f'ds_write_b32 v{t1}, v{cp}')
    def reads(ks, only=None):
        c, s = ks // CK, ks % CK; b = ks % 2
        for F in (range(3) if only is None else [only]):
            o = (c % NST) * STG + s * 3072 + F * 1024
            if o + 256 > 65535:
                base, o = vTr2, o - 49152
            else: base = vTr
            a(f'ds_read_b64_tr_b16 {V(wf[b][F],2)}, v{base} offset:{o}')
            a(f'ds_read_b64_tr_b16 {V(wf[b][F]+2,2)}, v{base} offset:{o+256}')
    vTr2 = va()
    a(f'v_add_u32 v{vTr2}, 49152, v{vTr}')
    def sync(c):
        a(f's_waitcnt vmcnt({vm.wait_for(("w", c))}) lgkmcnt(0)')
        a('s_barrier')
        if c >= 1 and c + NST - 1 < 4: wdma(c + NST - 1)
    sync(0)
    stamp(a, 1)
    reads(0)
    for ks in range(32):
        last = ks + 1 >= 32
        if not last and (ks + 1) % CK == 0: sync((ks + 1) // CK)
        a(f's_waitcnt vmcnt({vm.wait_for(("x", ks))}) lgkmcnt(0)')
        for F in range(3):
            a(f'{MF} {V(acc[F],16)}, {V(wf[ks%2][F],4)}, {V(xr[ks%D],4)}, {V(acc[F],16)}')
            if not last: reads(ks + 1, F)
        if ks + D < 32: xld(ks + D)
        if ks == 6:
            for f in range(1, 8):
                a(f'v_add_f32 v{ps}, v{ps}, v{ps+2*f}')
                a(f'v_add_f32 v{ps+1}, v{ps+1}, v{ps+2*f+1}')
            a(f'v_mov_b32 v{ps+2}, v{ps}'); a(f'v_mov_b32 v{ps+3}, v{ps+1}')
            a('s_nop 1')
            a(f'v_permlane32_swap_b32 v{ps}, v{ps+2}')
            a(f'v_permlane32_swap_b32 v{ps+1}, v{ps+3}')
            a('s_nop 1')
            a(f'v_add_f32 v{ps}, v{ps}, v{ps+2}')
            a(f'v_add_f32 v{ps+1}, v{ps+1}, v{ps+3}')
            ln_scalars(a, ps, ps + 1, z, 512)
            a(f'v_mov_b32 v{rr}, v{z[3]}')
            a(f'v_mul_f32 v{mr}, v{z[1]}, v{z[3]}')
            a(f'v_sub_f32 v{mr}, 0, v{mr}')
    stamp(a, 2)
    if chain: cstamp(a)
    tmp = ps; cs = cp
    pk = [xr[0], xr[2]]; vC2 = z[0]
    a(f'v_mov_b32 v{vC2}, {hex(f32bits(GC2))}')
    a(f's_mov_b32 s{T2}, {hex(f32bits(GC1))}')
    a(f'v_lshrrev_b32 v{t1}, 5, v{vLane}')
    a(f'v_lshlrev_b32 v{t1}, 4, v{t1}')
    a(f'v_add_u32 v{t1}, {CSL}, v{t1}')
    a(f's_lshl_b32 s{T0}, s{sRB}, 2')
    a(f's_add_u32 s{T0}, s{T0}, s{sW}')
    a(f's_mul_i32 s{T0}, s{T0}, 86')
    a(f's_mul_i32 s{T1}, s{sCB}, 6')
    a(f's_add_u32 s{T0}, s{T0}, s{T1}')
    a(f's_lshl_b32 s{T0}, s{T0}, 10')
    a(f's_add_u32 s{T0}, s{T0}, {hex(H3F)}')
    lskip = a.newlabel('g3_skip')
    for F in range(3):
        if F == 1:
            a(f's_cmp_eq_u32 s{sCB}, 14')
            a(f's_cbranch_scc1 {lskip}')
        for q in range(4):
            a(f'ds_read_b128 {V(cs+4*q,4)}, v{t1} offset:{F*128 + q*32}')
        ac = acc[F]
        for i in range(16):
            a(f'v_mul_f32 v{ac+i}, v{ac+i}, v{rr}')
        a('s_waitcnt lgkmcnt(0)')
        for i in range(16):
            a(f'v_fma_f32 v{ac+i}, v{mr}, v{cs+i}, v{ac+i}')
        gelu_scalar(a, ac, 16, tmp, T2, vC2)
        a(f's_add_u32 s{T1}, s{T0}, {F*2048}')
        pack_swap_store(a, ac, pk[F % 2], vL16, T1, stf)
    a.label(lskip)
    if chain:
        a(f's_lshl_b32 s{T0}, s{sRB}, 7')
        a(f's_add_u32 s{T0}, s{T0}, {hex(C3)}')
        signal(a, T0, t0, t1)
    return va.hi

def g45_stage(a, sId, chain, st3=False):
    va = RegAlloc(2, 256); vLane = 1; vm = VM()
    ldf = 'sc1' if chain else ''
    map_64x64(a, sId)
    srd(a, sWSRD, 32, 1376 * 1024)
    srd(a, sW2SRD, 26, 512 * 1024)
    srd(a, sAUX, 24, 2048 * 1024)
    g = WSK(a, va, sW, vLane, STMP, WD, vm, ring_bytes=WRING)
    t0, t1, t2 = g.t
    wsk_woffs(a, g)
    wsk_xoffs(a, g, H3F, 86 * 1024)
    sO0, sO1 = 55, 56
    def cond(lab):
        a(f's_cmp_ge_u32 s{sW}, 2')
        a(f's_cbranch_scc1 {lab}')
    a(f's_cmp_lt_u32 s{sW}, 2')
    a(f's_cselect_b32 s{sNN}, 22, 21')
    rot8(a, sJ0, sJ1, 5)
    rot8(a, sJ2, sJ3)
    g.add_segment(22, sWS, [sX0, sX1], g.vL16, ldf, sWSRD, [sW0, sW1], sJ0, sJ1, [sNN], last_cond=cond)
    g.add_segment(8, sWS, [sO0, sO1], g.vL16, ldf, sW2SRD, [sW0, sW1], sJ2, sJ3, 8)
    if chain: a('s_barrier')
    for i in range(WD):
        g.issue_w(i)
    g.nw = WD
    xr = x_rowmajor_loads(a, va, g, vLane, sAUX, vm)
    x1r = va(8, 4); vSt = va(); fl = va(2)
    a(f'v_and_b32 v{vSt}, 31, v{vLane}')
    a(f'v_lshlrev_b32 v{vSt}, 4, v{vSt}')
    a(f'v_lshrrev_b32 v{t0}, 5, v{vLane}')
    a(f'v_lshl_add_u32 v{vSt}, v{t0}, 3, v{vSt}')
    g.zero_acc(skip00=True)
    if chain:
        a(f's_lshr_b32 s{T0}, s{sRB}, 1')
        a(f's_lshl_b32 s{T0}, s{T0}, 7')
        a(f's_add_u32 s{T0}, s{T0}, {hex(C3)}')
        wait_flags(a, [T0], 15, t0, fl)
        cstamp(a)
    frag_tile_off(a, T0, g, X1F, 32)
    for q in range(4):
        a(f'buffer_load_dwordx2 {V(x1r+2*q,2)}, v{vSt}, {ws}, s{T0} offen offset:{q*512} {ldf}'); vm.add('x1')
    def after_issue():
        ac = g.acc[0][0]
        a(f's_waitcnt vmcnt({vm.wait_for("x1")})')
        for j in range(8):
            a(f'v_lshlrev_b32 v{ac+2*j}, 16, v{xr+j}')
            a(f'v_and_b32 v{ac+2*j+1}, 0xffff0000, v{xr+j}')
            a(f'v_lshlrev_b32 v{t0}, 16, v{x1r+j}')
            a(f'v_and_b32 v{t1}, 0xffff0000, v{x1r+j}')
            a(f'v_add_f32 v{ac+2*j}, v{ac+2*j}, v{t0}')
            a(f'v_add_f32 v{ac+2*j+1}, v{ac+2*j+1}, v{t1}')
    g.after_issue = after_issue
    stamp(a, 1)
    g.run(0, 22, xlimit=22)
    stamp(a, 2)
    if chain: cstamp(a)
    a(f's_lshl_b32 s{T0}, s{sRB}, 1')
    a(f's_add_u32 s{T1}, s{T0}, s{g.sWr}')
    a(f's_lshl_b32 s{sO0}, s{T1}, 15')
    a(f's_xor_b32 s{T1}, s{T1}, 1')
    a(f's_lshl_b32 s{sO1}, s{T1}, 15')
    a(f's_lshl_b32 s{T0}, s{sW}, 10')
    a(f's_add_u32 s{T0}, s{T0}, {hex(OF)}')
    a(f's_add_u32 s{sO0}, s{sO0}, s{T0}')
    a(f's_add_u32 s{sO1}, s{sO1}, s{T0}')
    if chain:
        a(f's_lshr_b32 s{T0}, s{sRB}, {1 if VB else 2}')
        a(f's_lshl_b32 s{T0}, s{T0}, 7')
        a(f's_add_u32 s{T0}, s{T0}, {hex(CA)}')
        wait_flags(a, [T0], 32, t0, fl)
    g.run(22, 30)
    ac = g.reduce()
    srd(a, sAUX, 58, 2048 * 1024)
    pk = g.acc[1][0]; vo = vSt
    a(f'v_and_b32 v{vo}, 31, v{vLane}')
    a(f'v_lshlrev_b32 v{vo}, 10, v{vo}')
    a(f'v_lshrrev_b32 v{t0}, 5, v{vLane}')
    a(f'v_lshl_add_u32 v{vo}, v{t0}, 4, v{vo}')
    x_rowmajor_off(a, g, T0)
    for i in range(8):
        a(f'v_cvt_pk_bf16_f32 v{pk+i}, v{ac+2*i}, v{ac+2*i+1}')
    a('s_nop 1')
    for pr in range(2):
        b = pk + 4 * pr
        a(f'v_permlane32_swap_b32 v{b}, v{b+2}')
        a(f'v_permlane32_swap_b32 v{b+1}, v{b+3}')
    a('s_nop 1')
    for pr in range(2):
        a(f'buffer_store_dwordx4 {V(pk+4*pr,4)}, v{vo}, s[{sAUX}:{sAUX+3}], s{T0} offen offset:{pr*32}')
    return va.hi

def stage_kernel(name, which, slot):
    def k(a):
        kernel_header(a, name)
        end = name + '_end'
        a('s_cmp_ge_u32 s2, 256')
        a(f's_cbranch_scc1 {end}')
        stamp(a, 0)
        load_ptrs(a)
        wave_lane(a, sW, 1)
        a('s_waitcnt lgkmcnt(0)')
        srd(a, sWS, 34, WS_BYTES)
        if which == 2:
            stamp(a, 1); hi = g2_stage(a, 2, False); stamp(a, 2)
        elif which == 3: hi = g3_stage(a, 2, False, end)
        else: hi = g45_stage(a, 2, False)
        stamp_flush(a, 3, slot)
        a.label(end)
        a('s_endpgm')
        return name, hi, MID_LDS
    return k

PRIO = int(os.environ.get('PRIO', '2'))
class CS:
    on = False; n = 1
def cstamp(a):
    if CS.on:
        o = Opt.stamps; Opt.stamps = True; stamp(a, CS.n); Opt.stamps = o
    CS.n += 1
def mid_kernel(a):
    name = 'mid_kernel'
    kernel_header(a, name)
    NA = 512 if VB else 256
    a(f's_cmp_ge_u32 s2, {NA + 256}')
    a('s_cbranch_scc1 mid_end')
    stamp(a, 0)
    load_ptrs(a)
    a('s_waitcnt lgkmcnt(0)')
    srd(a, sWS, 34, WS_BYTES)
    a(f's_cmp_ge_u32 s2, {NA}')
    a('s_cbranch_scc1 mid_chain')
    hi = (k_att2 if VB else k_att).att_body(a, 2, chain=True)
    a.label('mid_chain')
    if PRIO: a(f's_setprio {PRIO}')
    a(f's_sub_u32 s3, s2, {NA}')
    wave_lane(a, sW, 1)
    st = Opt.stamps
    CS.on = st; CS.n = 1
    Opt.stamps = False
    if st:
        for i in range(1, 8):
            a(f's_mov_b64 s[{64+4*i}:{65+4*i}], 0'); a(f's_mov_b64 s[{66+4*i}:{67+4*i}], 0')
    hi = max(hi, g2_stage(a, 3, True))
    cstamp(a)
    hi = max(hi, g3_stage(a, 3, True, 'mid_g4'))
    a.label('mid_g4')
    cstamp(a)
    hi = max(hi, g45_stage(a, 3, True))
    Opt.stamps = st
    stamp_flush(a, 7, 1)
    a.label('mid_end')
    a('s_endpgm')
    return name, hi, MID_LDS
```

```python
import sys
from core import *
from k_g1 import g1_kernel, G1HELP
from k_mid import *
if __name__ == '__main__':
    build([(g1_kernel, 256, 320 if G1HELP else 256), (mid_kernel, 768 if VB else 512, 256)], sys.argv[1])
```

```python
import sys, math, os
from asmlib import *

NAME = 'parallel_sum__softmax_full_mha__mixer_s_mlp__prompt'

QF  = 0x000000
KF  = 0x200000
VF  = 0x400000
HF  = 0x600000
X1F = 0x800000
OF  = 0xA00000
H3F = 0xC00000
YF  = 0x1200000
ST  = 0x1600000
PS  = 0x1610000
CS1 = 0x1650000
CS3 = 0x1660000
FLG = 0x1680000
WS_BYTES = 0x1800000
OOB = 0x7F000000

LOG2E = 1.4426950408889634
QSCALE = 0.25 * LOG2E
EPS = 1e-5
GC1 = -2.0 * 0.7978845608028654 * LOG2E
GC2 = GC1 * 0.044715

sXSRD, sWSRD, sWS, sAUX, sDBG = 4, 8, 12, 16, 20

class Opt:
    stamps = os.environ.get('STAMPS', '0') == '1'
STAMP_OFF = 0x1700000

def srd(a, d, base, nbytes):
    a(f's_mov_b32 s{d}, s{base}')
    a(f's_and_b32 s{d+1}, s{base+1}, 0xffff')
    a(f's_mov_b32 s{d+2}, {hex(nbytes)}')
    a(f's_mov_b32 s{d+3}, 0x20000')

def bf16_round(a, v):
    a(f'v_cvt_pk_bf16_f32 v{v}, v{v}, v{v}')
    a(f'v_lshlrev_b32 v{v}, 16, v{v}')

def stamp(a, idx):
    if not Opt.stamps: return
    a(f's_memtime s[{64+4*idx}:{65+4*idx}]')
    a(f's_memrealtime s[{66+4*idx}:{67+4*idx}]')
def stamp_flush(a, n, slot):
    if not Opt.stamps: return
    a('s_waitcnt lgkmcnt(0) vmcnt(0)')
    stamp(a, n)
    a('s_waitcnt lgkmcnt(0)')
    a('s_mov_b64 exec, -1')
    a('v_cmp_eq_u32 vcc, 0, v0')
    a('s_and_saveexec_b64 s[62:63], vcc')
    lab = a.newlabel('Lstamp')
    a(f's_cbranch_execz {lab}')
    a(f's_lshl_b32 s61, s2, 6')
    a(f's_add_u32 s61, s61, {hex(STAMP_OFF + slot * 0x10000)}')
    a('v_mov_b32 v2, 0')
    for i in range(n + 1):
        a(f'v_mov_b32 v4, s{64+4*i}')
        a(f'v_mov_b32 v5, s{66+4*i}')
        a(f'buffer_store_dwordx2 v[4:5], v2, s[{sWS}:{sWS+3}], s61 offen offset:{8*i}')
        a('s_nop 1')
    a.label(lab)

class G:
    pass

def spin_guard(a):
    a('s_add_u32 s92, s92, 1')
    a('s_cmp_gt_u32 s92, 0x400000')
    a('s_cbranch_scc1 k_end')

class SB:
    on = False; base = 0; n = 0; nw = 4; vA = None; vB = None; sT = None; maxn = 0
def BAR(a):
    if not SB.on:
        a('s_barrier'); return
    off = SB.n * 4; SB.n += 1
    assert SB.n <= SB.maxn
    lp = a.newlabel('Lsb'); ld = a.newlabel('Lsbd')
    a(f'v_mov_b32 v{SB.vA}, {SB.base}')
    a(f'v_mov_b32 v{SB.vB}, 1')
    a('s_waitcnt lgkmcnt(0)')
    a(f'ds_add_u32 v{SB.vA}, v{SB.vB} offset:{off}')
    a.label(lp)
    a(f'ds_read_b32 v{SB.vB}, v{SB.vA} offset:{off}')
    a('s_waitcnt lgkmcnt(0)')
    a(f'v_readfirstlane_b32 s{SB.sT}, v{SB.vB}')
    a(f's_cmp_ge_u32 s{SB.sT}, {64 * SB.nw}')
    a(f's_cbranch_scc1 {ld}')
    a('s_sleep 1')
    spin_guard(a)
    a(f's_branch {lp}')
    a.label(ld)

def wave_lane(a, sW, vLane):
    a(f'v_lshrrev_b32 v{vLane}, 6, v0')
    a('s_nop 0')
    a(f'v_readfirstlane_b32 s{sW}, v{vLane}')
    a(f'v_and_b32 v{vLane}, 63, v0')

def gemm_setup(a, va, p):
    TT, FT, WR, WC, NST = p.TT, p.FT, p.WR, p.WC, p.NST
    NW = WR * WC
    G2 = NW // 4
    TW, FW = TT // WR, FT // WC
    p.TW, p.FW, p.NW, p.G2 = TW, FW, NW, G2
    XS, WSZ = TT * 4096, FT * 4096
    XW = getattr(p, 'lds_base', 0) + NST * XS
    p.XS, p.WSZ, p.XW = XS, WSZ, XW
    p.lds_bytes = getattr(p, 'lds_base', 0) + NST * (XS + WSZ)
    sT0, sT1, sM0x, sM0w, sWr, sWc, sS, sGr = [p.stmp + i for i in range(8)]
    p.sT0, p.sT1, p.sM0x, p.sM0w, p.sWr, p.sWc, p.sS, p.sGr = sT0, sT1, sM0x, sM0w, sWr, sWc, sS, sGr
    l = p.vLane
    t0 = va(); t1 = va(); t2 = va()
    p.t = (t0, t1, t2)
    lg = int(math.log2(WC))
    a(f's_lshr_b32 s{sWr}, s{p.sW}, {lg}')
    a(f's_and_b32 s{sWc}, s{p.sW}, {WC-1}')
    a(f's_and_b32 s{sS}, s{p.sW}, 3')
    a(f's_lshr_b32 s{sGr}, s{p.sW}, 2')
    assert TT % G2 == 0
    p.TD = TT // G2
    p.FD = (FT + G2 - 1) // G2
    assert FT % G2 == 0
    a(f's_lshl_b32 s{sM0x}, s{sS}, 10')
    a(f's_add_u32 s{sM0w}, s{sM0x}, {XW}')
    if getattr(p, 'lds_base', 0): a(f's_add_u32 s{sM0x}, s{sM0x}, {p.lds_base}')
    if G2 > 1:
        a(f's_mul_i32 s{sT0}, s{sGr}, {p.TD * 4096}')
        a(f's_add_u32 s{sM0x}, s{sM0x}, s{sT0}')
        a(f's_mul_i32 s{sT0}, s{sGr}, {p.FD * 4096}')
        a(f's_add_u32 s{sM0w}, s{sM0w}, s{sT0}')
    vW = va(); p.vW = vW
    a(f'v_lshrrev_b32 v{t0}, 2, v{l}')
    a(f's_mov_b32 s{sT0}, {p.rowbytes}')
    a(f'v_mul_lo_u32 v{vW}, v{t0}, s{sT0}')
    a(f'v_and_b32 v{t0}, 3, v{l}')
    a(f'v_lshl_add_u32 v{vW}, v{t0}, 4, v{vW}')
    vL16 = va(); p.vL16 = vL16
    a(f'v_lshlrev_b32 v{vL16}, 4, v{l}')
    if p.xmode == 'row':
        vX = va(); p.vX = vX
        a(f's_and_b32 s{sT0}, s{p.sW}, 1')
        a(f's_lshl_b32 s{sT0}, s{sT0}, 2')
        a(f'v_lshrrev_b32 v{t0}, 4, v{l}')
        a(f'v_add_u32 v{t0}, s{sT0}, v{t0}')
        a(f'v_and_b32 v{t1}, 7, v{l}')
        a(f'v_xor_b32 v{t0}, v{t0}, v{t1}')
        a(f'v_lshrrev_b32 v{t1}, 3, v{l}')
        a(f'v_lshlrev_b32 v{t1}, 10, v{t1}')
        a(f'v_lshl_add_u32 v{vX}, v{t0}, 4, v{t1}')
    elif p.xmode == 'shift':
        assert G2 == 1 and p.xtile == 32768
        vSh = [[va() for g in range(4)] for T in range(TT)]
        p.vSh = vSh
        shifts = [-1, 1, -2, 2]
        a(f'v_and_b32 v{t0}, 31, v{l}')
        a(f'v_add_u32 v{t0}, s{p.sRow0}, v{t0}')
        a(f'v_lshrrev_b32 v{t1}, 5, v{l}')
        a(f'v_lshlrev_b32 v{t1}, 9, v{t1}')
        a(f's_mov_b32 s{sT0}, 2048')
        a(f's_mov_b32 s{sT1}, {hex(OOB)}')
        for T in range(TT):
            for g in range(4):
                r = vSh[T][g]
                d = 32 * T + shifts[g]
                a(f'v_add_u32 v{t2}, {d}, v{t0}')
                a(f'v_cmp_gt_u32 vcc, s{sT0}, v{t2}')
                a(f'v_lshrrev_b32 v{r}, 5, v{t2}')
                a(f'v_lshlrev_b32 v{r}, 15, v{r}')
                a(f'v_and_b32 v{t2}, 31, v{t2}')
                a(f'v_lshl_add_u32 v{r}, v{t2}, 4, v{r}')
                a(f'v_add_u32 v{r}, v{r}, v{t1}')
                a(f'v_mov_b32 v{t2}, s{sT1}')
                a(f'v_cndmask_b32 v{r}, v{t2}, v{r}, vcc')
    base = getattr(p, 'lds_base', 0)
    if p.xmode == 'row':
        vXr = [va() for s in range(4)]; p.vXr = vXr
        a(f'v_and_b32 v{t0}, 31, v{l}')
        a(f'v_lshrrev_b32 v{t1}, 1, v{t0}')
        a(f'v_and_b32 v{t1}, 7, v{t1}')
        a(f'v_lshrrev_b32 v{t2}, 5, v{l}')
        a(f'v_xor_b32 v{t1}, v{t1}, v{t2}')
        a(f'v_lshlrev_b32 v{t0}, 7, v{t0}')
        a(f's_mul_i32 s{sT0}, s{sWr}, {TW * 4096}')
        if base: a(f's_add_u32 s{sT0}, s{sT0}, {base}')
        a(f'v_add_u32 v{t0}, s{sT0}, v{t0}')
        for s in range(4):
            a(f'v_xor_b32 v{t2}, {2*s}, v{t1}')
            a(f'v_lshl_add_u32 v{vXr[s]}, v{t2}, 4, v{t0}')
    else:
        vXb = va(); p.vXb = vXb
        a(f's_mul_i32 s{sT0}, s{sWr}, {TW * 4096}')
        if base: a(f's_add_u32 s{sT0}, s{sT0}, {base}')
        a(f'v_add_u32 v{vXb}, s{sT0}, v{vL16}')
    vWb = va(); p.vWb = vWb
    a(f'v_lshrrev_b32 v{t0}, 5, v{l}')
    a(f'v_lshlrev_b32 v{t0}, 9, v{t0}')
    a(f'v_bfe_u32 v{t1}, v{l}, 2, 2')
    a(f'v_lshl_add_u32 v{t0}, v{t1}, 6, v{t0}')
    a(f'v_bfe_u32 v{t1}, v{l}, 4, 1')
    a(f'v_lshl_add_u32 v{t0}, v{t1}, 5, v{t0}')
    a(f'v_and_b32 v{t1}, 3, v{l}')
    a(f'v_lshl_add_u32 v{t0}, v{t1}, 3, v{t0}')
    a(f's_mul_i32 s{sT0}, s{sWc}, {FW * 4096}')
    a(f's_add_u32 s{sT0}, s{sT0}, {XW}')
    a(f'v_add_u32 v{vWb}, s{sT0}, v{t0}')

def gemm_main(a, va, p):
    TT, FT, WR, WC, KS, NST = p.TT, p.FT, p.WR, p.WC, p.KS, p.NST
    TW, FW, XS, WSZ = p.TW, p.FW, p.XS, p.WSZ
    NCH = (KS + 3) // 4
    sT0, sT1 = p.sT0, p.sT1
    vm = []
    p.vm = vm
    rot = getattr(p, 'sRot', None) is not None

    def dma_ops(c):
        st = c % NST
        ops = []
        for T in range(p.TD):
            def f(T=T):
                a(f's_add_u32 m0, s{p.sM0x}, {st * XS + T * 4096}')
                if p.xmode == 'row' and rot:
                    if T == 0:
                        a(f's_add_u32 s{p.sRotC}, s{p.sRot}, {c}')
                        a(f's_and_b32 s{p.sRotC}, s{p.sRotC}, {NCH-1}')
                        a(f's_lshl_b32 s{p.sRotX}, s{p.sRotC}, 7')
                        a(f's_add_u32 s{p.sRotX}, s{p.sRotX}, s{p.sXoff}')
                        a(f's_mul_i32 s{p.sRotW}, s{p.sRotC}, {64 * p.rowbytes}')
                        a(f's_add_u32 s{p.sRotW}, s{p.sRotW}, s{p.sWoff}')
                    a(f's_add_u32 s{sT0}, s{p.sRotX}, {T * 32768}'); vo = p.vX
                elif p.xmode == 'row':
                    a(f's_add_u32 s{sT0}, s{p.sXoff}, {T * 32768 + c * 128}'); vo = p.vX
                elif p.xmode == 'shift':
                    a(f's_add_u32 s{sT0}, s{p.sXoff}, {c * 4096}'); vo = p.vSh[T][c // 2]
                else:
                    a(f's_add_u32 s{sT0}, s{p.sXoff}, {T * p.xtile + c * 4096}'); vo = p.vL16
                a(f'buffer_load_dwordx4 v{vo}, s[{p.xsrd}:{p.xsrd+3}], s{sT0} offen {p.ldflags} lds')
                vm.append(c)
            ops.append(f)
        for F in range(p.FD):
            def f(F=F):
                a(f's_add_u32 m0, s{p.sM0w}, {st * WSZ + F * 4096}')
                if rot: a(f's_add_u32 s{sT1}, s{p.sRotW}, {F * 64}')
                else: a(f's_add_u32 s{sT1}, s{p.sWoff}, {c * 64 * p.rowbytes + F * 64}')
                a(f'buffer_load_dwordx4 v{p.vW}, s[{sWSRD}:{sWSRD+3}], s{sT1} offen lds')
                vm.append(c)
            ops.append(f)
        return ops

    acc = [[va(16, 4) for F in range(FW)] for T in range(TW)]
    xf = [[va(4) for T in range(TW)] for b in range(2)]
    wf = [[va(4) for F in range(FW)] for b in range(2)]
    p.acc = acc
    xstats = getattr(p, 'xstats', False); wsum_on = getattr(p, 'wsum', False)
    if xstats:
        xs = [[va(), va()] for T in range(TW)]; p.xs = xs
    if wsum_on:
        wsum = [va() for F in range(FW)]; p.wsumr = wsum
    ninit = min(getattr(p, 'init_chunks', NST), NCH)
    for c in range(ninit):
        for f in dma_ops(c): f()
    nxt = ninit
    pending = []
    if getattr(p, 'acc_init', None):
        p.acc_init(acc)
    else:
        for T in range(TW):
            for F in range(FW):
                for i in range(16):
                    a(f'v_mov_b32 v{acc[T][F]+i}, 0')
    if xstats:
        for T in range(TW):
            a(f'v_mov_b32 v{xs[T][0]}, 0'); a(f'v_mov_b32 v{xs[T][1]}, 0')
    if wsum_on:
        for F in range(FW):
            a(f'v_mov_b32 v{wsum[F]}, 0')
    sOnes = p.stmp + 8
    if xstats or wsum_on:
        a(f's_mov_b32 s{sOnes}, 0x3f803f80')
    if getattr(p, 'after_issue', None): p.after_issue()

    def read_ops(i):
        c, s = i // 4, i % 4
        st = c % NST; b = i % 2
        def rx(T):
            if p.xmode == 'row':
                return f'ds_read_b128 {V(xf[b][T],4)}, v{p.vXr[s]} offset:{st * XS + T * 4096}'
            return f'ds_read_b128 {V(xf[b][T],4)}, v{p.vXb} offset:{st * XS + T * 4096 + s * 1024}'
        ops = [(rx(0), ('x', i, 0))]
        for F in range(FW):
            o = st * WSZ + F * 4096 + s * 1024
            ops.append((f'ds_read_b64_tr_b16 {V(wf[b][F],2)}, v{p.vWb} offset:{o}', ('w', i, F)))
            ops.append((f'ds_read_b64_tr_b16 {V(wf[b][F]+2,2)}, v{p.vWb} offset:{o+256}', ('w', i, F)))
        for T in range(1, TW):
            ops.append((rx(T), ('x', i, T)))
        return ops
    lg = []
    def emit_read(op):
        a(op[0]); lg.append(op[1])
    def wait_lds(tags):
        idx = [k for k, t in enumerate(lg) if t in tags]
        if not idx: return
        n = len(lg) - 1 - max(idx)
        a(f's_waitcnt lgkmcnt({n})')
        del lg[:max(idx) + 1]

    INIT = getattr(p, 'init_chunks', NST)
    def sync(c):
        nonlocal nxt, pending
        for f in pending: f()
        pending = []
        last = max(i for i, v in enumerate(vm) if v == c)
        n = len(vm) - 1 - last
        assert n <= 63
        a(f's_waitcnt vmcnt({n}) lgkmcnt(0)')
        lg.clear()
        a('s_barrier')
        while nxt < NCH and nxt <= c + NST - 1 and len(pending) < (2 if c == 0 else 1) * (p.TD + p.FD):
            pending += dma_ops(nxt); nxt += 1
        if getattr(p, 'after_sync', None):
            p.after_sync(c); lg.append('other')

    def compute(i, rops):
        nonlocal pending
        b = i % 2
        nm = TW * FW
        per_r = (len(rops) + nm - 1) // nm
        ndma = (len(pending) + (3 - i % 4)) // (4 - i % 4) if pending else 0
        if (i + 1) % 4 == 0: ndma = (len(pending) + 3) // 4
        k = 0
        for T in range(TW):
            for F in range(FW):
                wait_lds({('x', i, T), ('w', i, F)})
                A_, B_ = (wf[b][F], xf[b][T]) if p.orient == 'T' else (xf[b][T], wf[b][F])
                a(f'v_mfma_f32_32x32x16_bf16 {V(acc[T][F],16)}, {V(A_,4)}, {V(B_,4)}, {V(acc[T][F],16)}')
                for op in rops[k * per_r:(k + 1) * per_r]: emit_read(op)
                k += 1
                if k >= nm - 1 or nm == 1:
                    take = (ndma + 1) // 2 if k == nm - 1 else ndma
                    for f in pending[:take]: f()
                    pending = pending[take:]; ndma -= take
        if xstats or wsum_on:
            lab = a.newlabel('Lst')
            a(f's_cmp_lg_u32 s{p.sPar}, {i % 2}')
            a(f's_cbranch_scc1 {lab}')
            for T in range(TW):
                for j in range(4):
                    a(f'v_dot2_f32_bf16 v{xs[T][0]}, v{xf[b][T]+j}, s{sOnes}, v{xs[T][0]}')
                    a(f'v_dot2_f32_bf16 v{xs[T][1]}, v{xf[b][T]+j}, v{xf[b][T]+j}, v{xs[T][1]}')
            for F in range(FW):
                for j in range(4):
                    a(f'v_dot2_f32_bf16 v{wsum[F]}, v{wf[b][F]+j}, s{sOnes}, v{wsum[F]}')
            a.label(lab)

    if xstats or wsum_on:
        assert WR == 2 and WC == 2
        p.sPar = p.stmp + 9
        a(f's_xor_b32 s{p.sPar}, s{p.sWr}, s{p.sWc}')
    sync(0)
    stamp(a, 1)
    for op in read_ops(0): emit_read(op)
    for i in range(KS):
        rops = []
        if i + 1 < KS:
            if (i + 1) % 4 == 0:
                sync((i + 1) // 4)
            rops = read_ops(i + 1)
        compute(i, rops)
    assert not pending
    a('s_waitcnt lgkmcnt(0)')
    stamp(a, 2)
    return acc

def gelu_scalar(a, base, n, tmp, sC1, vC2):
    for i in range(n):
        a(f'v_mul_f32 v{tmp+i}, v{base+i}, v{base+i}')
    for i in range(n):
        a(f'v_fma_f32 v{tmp+i}, v{tmp+i}, v{vC2}, s{sC1}')
    for i in range(n):
        a(f'v_mul_f32 v{tmp+i}, v{tmp+i}, v{base+i}')
    for i in range(n):
        a(f'v_exp_f32 v{tmp+i}, v{tmp+i}')
    a('s_nop 0')
    for i in range(n):
        a(f'v_add_f32 v{tmp+i}, 1.0, v{tmp+i}')
    for i in range(n):
        a(f'v_rcp_f32 v{tmp+i}, v{tmp+i}')
    a('s_nop 0')
    for i in range(n):
        a(f'v_mul_f32 v{base+i}, v{base+i}, v{tmp+i}')

def dpp_wave_sum(a, regs, tmp):
    steps = ['row_shr:1', 'row_shr:2', 'row_shr:4', 'row_shr:8', 'row_bcast:15 row_mask:0xa', 'row_bcast:31 row_mask:0xc']
    for st in steps:
        if len(regs) < 3: a('s_nop 1')
        for r in regs:
            m = st if 'row_mask' in st else st + ' row_mask:0xf'
            a(f'v_add_f32_dpp v{r}, v{r}, v{r} {m} bank_mask:0xf bound_ctrl:0' if False else f'v_add_f32_dpp v{r}, v{r}, v{r} {m} bank_mask:0xf')

def build(kernels, out):
    descs = []
    launches = []
    body = Asm()
    for fn, grid, block in kernels:
        name, nv, lds = fn(body)
        descs.append(kernel_desc(name, nv))
        launches.append(f'; @launch kernel={name} grid=({grid},1,1) block=({block},1,1) lds={lds}')
    txt = '\n'.join(launches) + '\n.amdgcn_target "amdgcn-amd-amdhsa--gfx950"\n' + body.text()
    txt += '.section .rodata,"a"\n' + ''.join('.p2align 6\n' + d for d in descs)
    open(out, 'w').write(txt)
```

```python
from core import *
MF = 'v_mfma_f32_32x32x16_bf16'
MPRIO = int(os.environ.get('MPRIO', '0'))

def trbase(a, v, l, t):
    a(f'v_lshrrev_b32 v{v}, 5, v{l}')
    a(f'v_lshlrev_b32 v{v}, 9, v{v}')
    a(f'v_bfe_u32 v{t}, v{l}, 2, 2')
    a(f'v_lshl_add_u32 v{v}, v{t}, 6, v{v}')
    a(f'v_bfe_u32 v{t}, v{l}, 4, 1')
    a(f'v_lshl_add_u32 v{v}, v{t}, 5, v{v}')
    a(f'v_and_b32 v{t}, 3, v{l}')
    a(f'v_lshl_add_u32 v{v}, v{t}, 3, v{v}')

def wdma_voff(a, v, l, t, rowbytes, sT):
    a(f'v_lshrrev_b32 v{t}, 2, v{l}')
    a(f's_mov_b32 s{sT}, {rowbytes}')
    a(f'v_mul_lo_u32 v{v}, v{t}, s{sT}')
    a(f'v_and_b32 v{t}, 3, v{l}')
    a(f'v_lshl_add_u32 v{v}, v{t}, 4, v{v}')

class VM:
    def __init__(self): self.l = []
    def add(self, tag='x'): self.l.append(tag)
    def wait_for(self, tag):
        last = max(i for i, v in enumerate(self.l) if v == tag)
        n = len(self.l) - 1 - last
        assert n <= 63, n
        return n

class WSK:
    def __init__(self, a, va, sW, vLane, stmp, D, vm, lds_base=0, ring_bytes=16384):
        self.a, self.va, self.sW, self.l, self.D, self.vm = a, va, sW, vLane, D, vm
        self.sT0, self.sT1, self.sM0, self.sWr, self.sWc = [stmp + i for i in range(5)]
        self.ring = ring_bytes; self.base = lds_base
        assert D * 2048 <= ring_bytes
        self.t0 = va(); self.t1 = va(); self.t2 = va()
        self.t = (self.t0, self.t1, self.t2)
        self.vL16 = va(); self.vTr = va(); self.vW = va()
        a(f's_lshr_b32 s{self.sWr}, s{sW}, 1')
        a(f's_and_b32 s{self.sWc}, s{sW}, 1')
        a(f's_mul_i32 s{self.sM0}, s{sW}, {ring_bytes}')
        if lds_base: a(f's_add_u32 s{self.sM0}, s{self.sM0}, {lds_base}')
        a(f'v_lshlrev_b32 v{self.vL16}, 4, v{vLane}')
        trbase(a, self.vTr, vLane, self.t0)
        a(f'v_add_u32 v{self.vTr}, s{self.sM0}, v{self.vTr}')
        wdma_voff(a, self.vW, vLane, self.t0, 1024, self.sT0)
        self.acc = [[va(16, 4) for F in range(2)] for T in range(2)]
        self.xr = [[va(4) for T in range(2)] for d in range(D)]
        self.wf = [[va(4) for F in range(2)] for b in range(2)]
        self.steps = []

    def zero_acc(self, skip00=False):
        for T in range(2):
            for F in range(2):
                if skip00 and T == 0 and F == 0: continue
                for i in range(16):
                    self.a(f'v_mov_b32 v{self.acc[T][F]+i}, 0')

    def add_segment(self, n, xsrd, sX, xvoff, xflags, wsrd, sWo, sJx, sJw, sN, last_cond=None):
        a = self.a
        def adv(sJ):
            a(f's_add_u32 s{sJ}, s{sJ}, 1')
            if isinstance(sN, int) and (sN & (sN - 1)) == 0:
                a(f's_and_b32 s{sJ}, s{sJ}, {sN-1}')
            else:
                a(f's_cmp_lt_u32 s{sJ}, {sN if isinstance(sN, int) else "s%d" % sN[0]}')
                a(f's_cselect_b32 s{sJ}, s{sJ}, 0')
        for j in range(n):
            idx = len(self.steps)
            slot = idx % self.D
            def ix(T, slot=slot, idx=idx):
                a(f's_lshl_b32 s{self.sT1}, s{sJx}, 12')
                a(f's_add_u32 s{self.sT0}, s{sX[T]}, s{self.sT1}')
                a(f'buffer_load_dwordx4 {V(self.xr[slot][T],4)}, v{xvoff}, s[{xsrd}:{xsrd+3}], s{self.sT0} offen {xflags}')
                self.vm.add(('x', idx))
                if T == 1: adv(sJx)
            def iw(F, slot=slot, idx=idx):
                a(f's_add_u32 m0, s{self.sM0}, {slot * 2048 + F * 1024}')
                a(f's_lshl_b32 s{self.sT0}, s{sJw}, 16')
                a(f's_add_u32 s{self.sT1}, s{sWo[F]}, s{self.sT0}')
                a(f'buffer_load_dwordx4 v{self.vW}, s[{wsrd}:{wsrd+3}], s{self.sT1} offen lds')
                self.vm.add(('w', idx))
                if F == 1: adv(sJw)
            self.steps.append((ix, iw, last_cond if j == n - 1 else None))

    def issue_w(self, i):
        self.steps[i][1](0); self.steps[i][1](1)
    def issue_x(self, i):
        self.steps[i][0](0); self.steps[i][0](1)

    def _reads(self, idx):
        a = self.a
        slot = idx % self.D; b = idx % 2
        a(f's_waitcnt vmcnt({self.vm.wait_for(("w", idx))})')
        for F in range(2):
            o = slot * 2048 + F * 1024
            a(f'ds_read_b64_tr_b16 {V(self.wf[b][F],2)}, v{self.vTr} offset:{o}')
            a(f'ds_read_b64_tr_b16 {V(self.wf[b][F]+2,2)}, v{self.vTr} offset:{o+256}')

    def run(self, lo, hi, xlimit=None, wlimit=None, pre_issued_x=0, pre_issued_w=0):
        a = self.a
        N = len(self.steps)
        if xlimit is None: xlimit = N
        if wlimit is None: wlimit = N
        def issue_upto(done):
            while self.nw < min(wlimit, done + self.D):
                self.issue_w(self.nw); self.nw += 1
                if self.nx < min(xlimit, done + self.D) and self.nx < self.nw:
                    self.issue_x(self.nx); self.nx += 1
            while self.nx < min(xlimit, done + self.D):
                self.issue_x(self.nx); self.nx += 1
        issue_upto(lo)
        if getattr(self, 'after_issue', None):
            self.after_issue(); self.after_issue = None
        self._reads(lo)
        for idx in range(lo, hi):
            b = idx % 2; slot = idx % self.D
            cond = self.steps[idx][2]
            if idx + 1 < hi:
                self._reads(idx + 1)
                a(f's_waitcnt vmcnt({self.vm.wait_for(("x", idx))}) lgkmcnt(4)')
            else:
                a(f's_waitcnt vmcnt({self.vm.wait_for(("x", idx))}) lgkmcnt(0)')
            dow = self.nw == idx + self.D and self.nw < wlimit
            dox = self.nx == idx + self.D and self.nx < xlimit
            mf = [f'{MF} {V(self.acc[T][F],16)}, {V(self.wf[b][F],4)}, {V(self.xr[slot][T],4)}, {V(self.acc[T][F],16)}' for T in range(2) for F in range(2)]
            if cond:
                lab = a.newlabel('Lsk'); cond(lab)
                if MPRIO: a('s_setprio 0')
                for m in mf: a(m)
                if MPRIO: a(f's_setprio {MPRIO}')
                a.label(lab)
            elif MPRIO:
                a('s_setprio 0')
                for m in mf: a(m)
                a(f's_setprio {MPRIO}')
            else:
                a(mf[0])
                if dow: self.steps[self.nw][1](0)
                a(mf[1])
                if dow: self.steps[self.nw][1](1); self.nw += 1
                a(mf[2])
                if dox: self.steps[self.nx][0](0)
                a(mf[3])
                if dox: self.steps[self.nx][0](1); self.nx += 1
            issue_upto(idx + 1)
    nx = 0; nw = 0

    def reduce(self):
        a = self.a
        vW_ = self.t0; vR = self.t1
        a(f'v_add_u32 v{vW_}, s{self.sM0}, v{self.vL16}')
        a('s_nop 10')
        for q in range(1, 4):
            ac = self.acc[q >> 1][q & 1]
            for i in range(4):
                a(f'ds_write_b128 v{vW_}, {V(ac+4*i,4)} offset:{(q-1)*4096 + i*1024}')
        a('s_waitcnt lgkmcnt(0)')
        BAR(a)
        for q in range(1, 4):
            ac = self.acc[q >> 1][q & 1]
            a(f's_xor_b32 s{self.sT0}, s{self.sW}, {q}')
            a(f's_mul_i32 s{self.sT0}, s{self.sT0}, {self.ring}')
            if self.base: a(f's_add_u32 s{self.sT0}, s{self.sT0}, {self.base}')
            a(f'v_add_u32 v{vR}, s{self.sT0}, v{self.vL16}')
            for i in range(4):
                a(f'ds_read_b128 {V(ac+4*i,4)}, v{vR} offset:{(q-1)*4096 + i*1024}')
        o = self.acc[0][0]
        for q in range(1, 4):
            ac = self.acc[q >> 1][q & 1]
            a(f's_waitcnt lgkmcnt({(3-q)*4})')
            for i in range(16):
                a(f'v_add_f32 v{o+i}, v{o+i}, v{ac+i}')
        return o
```

```python
import sys
from core2 import *

XNF  = 0x1200000
XNNF = 0x1400000
CL, CQ, C1, C2, C3, CA, CC = [FLG + i * 128 for i in (0, 16, 32, 64, 96, 112, 144)]
NCNT = 192

A_SIZE = 73728
FL = A_SIZE
F_STATUS, F_WRDY, F_KRDY, F_REQ, F_WDONE, F_KDONE = 0, 4, 8, 12, 16, 32
B_BASE = FL + 256
B_SIZE = 74752
LDS_TOTAL = B_BASE + B_SIZE
ZOK = 1 << 31
B_XA, B_XB, B_QKV, B_C1, B_C2, B_C3, B_CA = 1, 2, 0x1c, 0xe0, 0x2700, 0x800, 0x1000
ALLB = 0x3fff

ws = f's[{sWS}:{sWS+3}]'
PRIO = int(os.environ.get('PRIO', '2'))
WD = int(os.environ.get('WD', '7')); WRING = 16384
sW, sRB, sCB, sRow0 = 36, 37, 38, 39
sX0, sX1, sW0, sW1 = 40, 41, 42, 47
T0, T1, T2, T3 = 43, 44, 45, 46
STMP = 48
sW2SRD = 20
sJ0, sJ1, sJ2, sJ3, sNN = 60, 61, 62, 63, 57
pX, pQKV, pWO, pW1, pW2, pW3, pW4, pOUT, pDBG, pWS = 24, 26, 28, 30, 32, 84, 86, 88, 90, 34
vSA, vSB = 2, 3
V0 = 4

LNST = os.environ.get('LNST', '0') == '1'
TOUCH = os.environ.get('TOUCH', '1') == '1'
LDF = os.environ.get('LDF', '')
class CS:
    n = 1
DST = [x for x in os.environ.get('DST', '').split(',') if x]
def cstamp(a):
    if DST: return
    if CS.n <= 4: stamp(a, CS.n)
    CS.n += 1
def dstamp(a, name):
    if name in DST: stamp(a, DST.index(name) + 1)

def request(a, mask):
    a(f'v_mov_b32 v{vSA}, {FL}')
    a(f'v_mov_b32 v{vSB}, {hex(mask)}')
    a(f'ds_or_b32 v{vSA}, v{vSB} offset:{F_REQ}')

def wait_status(a, mask, sleep=1):
    lp = a.newlabel('Lws'); ld = a.newlabel('Lwd')
    if mask != ZOK: request(a, mask)
    else: a(f'v_mov_b32 v{vSA}, {FL}')
    a.label(lp)
    a(f'ds_read_b32 v{vSB}, v{vSA} offset:{F_STATUS}')
    a('s_waitcnt lgkmcnt(0)')
    a(f'v_readfirstlane_b32 s{T3}, v{vSB}')
    a(f's_and_b32 s{T3}, s{T3}, {hex(mask)}')
    a(f's_cmp_eq_u32 s{T3}, {hex(mask)}')
    a(f's_cbranch_scc1 {ld}')
    a(f's_sleep {sleep}')
    spin_guard(a)
    a(f's_branch {lp}')
    a.label(ld)

def wait_lds_ge(a, off, val, sleep=1):
    lp = a.newlabel('Lwl'); ld = a.newlabel('Lwld')
    a(f'v_mov_b32 v{vSA}, {FL}')
    a.label(lp)
    a(f'ds_read_b32 v{vSB}, v{vSA} offset:{off}')
    a('s_waitcnt lgkmcnt(0)')
    a(f'v_readfirstlane_b32 s{T3}, v{vSB}')
    a(f's_cmp_ge_u32 s{T3}, {val}')
    a(f's_cbranch_scc1 {ld}')
    a(f's_sleep {sleep}')
    spin_guard(a)
    a(f's_branch {lp}')
    a.label(ld)

def wait_min4(a, off, val, q, sleep=2):
    lp = a.newlabel('Lwm'); ld = a.newlabel('Lwmd')
    a(f'v_mov_b32 v{vSA}, {FL}')
    a.label(lp)
    a(f'ds_read_b128 {V(q,4)}, v{vSA} offset:{off}')
    a('s_waitcnt lgkmcnt(0)')
    a(f'v_min_u32 v{q}, v{q}, v{q+1}')
    a(f'v_min3_u32 v{q}, v{q}, v{q+2}, v{q+3}')
    a('s_nop 0')
    a(f'v_readfirstlane_b32 s{T3}, v{q}')
    a(f's_cmp_ge_u32 s{T3}, {val}')
    a(f's_cbranch_scc1 {ld}')
    a(f's_sleep {sleep}')
    spin_guard(a)
    a(f's_branch {lp}')
    a.label(ld)

def signal(a, offs, nw=4, need_zok=False, srdn=sWS):
    a('s_waitcnt vmcnt(0)')
    SB.nw = nw; BAR(a); SB.nw = 4
    lab = a.newlabel('Lsig')
    a(f's_cmp_lg_u32 s{sW}, 0')
    a(f's_cbranch_scc1 {lab}')
    if need_zok: wait_status(a, ZOK)
    a(f'v_mov_b32 v{vSA}, 0')
    a(f'v_mov_b32 v{vSB}, 1')
    a('s_mov_b64 exec, 1')
    for o in offs:
        a(f'buffer_atomic_add v{vSB}, v{vSA}, s[{srdn}:{srdn+3}], s{o} offen sc1')
    a('s_mov_b64 exec, -1')
    a.label(lab)

def map_64x64(a):
    a(f's_and_b32 s{T0}, s2, 7')
    a(f's_lshr_b32 s{T1}, s2, 3')
    a(f's_lshl_b32 s{sRB}, s{T0}, 2')
    a(f's_and_b32 s{T2}, s{T1}, 3')
    a(f's_add_u32 s{sRB}, s{sRB}, s{T2}')
    a(f's_lshr_b32 s{sCB}, s{T1}, 2')
def map_g3(a):
    a(f's_and_b32 s{T0}, s2, 7')
    a(f's_lshr_b32 s{T1}, s2, 3')
    a(f's_lshl_b32 s{sRB}, s{T0}, 1')
    a(f's_and_b32 s{T2}, s{T1}, 1')
    a(f's_add_u32 s{sRB}, s{sRB}, s{T2}')
    a(f's_lshr_b32 s{sCB}, s{T1}, 1')
def map_qkv(a):
    a(f's_and_b32 s{T0}, s2, 7')
    a(f's_lshr_b32 s{T1}, s2, 3')
    a(f's_lshr_b32 s{T2}, s{T0}, 1')
    a(f's_lshl_b32 s{T2}, s{T2}, 2')
    a(f's_and_b32 s{T3}, s{T1}, 3')
    a(f's_add_u32 s{sRB}, s{T2}, s{T3}')
    a(f's_and_b32 s{T2}, s{T0}, 1')
    a(f's_lshl_b32 s{T2}, s{T2}, 3')
    a(f's_lshr_b32 s{T3}, s{T1}, 2')
    a(f's_add_u32 s{sCB}, s{T2}, s{T3}')
def rot8(a, d0, d1, mul=1):
    a(f's_and_b32 s{T0}, s{sRB}, 3')
    a(f's_lshl_b32 s{T0}, s{T0}, 1')
    a(f's_add_u32 s{T0}, s{T0}, s{sCB}')
    a(f's_and_b32 s{d0}, s{T0}, 7')
    if mul != 1:
        a(f's_mul_i32 s{d0}, s{d0}, {mul}')
        a(f's_lshr_b32 s{d0}, s{d0}, 1')
    a(f's_mov_b32 s{d1}, s{d0}')

def pack_swap(a, ac, pk):
    for i in range(8):
        a(f'v_cvt_pk_bf16_f32 v{pk+i}, v{ac+2*i}, v{ac+2*i+1}')
    a('s_nop 1')
    for pr in range(2):
        b = pk + 4 * pr
        a(f'v_permlane32_swap_b32 v{b}, v{b+2}')
        a(f'v_permlane32_swap_b32 v{b+1}, v{b+3}')
    a('s_nop 1')
def pack_swap_store(a, ac, pk, voff, sOff):
    pack_swap(a, ac, pk)
    for pr in range(2):
        a(f'buffer_store_dwordx4 {V(pk+4*pr,4)}, v{voff}, {ws}, s{sOff} offen offset:{pr*1024} sc1')

def frag_tile_off(a, sDst, g, base, nks):
    a(f's_lshl_b32 s{sDst}, s{sRB}, 1')
    a(f's_add_u32 s{sDst}, s{sDst}, s{g.sWr}')
    a(f's_mul_i32 s{sDst}, s{sDst}, {nks}')
    a(f's_lshl_b32 s{T3}, s{sCB}, 2')
    a(f's_add_u32 s{sDst}, s{sDst}, s{T3}')
    a(f's_lshl_b32 s{T3}, s{g.sWc}, 1')
    a(f's_add_u32 s{sDst}, s{sDst}, s{T3}')
    a(f's_lshl_b32 s{sDst}, s{sDst}, 10')
    a(f's_add_u32 s{sDst}, s{sDst}, {hex(base)}')
def wsk_woffs(a, g):
    a(f's_lshl_b32 s{sW0}, s{sW}, 14')
    a(f's_lshl_b32 s{T0}, s{sCB}, 7')
    a(f's_add_u32 s{sW0}, s{sW0}, s{T0}')
    a(f's_lshl_b32 s{T0}, s{g.sWc}, 6')
    a(f's_xor_b32 s{T1}, s{T0}, 64')
    a(f's_add_u32 s{sW1}, s{sW0}, s{T1}')
    a(f's_add_u32 s{sW0}, s{sW0}, s{T0}')
def wsk_xoffs(a, g, base, xtile, d0=sX0, d1=sX1):
    a(f's_lshl_b32 s{T0}, s{sRB}, 1')
    a(f's_add_u32 s{T1}, s{T0}, s{g.sWr}')
    a(f's_mul_i32 s{d0}, s{T1}, {xtile}')
    a(f's_xor_b32 s{T1}, s{T1}, 1')
    a(f's_mul_i32 s{d1}, s{T1}, {xtile}')
    a(f's_lshl_b32 s{T0}, s{sW}, 10')
    a(f's_add_u32 s{T0}, s{T0}, {hex(base)}')
    a(f's_add_u32 s{d0}, s{d0}, s{T0}')
    a(f's_add_u32 s{d1}, s{d1}, s{T0}')
def x_rowmajor_off(a, g, sDst):
    a(f's_lshl_b32 s{sDst}, s{sRB}, 16')
    a(f's_lshl_b32 s{T1}, s{g.sWr}, 15')
    a(f's_add_u32 s{sDst}, s{sDst}, s{T1}')
    a(f's_lshl_b32 s{T1}, s{sCB}, 7')
    a(f's_add_u32 s{sDst}, s{sDst}, s{T1}')
    a(f's_lshl_b32 s{T1}, s{g.sWc}, 6')
    a(f's_add_u32 s{sDst}, s{sDst}, s{T1}')
def lane8_off(a, v, l, t):
    a(f'v_and_b32 v{v}, 31, v{l}')
    a(f'v_lshlrev_b32 v{v}, 4, v{v}')
    a(f'v_lshrrev_b32 v{t}, 5, v{l}')
    a(f'v_lshl_add_u32 v{v}, v{t}, 3, v{v}')
def unpack(a, src, dst, n):
    for j in range(n):
        a(f'v_lshlrev_b32 v{dst+2*j}, 16, v{src+j}')
        a(f'v_and_b32 v{dst+2*j+1}, 0xffff0000, v{src+j}')
def ln_scalars(a, mean, ex2, q, n):
    var, m1, s1, rs = q[0], q[1], q[2], q[3]
    a(f'v_mul_f32 v{mean}, {hex(f32bits(1/n))}, v{mean}')
    a(f'v_mul_f32 v{ex2}, {hex(f32bits(1/n))}, v{ex2}')
    a(f'v_fma_f32 v{var}, -v{mean}, v{mean}, v{ex2}')
    a(f'v_max_f32 v{var}, 0, v{var}')
    a(f'v_mov_b32 v{m1}, v{mean}'); bf16_round(a, m1)
    a(f'v_mov_b32 v{s1}, v{var}'); bf16_round(a, s1)
    a(f'v_add_f32 v{s1}, {hex(f32bits(EPS))}, v{s1}'); bf16_round(a, s1)
    a(f'v_sqrt_f32 v{s1}, v{s1}'); a('s_nop 0'); bf16_round(a, s1)
    a(f'v_rcp_f32 v{rs}, v{s1}'); a('s_nop 0')

def ln_stage(a, sK):
    va = RegAlloc(V0, 256); l = 1
    raw = va(4); x = va(8, 4); d = va(8, 4); pk = [va(4), va(4)]; s_ = va(); t_ = va(); vL16 = va(); vT = va()
    a(f'v_lshlrev_b32 v{vL16}, 4, v{l}')
    srd(a, sAUX, pX, 2048 * 1024)
    a(f's_lshl_b32 s{T0}, s2, 3')
    a(f's_add_u32 s{T0}, s{T0}, s{sK}')
    a(f's_lshl_b32 s{T0}, s{T0}, 10')
    a(f'buffer_load_dwordx4 {V(raw,4)}, v{vL16}, s[{sAUX}:{sAUX+3}], s{T0} offen')
    a('s_waitcnt vmcnt(0)')
    if LNST: stamp(a, 1)
    def wave_sum_to_sgpr(r, sD):
        dpp_wave_sum(a, [r], None)
        a('s_nop 0')
        a(f'v_readlane_b32 s{sD}, v{r}, 63')
    for which in range(2):
        src = raw if which == 0 else pk[0]
        unpack(a, src, x, 4)
        a(f'v_add_f32 v{s_}, v{x}, v{x+1}')
        a(f'v_mul_f32 v{t_}, v{x}, v{x}')
        a(f'v_add_f32 v{d}, v{x+2}, v{x+3}')
        a(f'v_mul_f32 v{d+1}, v{x+1}, v{x+1}')
        a(f'v_add_f32 v{d+2}, v{x+4}, v{x+5}')
        a(f'v_fma_f32 v{t_}, v{x+2}, v{x+2}, v{t_}')
        a(f'v_add_f32 v{d+3}, v{x+6}, v{x+7}')
        a(f'v_fma_f32 v{d+1}, v{x+3}, v{x+3}, v{d+1}')
        a(f'v_add_f32 v{s_}, v{s_}, v{d}')
        a(f'v_fma_f32 v{t_}, v{x+4}, v{x+4}, v{t_}')
        a(f'v_add_f32 v{d+2}, v{d+2}, v{d+3}')
        a(f'v_fma_f32 v{d+1}, v{x+5}, v{x+5}, v{d+1}')
        a(f'v_fma_f32 v{t_}, v{x+6}, v{x+6}, v{t_}')
        a(f'v_fma_f32 v{d+1}, v{x+7}, v{x+7}, v{d+1}')
        a(f'v_add_f32 v{s_}, v{s_}, v{d+2}')
        a(f'v_add_f32 v{t_}, v{t_}, v{d+1}')
        dpp_wave_sum(a, [s_, t_], None)
        a('s_nop 0')
        a(f'v_readlane_b32 s{T1}, v{s_}, 63')
        a(f'v_readlane_b32 s{T2}, v{t_}, 63')
        a('s_nop 1')
        a(f'v_mov_b32 v{s_}, s{T1}')
        a(f'v_mov_b32 v{t_}, s{T2}')
        a(f'v_mul_f32 v{s_}, {hex(f32bits(1/512))}, v{s_}')
        a(f'v_mul_f32 v{t_}, {hex(f32bits(1/512))}, v{t_}')
        a(f'v_fma_f32 v{t_}, -v{s_}, v{s_}, v{t_}')
        a(f'v_max_f32 v{t_}, 0, v{t_}')
        bf16_round(a, s_)
        bf16_round(a, t_)
        a(f'v_add_f32 v{t_}, {hex(f32bits(EPS))}, v{t_}'); bf16_round(a, t_)
        a(f'v_sqrt_f32 v{t_}, v{t_}'); a('s_nop 0'); bf16_round(a, t_)
        a(f'v_rcp_f32 v{t_}, v{t_}')
        for j in range(8): a(f'v_sub_f32 v{d+j}, v{x+j}, v{s_}')
        for j in range(4): a(f'v_cvt_pk_bf16_f32 v{x+j}, v{d+2*j}, v{d+2*j+1}')
        unpack(a, x, d, 4)
        for j in range(8): a(f'v_mul_f32 v{d+j}, v{d+j}, v{t_}')
        for j in range(4): a(f'v_cvt_pk_bf16_f32 v{pk[which]+j}, v{d+2*j}, v{d+2*j+1}')
    a(f's_mul_i32 s{T0}, s{sK}, 1040')
    a(f's_add_u32 s{T0}, s{T0}, {B_BASE}')
    a(f'v_add_u32 v{vT}, s{T0}, v{vL16}')
    a(f'ds_write_b128 v{vT}, {V(pk[0],4)}')
    a(f'ds_write_b128 v{vT}, {V(pk[1],4)} offset:8320')
    SB.nw = 8; BAR(a); SB.nw = 4
    a(f'v_and_b32 v{s_}, 7, v{l}')
    a(f's_mov_b32 s{T0}, 1040')
    a(f'v_mul_lo_u32 v{vT}, v{s_}, s{T0}')
    a(f'v_lshrrev_b32 v{t_}, 3, v{l}')
    a(f'v_lshl_add_u32 v{vT}, v{t_}, 4, v{vT}')
    a(f's_lshl_b32 s{T0}, s{sK}, 7')
    a(f's_add_u32 s{T0}, s{T0}, {B_BASE}')
    a(f'v_add_u32 v{vT}, s{T0}, v{vT}')
    a(f'ds_read_b128 {V(pk[0],4)}, v{vT}')
    a(f'ds_read_b128 {V(pk[1],4)}, v{vT} offset:8320')
    a(f'v_lshlrev_b32 v{vT}, 9, v{t_}')
    a(f'v_lshl_add_u32 v{vT}, v{s_}, 4, v{vT}')
    a(f's_lshr_b32 s{T0}, s2, 2')
    a(f's_lshl_b32 s{T0}, s{T0}, 15')
    a(f's_and_b32 s{T1}, s2, 3')
    a(f's_lshl_b32 s{T1}, s{T1}, 7')
    a(f's_add_u32 s{T0}, s{T0}, s{T1}')
    a(f's_lshl_b32 s{T1}, s{sK}, 12')
    a(f's_add_u32 s{T0}, s{T0}, s{T1}')
    a(f's_add_u32 s{T0}, s{T0}, {hex(XNF)}')
    a(f's_add_u32 s{T1}, s{T0}, {hex(XNNF - XNF)}')
    a('s_waitcnt lgkmcnt(0)')
    a(f'buffer_store_dwordx4 {V(pk[0],4)}, v{vT}, {ws}, s{T0} offen sc1')
    a(f'buffer_store_dwordx4 {V(pk[1],4)}, v{vT}, {ws}, s{T1} offen sc1')
    if LNST: stamp(a, 2)
    a(f's_and_b32 s{T0}, s2, 0xf0')
    a(f's_mov_b32 s{sW}, s{sK}')
    srd(a, sDBG, pDBG, 256)
    signal(a, [T0], nw=8, srdn=sDBG)
    if LNST: stamp(a, 3)
    return va.hi

def sentinel(a):
    l = 1
    vOff, vTgt, vVal, vZ, vF, vD = 4, 5, 6, 7, 8, 9
    sDone, sAct = sX0, sX1
    if os.environ.get('CPF', '1') == '1':
        a('s_getpc_b64 s[52:53]')
        a.label('k_pc')
        a(f's_sub_u32 s52, s52, k_pc-{NAME}_kernel')
        a('s_subb_u32 s53, s53, 0')
        a(f's_lshr_b32 s{T0}, s2, 3')
        a(f's_and_b32 s{T0}, s{T0}, 7')
        a(f's_lshl_b32 s{T0}, s{T0}, 13')
        a(f'v_lshlrev_b32 v{vOff}, 7, v{l}')
        a(f'v_add_u32 v{vOff}, s{T0}, v{vOff}')
        a(f's_mov_b32 s{T0}, k_end-{NAME}_kernel')
        a(f'v_min_u32 v{vOff}, s{T0}, v{vOff}')
        a(f'global_load_dword v10, v{vOff}, s[52:53]')
    srd(a, sDBG, pDBG, 256)
    a(f'v_mov_b32 v{vZ}, 0')
    a(f'v_mov_b32 v{vF}, {FL}')
    lz = a.newlabel('Lnz')
    a('s_cmp_lg_u32 s2, 0')
    a(f's_cbranch_scc1 {lz}')
    a(f'v_lshlrev_b32 v{vOff}, 7, v{l}')
    a(f's_mov_b32 s{T0}, {hex(FLG)}')
    for i in range(NCNT // 64):
        a(f'buffer_store_dword v{vZ}, v{vOff}, {ws}, s{T0} offen sc1')
        a(f's_add_u32 s{T0}, s{T0}, 8192')
    a(f'v_mov_b32 v{vVal}, 0x10000')
    a(f'v_lshlrev_b32 v{vOff}, 4, v{l}')
    a('s_waitcnt vmcnt(0)')
    a('s_mov_b64 exec, 0xffff')
    a(f'buffer_atomic_add v{vVal}, v{vOff}, s[{sDBG}:{sDBG+3}], 0 offen sc1')
    a('s_mov_b64 exec, -1')
    a.label(lz)
    a(f'v_mov_b32 v{vOff}, 0'); a(f'v_mov_b32 v{vTgt}, 0'); a(f'v_mov_b32 v{vD}, 0')
    def setl(lane, base, tgt):
        a(f's_lshl_b32 s{T3}, s{T3}, 7')
        a(f's_add_u32 s{T3}, s{T3}, {hex(base)}')
        a(f'v_writelane_b32 v{vOff}, s{T3}, {lane}')
        a(f's_mov_b32 s{T3}, {tgt}')
        a(f'v_writelane_b32 v{vTgt}, s{T3}, {lane}')
    map_qkv(a)
    a(f's_lshl_b32 s{T3}, s{sRB}, 4'); a(f'v_writelane_b32 v{vD}, s{T3}, 0')
    a(f's_and_b32 s{T0}, s2, 7')
    a(f's_lshl_b32 s{T0}, s{T0}, 2')
    a(f's_lshr_b32 s{T1}, s2, 3')
    a(f's_and_b32 s{T1}, s{T1}, 3')
    a(f's_add_u32 s{T0}, s{T0}, s{T1}')
    a(f's_lshr_b32 s{T0}, s{T0}, 1')
    for i in range(3):
        a(f's_add_u32 s{T3}, s{T0}, {16*i}')
        a(f's_mul_i32 s{T3}, s{T3}, 171')
        a(f's_lshr_b32 s{T3}, s{T3}, 9')
        setl(2 + i, CQ, 16)
    map_64x64(a)
    a(f's_lshr_b32 s{T3}, s{sRB}, 1'); a(f's_lshl_b32 s{T3}, s{T3}, 4'); a(f'v_writelane_b32 v{vD}, s{T3}, 1')
    a(f's_max_u32 s{T3}, s{sRB}, 1'); a(f's_sub_u32 s{T3}, s{T3}, 1'); setl(5, C1, 8)
    a(f's_mov_b32 s{T3}, s{sRB}'); setl(6, C1, 8)
    a(f's_add_u32 s{T3}, s{sRB}, 1'); a(f's_min_u32 s{T3}, s{T3}, 31'); setl(7, C1, 8)
    a(f's_lshr_b32 s{T3}, s{sRB}, 1'); setl(11, C3, 15)
    a(f's_mov_b32 s{T3}, s{sRB}'); setl(12, CA, 32)
    map_g3(a)
    a(f's_lshl_b32 s{T3}, s{sRB}, 1'); setl(8, C2, 8)
    a(f's_lshl_b32 s{T3}, s{sRB}, 1'); a(f's_add_u32 s{T3}, s{T3}, 1'); setl(9, C2, 8)
    a(f's_mul_i32 s{T3}, s{sCB}, 96'); a(f's_lshr_b32 s{T3}, s{T3}, 7'); setl(10, CC, 16)
    a(f's_mul_i32 s{T3}, s{sCB}, 96'); a(f's_add_u32 s{T3}, s{T3}, 95'); a(f's_lshr_b32 s{T3}, s{T3}, 7'); setl(13, CC, 16)
    a(f's_mov_b32 s{sDone}, 0')
    a(f's_cmp_ge_u32 s{sCB}, 15')
    a(f's_cselect_b32 s{sDone}, {hex(B_C2)}, 0')
    lp = a.newlabel('Lp1'); lw = a.newlabel('Lp1w')
    a.label(lw)
    spin_guard(a)
    a('s_sleep 2')
    a(f'ds_read_b32 v{vVal}, v{vF} offset:{F_REQ}')
    a('s_waitcnt lgkmcnt(0)')
    a(f'v_readfirstlane_b32 s{T0}, v{vVal}')
    a(f's_cmp_eq_u32 s{T0}, 0')
    a(f's_cbranch_scc1 {lw}')
    a('s_mov_b64 exec, 3')
    a.label(lp)
    spin_guard(a)
    a(f'buffer_load_dword v{vVal}, v{vD}, s[{sDBG}:{sDBG+3}], 0 offen sc1')
    a('s_waitcnt vmcnt(0)')
    a(f'v_readfirstlane_b32 s{T0}, v{vVal}')
    a(f'v_and_b32 v{vVal}, 0xffff, v{vVal}')
    a(f'v_cmp_le_u32 vcc, 16, v{vVal}')
    a(f's_lshr_b32 s{T0}, s{T0}, 16')
    a(f's_lshl_b32 s{T0}, s{T0}, 31')
    a(f's_or_b32 s{sDone}, s{sDone}, s{T0}')
    a(f's_or_b32 s{sDone}, s{sDone}, vcc_lo')
    a(f'v_mov_b32 v{vVal}, s{sDone}')
    a(f'ds_write_b32 v{vF}, v{vVal} offset:{F_STATUS}')
    a('s_sleep 3')
    a(f's_and_b32 s{T0}, s{sDone}, {hex(ZOK | 3)}')
    a(f's_cmp_lg_u32 s{T0}, {hex(ZOK | 3)}')
    a(f's_cbranch_scc1 {lp}')
    lp = a.newlabel('Lp2')
    a.label(lp)
    a('s_mov_b64 exec, -1')
    spin_guard(a)
    a('s_sleep 2')
    a(f'ds_read_b32 v{vVal}, v{vF} offset:{F_REQ}')
    a('s_waitcnt lgkmcnt(0)')
    a(f'v_readfirstlane_b32 s{sAct}, v{vVal}')
    a(f's_andn2_b32 s{sAct}, s{sAct}, s{sDone}')
    a(f's_cbranch_scc0 {lp}')
    a(f's_mov_b32 exec_lo, s{sAct}'); a('s_mov_b32 exec_hi, 0')
    a(f'buffer_load_dword v{vVal}, v{vOff}, {ws}, 0 offen sc1')
    a('s_waitcnt vmcnt(0)')
    a(f'v_cmp_ge_u32 vcc, v{vVal}, v{vTgt}')
    a(f's_or_b32 s{sDone}, s{sDone}, vcc_lo')
    a(f'v_mov_b32 v{vVal}, s{sDone}')
    a(f'ds_write_b32 v{vF}, v{vVal} offset:{F_STATUS}')
    a(f's_and_b32 s{T0}, s{sDone}, {hex(ALLB)}')
    a(f's_cmp_lg_u32 s{T0}, {hex(ALLB)}')
    a(f's_cbranch_scc1 {lp}')
    a('s_waitcnt lgkmcnt(0)')
    a('s_endpgm')

QCK = 4; QSLOT = QCK * 3072; QNS = 6

def qkv_loader(a):
    l = 1; vW, t0, vF, vV = 4, 5, 6, 7
    map_qkv(a)
    srd(a, sWSRD, pQKV, 512 * 3072)
    wdma_voff(a, vW, l, t0, 3072, T0)
    a(f'v_mov_b32 v{vF}, {FL}')
    a(f's_mul_i32 s{sW0}, s{sCB}, 192')
    rot8(a, sJ0, sJ1)
    def chunk(c):
        a(f's_mul_i32 s{sJ1}, s{sJ0}, {64 * 3072}')
        a(f's_add_u32 s{sJ1}, s{sJ1}, s{sW0}')
        for s in range(QCK):
            for F in range(3):
                a(f's_mov_b32 m0, {(c % QNS) * QSLOT + s * 3072 + F * 1024}')
                a(f's_add_u32 s{T0}, s{sJ1}, {s * 16 * 3072 + F * 64}')
                a(f'buffer_load_dwordx4 v{vW}, s[{sWSRD}:{sWSRD+3}], s{T0} offen lds')
        a(f's_add_u32 s{sJ0}, s{sJ0}, 1')
        a(f's_and_b32 s{sJ0}, s{sJ0}, 7')
    def publish(c):
        a(f'v_mov_b32 v{vV}, {c + 1}')
        a(f'ds_write_b32 v{vF}, v{vV} offset:{F_WRDY}')
    chunk(0); chunk(1); chunk(2)
    for c in range(3, 8):
        a('s_waitcnt vmcnt(24)'); publish(c - 3)
        if c >= QNS: wait_min4(a, F_WDONE, c - QNS + 1, 8)
        chunk(c)
    a('s_waitcnt vmcnt(24)'); publish(5)
    a('s_waitcnt vmcnt(12)'); publish(6)
    a('s_waitcnt vmcnt(0)'); publish(7)
    if TOUCH:
        a(f'v_lshlrev_b32 v12, 7, v{l}')
        l2_touch(a, pW2, 512 * 1024, 12, 13)
        l2_touch(a, pW3, 512 * 2752, 12, 13)

def l2_touch(a, ptr, nbytes, vT, vD):
    share = nbytes // 32
    srd(a, sAUX, ptr, nbytes)
    a(f's_lshr_b32 s{T0}, s2, 3')
    a(f's_mul_i32 s{T0}, s{T0}, {share}')
    n = (share + 8191) // 8192
    for i in range(n):
        a(f'buffer_load_dword v{vD}, v{vT}, s[{sAUX}:{sAUX+3}], s{T0} offen')
        if i + 1 < n: a(f's_add_u32 s{T0}, s{T0}, 8192')

def qkv_compute(a):
    l = 1
    map_qkv(a)
    rot8(a, sJ0, sJ1)
    hi = 0
    a(f's_cmp_ge_u32 s{sCB}, 11')
    a('s_cbranch_scc1 qkv_nnn')
    a(f's_cmp_eq_u32 s{sCB}, 10')
    a('s_cbranch_scc1 qkv_ttn')
    for var in ('ttt', 'ttn', 'nnn'):
        if var != 'ttt': a.label('qkv_' + var)
        va = RegAlloc(V0, 256); vm = VM()
        D = 16
        t0 = va(); t1 = va(); vL16 = va(); vTr = va(); vTr2 = va(); vF = va(); vOne = va(); vR = va()
        acc = [va(16, 4) for F in range(3)]
        xr = [va(4) for d in range(D)]
        wf = [[va(4) for F in range(3)] for b in range(3)]
        a(f'v_lshlrev_b32 v{vL16}, 4, v{l}')
        trbase(a, vTr, l, t0)
        a(f'v_add_u32 v{vTr2}, 49152, v{vTr}')
        a(f's_lshl_b32 s{T0}, s{sW}, 2')
        a(f's_add_u32 s{T0}, s{T0}, {FL + F_WDONE}')
        a(f'v_mov_b32 v{vF}, s{T0}')
        vSt0 = t1
        a(f'v_mov_b32 v{vSt0}, {FL}')
        for F in range(3):
            for i in range(16): a(f'v_mov_b32 v{acc[F]+i}, 0')
        a(f's_lshl_b32 s{sX0}, s{sRB}, 2')
        a(f's_add_u32 s{sX0}, s{sX0}, s{sW}')
        a(f's_lshl_b32 s{sX0}, s{sX0}, 15')
        a(f's_add_u32 s{sX0}, s{sX0}, {hex(XNF)}')
        def xld(ks):
            if ks % QCK == 0:
                a(f's_lshl_b32 s{sJ2}, s{sJ0}, 12')
                a(f's_add_u32 s{sJ2}, s{sJ2}, s{sX0}')
                a(f's_add_u32 s{sJ0}, s{sJ0}, 1')
                a(f's_and_b32 s{sJ0}, s{sJ0}, 7')
            a(f'buffer_load_dwordx4 {V(xr[ks % D],4)}, v{vL16}, {ws}, s{sJ2} offen offset:{(ks % QCK) * 1024} {LDF}')
            vm.add(('x', ks))
        def reads(ks, only=None):
            c, s = ks // QCK, ks % QCK; b = ks % 3
            for F in (range(3) if only is None else [only]):
                o = (c % QNS) * QSLOT + s * 3072 + F * 1024
                base = vTr
                if o + 256 > 65535: base, o = vTr2, o - 49152
                a(f'ds_read_b64_tr_b16 {V(wf[b][F],2)}, v{base} offset:{o}')
                a(f'ds_read_b64_tr_b16 {V(wf[b][F]+2,2)}, v{base} offset:{o+256}')
        wait_status(a, B_XA)
        if var == 'ttt': n0 = CS.n
        CS.n = n0; cstamp(a); dstamp(a, 'qx')
        for ks in range(D): xld(ks)
        wait_lds_ge(a, F_WRDY, 1)
        reads(0); reads(1)
        for ks in range(32):
            nx = ks + 2
            if nx < 32 and nx % QCK == 0:
                lr = a.newlabel('Lqr')
                a('s_waitcnt lgkmcnt(0)')
                a(f'v_readfirstlane_b32 s{T3}, v{vR}')
                a(f's_cmp_ge_u32 s{T3}, {nx // QCK + 1}')
                a(f's_cbranch_scc1 {lr}')
                wait_lds_ge(a, F_WRDY, nx // QCK + 1)
                a.label(lr)
                a(f'v_mov_b32 v{vOne}, {nx // QCK}')
                a(f'ds_write_b32 v{vF}, v{vOne}')
                a(f's_waitcnt vmcnt({vm.wait_for(("x", ks))})')
            else:
                extra = 1 if (ks >= 1 and (ks + 2) % QCK == 1 and ks + 1 < 32) else 0
                a(f's_waitcnt vmcnt({vm.wait_for(("x", ks))}) lgkmcnt({6 if ks + 1 < 32 else 0})')
            for F in range(3):
                A_, B_ = (wf[ks % 3][F], xr[ks % D]) if var[F] == 't' else (xr[ks % D], wf[ks % 3][F])
                a(f'{MF} {V(acc[F],16)}, {V(A_,4)}, {V(B_,4)}, {V(acc[F],16)}')
                if F == 0 and nx + 1 < 32 and (nx + 1) % QCK == 0:
                    a(f'ds_read_b32 v{vR}, v{vSt0} offset:{F_WRDY}')
                if nx < 32: reads(nx, F)
            if ks + D < 32: xld(ks + D)
        a(f'v_mov_b32 v{vOne}, 8')
        a(f'ds_write_b32 v{vF}, v{vOne}')
        cstamp(a); dstamp(a, 'qloop')
        vSt = t1
        a(f'v_and_b32 v{vSt}, 15, v{l}')
        a(f'v_lshlrev_b32 v{vSt}, 4, v{vSt}')
        a(f'v_lshrrev_b32 v{t0}, 5, v{l}')
        a(f'v_lshl_add_u32 v{vSt}, v{t0}, 8, v{vSt}')
        a(f'v_bfe_u32 v{t0}, v{l}, 4, 1')
        a(f'v_lshl_add_u32 v{vSt}, v{t0}, 10, v{vSt}')
        a(f's_lshl_b32 s{sX0}, s{sRB}, 2')
        a(f's_add_u32 s{sX0}, s{sX0}, s{sW}')
        a(f's_lshl_b32 s{sX0}, s{sX0}, 15')
        a(f's_mul_i32 s{sX1}, s{sCB}, 3')
        a(f's_mov_b32 s{sJ1}, {hex(f32bits(QSCALE))}')
        for F in range(3):
            pk = xr[2 * F]
            a(f's_add_u32 s{T0}, s{sX1}, {F}')
            a(f's_lshr_b32 s{T1}, s{T0}, 4')
            a(f's_lshl_b32 s{T1}, s{T1}, 21')
            a(f's_and_b32 s{T2}, s{T0}, 15')
            a(f's_lshl_b32 s{T2}, s{T2}, 11')
            a(f's_add_u32 s{T1}, s{T1}, s{T2}')
            a(f's_add_u32 s{T1}, s{T1}, s{sX0}')
            ac = acc[F]
            if var[F] == 't':
                if var == 'ttt':
                    lq = a.newlabel('Lnq')
                    a(f's_cmp_ge_u32 s{T0}, 16')
                    a(f's_cbranch_scc1 {lq}')
                    for i in range(16): a(f'v_mul_f32 v{ac+i}, s{sJ1}, v{ac+i}')
                    a.label(lq)
                pack_swap_store(a, ac, pk, vL16, T1)
            else:
                for i in range(8): a(f'v_cvt_pk_bf16_f32 v{pk+i}, v{ac+2*i}, v{ac+2*i+1}')
                for f in range(2):
                    a(f'buffer_store_dwordx4 {V(pk+4*f,4)}, v{vSt}, {ws}, s{T1} offen offset:{f*512} sc1')
        hi = max(hi, va.hi)
        if var != 'nnn': a('s_branch qkv_done')
    a.label('qkv_done')
    a(f's_lshl_b32 s{T0}, s{sCB}, 7')
    a(f's_add_u32 s{T0}, s{T0}, {hex(CQ)}')
    dstamp(a, 'qepi')
    signal(a, [T0], need_zok=True)
    dstamp(a, 'qsig')
    return hi

def colsum3_job_issue(a, va):
    r = G()
    r.l3 = [va(4), va(4)]; r.tA = va(); r.tB = va()
    srd(a, sAUX, pW3, 512 * 2752)
    a(f's_and_b32 s{T0}, s2, 15')
    a(f's_mul_i32 s{T0}, s{T0}, {32 * 2752}')
    a(f's_lshr_b32 s{T1}, s2, 4')
    a(f's_min_u32 s{T1}, s{T1}, 10')
    a(f's_lshl_b32 s{T1}, s{T1}, 8')
    a(f's_add_u32 s{T0}, s{T0}, s{T1}')
    a(f'v_lshrrev_b32 v{r.tA}, 4, v0')
    a(f's_mov_b32 s{T1}, 2752')
    a(f'v_mul_lo_u32 v{r.tA}, v{r.tA}, s{T1}')
    a(f'v_and_b32 v{r.tB}, 15, v0')
    a(f'v_lshl_add_u32 v{r.tA}, v{r.tB}, 4, v{r.tA}')
    a(f'buffer_load_dwordx4 {V(r.l3[0],4)}, v{r.tA}, s[{sAUX}:{sAUX+3}], s{T0} offen')
    a(f's_add_u32 s{T0}, s{T0}, {16 * 2752}')
    a(f'buffer_load_dwordx4 {V(r.l3[1],4)}, v{r.tA}, s[{sAUX}:{sAUX+3}], s{T0} offen')
    return r
def colsum3_job_finish(a, r, u):
    SCR = B_BASE + 65536
    unpack(a, r.l3[0], u, 4); unpack(a, r.l3[1], u + 8, 4)
    for j in range(8): a(f'v_add_f32 v{u+j}, v{u+j}, v{u+8+j}')
    a(f'v_lshrrev_b32 v{r.tA}, 4, v0')
    a(f'v_lshlrev_b32 v{r.tA}, 9, v{r.tA}')
    a(f'v_lshl_add_u32 v{r.tA}, v{r.tB}, 5, v{r.tA}')
    a(f'v_add_u32 v{r.tA}, {SCR}, v{r.tA}')
    a(f'ds_write_b128 v{r.tA}, {V(u,4)}')
    a(f'ds_write_b128 v{r.tA}, {V(u+4,4)} offset:16')
    BAR(a)
    lab = a.newlabel('Lc3')
    a(f's_cmp_ge_u32 s{sW}, 2')
    a(f's_cbranch_scc1 {lab}')
    a('s_cmp_ge_u32 s2, 176')
    a(f's_cbranch_scc1 {lab}')
    a(f'v_lshlrev_b32 v{r.tA}, 2, v0')
    a(f'v_add_u32 v{r.tB}, {SCR}, v{r.tA}')
    for k in range(16): a(f'ds_read_b32 v{u+k}, v{r.tB} offset:{k*512}')
    a('s_waitcnt lgkmcnt(0)')
    for k in range(1, 16): a(f'v_add_f32 v{u}, v{u}, v{u+k}')
    a(f's_and_b32 s{T0}, s2, 15')
    a(f's_mul_i32 s{T0}, s{T0}, {1408 * 4}')
    a(f's_lshr_b32 s{T1}, s2, 4')
    a(f's_lshl_b32 s{T1}, s{T1}, 9')
    a(f's_add_u32 s{T0}, s{T0}, s{T1}')
    a(f's_add_u32 s{T0}, s{T0}, {hex(CS3)}')
    a(f'buffer_store_dword v{u}, v{r.tA}, {ws}, s{T0} offen sc1')
    a.label(lab)

def w1_stage(a):
    va = RegAlloc(V0, 256); l = 1; vm = VM()
    map_64x64(a)
    srd(a, sWSRD, pW1, 512 * 1024)
    g = WSK(a, va, sW, l, STMP, WD, vm, lds_base=B_BASE, ring_bytes=WRING)
    t0, t1, t2 = g.t
    wsk_woffs(a, g)
    wsk_xoffs(a, g, XNNF, 32768)
    rot8(a, sJ0, sJ1)
    g.add_segment(8, sWS, [sX0, sX1], g.vL16, LDF, sWSRD, [sW0, sW1], sJ0, sJ1, 8)
    cj = colsum3_job_issue(a, va); vm.add('cj'); vm.add('cj')
    for i in range(WD): g.issue_w(i)
    g.nw = WD
    a(f's_waitcnt vmcnt({vm.wait_for("cj")})')
    colsum3_job_finish(a, cj, g.acc[0][0])
    g.zero_acc()
    wait_status(a, B_XB)
    cstamp(a); dstamp(a, 'w1x')
    g.run(0, 8)
    dstamp(a, 'w1loop')
    ac = g.reduce()
    dstamp(a, 'w1red')
    tmp = g.acc[0][1]; pk = g.acc[1][0]; vC2 = g.acc[1][1]; vSt = g.acc[1][1] + 1
    a(f'v_mov_b32 v{vC2}, {hex(f32bits(GC2))}')
    a(f's_mov_b32 s{T2}, {hex(f32bits(GC1))}')
    gelu_scalar(a, ac, 16, tmp, T2, vC2)
    a(f's_lshr_b32 s{T1}, s{sCB}, 1')
    a(f's_lshr_b32 s{T3}, s{T1}, 1')
    a(f's_add_u32 s{T3}, s{T3}, 1')
    a(f's_mov_b32 s{sJ2}, s{T3}')
    a(f's_sub_u32 s{T2}, 0, s{T3}')
    a(f's_and_b32 s{sJ3}, s{T1}, 1')
    a(f's_cmp_eq_u32 s{sJ3}, 0')
    a(f's_cselect_b32 s{T3}, s{T3}, s{T2}')
    a(f's_lshl_b32 s{T1}, s{sRB}, 6')
    a(f's_add_u32 s{T3}, s{T3}, s{T1}')
    a(f's_lshl_b32 s{T1}, s{g.sWr}, 5')
    a(f's_add_u32 s{T3}, s{T3}, s{T1}')
    a(f's_mov_b32 s{T2}, 2048')
    a(f'v_and_b32 v{t2}, 31, v{l}')
    a(f'v_add_u32 v{t2}, s{T3}, v{t2}')
    a(f'v_cmp_gt_u32 vcc, s{T2}, v{t2}')
    a(f'v_lshrrev_b32 v{vSt}, 5, v{t2}')
    a(f'v_lshlrev_b32 v{vSt}, 15, v{vSt}')
    a(f'v_and_b32 v{t2}, 31, v{t2}')
    a(f'v_lshl_add_u32 v{vSt}, v{t2}, 4, v{vSt}')
    a(f'v_lshrrev_b32 v{t2}, 5, v{l}')
    a(f'v_lshl_add_u32 v{vSt}, v{t2}, 9, v{vSt}')
    a(f'v_mov_b32 v{t2}, {hex(OOB)}')
    a(f'v_cndmask_b32 v{vSt}, v{t2}, v{vSt}, vcc')
    a(f's_lshl_b32 s{T0}, s{sCB}, 2')
    a(f's_lshl_b32 s{T1}, s{g.sWc}, 1')
    a(f's_add_u32 s{T0}, s{T0}, s{T1}')
    a(f's_lshl_b32 s{T0}, s{T0}, 10')
    a(f's_add_u32 s{T0}, s{T0}, {hex(HF)}')
    pack_swap_store(a, ac, pk, vSt, T0)
    lz = a.newlabel('Lzf')
    a(f's_cmp_lg_u32 s{g.sWr}, 0')
    a(f's_cbranch_scc1 {lz}')
    a(f's_mul_i32 s{T1}, s{sJ3}, 31')
    a(f's_cmp_lg_u32 s{sRB}, s{T1}')
    a(f's_cbranch_scc1 {lz}')
    a(f'v_and_b32 v{t2}, 31, v{l}')
    a(f'v_cmp_gt_u32 vcc, s{sJ2}, v{t2}')
    a(f'v_xor_b32 v{t2}, s{T1}, v{t2}')
    a(f'v_lshlrev_b32 v{t2}, 4, v{t2}')
    a(f's_mul_i32 s{T1}, s{sJ3}, {63 * 32768}')
    a(f'v_add_u32 v{t2}, s{T1}, v{t2}')
    a(f'v_lshrrev_b32 v{t1}, 5, v{l}')
    a(f'v_lshl_add_u32 v{t2}, v{t1}, 9, v{t2}')
    for i in range(4): a(f'v_mov_b32 v{tmp+i}, 0')
    a('s_and_saveexec_b64 s[54:55], vcc')
    for kk in range(2):
        a(f'buffer_store_dwordx4 {V(tmp,4)}, v{t2}, {ws}, s{T0} offen offset:{kk*1024} sc1')
    a('s_mov_b64 exec, -1')
    a.label(lz)
    a(f's_lshl_b32 s{T0}, s{sRB}, 7')
    a(f's_add_u32 s{T0}, s{T0}, {hex(C1)}')
    a(f's_lshr_b32 s{T1}, s2, 4')
    a(f's_lshl_b32 s{T1}, s{T1}, 7')
    a(f's_add_u32 s{T1}, s{T1}, {hex(CC)}')
    dstamp(a, 'w1epi')
    signal(a, [T0, T1], need_zok=True)
    dstamp(a, 'w1sig')
    return va.hi

def g2_stage(a):
    va = RegAlloc(V0, 256); l = 1; vm = VM()
    srd(a, sWSRD, pW2, 512 * 1024)
    g = WSK(a, va, sW, l, STMP, WD, vm, lds_base=B_BASE, ring_bytes=WRING)
    t0, t1, t2 = g.t
    wsk_woffs(a, g)
    wsk_xoffs(a, g, HF, 32768)
    rot8(a, sJ0, sJ1)
    g.add_segment(8, sWS, [sX0, sX1], g.vL16, LDF, sWSRD, [sW0, sW1], sJ0, sJ1, 8)
    vSt = va(); xr = va(8, 4)
    request(a, B_C1)
    lane8_off(a, vSt, l, t0)
    frag_tile_off(a, T0, g, XNF, 32)
    for q in range(4):
        a(f'buffer_load_dwordx2 {V(xr+2*q,2)}, v{vSt}, {ws}, s{T0} offen offset:{q*512} {LDF}'); vm.add('xn')
    for i in range(WD): g.issue_w(i)
    g.nw = WD
    g.zero_acc(skip00=True)
    a(f's_waitcnt vmcnt({vm.wait_for("xn")})')
    unpack(a, xr, g.acc[0][0], 8)
    dstamp(a, 'g2pre')
    wait_status(a, B_C1)
    dstamp(a, 'g2x')
    g.run(0, 8)
    dstamp(a, 'g2loop')
    ac = g.reduce()
    xf = g.acc[0][1]; pk = g.acc[1][0]; s1, s2, s1b, s2b, pr = [g.acc[1][1] + i for i in (0, 1, 2, 3, 4)]
    frag_tile_off(a, T0, g, X1F, 32)
    pack_swap_store(a, ac, pk, g.vL16, T0)
    unpack(a, pk, xf, 8)
    a(f'v_add_f32 v{s1}, v{xf}, v{xf+1}')
    a(f'v_mul_f32 v{s2}, v{xf}, v{xf}')
    a(f'v_fma_f32 v{s2}, v{xf+1}, v{xf+1}, v{s2}')
    for i in range(2, 16):
        a(f'v_add_f32 v{s1}, v{s1}, v{xf+i}')
        a(f'v_fma_f32 v{s2}, v{xf+i}, v{xf+i}, v{s2}')
    a(f'v_mov_b32 v{s1b}, v{s1}'); a(f'v_mov_b32 v{s2b}, v{s2}')
    a('s_nop 1')
    a(f'v_permlane32_swap_b32 v{s1}, v{s1b}')
    a(f'v_permlane32_swap_b32 v{s2}, v{s2b}')
    a('s_nop 1')
    a(f'v_add_f32 v{pr}, v{s1}, v{s1b}')
    a(f'v_add_f32 v{pr+1}, v{s2}, v{s2b}')
    a(f's_lshl_b32 s{T0}, s{sCB}, 1')
    a(f's_add_u32 s{T0}, s{T0}, s{g.sWc}')
    a(f's_lshl_b32 s{T0}, s{T0}, 14')
    a(f's_lshl_b32 s{T1}, s{sRB}, 9')
    a(f's_add_u32 s{T0}, s{T0}, s{T1}')
    a(f's_lshl_b32 s{T1}, s{g.sWr}, 8')
    a(f's_add_u32 s{T0}, s{T0}, s{T1}')
    a(f's_add_u32 s{T0}, s{T0}, {hex(PS)}')
    a(f'v_lshlrev_b32 v{t0}, 3, v{l}')
    a('s_mov_b32 exec_hi, 0')
    a(f'buffer_store_dwordx2 {V(pr,2)}, v{t0}, {ws}, s{T0} offen sc1')
    a('s_mov_b64 exec, -1')
    a(f's_lshl_b32 s{T0}, s{sRB}, 7')
    a(f's_add_u32 s{T0}, s{T0}, {hex(C2)}')
    dstamp(a, 'g2epi')
    signal(a, [T0])
    dstamp(a, 'g2sig')
    return va.hi

def g3_stage(a, endlabel):
    va = RegAlloc(V0, 256); l = 1; vm = VM()
    map_g3(a)
    a(f's_cmp_ge_u32 s{sCB}, 15')
    a(f's_cbranch_scc1 {endlabel}')
    srd(a, sWSRD, pW3, 512 * 2752)
    D = 8; CK = 8; NST = 3; STG = CK * 3 * 1024; CSL = B_BASE + NST * STG
    sT0, sT1, sM0 = STMP, STMP + 1, STMP + 2
    t0 = va(); t1 = va(); t2 = va(); vL16 = va(); vTr = va(); vW = va(); vTr2 = va()
    a(f'v_lshlrev_b32 v{vL16}, 4, v{l}')
    trbase(a, vTr, l, t0)
    a(f'v_add_u32 v{vTr}, {B_BASE}, v{vTr}')
    a(f'v_add_u32 v{vTr2}, 49152, v{vTr}')
    wdma_voff(a, vW, l, t0, 2752, sT0)
    acc = [va(16, 4) for F in range(3)]
    xr = [va(4) for d in range(D)]
    wf = [[va(4) for F in range(3)] for b in range(3)]
    ps = va(16, 4); cp = va(16, 4)
    mr = va(); rr = va(); z = [va() for _ in range(4)]
    a(f's_mul_i32 s{sW0}, s{sW}, {16 * 2752}')
    a(f's_mul_i32 s{T0}, s{sCB}, 192')
    a(f's_add_u32 s{sW0}, s{sW0}, s{T0}')
    a(f's_mul_i32 s{sM0}, s{sW}, 3072')
    a(f's_add_u32 s{sM0}, s{sM0}, {B_BASE}')
    a(f's_and_b32 s{T0}, s{sRB}, 1')
    a(f's_lshl_b32 s{T0}, s{T0}, 1')
    a(f's_add_u32 s{sJ0}, s{T0}, s{sCB}')
    def wdma(c):
        a(f's_add_u32 s{sJ1}, s{sJ0}, {c}')
        a(f's_and_b32 s{sJ1}, s{sJ1}, 3')
        a(f's_mul_i32 s{sJ1}, s{sJ1}, {128 * 2752}')
        a(f's_add_u32 s{sJ1}, s{sJ1}, s{sW0}')
        for hh in range(2):
            for F in range(3):
                a(f's_add_u32 m0, s{sM0}, {(c % NST) * STG + hh * 4 * 3072 + F * 1024}')
                a(f's_add_u32 s{sT1}, s{sJ1}, {(hh * 4) * 16 * 2752 + F * 64}')
                a(f'buffer_load_dwordx4 v{vW}, s[{sWSRD}:{sWSRD+3}], s{sT1} offen lds')
                vm.add(('w', c))
    request(a, B_C2)
    for c in range(NST): wdma(c)
    for F in range(3):
        for i in range(16): a(f'v_mov_b32 v{acc[F]+i}, 0')
    a(f's_lshl_b32 s{sX0}, s{sRB}, 2')
    a(f's_add_u32 s{sX0}, s{sX0}, s{sW}')
    a(f's_lshl_b32 s{sX0}, s{sX0}, 15')
    a(f's_add_u32 s{sX0}, s{sX0}, {hex(X1F)}')
    dstamp(a, 'g3pre')
    wait_status(a, B_C2)
    dstamp(a, 'g3x')
    def xld(ks):
        if ks % 8 == 0:
            a(f's_add_u32 s{sJ2}, s{sJ0}, {ks // 8}')
            a(f's_and_b32 s{sJ2}, s{sJ2}, 3')
            a(f's_lshl_b32 s{sJ2}, s{sJ2}, 13')
            a(f's_add_u32 s{sJ2}, s{sJ2}, s{sX0}')
        a(f's_add_u32 s{sT0}, s{sJ2}, {(ks % 8) * 1024}')
        a(f'buffer_load_dwordx4 {V(xr[ks % D],4)}, v{vL16}, {ws}, s{sT0} offen {LDF}')
        vm.add(('x', ks))
    for ks in range(D): xld(ks)
    a(f'v_and_b32 v{t0}, 31, v{l}')
    a(f'v_lshlrev_b32 v{t0}, 3, v{t0}')
    a(f'v_lshrrev_b32 v{t2}, 5, v{l}')
    a(f'v_lshl_add_u32 v{t0}, v{t2}, 17, v{t0}')
    a(f's_lshl_b32 s{T0}, s{sRB}, 10')
    a(f's_lshl_b32 s{T1}, s{sW}, 8')
    a(f's_add_u32 s{T0}, s{T0}, s{T1}')
    a(f's_add_u32 s{T0}, s{T0}, {hex(PS)}')
    for f in range(8):
        a(f'buffer_load_dwordx2 {V(ps+2*f,2)}, v{t0}, {ws}, s{T0} offen {LDF}'); vm.add('ps')
        a(f's_add_u32 s{T0}, s{T0}, 16384')
    a(f'v_lshlrev_b32 v{t1}, 2, v0')
    a(f's_mul_i32 s{T0}, s{sCB}, 384')
    a(f's_add_u32 s{T0}, s{T0}, {hex(CS3)}')
    for k in range(16):
        a(f'buffer_load_dword v{cp+k}, v{t1}, {ws}, s{T0} offen {LDF}'); vm.add('cs')
        a(f's_add_u32 s{T0}, s{T0}, {1408*4}')
    def reads(ks, only=None):
        c, s = ks // CK, ks % CK; b = ks % 3
        for F in (range(3) if only is None else [only]):
            o = (c % NST) * STG + s * 3072 + F * 1024
            base = vTr
            if o + 256 > 65535: base, o = vTr2, o - 49152
            a(f'ds_read_b64_tr_b16 {V(wf[b][F],2)}, v{base} offset:{o}')
            a(f'ds_read_b64_tr_b16 {V(wf[b][F]+2,2)}, v{base} offset:{o+256}')
    def sync(c):
        if c == 0:
            a(f's_waitcnt vmcnt({vm.wait_for(("w", 2))})'); BAR(a)
        elif c == 1:
            BAR(a); wdma(3)
        elif c == 3:
            a(f's_waitcnt vmcnt({vm.wait_for(("w", 3))})'); BAR(a)
    sync(0)
    reads(0); reads(1)
    for ks in range(32):
        nx = ks + 2
        if nx < 32 and nx % CK == 0: sync(nx // CK)
        a(f's_waitcnt vmcnt({vm.wait_for(("x", ks))}) lgkmcnt({6 if ks + 1 < 32 else 0})')
        for F in range(3):
            a(f'{MF} {V(acc[F],16)}, {V(wf[ks%3][F],4)}, {V(xr[ks%D],4)}, {V(acc[F],16)}')
            if nx < 32: reads(nx, F)
        if ks + D < 32: xld(ks + D)
        if ks == 12:
            for k in range(1, 16): a(f'v_add_f32 v{cp}, v{cp}, v{cp+k}')
            a(f'v_add_u32 v{t1}, {CSL}, v{t1}')
            a(f'ds_write_b32 v{t1}, v{cp}')
            for f in range(1, 8):
                a(f'v_add_f32 v{ps}, v{ps}, v{ps+2*f}')
                a(f'v_add_f32 v{ps+1}, v{ps+1}, v{ps+2*f+1}')
            a(f'v_mov_b32 v{ps+2}, v{ps}'); a(f'v_mov_b32 v{ps+3}, v{ps+1}')
            a('s_nop 1')
            a(f'v_permlane32_swap_b32 v{ps}, v{ps+2}')
            a(f'v_permlane32_swap_b32 v{ps+1}, v{ps+3}')
            a('s_nop 1')
            a(f'v_add_f32 v{ps}, v{ps}, v{ps+2}')
            a(f'v_add_f32 v{ps+1}, v{ps+1}, v{ps+3}')
            ln_scalars(a, ps, ps + 1, z, 512)
            a(f'v_mov_b32 v{rr}, v{z[3]}')
            a(f'v_mul_f32 v{mr}, v{z[1]}, v{z[3]}')
            a(f'v_sub_f32 v{mr}, 0, v{mr}')
    dstamp(a, 'g3loop')
    tmp = ps; cs = cp
    pk = [xr[0], xr[2]]; vC2 = z[0]
    a(f'v_mov_b32 v{vC2}, {hex(f32bits(GC2))}')
    a(f's_mov_b32 s{T2}, {hex(f32bits(GC1))}')
    a(f'v_lshrrev_b32 v{t1}, 5, v{l}')
    a(f'v_lshlrev_b32 v{t1}, 4, v{t1}')
    a(f'v_add_u32 v{t1}, {CSL}, v{t1}')
    a(f's_lshl_b32 s{T0}, s{sRB}, 2')
    a(f's_add_u32 s{T0}, s{T0}, s{sW}')
    a(f's_mul_i32 s{T0}, s{T0}, 86')
    a(f's_mul_i32 s{T1}, s{sCB}, 6')
    a(f's_add_u32 s{T0}, s{T0}, s{T1}')
    a(f's_lshl_b32 s{T0}, s{T0}, 10')
    a(f's_add_u32 s{T0}, s{T0}, {hex(H3F)}')
    lskip = a.newlabel('g3_skip')
    for F in range(3):
        if F == 1:
            a(f's_cmp_eq_u32 s{sCB}, 14')
            a(f's_cbranch_scc1 {lskip}')
        for q in range(4):
            a(f'ds_read_b128 {V(cs+4*q,4)}, v{t1} offset:{F*128 + q*32}')
        ac = acc[F]
        for i in range(16): a(f'v_mul_f32 v{ac+i}, v{ac+i}, v{rr}')
        a('s_waitcnt lgkmcnt(0)')
        for i in range(16): a(f'v_fma_f32 v{ac+i}, v{mr}, v{cs+i}, v{ac+i}')
        gelu_scalar(a, ac, 16, tmp, T2, vC2)
        a(f's_add_u32 s{T1}, s{T0}, {F*2048}')
        pack_swap_store(a, ac, pk[F % 2], vL16, T1)
    a.label(lskip)
    a(f's_lshl_b32 s{T0}, s{sRB}, 7')
    a(f's_add_u32 s{T0}, s{T0}, {hex(C3)}')
    dstamp(a, 'g3epi')
    signal(a, [T0])
    dstamp(a, 'g3sig')
    return va.hi

def g45_stage(a):
    va = RegAlloc(V0, 256); l = 1; vm = VM()
    map_64x64(a)
    srd(a, sWSRD, pW4, 1376 * 1024)
    srd(a, sW2SRD, pWO, 512 * 1024)
    srd(a, sAUX, pX, 2048 * 1024)
    g = WSK(a, va, sW, l, STMP, WD, vm, lds_base=B_BASE, ring_bytes=WRING)
    t0, t1, t2 = g.t
    wsk_woffs(a, g)
    wsk_xoffs(a, g, H3F, 86 * 1024)
    sO0, sO1 = 55, 56
    wsk_xoffs(a, g, OF, 32768, sO0, sO1)
    def cond(lab):
        a(f's_cmp_ge_u32 s{sW}, 2')
        a(f's_cbranch_scc1 {lab}')
    a(f's_cmp_lt_u32 s{sW}, 2')
    a(f's_cselect_b32 s{sNN}, 22, 21')
    rot8(a, sJ0, sJ1, 5)
    rot8(a, sJ2, sJ3)
    g.add_segment(22, sWS, [sX0, sX1], g.vL16, LDF, sWSRD, [sW0, sW1], sJ0, sJ1, [sNN], last_cond=cond)
    g.add_segment(8, sWS, [sO0, sO1], g.vL16, LDF, sW2SRD, [sW0, sW1], sJ2, sJ3, 8)
    vSt = va(); x1r = va(8, 4); xr = va(8, 4)
    request(a, B_C3)
    a(f'v_and_b32 v{t2}, 31, v{l}')
    a(f'v_lshlrev_b32 v{t2}, 10, v{t2}')
    a(f'v_lshrrev_b32 v{t0}, 5, v{l}')
    a(f'v_lshl_add_u32 v{t2}, v{t0}, 3, v{t2}')
    x_rowmajor_off(a, g, T0)
    for q in range(4):
        a(f'buffer_load_dwordx2 {V(xr+2*q,2)}, v{t2}, s[{sAUX}:{sAUX+3}], s{T0} offen offset:{q*16}'); vm.add('p')
    lane8_off(a, vSt, l, t0)
    frag_tile_off(a, T0, g, X1F, 32)
    for q in range(4):
        a(f'buffer_load_dwordx2 {V(x1r+2*q,2)}, v{vSt}, {ws}, s{T0} offen offset:{q*512} {LDF}'); vm.add('p')
    for i in range(WD): g.issue_w(i)
    g.nw = WD
    g.zero_acc(skip00=True)
    ac = g.acc[0][0]
    a(f's_waitcnt vmcnt({vm.wait_for("p")})')
    for j in range(8):
        a(f'v_lshlrev_b32 v{ac+2*j}, 16, v{xr+j}')
        a(f'v_and_b32 v{ac+2*j+1}, 0xffff0000, v{xr+j}')
        a(f'v_lshlrev_b32 v{t0}, 16, v{x1r+j}')
        a(f'v_and_b32 v{t1}, 0xffff0000, v{x1r+j}')
        a(f'v_add_f32 v{ac+2*j}, v{ac+2*j}, v{t0}')
        a(f'v_add_f32 v{ac+2*j+1}, v{ac+2*j+1}, v{t1}')
    dstamp(a, 'g4pre')
    wait_status(a, B_C3)
    dstamp(a, 'g4x')
    g.run(0, 22, xlimit=22)
    cstamp(a); dstamp(a, 'g4loop')
    wait_status(a, B_CA)
    dstamp(a, 'g5x')
    g.run(22, 30)
    dstamp(a, 'g5loop')
    ac = g.reduce()
    srd(a, sAUX, pOUT, 2048 * 1024)
    pk = g.acc[1][0]; vo = vSt
    a(f'v_and_b32 v{vo}, 31, v{l}')
    a(f'v_lshlrev_b32 v{vo}, 10, v{vo}')
    a(f'v_lshrrev_b32 v{t0}, 5, v{l}')
    a(f'v_lshl_add_u32 v{vo}, v{t0}, 4, v{vo}')
    x_rowmajor_off(a, g, T0)
    pack_swap(a, ac, pk)
    for pr in range(2):
        a(f'buffer_store_dwordx4 {V(pk+4*pr,4)}, v{vo}, s[{sAUX}:{sAUX+3}], s{T0} offen offset:{pr*32}')
    return va.hi

VT = 1056
ATT_BUF = 8192 + 8 * VT
NBUF = 4
def R(b, n): return V(b, n)

def att_head(a, sHead):
    a(f's_and_b32 s{T0}, s2, 7')
    a(f's_lshl_b32 s{sHead}, s{T0}, 2')
    a(f's_lshr_b32 s{T0}, s2, 3')
    a(f's_and_b32 s{T0}, s{T0}, 3')
    a(f's_add_u32 s{sHead}, s{sHead}, s{T0}')

def kv_loader(a):
    l = 1; vL16, vF, vV = 4, 6, 7
    sHead, sKoff, sVoff = sRB, sX0, sX1
    att_head(a, sHead)
    a(f'v_lshlrev_b32 v{vL16}, 4, v{l}')
    a(f's_lshl_b32 s{sKoff}, s{sHead}, 10')
    a(f's_add_u32 s{sVoff}, s{sKoff}, {hex(VF)}')
    a(f's_add_u32 s{sKoff}, s{sKoff}, {hex(KF)}')
    def lchunk(c):
        b = (c % NBUF) * ATT_BUF
        for j in range(8):
            a(f's_mov_b32 m0, {b + j*1024}')
            a(f's_add_u32 s{T0}, s{sKoff}, {(c*8+j)*32768}')
            a(f'buffer_load_dwordx4 v{vL16}, {ws}, s{T0} offen {LDF} lds')
            a(f's_mov_b32 m0, {b + 8192 + j*VT}')
            a(f's_add_u32 s{T0}, s{sVoff}, {(c*8+j)*32768}')
            a(f'buffer_load_dwordx4 v{vL16}, {ws}, s{T0} offen {LDF} lds')
    def publish(c):
        a(f'v_mov_b32 v{vV}, {c + 1}')
        a(f'ds_write_b32 v{vF}, v{vV} offset:{F_KRDY}')
    wait_min4(a, F_WDONE, 8, 8)
    wait_status(a, B_QKV)
    lchunk(0); lchunk(1)
    a('s_waitcnt vmcnt(16)'); publish(0)
    lchunk(2)
    a('s_waitcnt vmcnt(16)'); publish(1)
    lchunk(3)
    a('s_waitcnt vmcnt(16)'); publish(2)
    if TOUCH:
        a('s_waitcnt vmcnt(0)'); publish(3)
        a('s_setprio 1')
        l2_touch(a, pW4, 1376 * 1024, 12, 13)
        l2_touch(a, pWO, 512 * 1024, 12, 13)
        a('s_setprio 3')
    for c in range(4, 8):
        wait_min4(a, F_KDONE, c - 3, 8, sleep=8)
        lchunk(c)
        a('s_waitcnt vmcnt(16)'); publish(c - 1)
    a('s_waitcnt vmcnt(0)'); publish(7)
    a('s_waitcnt lgkmcnt(0)')
    a('s_endpgm')

def att_compute(a):
    va = RegAlloc(V0, 256); l = 1
    sHead, sTT, sKoff, sVoff, sC, sBn, sFb = sRB, sCB, sX0, sX1, sW0, sW1, sRow0
    sEx = 50
    att_head(a, sHead)
    a(f's_lshr_b32 s{sTT}, s2, 5')
    a(f's_lshl_b32 s{sTT}, s{sTT}, 3')
    a(f's_lshl_b32 s{T0}, s{sW}, 1')
    a(f's_add_u32 s{sTT}, s{sTT}, s{T0}')
    a(f's_mov_b32 s{sEx}, 0x0000ffff'); a(f's_mov_b32 s{sEx+1}, 0x0000ffff')
    vL16 = va(); vVo = va(); t0 = va(); t1 = va()
    vK = [va(), va()]; vV0 = [va(), va()]; vV1 = [va(), va()]
    vV0b = va(); vV1b = va(); vF = va(); vDn = va(); vR = va(); vP = va()
    SA, SB_, NA, NB, OA, OB = [va(16, 4) for _ in range(6)]
    P = va(8, 4); QA = va(4); QB = va(4)
    K = [va(4), va(4)]; Vv = [va(8, 4), va(8, 4)]
    a(f'v_lshlrev_b32 v{vL16}, 4, v{l}')
    a(f's_mov_b32 s{sBn}, {ATT_BUF}')
    a(f'v_and_b32 v{vVo}, 15, v{l}')
    a(f'v_lshlrev_b32 v{vVo}, 4, v{vVo}')
    a(f'v_lshrrev_b32 v{t0}, 5, v{l}')
    a(f'v_lshl_add_u32 v{vVo}, v{t0}, 8, v{vVo}')
    a(f'v_and_b32 v{t0}, 31, v{l}')
    a(f'v_cmp_eq_u32 vcc, 16, v{t0}')
    a(f'v_mov_b32 v{t1}, {8192+1040}')
    a(f'v_mov_b32 v{vV0b}, {8192+1024}')
    a(f'v_cndmask_b32 v{t1}, v{t1}, v{vV0b}, vcc')
    a(f'v_cmp_gt_u32 vcc, 16, v{t0}')
    a(f'v_add_u32 v{vV0b}, 8192, v{vVo}')
    a(f'v_add_u32 v{vV1b}, {8192+512}, v{vVo}')
    a(f'v_cndmask_b32 v{vV0b}, v{t1}, v{vV0b}, vcc')
    a(f'v_cndmask_b32 v{vV1b}, v{t1}, v{vV1b}, vcc')
    a(f'v_and_b32 v{t0}, 1, v{l}')
    a(f'v_cmp_eq_u32 vcc, 0, v{t0}')
    a(f'v_mov_b32 v{t1}, 0x3f803f80')
    a(f'v_lshlrev_b32 v{t0}, 4, v{t0}')
    for i in range(4): a(f'v_cndmask_b32 v{P+i}, 0, v{t1}, vcc')
    a(f'v_lshrrev_b32 v{t1}, 4, v{l}')
    a(f's_mov_b32 s{T0}, {ATT_BUF}')
    a(f'v_mul_lo_u32 v{t1}, v{t1}, s{T0}')
    a(f'v_add_u32 v{t0}, v{t0}, v{t1}')
    a(f'v_bfe_u32 v{t1}, v{l}, 1, 3')
    a(f's_mov_b32 s{T0}, {VT}')
    a(f'v_mul_lo_u32 v{t1}, v{t1}, s{T0}')
    a(f'v_add_u32 v{t0}, v{t0}, v{t1}')
    a(f'ds_write_b128 v{t0}, {R(P,4)} offset:{8192+1024}')
    for i in range(16):
        a(f'v_mov_b32 v{OA+i}, 0'); a(f'v_mov_b32 v{OB+i}, 0')
    for i in range(4):
        a(f'v_mov_b32 v{P+4+i}, 0'); a(f'v_mov_b32 v{Vv[1]+4+i}, 0')
    a(f'v_mov_b32 v{vK[0]}, v{vL16}'); a(f'v_mov_b32 v{vV0[0]}, v{vV0b}'); a(f'v_mov_b32 v{vV1[0]}, v{vV1b}')
    a(f'v_add_u32 v{vK[1]}, {ATT_BUF}, v{vL16}')
    a(f'v_add_u32 v{vV0[1]}, {ATT_BUF}, v{vV0b}')
    a(f'v_add_u32 v{vV1[1]}, {ATT_BUF}, v{vV1b}')
    a(f's_mov_b32 s{sFb}, 0')
    a(f'v_mov_b32 v{vF}, {FL}')
    a(f's_lshl_b32 s{T0}, s{sW}, 2')
    a(f's_add_u32 s{T0}, s{T0}, {FL + F_KDONE}')
    a(f'v_mov_b32 v{vDn}, s{T0}')
    a(f'v_mov_b32 v{vP}, 0')
    wait_status(a, B_QKV)
    dstamp(a, 'aflag')
    a(f's_lshl_b32 s{T0}, s{sTT}, 5')
    a(f's_add_u32 s{T0}, s{T0}, s{sHead}')
    a(f's_lshl_b32 s{T0}, s{T0}, 10')
    a(f'buffer_load_dwordx4 {R(QA,4)}, v{vL16}, {ws}, s{T0} offen {LDF}')
    a(f's_add_u32 s{T0}, s{T0}, 32768')
    a(f'buffer_load_dwordx4 {R(QB,4)}, v{vL16}, {ws}, s{T0} offen {LDF}')
    def spin_ready(val):
        lp = a.newlabel('at_sp'); ld = a.newlabel('at_ok')
        a.label(lp)
        a(f'ds_read_b32 v{vR}, v{vF} offset:{F_KRDY}')
        a('s_waitcnt lgkmcnt(0)')
        a(f'v_readfirstlane_b32 s{T0}, v{vR}')
        a(f's_cmp_gt_u32 s{T0}, {val}')
        a(f's_cbranch_scc1 {ld}')
        a('s_sleep 1')
        spin_guard(a)
        a(f's_branch {lp}')
        a.label(ld)
    spin_ready('0')
    a('s_waitcnt vmcnt(0)')
    cstamp(a); dstamp(a, 'astart')
    a(f'ds_read_b128 {R(K[0],4)}, v{vK[0]}')
    a(f'ds_read_b128 {R(K[1],4)}, v{vK[0]} offset:1024')
    a(f'ds_read_b128 {R(Vv[0],4)}, v{vV0[0]}')
    a(f'ds_read_b128 {R(Vv[0]+4,4)}, v{vV1[0]}')
    a('s_waitcnt lgkmcnt(3)')
    a(f'{MF} {R(SA,16)}, {R(K[0],4)}, {R(QA,4)}, 0')
    a(f'{MF} {R(SB_,16)}, {R(K[0],4)}, {R(QB,4)}, 0')
    a('s_nop 10')
    def rowmax_to_neg(S_, N_):
        a(f'v_max3_f32 v{t0}, v{S_}, v{S_+1}, v{S_+2}')
        for i in range(3, 15, 2): a(f'v_max3_f32 v{t0}, v{t0}, v{S_+i}, v{S_+i+1}')
        a(f'v_max_f32 v{t0}, v{t0}, v{S_+15}')
        a(f'v_mov_b32 v{t1}, v{t0}')
        a('s_nop 1')
        a(f'v_permlane32_swap_b32 v{t0}, v{t1}')
        a('s_nop 1')
        a(f'v_max_f32 v{t0}, v{t0}, v{t1}')
        for i in range(16): a(f'v_sub_f32 v{N_+i}, 0, v{t0}')
    rowmax_to_neg(SA, NA)
    rowmax_to_neg(SB_, NB)
    a('s_nop 1')
    a(f'{MF} {R(SA,16)}, {R(K[0],4)}, {R(QA,4)}, {R(NA,16)}')
    a(f's_mov_b32 s{sC}, 0')
    a('s_waitcnt lgkmcnt(0)')
    a('s_nop 8')
    a('s_setprio 0')
    a.label('att_loop')
    for t in range(8):
        Kc, Kn = K[t % 2], K[(t + 1) % 2]
        Vc, Vn = Vv[t % 2], Vv[(t + 1) % 2]
        for sub in range(2):
            cur = [SA, SB_][sub]
            if sub == 0:
                qk = f'{MF} {R(SB_,16)}, {R(Kc,4)}, {R(QB,4)}, {R(NB,16)}'
                pv1 = f'{MF} {R(OB,16)}, {R(Vn+4,4)}, {R(P+4,4)}, {R(OB,16)}'
            else:
                qk = f'{MF} {R(SA,16)}, {R(Kn,4)}, {R(QA,4)}, {R(NA,16)}'
                pv1 = f'{MF} {R(OA,16)}, {R(Vc+4,4)}, {R(P+4,4)}, {R(OA,16)}'
            Oc = [OA, OB][sub]
            pv0 = f'{MF} {R(Oc,16)}, {R(Vc,4)}, {R(P,4)}, {R(Oc,16)}'
            ex = [f'v_exp_f32 v{cur+i}, v{cur+i}' for i in range(16)]
            cv = [f'v_cvt_pk_bf16_f32 v{P+i}, v{cur+2*i}, v{cur+2*i+1}' for i in range(8)]
            a(qk)
            for s in ex[0:6]: a(s)
            a(pv1)
            if sub == 0:
                a('s_waitcnt lgkmcnt(0)')
                if t == 6:
                    l1 = a.newlabel('att_rdy')
                    a(f'v_readfirstlane_b32 s{T0}, v{vR}')
                    a(f's_min_u32 s{T1}, s{sC}, 6')
                    a(f's_add_u32 s{T1}, s{T1}, 1')
                    a(f's_cmp_gt_u32 s{T0}, s{T1}')
                    a(f's_cbranch_scc1 {l1}')
                    spin_ready(f's{T1}')
                    a.label(l1)
                if t == 7:
                    a(f'v_add_u32 v{vP}, 1, v{vP}')
                    a(f'ds_write_b32 v{vDn}, v{vP}')
                if t == 5:
                    a(f'ds_read_b32 v{vR}, v{vF} offset:{F_KRDY}')
                kb = vK[0] if t + 2 < 8 else vK[1]
                b_ = 0 if t + 1 < 8 else 1
                a(f'ds_read_b128 {R(Kc,4)}, v{kb} offset:{((t+2)%8)*1024}')
                a(f'ds_read_b128 {R(Vn,4)}, v{vV0[b_]} offset:{((t+1)%8)*VT}')
                a(f'ds_read_b128 {R(Vn+4,4)}, v{vV1[b_]} offset:{((t+1)%8)*VT}')
            for s in ex[6:8] + cv[0:4] + ex[8:10]: a(s)
            a(pv0)
            for s in ex[10:16] + cv[4:8]: a(s)
    a(f'v_mov_b32 v{vK[0]}, v{vK[1]}'); a(f'v_mov_b32 v{vV0[0]}, v{vV0[1]}'); a(f'v_mov_b32 v{vV1[0]}, v{vV1[1]}')
    a(f's_add_u32 s{sBn}, s{sBn}, {ATT_BUF}')
    a(f's_cmp_eq_u32 s{sBn}, {NBUF*ATT_BUF}')
    a(f's_cselect_b32 s{sBn}, 0, s{sBn}')
    a(f'v_add_u32 v{vK[1]}, s{sBn}, v{vL16}')
    a(f'v_add_u32 v{vV0[1]}, s{sBn}, v{vV0b}')
    a(f'v_add_u32 v{vV1[1]}, s{sBn}, v{vV1b}')
    a(f's_add_u32 s{sC}, s{sC}, 1')
    a(f's_cmp_lt_u32 s{sC}, 8')
    a('s_cbranch_scc1 att_loop')
    a(f'{MF} {R(OB,16)}, {R(Vv[1]+4,4)}, {R(P+4,4)}, {R(OB,16)}')
    a('s_setprio 3')
    cstamp(a)
    a('s_waitcnt lgkmcnt(0)')
    a.label('att_fin')
    a('s_nop 12')
    LA, LB = SA, SA + 2
    for L_, O_ in ((LA, OA), (LB, OB)):
        a(f'v_mov_b32 v{L_}, v{O_+8}'); a(f'v_mov_b32 v{L_+1}, v{O_+8}')
    a('s_nop 1')
    a(f'v_permlane32_swap_b32 v{LA}, v{LA+1}')
    a(f'v_permlane32_swap_b32 v{LB}, v{LB+1}')
    lok = a.newlabel('att_ok')
    a(f's_cmp_lg_u32 s{sFb}, 0')
    a(f's_cbranch_scc1 {lok}')
    a(f's_mov_b32 s{T0}, {hex(f32bits(2.0**-60))}')
    a(f's_mov_b32 s{T1}, {hex(f32bits(2.0**60))}')
    a(f'v_cmp_nle_f32 vcc, s{T0}, v{LA}')
    a(f'v_cmp_nge_f32 s[54:55], s{T1}, v{LA}')
    a('s_or_b64 s[52:53], vcc, s[54:55]')
    a(f'v_cmp_nle_f32 vcc, s{T0}, v{LB}')
    a(f'v_cmp_nge_f32 s[54:55], s{T1}, v{LB}')
    a('s_or_b64 vcc, vcc, s[54:55]')
    a('s_or_b64 vcc, vcc, s[52:53]')
    a('s_cbranch_scc1 att_fallback')
    a.label(lok)
    a(f'v_rcp_f32 v{LA}, v{LA}')
    a(f'v_rcp_f32 v{LB}, v{LB}')
    a(f's_lshl_b32 s{T0}, s{sTT}, 5')
    a(f's_add_u32 s{T0}, s{T0}, s{sHead}')
    a(f's_lshl_b32 s{T0}, s{T0}, 10')
    a(f's_add_u32 s{T0}, s{T0}, {hex(OF)}')
    for n, (L_, O_) in enumerate(((LA, OA), (LB, OB))):
        for i in range(8): a(f'v_mul_f32 v{O_+i}, v{O_+i}, v{L_}')
        for i in range(4): a(f'v_cvt_pk_bf16_f32 v{P+4*n+i}, v{O_+2*i}, v{O_+2*i+1}')
        if n: a(f's_add_u32 s{T0}, s{T0}, 32768')
        a('s_nop 1')
        b = P + 4 * n
        a(f'v_permlane32_swap_b32 v{b}, v{b+2}')
        a(f'v_permlane32_swap_b32 v{b+1}, v{b+3}')
        a('s_nop 1')
        a(f'buffer_store_dwordx4 {R(b,4)}, v{vL16}, {ws}, s{T0} offen sc1')
    a(f's_lshr_b32 s{T0}, s{sTT}, 1')
    a(f's_lshl_b32 s{T0}, s{T0}, 7')
    a(f's_add_u32 s{T0}, s{T0}, {hex(CA)}')
    a(f'v_mov_b32 v{t0}, 0'); a(f'v_mov_b32 v{t1}, 1')
    a('s_waitcnt vmcnt(0)')
    a('s_mov_b64 exec, 1')
    a(f'buffer_atomic_add v{t1}, v{t0}, {ws}, s{T0} offen sc1')
    a('s_mov_b64 exec, -1')
    stamp_flush(a, 5, 1)
    a('s_endpgm')
    a.label('att_fallback')
    a(f's_mov_b32 s{sFb}, 1')
    a(f's_lshl_b32 s{sKoff}, s{sHead}, 10')
    a(f's_add_u32 s{sVoff}, s{sKoff}, {hex(VF)}')
    a(f's_add_u32 s{sKoff}, s{sKoff}, {hex(KF)}')
    for i in range(16):
        a(f'v_mov_b32 v{NA+i}, 0xff800000'); a(f'v_mov_b32 v{NB+i}, 0xff800000')
    a(f's_mov_b32 s{sC}, 0')
    a(f's_mov_b32 s{T0}, s{sKoff}')
    a.label('att_fb1')
    a(f'buffer_load_dwordx4 {R(K[0],4)}, v{vL16}, {ws}, s{T0} offen {LDF}')
    a('s_waitcnt vmcnt(0)')
    a(f'{MF} {R(SA,16)}, {R(K[0],4)}, {R(QA,4)}, 0')
    a(f'{MF} {R(SB_,16)}, {R(K[0],4)}, {R(QB,4)}, 0')
    a('s_nop 12')
    for i in range(16): a(f'v_max_f32 v{NA+i}, v{NA+i}, v{SA+i}')
    for i in range(16): a(f'v_max_f32 v{NB+i}, v{NB+i}, v{SB_+i}')
    a(f's_add_u32 s{T0}, s{T0}, 32768')
    a(f's_add_u32 s{sC}, s{sC}, 1')
    a(f's_cmp_lt_u32 s{sC}, 64')
    a('s_cbranch_scc1 att_fb1')
    for i in range(16):
        a(f'v_mov_b32 v{SA+i}, v{NA+i}'); a(f'v_mov_b32 v{SB_+i}, v{NB+i}')
    rowmax_to_neg(SA, NA)
    rowmax_to_neg(SB_, NB)
    for i in range(16):
        a(f'v_mov_b32 v{OA+i}, 0'); a(f'v_mov_b32 v{OB+i}, 0')
    a(f'v_and_b32 v{t0}, 31, v{l}')
    a(f'v_cmp_eq_u32 vcc, 16, v{t0}')
    a(f'v_mov_b32 v{t1}, 0x3f803f80')
    a('s_nop 0')
    for i in range(8): a(f'v_cndmask_b32 v{Vv[0]+i}, 0, v{t1}, vcc')
    a(f's_mov_b32 s{sC}, 0')
    a.label('att_fb2')
    a(f'buffer_load_dwordx4 {R(K[0],4)}, v{vL16}, {ws}, s{sKoff} offen {LDF}')
    a(f's_mov_b64 exec, s[{sEx}:{sEx+1}]')
    a(f'buffer_load_dwordx4 {R(Vv[0],4)}, v{vVo}, {ws}, s{sVoff} offen {LDF}')
    a(f'buffer_load_dwordx4 {R(Vv[0]+4,4)}, v{vVo}, {ws}, s{sVoff} offen offset:512 {LDF}')
    a('s_mov_b64 exec, -1')
    a('s_waitcnt vmcnt(0)')
    a(f'{MF} {R(SA,16)}, {R(K[0],4)}, {R(QA,4)}, {R(NA,16)}')
    a(f'{MF} {R(SB_,16)}, {R(K[0],4)}, {R(QB,4)}, {R(NB,16)}')
    a('s_nop 12')
    for S_, O_ in ((SA, OA), (SB_, OB)):
        for i in range(16): a(f'v_exp_f32 v{S_+i}, v{S_+i}')
        a('s_nop 0')
        for i in range(8): a(f'v_cvt_pk_bf16_f32 v{P+i}, v{S_+2*i}, v{S_+2*i+1}')
        a('s_nop 1')
        a(f'{MF} {R(O_,16)}, {R(Vv[0],4)}, {R(P,4)}, {R(O_,16)}')
        a(f'{MF} {R(O_,16)}, {R(Vv[0]+4,4)}, {R(P+4,4)}, {R(O_,16)}')
    a(f's_add_u32 s{sKoff}, s{sKoff}, 32768')
    a(f's_add_u32 s{sVoff}, s{sVoff}, 32768')
    a(f's_add_u32 s{sC}, s{sC}, 1')
    a(f's_cmp_lt_u32 s{sC}, 64')
    a('s_nop 7'); a('s_nop 7')
    a('s_cbranch_scc1 att_fb2')
    a('s_branch att_fin')
    return va.hi

def full_kernel(a):
    name = NAME + '_kernel'
    kernel_header(a, name)
    a('s_cmp_ge_u32 s2, 256')
    a('s_cbranch_scc1 k_end')
    stamp(a, 0)
    a('s_mov_b32 s92, 0')
    a('s_load_dwordx4 s[24:27], s[0:1], 0')
    a('s_load_dwordx2 s[28:29], s[0:1], 16')
    a('s_load_dwordx2 s[30:31], s[0:1], 32')
    a('s_load_dwordx2 s[32:33], s[0:1], 40')
    a('s_load_dwordx8 s[84:91], s[0:1], 48')
    a('s_load_dwordx2 s[34:35], s[0:1], 80')
    SB.on = True; SB.base = FL + 64; SB.n = 0; SB.vA = vSA; SB.vB = vSB; SB.sT = T3; SB.maxn = 48
    a('v_cmp_gt_u32 vcc, 64, v0')
    a('s_and_saveexec_b64 s[36:37], vcc')
    lz = a.newlabel('Lz')
    a(f's_cbranch_execz {lz}')
    a('v_lshlrev_b32 v1, 2, v0')
    a(f'v_add_u32 v1, {FL}, v1')
    a('v_mov_b32 v2, 0')
    a('ds_write_b32 v1, v2')
    a.label(lz)
    a('s_mov_b64 exec, -1')
    sWv = 58
    wave_lane(a, sWv, 1)
    a('s_waitcnt lgkmcnt(0)')
    srd(a, sWS, pWS, WS_BYTES)
    a('s_barrier')
    a('s_setprio 3')
    a(f's_cmp_eq_u32 s{sWv}, 9')
    a('s_cbranch_scc1 k_sentinel')
    a(f's_cmp_eq_u32 s{sWv}, 4')
    a('s_cbranch_scc1 k_loader')
    sK = 59
    a(f's_sub_u32 s{sK}, s{sWv}, 1')
    a(f's_cmp_lt_u32 s{sWv}, 4')
    a(f's_cselect_b32 s{sK}, s{sWv}, s{sK}')
    hi = ln_stage(a, sK)
    a(f's_and_b32 s{sW}, s{sK}, 3')
    a(f's_cmp_ge_u32 s{sK}, 4')
    a('s_cbranch_scc1 k_chain')
    CS.n = 4 if LNST else 1
    hi = max(hi, qkv_compute(a))
    hi = max(hi, att_compute(a))
    a.label('k_chain')
    a(f's_setprio {PRIO}')
    a('v_subrev_u32 v0, 320, v0')
    CS.n = 4 if LNST else 1
    hi = max(hi, w1_stage(a))
    hi = max(hi, g2_stage(a))
    cstamp(a)
    hi = max(hi, g3_stage(a, 'k_g4'))
    a.label('k_g4')
    cstamp(a)
    hi = max(hi, g45_stage(a))
    stamp_flush(a, 5, 2)
    a('s_endpgm')
    a.label('k_loader')
    a(f's_setprio {int(os.environ.get("LPRIO", "1"))}')
    qkv_loader(a)
    a('s_setprio 3')
    kv_loader(a)
    a.label('k_sentinel')
    sentinel(a)
    a.label('k_end')
    a('s_endpgm')
    SB.on = False
    return name, hi, LDS_TOTAL

if __name__ == '__main__':
    build([(full_kernel, 256, 640)], sys.argv[1])
```

```python
import sys
from core2 import *

XNF  = 0x1200000
XNNF = 0x1400000
CL, CQ, C1, C2, C3, CA, CC = [FLG + i * 128 for i in (0, 16, 32, 64, 96, 112, 144)]
NCNT = 192

A_SIZE = 73728
FL = A_SIZE
F_STATUS, F_WRDY, F_KRDY, F_REQ, F_WDONE, F_KDONE = 0, 4, 8, 12, 16, 32
B_BASE = FL + 256
B_SIZE = 74752
LDS_TOTAL = B_BASE + B_SIZE
ZOK = 1 << 31
B_XA, B_XB, B_QKV, B_C1, B_C2, B_C3, B_CA = 1, 2, 0x1c, 0xe0, 0x2700, 0x800, 0x1000
ALLB = 0x3fff

ws = f's[{sWS}:{sWS+3}]'
PRIO = int(os.environ.get('PRIO', '2'))
WD = int(os.environ.get('WD', '7')); WRING = 16384
sW, sRB, sCB, sRow0 = 36, 37, 38, 39
sX0, sX1, sW0, sW1 = 40, 41, 42, 47
T0, T1, T2, T3 = 43, 44, 45, 46
STMP = 48
sW2SRD = 20
sJ0, sJ1, sJ2, sJ3, sNN = 60, 61, 62, 63, 57
pX, pQKV, pWO, pW1, pW2, pW3, pW4, pOUT, pDBG, pWS = 24, 26, 28, 30, 32, 84, 86, 88, 90, 34
vSA, vSB = 2, 3
V0 = 4

LNST = os.environ.get('LNST', '0') == '1'
TOUCH = os.environ.get('TOUCH', '1') == '1'
LDF = os.environ.get('LDF', '')
class CS:
    n = 1
DST = [x for x in os.environ.get('DST', '').split(',') if x]
def cstamp(a):
    if DST: return
    if CS.n <= 4: stamp(a, CS.n)
    CS.n += 1
def dstamp(a, name):
    if name in DST: stamp(a, DST.index(name) + 1)

def request(a, mask):
    a(f'v_mov_b32 v{vSA}, {FL}')
    a(f'v_mov_b32 v{vSB}, {hex(mask)}')
    a(f'ds_or_b32 v{vSA}, v{vSB} offset:{F_REQ}')

def wait_status(a, mask, sleep=1):
    lp = a.newlabel('Lws'); ld = a.newlabel('Lwd')
    if mask != ZOK: request(a, mask)
    else: a(f'v_mov_b32 v{vSA}, {FL}')
    a.label(lp)
    a(f'ds_read_b32 v{vSB}, v{vSA} offset:{F_STATUS}')
    a('s_waitcnt lgkmcnt(0)')
    a(f'v_readfirstlane_b32 s{T3}, v{vSB}')
    a(f's_and_b32 s{T3}, s{T3}, {hex(mask)}')
    a(f's_cmp_eq_u32 s{T3}, {hex(mask)}')
    a(f's_cbranch_scc1 {ld}')
    a(f's_sleep {sleep}')
    spin_guard(a)
    a(f's_branch {lp}')
    a.label(ld)

def wait_lds_ge(a, off, val, sleep=1):
    lp = a.newlabel('Lwl'); ld = a.newlabel('Lwld')
    a(f'v_mov_b32 v{vSA}, {FL}')
    a.label(lp)
    a(f'ds_read_b32 v{vSB}, v{vSA} offset:{off}')
    a('s_waitcnt lgkmcnt(0)')
    a(f'v_readfirstlane_b32 s{T3}, v{vSB}')
    a(f's_cmp_ge_u32 s{T3}, {val}')
    a(f's_cbranch_scc1 {ld}')
    a(f's_sleep {sleep}')
    spin_guard(a)
    a(f's_branch {lp}')
    a.label(ld)

def wait_min4(a, off, val, q, sleep=2):
    lp = a.newlabel('Lwm'); ld = a.newlabel('Lwmd')
    a(f'v_mov_b32 v{vSA}, {FL}')
    a.label(lp)
    a(f'ds_read_b128 {V(q,4)}, v{vSA} offset:{off}')
    a('s_waitcnt lgkmcnt(0)')
    a(f'v_min_u32 v{q}, v{q}, v{q+1}')
    a(f'v_min3_u32 v{q}, v{q}, v{q+2}, v{q+3}')
    a('s_nop 0')
    a(f'v_readfirstlane_b32 s{T3}, v{q}')
    a(f's_cmp_ge_u32 s{T3}, {val}')
    a(f's_cbranch_scc1 {ld}')
    a(f's_sleep {sleep}')
    spin_guard(a)
    a(f's_branch {lp}')
    a.label(ld)

def signal(a, offs, nw=4, need_zok=False, srdn=sWS):
    a('s_waitcnt vmcnt(0)')
    SB.nw = nw; BAR(a); SB.nw = 4
    lab = a.newlabel('Lsig')
    a(f's_cmp_lg_u32 s{sW}, 0')
    a(f's_cbranch_scc1 {lab}')
    if need_zok: wait_status(a, ZOK)
    a(f'v_mov_b32 v{vSA}, 0')
    a(f'v_mov_b32 v{vSB}, 1')
    a('s_mov_b64 exec, 1')
    for o in offs:
        a(f'buffer_atomic_add v{vSB}, v{vSA}, s[{srdn}:{srdn+3}], s{o} offen sc1')
    a('s_mov_b64 exec, -1')
    a.label(lab)

def map_64x64(a):
    a(f's_and_b32 s{T0}, s2, 7')
    a(f's_lshr_b32 s{T1}, s2, 3')
    a(f's_lshl_b32 s{sRB}, s{T0}, 2')
    a(f's_and_b32 s{T2}, s{T1}, 3')
    a(f's_add_u32 s{sRB}, s{sRB}, s{T2}')
    a(f's_lshr_b32 s{sCB}, s{T1}, 2')
def map_g3(a):
    a(f's_and_b32 s{T0}, s2, 7')
    a(f's_lshr_b32 s{T1}, s2, 3')
    a(f's_lshl_b32 s{sRB}, s{T0}, 1')
    a(f's_and_b32 s{T2}, s{T1}, 1')
    a(f's_add_u32 s{sRB}, s{sRB}, s{T2}')
    a(f's_lshr_b32 s{sCB}, s{T1}, 1')
def map_qkv(a):
    a(f's_and_b32 s{T0}, s2, 7')
    a(f's_lshr_b32 s{T1}, s2, 3')
    a(f's_lshr_b32 s{T2}, s{T0}, 1')
    a(f's_lshl_b32 s{T2}, s{T2}, 2')
    a(f's_and_b32 s{T3}, s{T1}, 3')
    a(f's_add_u32 s{sRB}, s{T2}, s{T3}')
    a(f's_and_b32 s{T2}, s{T0}, 1')
    a(f's_lshl_b32 s{T2}, s{T2}, 3')
    a(f's_lshr_b32 s{T3}, s{T1}, 2')
    a(f's_add_u32 s{sCB}, s{T2}, s{T3}')
def rot8(a, d0, d1, mul=1):
    a(f's_and_b32 s{T0}, s{sRB}, 3')
    a(f's_lshl_b32 s{T0}, s{T0}, 1')
    a(f's_add_u32 s{T0}, s{T0}, s{sCB}')
    a(f's_and_b32 s{d0}, s{T0}, 7')
    if mul != 1:
        a(f's_mul_i32 s{d0}, s{d0}, {mul}')
        a(f's_lshr_b32 s{d0}, s{d0}, 1')
    a(f's_mov_b32 s{d1}, s{d0}')

def pack_swap(a, ac, pk):
    for i in range(8):
        a(f'v_cvt_pk_bf16_f32 v{pk+i}, v{ac+2*i}, v{ac+2*i+1}')
    a('s_nop 1')
    for pr in range(2):
        b = pk + 4 * pr
        a(f'v_permlane32_swap_b32 v{b}, v{b+2}')
        a(f'v_permlane32_swap_b32 v{b+1}, v{b+3}')
    a('s_nop 1')
def pack_swap_store(a, ac, pk, voff, sOff):
    pack_swap(a, ac, pk)
    for pr in range(2):
        a(f'buffer_store_dwordx4 {V(pk+4*pr,4)}, v{voff}, {ws}, s{sOff} offen offset:{pr*1024} sc1')

def frag_tile_off(a, sDst, g, base, nks):
    a(f's_lshl_b32 s{sDst}, s{sRB}, 1')
    a(f's_add_u32 s{sDst}, s{sDst}, s{g.sWr}')
    a(f's_mul_i32 s{sDst}, s{sDst}, {nks}')
    a(f's_lshl_b32 s{T3}, s{sCB}, 2')
    a(f's_add_u32 s{sDst}, s{sDst}, s{T3}')
    a(f's_lshl_b32 s{T3}, s{g.sWc}, 1')
    a(f's_add_u32 s{sDst}, s{sDst}, s{T3}')
    a(f's_lshl_b32 s{sDst}, s{sDst}, 10')
    a(f's_add_u32 s{sDst}, s{sDst}, {hex(base)}')
def wsk_woffs(a, g):
    a(f's_lshl_b32 s{sW0}, s{sW}, 14')
    a(f's_lshl_b32 s{T0}, s{sCB}, 7')
    a(f's_add_u32 s{sW0}, s{sW0}, s{T0}')
    a(f's_lshl_b32 s{T0}, s{g.sWc}, 6')
    a(f's_xor_b32 s{T1}, s{T0}, 64')
    a(f's_add_u32 s{sW1}, s{sW0}, s{T1}')
    a(f's_add_u32 s{sW0}, s{sW0}, s{T0}')
def wsk_xoffs(a, g, base, xtile, d0=sX0, d1=sX1):
    a(f's_lshl_b32 s{T0}, s{sRB}, 1')
    a(f's_add_u32 s{T1}, s{T0}, s{g.sWr}')
    a(f's_mul_i32 s{d0}, s{T1}, {xtile}')
    a(f's_xor_b32 s{T1}, s{T1}, 1')
    a(f's_mul_i32 s{d1}, s{T1}, {xtile}')
    a(f's_lshl_b32 s{T0}, s{sW}, 10')
    a(f's_add_u32 s{T0}, s{T0}, {hex(base)}')
    a(f's_add_u32 s{d0}, s{d0}, s{T0}')
    a(f's_add_u32 s{d1}, s{d1}, s{T0}')
def x_rowmajor_off(a, g, sDst):
    a(f's_lshl_b32 s{sDst}, s{sRB}, 16')
    a(f's_lshl_b32 s{T1}, s{g.sWr}, 15')
    a(f's_add_u32 s{sDst}, s{sDst}, s{T1}')
    a(f's_lshl_b32 s{T1}, s{sCB}, 7')
    a(f's_add_u32 s{sDst}, s{sDst}, s{T1}')
    a(f's_lshl_b32 s{T1}, s{g.sWc}, 6')
    a(f's_add_u32 s{sDst}, s{sDst}, s{T1}')
def lane8_off(a, v, l, t):
    a(f'v_and_b32 v{v}, 31, v{l}')
    a(f'v_lshlrev_b32 v{v}, 4, v{v}')
    a(f'v_lshrrev_b32 v{t}, 5, v{l}')
    a(f'v_lshl_add_u32 v{v}, v{t}, 3, v{v}')
def unpack(a, src, dst, n):
    for j in range(n):
        a(f'v_lshlrev_b32 v{dst+2*j}, 16, v{src+j}')
        a(f'v_and_b32 v{dst+2*j+1}, 0xffff0000, v{src+j}')
def ln_scalars(a, mean, ex2, q, n):
    var, m1, s1, rs = q[0], q[1], q[2], q[3]
    a(f'v_mul_f32 v{mean}, {hex(f32bits(1/n))}, v{mean}')
    a(f'v_mul_f32 v{ex2}, {hex(f32bits(1/n))}, v{ex2}')
    a(f'v_fma_f32 v{var}, -v{mean}, v{mean}, v{ex2}')
    a(f'v_max_f32 v{var}, 0, v{var}')
    a(f'v_mov_b32 v{m1}, v{mean}'); bf16_round(a, m1)
    a(f'v_mov_b32 v{s1}, v{var}'); bf16_round(a, s1)
    a(f'v_add_f32 v{s1}, {hex(f32bits(EPS))}, v{s1}'); bf16_round(a, s1)
    a(f'v_sqrt_f32 v{s1}, v{s1}'); a('s_nop 0'); bf16_round(a, s1)
    a(f'v_rcp_f32 v{rs}, v{s1}'); a('s_nop 0')

def ln_stage(a, sK):
    va = RegAlloc(V0, 256); l = 1
    raw = va(4); x = va(8, 4); d = va(8, 4); pk = [va(4), va(4)]; s_ = va(); t_ = va(); vL16 = va(); vT = va()
    a(f'v_lshlrev_b32 v{vL16}, 4, v{l}')
    srd(a, sAUX, pX, 2048 * 1024)
    a(f's_lshl_b32 s{T0}, s2, 3')
    a(f's_add_u32 s{T0}, s{T0}, s{sK}')
    a(f's_lshl_b32 s{T0}, s{T0}, 10')
    a(f'buffer_load_dwordx4 {V(raw,4)}, v{vL16}, s[{sAUX}:{sAUX+3}], s{T0} offen')
    a('s_waitcnt vmcnt(0)')
    if LNST: stamp(a, 1)
    def wave_sum_to_sgpr(r, sD):
        dpp_wave_sum(a, [r], None)
        a('s_nop 0')
        a(f'v_readlane_b32 s{sD}, v{r}, 63')
    for which in range(2):
        src = raw if which == 0 else pk[0]
        unpack(a, src, x, 4)
        a(f'v_add_f32 v{s_}, v{x}, v{x+1}')
        a(f'v_mul_f32 v{t_}, v{x}, v{x}')
        a(f'v_add_f32 v{d}, v{x+2}, v{x+3}')
        a(f'v_mul_f32 v{d+1}, v{x+1}, v{x+1}')
        a(f'v_add_f32 v{d+2}, v{x+4}, v{x+5}')
        a(f'v_fma_f32 v{t_}, v{x+2}, v{x+2}, v{t_}')
        a(f'v_add_f32 v{d+3}, v{x+6}, v{x+7}')
        a(f'v_fma_f32 v{d+1}, v{x+3}, v{x+3}, v{d+1}')
        a(f'v_add_f32 v{s_}, v{s_}, v{d}')
        a(f'v_fma_f32 v{t_}, v{x+4}, v{x+4}, v{t_}')
        a(f'v_add_f32 v{d+2}, v{d+2}, v{d+3}')
        a(f'v_fma_f32 v{d+1}, v{x+5}, v{x+5}, v{d+1}')
        a(f'v_fma_f32 v{t_}, v{x+6}, v{x+6}, v{t_}')
        a(f'v_fma_f32 v{d+1}, v{x+7}, v{x+7}, v{d+1}')
        a(f'v_add_f32 v{s_}, v{s_}, v{d+2}')
        a(f'v_add_f32 v{t_}, v{t_}, v{d+1}')
        dpp_wave_sum(a, [s_, t_], None)
        a('s_nop 0')
        a(f'v_readlane_b32 s{T1}, v{s_}, 63')
        a(f'v_readlane_b32 s{T2}, v{t_}, 63')
        a('s_nop 1')
        a(f'v_mov_b32 v{s_}, s{T1}')
        a(f'v_mov_b32 v{t_}, s{T2}')
        a(f'v_mul_f32 v{s_}, {hex(f32bits(1/512))}, v{s_}')
        a(f'v_mul_f32 v{t_}, {hex(f32bits(1/512))}, v{t_}')
        a(f'v_fma_f32 v{t_}, -v{s_}, v{s_}, v{t_}')
        a(f'v_max_f32 v{t_}, 0, v{t_}')
        bf16_round(a, s_)
        bf16_round(a, t_)
        a(f'v_add_f32 v{t_}, {hex(f32bits(EPS))}, v{t_}'); bf16_round(a, t_)
        a(f'v_sqrt_f32 v{t_}, v{t_}'); a('s_nop 0'); bf16_round(a, t_)
        a(f'v_rcp_f32 v{t_}, v{t_}')
        for j in range(8): a(f'v_sub_f32 v{d+j}, v{x+j}, v{s_}')
        for j in range(4): a(f'v_cvt_pk_bf16_f32 v{x+j}, v{d+2*j}, v{d+2*j+1}')
        unpack(a, x, d, 4)
        for j in range(8): a(f'v_mul_f32 v{d+j}, v{d+j}, v{t_}')
        for j in range(4): a(f'v_cvt_pk_bf16_f32 v{pk[which]+j}, v{d+2*j}, v{d+2*j+1}')
    a(f's_mul_i32 s{T0}, s{sK}, 1040')
    a(f's_add_u32 s{T0}, s{T0}, {B_BASE}')
    a(f'v_add_u32 v{vT}, s{T0}, v{vL16}')
    a(f'ds_write_b128 v{vT}, {V(pk[0],4)}')
    a(f'ds_write_b128 v{vT}, {V(pk[1],4)} offset:8320')
    SB.nw = 8; BAR(a); SB.nw = 4
    a(f'v_and_b32 v{s_}, 7, v{l}')
    a(f's_mov_b32 s{T0}, 1040')
    a(f'v_mul_lo_u32 v{vT}, v{s_}, s{T0}')
    a(f'v_lshrrev_b32 v{t_}, 3, v{l}')
    a(f'v_lshl_add_u32 v{vT}, v{t_}, 4, v{vT}')
    a(f's_lshl_b32 s{T0}, s{sK}, 7')
    a(f's_add_u32 s{T0}, s{T0}, {B_BASE}')
    a(f'v_add_u32 v{vT}, s{T0}, v{vT}')
    a(f'ds_read_b128 {V(pk[0],4)}, v{vT}')
    a(f'ds_read_b128 {V(pk[1],4)}, v{vT} offset:8320')
    a(f'v_lshlrev_b32 v{vT}, 9, v{t_}')
    a(f'v_lshl_add_u32 v{vT}, v{s_}, 4, v{vT}')
    a(f's_lshr_b32 s{T0}, s2, 2')
    a(f's_lshl_b32 s{T0}, s{T0}, 15')
    a(f's_and_b32 s{T1}, s2, 3')
    a(f's_lshl_b32 s{T1}, s{T1}, 7')
    a(f's_add_u32 s{T0}, s{T0}, s{T1}')
    a(f's_lshl_b32 s{T1}, s{sK}, 12')
    a(f's_add_u32 s{T0}, s{T0}, s{T1}')
    a(f's_add_u32 s{T0}, s{T0}, {hex(XNF)}')
    a(f's_add_u32 s{T1}, s{T0}, {hex(XNNF - XNF)}')
    a('s_waitcnt lgkmcnt(0)')
    a(f'buffer_store_dwordx4 {V(pk[0],4)}, v{vT}, {ws}, s{T0} offen sc1')
    a(f'buffer_store_dwordx4 {V(pk[1],4)}, v{vT}, {ws}, s{T1} offen sc1')
    if LNST: stamp(a, 2)
    a(f's_and_b32 s{T0}, s2, 0xf0')
    a(f's_mov_b32 s{sW}, s{sK}')
    srd(a, sDBG, pDBG, 256)
    signal(a, [T0], nw=8, srdn=sDBG)
    if LNST: stamp(a, 3)
    return va.hi

def sentinel(a):
    l = 1
    vOff, vTgt, vVal, vZ, vF, vD = 4, 5, 6, 7, 8, 9
    sDone, sAct = sX0, sX1
    if os.environ.get('CPF', '1') == '1':
        a('s_getpc_b64 s[52:53]')
        a.label('k_pc')
        a(f's_sub_u32 s52, s52, k_pc-{NAME}_kernel')
        a('s_subb_u32 s53, s53, 0')
        a(f's_lshr_b32 s{T0}, s2, 3')
        a(f's_and_b32 s{T0}, s{T0}, 7')
        a(f's_lshl_b32 s{T0}, s{T0}, 13')
        a(f'v_lshlrev_b32 v{vOff}, 7, v{l}')
        a(f'v_add_u32 v{vOff}, s{T0}, v{vOff}')
        a(f's_mov_b32 s{T0}, k_end-{NAME}_kernel')
        a(f'v_min_u32 v{vOff}, s{T0}, v{vOff}')
        a(f'global_load_dword v10, v{vOff}, s[52:53]')
    srd(a, sDBG, pDBG, 256)
    a(f'v_mov_b32 v{vZ}, 0')
    a(f'v_mov_b32 v{vF}, {FL}')
    lz = a.newlabel('Lnz')
    a('s_cmp_lg_u32 s2, 0')
    a(f's_cbranch_scc1 {lz}')
    a(f'v_lshlrev_b32 v{vOff}, 7, v{l}')
    a(f's_mov_b32 s{T0}, {hex(FLG)}')
    for i in range(NCNT // 64):
        a(f'buffer_store_dword v{vZ}, v{vOff}, {ws}, s{T0} offen sc1')
        a(f's_add_u32 s{T0}, s{T0}, 8192')
    a(f'v_mov_b32 v{vVal}, 0x10000')
    a(f'v_lshlrev_b32 v{vOff}, 4, v{l}')
    a('s_waitcnt vmcnt(0)')
    a('s_mov_b64 exec, 0xffff')
    a(f'buffer_atomic_add v{vVal}, v{vOff}, s[{sDBG}:{sDBG+3}], 0 offen sc1')
    a('s_mov_b64 exec, -1')
    a.label(lz)
    a(f'v_mov_b32 v{vOff}, 0'); a(f'v_mov_b32 v{vTgt}, 0'); a(f'v_mov_b32 v{vD}, 0')
    def setl(lane, base, tgt):
        a(f's_lshl_b32 s{T3}, s{T3}, 7')
        a(f's_add_u32 s{T3}, s{T3}, {hex(base)}')
        a(f'v_writelane_b32 v{vOff}, s{T3}, {lane}')
        a(f's_mov_b32 s{T3}, {tgt}')
        a(f'v_writelane_b32 v{vTgt}, s{T3}, {lane}')
    map_qkv(a)
    a(f's_lshl_b32 s{T3}, s{sRB}, 4'); a(f'v_writelane_b32 v{vD}, s{T3}, 0')
    a(f's_and_b32 s{T0}, s2, 7')
    a(f's_lshl_b32 s{T0}, s{T0}, 2')
    a(f's_lshr_b32 s{T1}, s2, 3')
    a(f's_and_b32 s{T1}, s{T1}, 3')
    a(f's_add_u32 s{T0}, s{T0}, s{T1}')
    a(f's_lshr_b32 s{T0}, s{T0}, 1')
    for i in range(3):
        a(f's_add_u32 s{T3}, s{T0}, {16*i}')
        a(f's_mul_i32 s{T3}, s{T3}, 171')
        a(f's_lshr_b32 s{T3}, s{T3}, 9')
        setl(2 + i, CQ, 16)
    map_64x64(a)
    a(f's_lshr_b32 s{T3}, s{sRB}, 1'); a(f's_lshl_b32 s{T3}, s{T3}, 4'); a(f'v_writelane_b32 v{vD}, s{T3}, 1')
    a(f's_max_u32 s{T3}, s{sRB}, 1'); a(f's_sub_u32 s{T3}, s{T3}, 1'); setl(5, C1, 8)
    a(f's_mov_b32 s{T3}, s{sRB}'); setl(6, C1, 8)
    a(f's_add_u32 s{T3}, s{sRB}, 1'); a(f's_min_u32 s{T3}, s{T3}, 31'); setl(7, C1, 8)
    a(f's_lshr_b32 s{T3}, s{sRB}, 1'); setl(11, C3, 15)
    a(f's_mov_b32 s{T3}, s{sRB}'); setl(12, CA, 32)
    map_g3(a)
    a(f's_lshl_b32 s{T3}, s{sRB}, 1'); setl(8, C2, 8)
    a(f's_lshl_b32 s{T3}, s{sRB}, 1'); a(f's_add_u32 s{T3}, s{T3}, 1'); setl(9, C2, 8)
    a(f's_mul_i32 s{T3}, s{sCB}, 96'); a(f's_lshr_b32 s{T3}, s{T3}, 7'); setl(10, CC, 16)
    a(f's_mul_i32 s{T3}, s{sCB}, 96'); a(f's_add_u32 s{T3}, s{T3}, 95'); a(f's_lshr_b32 s{T3}, s{T3}, 7'); setl(13, CC, 16)
    a(f's_mov_b32 s{sDone}, 0')
    a(f's_cmp_ge_u32 s{sCB}, 15')
    a(f's_cselect_b32 s{sDone}, {hex(B_C2)}, 0')
    lp = a.newlabel('Lp1'); lw = a.newlabel('Lp1w')
    a.label(lw)
    spin_guard(a)
    a('s_sleep 2')
    a(f'ds_read_b32 v{vVal}, v{vF} offset:{F_REQ}')
    a('s_waitcnt lgkmcnt(0)')
    a(f'v_readfirstlane_b32 s{T0}, v{vVal}')
    a(f's_cmp_eq_u32 s{T0}, 0')
    a(f's_cbranch_scc1 {lw}')
    a('s_mov_b64 exec, 3')
    a.label(lp)
    spin_guard(a)
    a(f'buffer_load_dword v{vVal}, v{vD}, s[{sDBG}:{sDBG+3}], 0 offen sc1')
    a('s_waitcnt vmcnt(0)')
    a(f'v_readfirstlane_b32 s{T0}, v{vVal}')
    a(f'v_and_b32 v{vVal}, 0xffff, v{vVal}')
    a(f'v_cmp_le_u32 vcc, 16, v{vVal}')
    a(f's_lshr_b32 s{T0}, s{T0}, 16')
    a(f's_lshl_b32 s{T0}, s{T0}, 31')
    a(f's_or_b32 s{sDone}, s{sDone}, s{T0}')
    a(f's_or_b32 s{sDone}, s{sDone}, vcc_lo')
    a(f'v_mov_b32 v{vVal}, s{sDone}')
    a(f'ds_write_b32 v{vF}, v{vVal} offset:{F_STATUS}')
    a('s_sleep 3')
    a(f's_and_b32 s{T0}, s{sDone}, {hex(ZOK | 3)}')
    a(f's_cmp_lg_u32 s{T0}, {hex(ZOK | 3)}')
    a(f's_cbranch_scc1 {lp}')
    lp = a.newlabel('Lp2')
    a.label(lp)
    a('s_mov_b64 exec, -1')
    spin_guard(a)
    a('s_sleep 2')
    a(f'ds_read_b32 v{vVal}, v{vF} offset:{F_REQ}')
    a('s_waitcnt lgkmcnt(0)')
    a(f'v_readfirstlane_b32 s{sAct}, v{vVal}')
    a(f's_andn2_b32 s{sAct}, s{sAct}, s{sDone}')
    a(f's_cbranch_scc0 {lp}')
    a(f's_mov_b32 exec_lo, s{sAct}'); a('s_mov_b32 exec_hi, 0')
    a(f'buffer_load_dword v{vVal}, v{vOff}, {ws}, 0 offen sc1')
    a('s_waitcnt vmcnt(0)')
    a(f'v_cmp_ge_u32 vcc, v{vVal}, v{vTgt}')
    a(f's_or_b32 s{sDone}, s{sDone}, vcc_lo')
    a(f'v_mov_b32 v{vVal}, s{sDone}')
    a(f'ds_write_b32 v{vF}, v{vVal} offset:{F_STATUS}')
    a(f's_and_b32 s{T0}, s{sDone}, {hex(ALLB)}')
    a(f's_cmp_lg_u32 s{T0}, {hex(ALLB)}')
    a(f's_cbranch_scc1 {lp}')
    a('s_waitcnt lgkmcnt(0)')
    a('s_endpgm')

QCK = 4; QSLOT = QCK * 3072; QNS = 6

def qkv_loader(a):
    l = 1; vW, t0, vF, vV = 4, 5, 6, 7
    map_qkv(a)
    srd(a, sWSRD, pQKV, 512 * 3072)
    wdma_voff(a, vW, l, t0, 3072, T0)
    a(f'v_mov_b32 v{vF}, {FL}')
    a(f's_mul_i32 s{sW0}, s{sCB}, 192')
    rot8(a, sJ0, sJ1)
    def chunk(c):
        a(f's_mul_i32 s{sJ1}, s{sJ0}, {64 * 3072}')
        a(f's_add_u32 s{sJ1}, s{sJ1}, s{sW0}')
        for s in range(QCK):
            for F in range(3):
                a(f's_mov_b32 m0, {(c % QNS) * QSLOT + s * 3072 + F * 1024}')
                a(f's_add_u32 s{T0}, s{sJ1}, {s * 16 * 3072 + F * 64}')
                a(f'buffer_load_dwordx4 v{vW}, s[{sWSRD}:{sWSRD+3}], s{T0} offen lds')
        a(f's_add_u32 s{sJ0}, s{sJ0}, 1')
        a(f's_and_b32 s{sJ0}, s{sJ0}, 7')
    def publish(c):
        a(f'v_mov_b32 v{vV}, {c + 1}')
        a(f'ds_write_b32 v{vF}, v{vV} offset:{F_WRDY}')
    chunk(0); chunk(1); chunk(2)
    for c in range(3, 8):
        a('s_waitcnt vmcnt(24)'); publish(c - 3)
        if c >= QNS: wait_min4(a, F_WDONE, c - QNS + 1, 8)
        chunk(c)
    a('s_waitcnt vmcnt(24)'); publish(5)
    a('s_waitcnt vmcnt(12)'); publish(6)
    a('s_waitcnt vmcnt(0)'); publish(7)
    if TOUCH:
        a(f'v_lshlrev_b32 v12, 7, v{l}')
        l2_touch(a, pW2, 512 * 1024, 12, 13)
        l2_touch(a, pW3, 512 * 2752, 12, 13)

def l2_touch(a, ptr, nbytes, vT, vD):
    share = nbytes // 32
    srd(a, sAUX, ptr, nbytes)
    a(f's_lshr_b32 s{T0}, s2, 3')
    a(f's_mul_i32 s{T0}, s{T0}, {share}')
    n = (share + 8191) // 8192
    for i in range(n):
        a(f'buffer_load_dword v{vD}, v{vT}, s[{sAUX}:{sAUX+3}], s{T0} offen')
        if i + 1 < n: a(f's_add_u32 s{T0}, s{T0}, 8192')

def qkv_compute(a):
    l = 1
    map_qkv(a)
    rot8(a, sJ0, sJ1)
    hi = 0
    a(f's_cmp_ge_u32 s{sCB}, 11')
    a('s_cbranch_scc1 qkv_nnn')
    a(f's_cmp_eq_u32 s{sCB}, 10')
    a('s_cbranch_scc1 qkv_ttn')
    for var in ('ttt', 'ttn', 'nnn'):
        if var != 'ttt': a.label('qkv_' + var)
        va = RegAlloc(V0, 256); vm = VM()
        D = 16
        t0 = va(); t1 = va(); vL16 = va(); vTr = va(); vTr2 = va(); vF = va(); vOne = va(); vR = va()
        acc = [va(16, 4) for F in range(3)]
        xr = [va(4) for d in range(D)]
        wf = [[va(4) for F in range(3)] for b in range(3)]
        a(f'v_lshlrev_b32 v{vL16}, 4, v{l}')
        trbase(a, vTr, l, t0)
        a(f'v_add_u32 v{vTr2}, 49152, v{vTr}')
        a(f's_lshl_b32 s{T0}, s{sW}, 2')
        a(f's_add_u32 s{T0}, s{T0}, {FL + F_WDONE}')
        a(f'v_mov_b32 v{vF}, s{T0}')
        vSt0 = t1
        a(f'v_mov_b32 v{vSt0}, {FL}')
        for F in range(3):
            for i in range(16): a(f'v_mov_b32 v{acc[F]+i}, 0')
        a(f's_lshl_b32 s{sX0}, s{sRB}, 2')
        a(f's_add_u32 s{sX0}, s{sX0}, s{sW}')
        a(f's_lshl_b32 s{sX0}, s{sX0}, 15')
        a(f's_add_u32 s{sX0}, s{sX0}, {hex(XNF)}')
        def xld(ks):
            if ks % QCK == 0:
                a(f's_lshl_b32 s{sJ2}, s{sJ0}, 12')
                a(f's_add_u32 s{sJ2}, s{sJ2}, s{sX0}')
                a(f's_add_u32 s{sJ0}, s{sJ0}, 1')
                a(f's_and_b32 s{sJ0}, s{sJ0}, 7')
            a(f'buffer_load_dwordx4 {V(xr[ks % D],4)}, v{vL16}, {ws}, s{sJ2} offen offset:{(ks % QCK) * 1024} {LDF}')
            vm.add(('x', ks))
        def reads(ks, only=None):
            c, s = ks // QCK, ks % QCK; b = ks % 3
            for F in (range(3) if only is None else [only]):
                o = (c % QNS) * QSLOT + s * 3072 + F * 1024
                base = vTr
                if o + 256 > 65535: base, o = vTr2, o - 49152
                a(f'ds_read_b64_tr_b16 {V(wf[b][F],2)}, v{base} offset:{o}')
                a(f'ds_read_b64_tr_b16 {V(wf[b][F]+2,2)}, v{base} offset:{o+256}')
        wait_status(a, B_XA)
        if var == 'ttt': n0 = CS.n
        CS.n = n0; cstamp(a); dstamp(a, 'qx')
        for ks in range(D): xld(ks)
        wait_lds_ge(a, F_WRDY, 1)
        reads(0); reads(1)
        for ks in range(32):
            nx = ks + 2
            if nx < 32 and nx % QCK == 0:
                lr = a.newlabel('Lqr')
                a('s_waitcnt lgkmcnt(0)')
                a(f'v_readfirstlane_b32 s{T3}, v{vR}')
                a(f's_cmp_ge_u32 s{T3}, {nx // QCK + 1}')
                a(f's_cbranch_scc1 {lr}')
                wait_lds_ge(a, F_WRDY, nx // QCK + 1)
                a.label(lr)
                a(f'v_mov_b32 v{vOne}, {nx // QCK}')
                a(f'ds_write_b32 v{vF}, v{vOne}')
                a(f's_waitcnt vmcnt({vm.wait_for(("x", ks))})')
            else:
                extra = 1 if (ks >= 1 and (ks + 2) % QCK == 1 and ks + 1 < 32) else 0
                a(f's_waitcnt vmcnt({vm.wait_for(("x", ks))}) lgkmcnt({6 if ks + 1 < 32 else 0})')
            for F in range(3):
                A_, B_ = (wf[ks % 3][F], xr[ks % D]) if var[F] == 't' else (xr[ks % D], wf[ks % 3][F])
                a(f'{MF} {V(acc[F],16)}, {V(A_,4)}, {V(B_,4)}, {V(acc[F],16)}')
                if F == 0 and nx + 1 < 32 and (nx + 1) % QCK == 0:
                    a(f'ds_read_b32 v{vR}, v{vSt0} offset:{F_WRDY}')
                if nx < 32: reads(nx, F)
            if ks + D < 32: xld(ks + D)
        a(f'v_mov_b32 v{vOne}, 8')
        a(f'ds_write_b32 v{vF}, v{vOne}')
        cstamp(a); dstamp(a, 'qloop')
        vSt = t1
        a(f'v_and_b32 v{vSt}, 15, v{l}')
        a(f'v_lshlrev_b32 v{vSt}, 4, v{vSt}')
        a(f'v_lshrrev_b32 v{t0}, 5, v{l}')
        a(f'v_lshl_add_u32 v{vSt}, v{t0}, 8, v{vSt}')
        a(f'v_bfe_u32 v{t0}, v{l}, 4, 1')
        a(f'v_lshl_add_u32 v{vSt}, v{t0}, 10, v{vSt}')
        a(f's_lshl_b32 s{sX0}, s{sRB}, 2')
        a(f's_add_u32 s{sX0}, s{sX0}, s{sW}')
        a(f's_lshl_b32 s{sX0}, s{sX0}, 15')
        a(f's_mul_i32 s{sX1}, s{sCB}, 3')
        a(f's_mov_b32 s{sJ1}, {hex(f32bits(QSCALE))}')
        for F in range(3):
            pk = xr[2 * F]
            a(f's_add_u32 s{T0}, s{sX1}, {F}')
            a(f's_lshr_b32 s{T1}, s{T0}, 4')
            a(f's_lshl_b32 s{T1}, s{T1}, 21')
            a(f's_and_b32 s{T2}, s{T0}, 15')
            a(f's_lshl_b32 s{T2}, s{T2}, 11')
            a(f's_add_u32 s{T1}, s{T1}, s{T2}')
            a(f's_add_u32 s{T1}, s{T1}, s{sX0}')
            ac = acc[F]
            if var[F] == 't':
                if var == 'ttt':
                    lq = a.newlabel('Lnq')
                    a(f's_cmp_ge_u32 s{T0}, 16')
                    a(f's_cbranch_scc1 {lq}')
                    for i in range(16): a(f'v_mul_f32 v{ac+i}, s{sJ1}, v{ac+i}')
                    a.label(lq)
                pack_swap_store(a, ac, pk, vL16, T1)
            else:
                for i in range(8): a(f'v_cvt_pk_bf16_f32 v{pk+i}, v{ac+2*i}, v{ac+2*i+1}')
                for f in range(2):
                    a(f'buffer_store_dwordx4 {V(pk+4*f,4)}, v{vSt}, {ws}, s{T1} offen offset:{f*512} sc1')
        hi = max(hi, va.hi)
        if var != 'nnn': a('s_branch qkv_done')
    a.label('qkv_done')
    a(f's_lshl_b32 s{T0}, s{sCB}, 7')
    a(f's_add_u32 s{T0}, s{T0}, {hex(CQ)}')
    dstamp(a, 'qepi')
    signal(a, [T0], need_zok=True)
    dstamp(a, 'qsig')
    return hi

def colsum3_job_issue(a, va):
    r = G()
    r.l3 = [va(4), va(4)]; r.tA = va(); r.tB = va()
    srd(a, sAUX, pW3, 512 * 2752)
    a(f's_and_b32 s{T0}, s2, 15')
    a(f's_mul_i32 s{T0}, s{T0}, {32 * 2752}')
    a(f's_lshr_b32 s{T1}, s2, 4')
    a(f's_min_u32 s{T1}, s{T1}, 10')
    a(f's_lshl_b32 s{T1}, s{T1}, 8')
    a(f's_add_u32 s{T0}, s{T0}, s{T1}')
    a(f'v_lshrrev_b32 v{r.tA}, 4, v0')
    a(f's_mov_b32 s{T1}, 2752')
    a(f'v_mul_lo_u32 v{r.tA}, v{r.tA}, s{T1}')
    a(f'v_and_b32 v{r.tB}, 15, v0')
    a(f'v_lshl_add_u32 v{r.tA}, v{r.tB}, 4, v{r.tA}')
    a(f'buffer_load_dwordx4 {V(r.l3[0],4)}, v{r.tA}, s[{sAUX}:{sAUX+3}], s{T0} offen')
    a(f's_add_u32 s{T0}, s{T0}, {16 * 2752}')
    a(f'buffer_load_dwordx4 {V(r.l3[1],4)}, v{r.tA}, s[{sAUX}:{sAUX+3}], s{T0} offen')
    return r
def colsum3_job_finish(a, r, u):
    SCR = B_BASE + 65536
    unpack(a, r.l3[0], u, 4); unpack(a, r.l3[1], u + 8, 4)
    for j in range(8): a(f'v_add_f32 v{u+j}, v{u+j}, v{u+8+j}')
    a(f'v_lshrrev_b32 v{r.tA}, 4, v0')
    a(f'v_lshlrev_b32 v{r.tA}, 9, v{r.tA}')
    a(f'v_lshl_add_u32 v{r.tA}, v{r.tB}, 5, v{r.tA}')
    a(f'v_add_u32 v{r.tA}, {SCR}, v{r.tA}')
    a(f'ds_write_b128 v{r.tA}, {V(u,4)}')
    a(f'ds_write_b128 v{r.tA}, {V(u+4,4)} offset:16')
    BAR(a)
    lab = a.newlabel('Lc3')
    a(f's_cmp_ge_u32 s{sW}, 2')
    a(f's_cbranch_scc1 {lab}')
    a('s_cmp_ge_u32 s2, 176')
    a(f's_cbranch_scc1 {lab}')
    a(f'v_lshlrev_b32 v{r.tA}, 2, v0')
    a(f'v_add_u32 v{r.tB}, {SCR}, v{r.tA}')
    for k in range(16): a(f'ds_read_b32 v{u+k}, v{r.tB} offset:{k*512}')
    a('s_waitcnt lgkmcnt(0)')
    for k in range(1, 16): a(f'v_add_f32 v{u}, v{u}, v{u+k}')
    a(f's_and_b32 s{T0}, s2, 15')
    a(f's_mul_i32 s{T0}, s{T0}, {1408 * 4}')
    a(f's_lshr_b32 s{T1}, s2, 4')
    a(f's_lshl_b32 s{T1}, s{T1}, 9')
    a(f's_add_u32 s{T0}, s{T0}, s{T1}')
    a(f's_add_u32 s{T0}, s{T0}, {hex(CS3)}')
    a(f'buffer_store_dword v{u}, v{r.tA}, {ws}, s{T0} offen sc1')
    a.label(lab)

def w1_stage(a):
    va = RegAlloc(V0, 256); l = 1; vm = VM()
    map_64x64(a)
    srd(a, sWSRD, pW1, 512 * 1024)
    g = WSK(a, va, sW, l, STMP, WD, vm, lds_base=B_BASE, ring_bytes=WRING)
    t0, t1, t2 = g.t
    wsk_woffs(a, g)
    wsk_xoffs(a, g, XNNF, 32768)
    rot8(a, sJ0, sJ1)
    g.add_segment(8, sWS, [sX0, sX1], g.vL16, LDF, sWSRD, [sW0, sW1], sJ0, sJ1, 8)
    cj = colsum3_job_issue(a, va); vm.add('cj'); vm.add('cj')
    for i in range(WD): g.issue_w(i)
    g.nw = WD
    a(f's_waitcnt vmcnt({vm.wait_for("cj")})')
    colsum3_job_finish(a, cj, g.acc[0][0])
    g.zero_acc()
    wait_status(a, B_XB)
    cstamp(a); dstamp(a, 'w1x')
    g.run(0, 8)
    dstamp(a, 'w1loop')
    ac = g.reduce()
    dstamp(a, 'w1red')
    tmp = g.acc[0][1]; pk = g.acc[1][0]; vC2 = g.acc[1][1]; vSt = g.acc[1][1] + 1
    a(f'v_mov_b32 v{vC2}, {hex(f32bits(GC2))}')
    a(f's_mov_b32 s{T2}, {hex(f32bits(GC1))}')
    gelu_scalar(a, ac, 16, tmp, T2, vC2)
    a(f's_lshr_b32 s{T1}, s{sCB}, 1')
    a(f's_lshr_b32 s{T3}, s{T1}, 1')
    a(f's_add_u32 s{T3}, s{T3}, 1')
    a(f's_mov_b32 s{sJ2}, s{T3}')
    a(f's_sub_u32 s{T2}, 0, s{T3}')
    a(f's_and_b32 s{sJ3}, s{T1}, 1')
    a(f's_cmp_eq_u32 s{sJ3}, 0')
    a(f's_cselect_b32 s{T3}, s{T3}, s{T2}')
    a(f's_lshl_b32 s{T1}, s{sRB}, 6')
    a(f's_add_u32 s{T3}, s{T3}, s{T1}')
    a(f's_lshl_b32 s{T1}, s{g.sWr}, 5')
    a(f's_add_u32 s{T3}, s{T3}, s{T1}')
    a(f's_mov_b32 s{T2}, 2048')
    a(f'v_and_b32 v{t2}, 31, v{l}')
    a(f'v_add_u32 v{t2}, s{T3}, v{t2}')
    a(f'v_cmp_gt_u32 vcc, s{T2}, v{t2}')
    a(f'v_lshrrev_b32 v{vSt}, 5, v{t2}')
    a(f'v_lshlrev_b32 v{vSt}, 15, v{vSt}')
    a(f'v_and_b32 v{t2}, 31, v{t2}')
    a(f'v_lshl_add_u32 v{vSt}, v{t2}, 4, v{vSt}')
    a(f'v_lshrrev_b32 v{t2}, 5, v{l}')
    a(f'v_lshl_add_u32 v{vSt}, v{t2}, 9, v{vSt}')
    a(f'v_mov_b32 v{t2}, {hex(OOB)}')
    a(f'v_cndmask_b32 v{vSt}, v{t2}, v{vSt}, vcc')
    a(f's_lshl_b32 s{T0}, s{sCB}, 2')
    a(f's_lshl_b32 s{T1}, s{g.sWc}, 1')
    a(f's_add_u32 s{T0}, s{T0}, s{T1}')
    a(f's_lshl_b32 s{T0}, s{T0}, 10')
    a(f's_add_u32 s{T0}, s{T0}, {hex(HF)}')
    pack_swap_store(a, ac, pk, vSt, T0)
    lz = a.newlabel('Lzf')
    a(f's_cmp_lg_u32 s{g.sWr}, 0')
    a(f's_cbranch_scc1 {lz}')
    a(f's_mul_i32 s{T1}, s{sJ3}, 31')
    a(f's_cmp_lg_u32 s{sRB}, s{T1}')
    a(f's_cbranch_scc1 {lz}')
    a(f'v_and_b32 v{t2}, 31, v{l}')
    a(f'v_cmp_gt_u32 vcc, s{sJ2}, v{t2}')
    a(f'v_xor_b32 v{t2}, s{T1}, v{t2}')
    a(f'v_lshlrev_b32 v{t2}, 4, v{t2}')
    a(f's_mul_i32 s{T1}, s{sJ3}, {63 * 32768}')
    a(f'v_add_u32 v{t2}, s{T1}, v{t2}')
    a(f'v_lshrrev_b32 v{t1}, 5, v{l}')
    a(f'v_lshl_add_u32 v{t2}, v{t1}, 9, v{t2}')
    for i in range(4): a(f'v_mov_b32 v{tmp+i}, 0')
    a('s_and_saveexec_b64 s[54:55], vcc')
    for kk in range(2):
        a(f'buffer_store_dwordx4 {V(tmp,4)}, v{t2}, {ws}, s{T0} offen offset:{kk*1024} sc1')
    a('s_mov_b64 exec, -1')
    a.label(lz)
    a(f's_lshl_b32 s{T0}, s{sRB}, 7')
    a(f's_add_u32 s{T0}, s{T0}, {hex(C1)}')
    a(f's_lshr_b32 s{T1}, s2, 4')
    a(f's_lshl_b32 s{T1}, s{T1}, 7')
    a(f's_add_u32 s{T1}, s{T1}, {hex(CC)}')
    dstamp(a, 'w1epi')
    signal(a, [T0, T1], need_zok=True)
    dstamp(a, 'w1sig')
    return va.hi

def g2_stage(a):
    va = RegAlloc(V0, 256); l = 1; vm = VM()
    srd(a, sWSRD, pW2, 512 * 1024)
    g = WSK(a, va, sW, l, STMP, WD, vm, lds_base=B_BASE, ring_bytes=WRING)
    t0, t1, t2 = g.t
    wsk_woffs(a, g)
    wsk_xoffs(a, g, HF, 32768)
    rot8(a, sJ0, sJ1)
    g.add_segment(8, sWS, [sX0, sX1], g.vL16, LDF, sWSRD, [sW0, sW1], sJ0, sJ1, 8)
    vSt = va(); xr = va(8, 4)
    request(a, B_C1)
    lane8_off(a, vSt, l, t0)
    frag_tile_off(a, T0, g, XNF, 32)
    for q in range(4):
        a(f'buffer_load_dwordx2 {V(xr+2*q,2)}, v{vSt}, {ws}, s{T0} offen offset:{q*512} {LDF}'); vm.add('xn')
    for i in range(WD): g.issue_w(i)
    g.nw = WD
    g.zero_acc(skip00=True)
    a(f's_waitcnt vmcnt({vm.wait_for("xn")})')
    unpack(a, xr, g.acc[0][0], 8)
    dstamp(a, 'g2pre')
    wait_status(a, B_C1)
    dstamp(a, 'g2x')
    g.run(0, 8)
    dstamp(a, 'g2loop')
    ac = g.reduce()
    xf = g.acc[0][1]; pk = g.acc[1][0]; s1, s2, s1b, s2b, pr = [g.acc[1][1] + i for i in (0, 1, 2, 3, 4)]
    frag_tile_off(a, T0, g, X1F, 32)
    pack_swap_store(a, ac, pk, g.vL16, T0)
    unpack(a, pk, xf, 8)
    a(f'v_add_f32 v{s1}, v{xf}, v{xf+1}')
    a(f'v_mul_f32 v{s2}, v{xf}, v{xf}')
    a(f'v_fma_f32 v{s2}, v{xf+1}, v{xf+1}, v{s2}')
    for i in range(2, 16):
        a(f'v_add_f32 v{s1}, v{s1}, v{xf+i}')
        a(f'v_fma_f32 v{s2}, v{xf+i}, v{xf+i}, v{s2}')
    a(f'v_mov_b32 v{s1b}, v{s1}'); a(f'v_mov_b32 v{s2b}, v{s2}')
    a('s_nop 1')
    a(f'v_permlane32_swap_b32 v{s1}, v{s1b}')
    a(f'v_permlane32_swap_b32 v{s2}, v{s2b}')
    a('s_nop 1')
    a(f'v_add_f32 v{pr}, v{s1}, v{s1b}')
    a(f'v_add_f32 v{pr+1}, v{s2}, v{s2b}')
    a(f's_lshl_b32 s{T0}, s{sCB}, 1')
    a(f's_add_u32 s{T0}, s{T0}, s{g.sWc}')
    a(f's_lshl_b32 s{T0}, s{T0}, 14')
    a(f's_lshl_b32 s{T1}, s{sRB}, 9')
    a(f's_add_u32 s{T0}, s{T0}, s{T1}')
    a(f's_lshl_b32 s{T1}, s{g.sWr}, 8')
    a(f's_add_u32 s{T0}, s{T0}, s{T1}')
    a(f's_add_u32 s{T0}, s{T0}, {hex(PS)}')
    a(f'v_lshlrev_b32 v{t0}, 3, v{l}')
    a('s_mov_b32 exec_hi, 0')
    a(f'buffer_store_dwordx2 {V(pr,2)}, v{t0}, {ws}, s{T0} offen sc1')
    a('s_mov_b64 exec, -1')
    a(f's_lshl_b32 s{T0}, s{sRB}, 7')
    a(f's_add_u32 s{T0}, s{T0}, {hex(C2)}')
    dstamp(a, 'g2epi')
    signal(a, [T0])
    dstamp(a, 'g2sig')
    return va.hi

def g3_stage(a, endlabel):
    va = RegAlloc(V0, 256); l = 1; vm = VM()
    map_g3(a)
    a(f's_cmp_ge_u32 s{sCB}, 15')
    a(f's_cbranch_scc1 {endlabel}')
    srd(a, sWSRD, pW3, 512 * 2752)
    D = 8; CK = 8; NST = 3; STG = CK * 3 * 1024; CSL = B_BASE + NST * STG
    sT0, sT1, sM0 = STMP, STMP + 1, STMP + 2
    t0 = va(); t1 = va(); t2 = va(); vL16 = va(); vTr = va(); vW = va(); vTr2 = va()
    a(f'v_lshlrev_b32 v{vL16}, 4, v{l}')
    trbase(a, vTr, l, t0)
    a(f'v_add_u32 v{vTr}, {B_BASE}, v{vTr}')
    a(f'v_add_u32 v{vTr2}, 49152, v{vTr}')
    wdma_voff(a, vW, l, t0, 2752, sT0)
    acc = [va(16, 4) for F in range(3)]
    xr = [va(4) for d in range(D)]
    wf = [[va(4) for F in range(3)] for b in range(3)]
    ps = va(16, 4); cp = va(16, 4)
    mr = va(); rr = va(); z = [va() for _ in range(4)]
    a(f's_mul_i32 s{sW0}, s{sW}, {16 * 2752}')
    a(f's_mul_i32 s{T0}, s{sCB}, 192')
    a(f's_add_u32 s{sW0}, s{sW0}, s{T0}')
    a(f's_mul_i32 s{sM0}, s{sW}, 3072')
    a(f's_add_u32 s{sM0}, s{sM0}, {B_BASE}')
    a(f's_and_b32 s{T0}, s{sRB}, 1')
    a(f's_lshl_b32 s{T0}, s{T0}, 1')
    a(f's_add_u32 s{sJ0}, s{T0}, s{sCB}')
    def wdma(c):
        a(f's_add_u32 s{sJ1}, s{sJ0}, {c}')
        a(f's_and_b32 s{sJ1}, s{sJ1}, 3')
        a(f's_mul_i32 s{sJ1}, s{sJ1}, {128 * 2752}')
        a(f's_add_u32 s{sJ1}, s{sJ1}, s{sW0}')
        for hh in range(2):
            for F in range(3):
                a(f's_add_u32 m0, s{sM0}, {(c % NST) * STG + hh * 4 * 3072 + F * 1024}')
                a(f's_add_u32 s{sT1}, s{sJ1}, {(hh * 4) * 16 * 2752 + F * 64}')
                a(f'buffer_load_dwordx4 v{vW}, s[{sWSRD}:{sWSRD+3}], s{sT1} offen lds')
                vm.add(('w', c))
    request(a, B_C2)
    for c in range(NST): wdma(c)
    for F in range(3):
        for i in range(16): a(f'v_mov_b32 v{acc[F]+i}, 0')
    a(f's_lshl_b32 s{sX0}, s{sRB}, 2')
    a(f's_add_u32 s{sX0}, s{sX0}, s{sW}')
    a(f's_lshl_b32 s{sX0}, s{sX0}, 15')
    a(f's_add_u32 s{sX0}, s{sX0}, {hex(X1F)}')
    dstamp(a, 'g3pre')
    wait_status(a, B_C2)
    dstamp(a, 'g3x')
    def xld(ks):
        if ks % 8 == 0:
            a(f's_add_u32 s{sJ2}, s{sJ0}, {ks // 8}')
            a(f's_and_b32 s{sJ2}, s{sJ2}, 3')
            a(f's_lshl_b32 s{sJ2}, s{sJ2}, 13')
            a(f's_add_u32 s{sJ2}, s{sJ2}, s{sX0}')
        a(f's_add_u32 s{sT0}, s{sJ2}, {(ks % 8) * 1024}')
        a(f'buffer_load_dwordx4 {V(xr[ks % D],4)}, v{vL16}, {ws}, s{sT0} offen {LDF}')
        vm.add(('x', ks))
    for ks in range(D): xld(ks)
    a(f'v_and_b32 v{t0}, 31, v{l}')
    a(f'v_lshlrev_b32 v{t0}, 3, v{t0}')
    a(f'v_lshrrev_b32 v{t2}, 5, v{l}')
    a(f'v_lshl_add_u32 v{t0}, v{t2}, 17, v{t0}')
    a(f's_lshl_b32 s{T0}, s{sRB}, 10')
    a(f's_lshl_b32 s{T1}, s{sW}, 8')
    a(f's_add_u32 s{T0}, s{T0}, s{T1}')
    a(f's_add_u32 s{T0}, s{T0}, {hex(PS)}')
    for f in range(8):
        a(f'buffer_load_dwordx2 {V(ps+2*f,2)}, v{t0}, {ws}, s{T0} offen {LDF}'); vm.add('ps')
        a(f's_add_u32 s{T0}, s{T0}, 16384')
    a(f'v_lshlrev_b32 v{t1}, 2, v0')
    a(f's_mul_i32 s{T0}, s{sCB}, 384')
    a(f's_add_u32 s{T0}, s{T0}, {hex(CS3)}')
    for k in range(16):
        a(f'buffer_load_dword v{cp+k}, v{t1}, {ws}, s{T0} offen {LDF}'); vm.add('cs')
        a(f's_add_u32 s{T0}, s{T0}, {1408*4}')
    def reads(ks, only=None):
        c, s = ks // CK, ks % CK; b = ks % 3
        for F in (range(3) if only is None else [only]):
            o = (c % NST) * STG + s * 3072 + F * 1024
            base = vTr
            if o + 256 > 65535: base, o = vTr2, o - 49152
            a(f'ds_read_b64_tr_b16 {V(wf[b][F],2)}, v{base} offset:{o}')
            a(f'ds_read_b64_tr_b16 {V(wf[b][F]+2,2)}, v{base} offset:{o+256}')
    def sync(c):
        if c == 0:
            a(f's_waitcnt vmcnt({vm.wait_for(("w", 2))})'); BAR(a)
        elif c == 1:
            BAR(a); wdma(3)
        elif c == 3:
            a(f's_waitcnt vmcnt({vm.wait_for(("w", 3))})'); BAR(a)
    sync(0)
    reads(0); reads(1)
    for ks in range(32):
        nx = ks + 2
        if nx < 32 and nx % CK == 0: sync(nx // CK)
        a(f's_waitcnt vmcnt({vm.wait_for(("x", ks))}) lgkmcnt({6 if ks + 1 < 32 else 0})')
        for F in range(3):
            a(f'{MF} {V(acc[F],16)}, {V(wf[ks%3][F],4)}, {V(xr[ks%D],4)}, {V(acc[F],16)}')
            if nx < 32: reads(nx, F)
        if ks + D < 32: xld(ks + D)
        if ks == 12:
            for k in range(1, 16): a(f'v_add_f32 v{cp}, v{cp}, v{cp+k}')
            a(f'v_add_u32 v{t1}, {CSL}, v{t1}')
            a(f'ds_write_b32 v{t1}, v{cp}')
            for f in range(1, 8):
                a(f'v_add_f32 v{ps}, v{ps}, v{ps+2*f}')
                a(f'v_add_f32 v{ps+1}, v{ps+1}, v{ps+2*f+1}')
            a(f'v_mov_b32 v{ps+2}, v{ps}'); a(f'v_mov_b32 v{ps+3}, v{ps+1}')
            a('s_nop 1')
            a(f'v_permlane32_swap_b32 v{ps}, v{ps+2}')
            a(f'v_permlane32_swap_b32 v{ps+1}, v{ps+3}')
            a('s_nop 1')
            a(f'v_add_f32 v{ps}, v{ps}, v{ps+2}')
            a(f'v_add_f32 v{ps+1}, v{ps+1}, v{ps+3}')
            ln_scalars(a, ps, ps + 1, z, 512)
            a(f'v_mov_b32 v{rr}, v{z[3]}')
            a(f'v_mul_f32 v{mr}, v{z[1]}, v{z[3]}')
            a(f'v_sub_f32 v{mr}, 0, v{mr}')
    dstamp(a, 'g3loop')
    tmp = ps; cs = cp
    pk = [xr[0], xr[2]]; vC2 = z[0]
    a(f'v_mov_b32 v{vC2}, {hex(f32bits(GC2))}')
    a(f's_mov_b32 s{T2}, {hex(f32bits(GC1))}')
    a(f'v_lshrrev_b32 v{t1}, 5, v{l}')
    a(f'v_lshlrev_b32 v{t1}, 4, v{t1}')
    a(f'v_add_u32 v{t1}, {CSL}, v{t1}')
    a(f's_lshl_b32 s{T0}, s{sRB}, 2')
    a(f's_add_u32 s{T0}, s{T0}, s{sW}')
    a(f's_mul_i32 s{T0}, s{T0}, 86')
    a(f's_mul_i32 s{T1}, s{sCB}, 6')
    a(f's_add_u32 s{T0}, s{T0}, s{T1}')
    a(f's_lshl_b32 s{T0}, s{T0}, 10')
    a(f's_add_u32 s{T0}, s{T0}, {hex(H3F)}')
    lskip = a.newlabel('g3_skip')
    for F in range(3):
        if F == 1:
            a(f's_cmp_eq_u32 s{sCB}, 14')
            a(f's_cbranch_scc1 {lskip}')
        for q in range(4):
            a(f'ds_read_b128 {V(cs+4*q,4)}, v{t1} offset:{F*128 + q*32}')
        ac = acc[F]
        for i in range(16): a(f'v_mul_f32 v{ac+i}, v{ac+i}, v{rr}')
        a('s_waitcnt lgkmcnt(0)')
        for i in range(16): a(f'v_fma_f32 v{ac+i}, v{mr}, v{cs+i}, v{ac+i}')
        gelu_scalar(a, ac, 16, tmp, T2, vC2)
        a(f's_add_u32 s{T1}, s{T0}, {F*2048}')
        pack_swap_store(a, ac, pk[F % 2], vL16, T1)
    a.label(lskip)
    a(f's_lshl_b32 s{T0}, s{sRB}, 7')
    a(f's_add_u32 s{T0}, s{T0}, {hex(C3)}')
    dstamp(a, 'g3epi')
    signal(a, [T0])
    dstamp(a, 'g3sig')
    return va.hi

def g45_stage(a):
    va = RegAlloc(V0, 256); l = 1; vm = VM()
    map_64x64(a)
    srd(a, sWSRD, pW4, 1376 * 1024)
    srd(a, sW2SRD, pWO, 512 * 1024)
    srd(a, sAUX, pX, 2048 * 1024)
    g = WSK(a, va, sW, l, STMP, WD, vm, lds_base=B_BASE, ring_bytes=WRING)
    t0, t1, t2 = g.t
    wsk_woffs(a, g)
    wsk_xoffs(a, g, H3F, 86 * 1024)
    sO0, sO1 = 55, 56
    wsk_xoffs(a, g, OF, 32768, sO0, sO1)
    def cond(lab):
        a(f's_cmp_ge_u32 s{sW}, 2')
        a(f's_cbranch_scc1 {lab}')
    a(f's_cmp_lt_u32 s{sW}, 2')
    a(f's_cselect_b32 s{sNN}, 22, 21')
    rot8(a, sJ0, sJ1, 5)
    rot8(a, sJ2, sJ3)
    g.add_segment(22, sWS, [sX0, sX1], g.vL16, LDF, sWSRD, [sW0, sW1], sJ0, sJ1, [sNN], last_cond=cond)
    g.add_segment(8, sWS, [sO0, sO1], g.vL16, LDF, sW2SRD, [sW0, sW1], sJ2, sJ3, 8)
    vSt = va(); x1r = va(8, 4); xr = va(8, 4)
    request(a, B_C3)
    a(f'v_and_b32 v{t2}, 31, v{l}')
    a(f'v_lshlrev_b32 v{t2}, 10, v{t2}')
    a(f'v_lshrrev_b32 v{t0}, 5, v{l}')
    a(f'v_lshl_add_u32 v{t2}, v{t0}, 3, v{t2}')
    x_rowmajor_off(a, g, T0)
    for q in range(4):
        a(f'buffer_load_dwordx2 {V(xr+2*q,2)}, v{t2}, s[{sAUX}:{sAUX+3}], s{T0} offen offset:{q*16}'); vm.add('p')
    lane8_off(a, vSt, l, t0)
    frag_tile_off(a, T0, g, X1F, 32)
    for q in range(4):
        a(f'buffer_load_dwordx2 {V(x1r+2*q,2)}, v{vSt}, {ws}, s{T0} offen offset:{q*512} {LDF}'); vm.add('p')
    for i in range(WD): g.issue_w(i)
    g.nw = WD
    g.zero_acc(skip00=True)
    ac = g.acc[0][0]
    a(f's_waitcnt vmcnt({vm.wait_for("p")})')
    for j in range(8):
        a(f'v_lshlrev_b32 v{ac+2*j}, 16, v{xr+j}')
        a(f'v_and_b32 v{ac+2*j+1}, 0xffff0000, v{xr+j}')
        a(f'v_lshlrev_b32 v{t0}, 16, v{x1r+j}')
        a(f'v_and_b32 v{t1}, 0xffff0000, v{x1r+j}')
        a(f'v_add_f32 v{ac+2*j}, v{ac+2*j}, v{t0}')
        a(f'v_add_f32 v{ac+2*j+1}, v{ac+2*j+1}, v{t1}')
    dstamp(a, 'g4pre')
    wait_status(a, B_C3)
    dstamp(a, 'g4x')
    g.run(0, 22, xlimit=22)
    cstamp(a); dstamp(a, 'g4loop')
    wait_status(a, B_CA)
    dstamp(a, 'g5x')
    g.run(22, 30)
    dstamp(a, 'g5loop')
    ac = g.reduce()
    srd(a, sAUX, pOUT, 2048 * 1024)
    pk = g.acc[1][0]; vo = vSt
    a(f'v_and_b32 v{vo}, 31, v{l}')
    a(f'v_lshlrev_b32 v{vo}, 10, v{vo}')
    a(f'v_lshrrev_b32 v{t0}, 5, v{l}')
    a(f'v_lshl_add_u32 v{vo}, v{t0}, 4, v{vo}')
    x_rowmajor_off(a, g, T0)
    pack_swap(a, ac, pk)
    for pr in range(2):
        a(f'buffer_store_dwordx4 {V(pk+4*pr,4)}, v{vo}, s[{sAUX}:{sAUX+3}], s{T0} offen offset:{pr*32}')
    return va.hi

VT = 1056
ATT_BUF = 8192 + 8 * VT
NBUF = 4
def R(b, n): return V(b, n)

def att_head(a, sHead):
    a(f's_and_b32 s{T0}, s2, 7')
    a(f's_lshl_b32 s{sHead}, s{T0}, 2')
    a(f's_lshr_b32 s{T0}, s2, 3')
    a(f's_and_b32 s{T0}, s{T0}, 3')
    a(f's_add_u32 s{sHead}, s{sHead}, s{T0}')

def kv_loader(a):
    l = 1; vL16, vF, vV = 4, 6, 7
    sHead, sKoff, sVoff = sRB, sX0, sX1
    att_head(a, sHead)
    a(f'v_lshlrev_b32 v{vL16}, 4, v{l}')
    a(f's_lshl_b32 s{sKoff}, s{sHead}, 10')
    a(f's_add_u32 s{sVoff}, s{sKoff}, {hex(VF)}')
    a(f's_add_u32 s{sKoff}, s{sKoff}, {hex(KF)}')
    def lchunk(c):
        b = (c % NBUF) * ATT_BUF
        for j in range(8):
            a(f's_mov_b32 m0, {b + j*1024}')
            a(f's_add_u32 s{T0}, s{sKoff}, {(c*8+j)*32768}')
            a(f'buffer_load_dwordx4 v{vL16}, {ws}, s{T0} offen {LDF} lds')
            a(f's_mov_b32 m0, {b + 8192 + j*VT}')
            a(f's_add_u32 s{T0}, s{sVoff}, {(c*8+j)*32768}')
            a(f'buffer_load_dwordx4 v{vL16}, {ws}, s{T0} offen {LDF} lds')
    def publish(c):
        a(f'v_mov_b32 v{vV}, {c + 1}')
        a(f'ds_write_b32 v{vF}, v{vV} offset:{F_KRDY}')
    wait_min4(a, F_WDONE, 8, 8)
    wait_status(a, B_QKV)
    lchunk(0); lchunk(1)
    a('s_waitcnt vmcnt(16)'); publish(0)
    lchunk(2)
    a('s_waitcnt vmcnt(16)'); publish(1)
    lchunk(3)
    a('s_waitcnt vmcnt(16)'); publish(2)
    if TOUCH:
        a('s_waitcnt vmcnt(0)'); publish(3)
        a('s_setprio 1')
        l2_touch(a, pW4, 1376 * 1024, 12, 13)
        l2_touch(a, pWO, 512 * 1024, 12, 13)
        a('s_setprio 3')
    for c in range(4, 8):
        wait_min4(a, F_KDONE, c - 3, 8, sleep=8)
        lchunk(c)
        a('s_waitcnt vmcnt(16)'); publish(c - 1)
    a('s_waitcnt vmcnt(0)'); publish(7)
    a('s_waitcnt lgkmcnt(0)')
    a('s_endpgm')

def att_compute(a):
    va = RegAlloc(V0, 256); l = 1
    sHead, sTT, sKoff, sVoff, sC, sBn, sFb = sRB, sCB, sX0, sX1, sW0, sW1, sRow0
    sEx = 50
    att_head(a, sHead)
    a(f's_lshr_b32 s{sTT}, s2, 5')
    a(f's_lshl_b32 s{sTT}, s{sTT}, 3')
    a(f's_lshl_b32 s{T0}, s{sW}, 1')
    a(f's_add_u32 s{sTT}, s{sTT}, s{T0}')
    a(f's_mov_b32 s{sEx}, 0x0000ffff'); a(f's_mov_b32 s{sEx+1}, 0x0000ffff')
    vL16 = va(); vVo = va(); t0 = va(); t1 = va()
    vK = [va(), va()]; vV0 = [va(), va()]; vV1 = [va(), va()]
    vV0b = va(); vV1b = va(); vF = va(); vDn = va(); vR = va(); vP = va()
    SA, SB_, NA, NB, OA, OB = [va(16, 4) for _ in range(6)]
    P = va(8, 4); QA = va(4); QB = va(4)
    K = [va(4), va(4)]; Vv = [va(8, 4), va(8, 4)]
    a(f'v_lshlrev_b32 v{vL16}, 4, v{l}')
    a(f's_mov_b32 s{sBn}, {ATT_BUF}')
    a(f'v_and_b32 v{vVo}, 15, v{l}')
    a(f'v_lshlrev_b32 v{vVo}, 4, v{vVo}')
    a(f'v_lshrrev_b32 v{t0}, 5, v{l}')
    a(f'v_lshl_add_u32 v{vVo}, v{t0}, 8, v{vVo}')
    a(f'v_and_b32 v{t0}, 31, v{l}')
    a(f'v_cmp_eq_u32 vcc, 16, v{t0}')
    a(f'v_mov_b32 v{t1}, {8192+1040}')
    a(f'v_mov_b32 v{vV0b}, {8192+1024}')
    a(f'v_cndmask_b32 v{t1}, v{t1}, v{vV0b}, vcc')
    a(f'v_cmp_gt_u32 vcc, 16, v{t0}')
    a(f'v_add_u32 v{vV0b}, 8192, v{vVo}')
    a(f'v_add_u32 v{vV1b}, {8192+512}, v{vVo}')
    a(f'v_cndmask_b32 v{vV0b}, v{t1}, v{vV0b}, vcc')
    a(f'v_cndmask_b32 v{vV1b}, v{t1}, v{vV1b}, vcc')
    a(f'v_and_b32 v{t0}, 1, v{l}')
    a(f'v_cmp_eq_u32 vcc, 0, v{t0}')
    a(f'v_mov_b32 v{t1}, 0x3f803f80')
    a(f'v_lshlrev_b32 v{t0}, 4, v{t0}')
    for i in range(4): a(f'v_cndmask_b32 v{P+i}, 0, v{t1}, vcc')
    a(f'v_lshrrev_b32 v{t1}, 4, v{l}')
    a(f's_mov_b32 s{T0}, {ATT_BUF}')
    a(f'v_mul_lo_u32 v{t1}, v{t1}, s{T0}')
    a(f'v_add_u32 v{t0}, v{t0}, v{t1}')
    a(f'v_bfe_u32 v{t1}, v{l}, 1, 3')
    a(f's_mov_b32 s{T0}, {VT}')
    a(f'v_mul_lo_u32 v{t1}, v{t1}, s{T0}')
    a(f'v_add_u32 v{t0}, v{t0}, v{t1}')
    a(f'ds_write_b128 v{t0}, {R(P,4)} offset:{8192+1024}')
    for i in range(16):
        a(f'v_mov_b32 v{OA+i}, 0'); a(f'v_mov_b32 v{OB+i}, 0')
    for i in range(4):
        a(f'v_mov_b32 v{P+4+i}, 0'); a(f'v_mov_b32 v{Vv[1]+4+i}, 0')
    a(f'v_mov_b32 v{vK[0]}, v{vL16}'); a(f'v_mov_b32 v{vV0[0]}, v{vV0b}'); a(f'v_mov_b32 v{vV1[0]}, v{vV1b}')
    a(f'v_add_u32 v{vK[1]}, {ATT_BUF}, v{vL16}')
    a(f'v_add_u32 v{vV0[1]}, {ATT_BUF}, v{vV0b}')
    a(f'v_add_u32 v{vV1[1]}, {ATT_BUF}, v{vV1b}')
    a(f's_mov_b32 s{sFb}, 0')
    a(f'v_mov_b32 v{vF}, {FL}')
    a(f's_lshl_b32 s{T0}, s{sW}, 2')
    a(f's_add_u32 s{T0}, s{T0}, {FL + F_KDONE}')
    a(f'v_mov_b32 v{vDn}, s{T0}')
    a(f'v_mov_b32 v{vP}, 0')
    wait_status(a, B_QKV)
    dstamp(a, 'aflag')
    a(f's_lshl_b32 s{T0}, s{sTT}, 5')
    a(f's_add_u32 s{T0}, s{T0}, s{sHead}')
    a(f's_lshl_b32 s{T0}, s{T0}, 10')
    a(f'buffer_load_dwordx4 {R(QA,4)}, v{vL16}, {ws}, s{T0} offen {LDF}')
    a(f's_add_u32 s{T0}, s{T0}, 32768')
    a(f'buffer_load_dwordx4 {R(QB,4)}, v{vL16}, {ws}, s{T0} offen {LDF}')
    def spin_ready(val):
        lp = a.newlabel('at_sp'); ld = a.newlabel('at_ok')
        a.label(lp)
        a(f'ds_read_b32 v{vR}, v{vF} offset:{F_KRDY}')
        a('s_waitcnt lgkmcnt(0)')
        a(f'v_readfirstlane_b32 s{T0}, v{vR}')
        a(f's_cmp_gt_u32 s{T0}, {val}')
        a(f's_cbranch_scc1 {ld}')
        a('s_sleep 1')
        spin_guard(a)
        a(f's_branch {lp}')
        a.label(ld)
    spin_ready('0')
    a('s_waitcnt vmcnt(0)')
    cstamp(a); dstamp(a, 'astart')
    a(f'ds_read_b128 {R(K[0],4)}, v{vK[0]}')
    a(f'ds_read_b128 {R(K[1],4)}, v{vK[0]} offset:1024')
    a(f'ds_read_b128 {R(Vv[0],4)}, v{vV0[0]}')
    a(f'ds_read_b128 {R(Vv[0]+4,4)}, v{vV1[0]}')
    a('s_waitcnt lgkmcnt(3)')
    a(f'{MF} {R(SA,16)}, {R(K[0],4)}, {R(QA,4)}, 0')
    a(f'{MF} {R(SB_,16)}, {R(K[0],4)}, {R(QB,4)}, 0')
    a('s_nop 10')
    def rowmax_to_neg(S_, N_):
        a(f'v_max3_f32 v{t0}, v{S_}, v{S_+1}, v{S_+2}')
        for i in range(3, 15, 2): a(f'v_max3_f32 v{t0}, v{t0}, v{S_+i}, v{S_+i+1}')
        a(f'v_max_f32 v{t0}, v{t0}, v{S_+15}')
        a(f'v_mov_b32 v{t1}, v{t0}')
        a('s_nop 1')
        a(f'v_permlane32_swap_b32 v{t0}, v{t1}')
        a('s_nop 1')
        a(f'v_max_f32 v{t0}, v{t0}, v{t1}')
        for i in range(16): a(f'v_sub_f32 v{N_+i}, 0, v{t0}')
    rowmax_to_neg(SA, NA)
    rowmax_to_neg(SB_, NB)
    a('s_nop 1')
    a(f'{MF} {R(SA,16)}, {R(K[0],4)}, {R(QA,4)}, {R(NA,16)}')
    a(f's_mov_b32 s{sC}, 0')
    a('s_waitcnt lgkmcnt(0)')
    a('s_nop 8')
    a('s_setprio 0')
    a.label('att_loop')
    for t in range(8):
        Kc, Kn = K[t % 2], K[(t + 1) % 2]
        Vc, Vn = Vv[t % 2], Vv[(t + 1) % 2]
        for sub in range(2):
            cur = [SA, SB_][sub]
            if sub == 0:
                qk = f'{MF} {R(SB_,16)}, {R(Kc,4)}, {R(QB,4)}, {R(NB,16)}'
                pv1 = f'{MF} {R(OB,16)}, {R(Vn+4,4)}, {R(P+4,4)}, {R(OB,16)}'
            else:
                qk = f'{MF} {R(SA,16)}, {R(Kn,4)}, {R(QA,4)}, {R(NA,16)}'
                pv1 = f'{MF} {R(OA,16)}, {R(Vc+4,4)}, {R(P+4,4)}, {R(OA,16)}'
            Oc = [OA, OB][sub]
            pv0 = f'{MF} {R(Oc,16)}, {R(Vc,4)}, {R(P,4)}, {R(Oc,16)}'
            ex = [f'v_exp_f32 v{cur+i}, v{cur+i}' for i in range(16)]
            cv = [f'v_cvt_pk_bf16_f32 v{P+i}, v{cur+2*i}, v{cur+2*i+1}' for i in range(8)]
            a(qk)
            for s in ex[0:6]: a(s)
            a(pv1)
            if sub == 0:
                a('s_waitcnt lgkmcnt(0)')
                if t == 6:
                    l1 = a.newlabel('att_rdy')
                    a(f'v_readfirstlane_b32 s{T0}, v{vR}')
                    a(f's_min_u32 s{T1}, s{sC}, 6')
                    a(f's_add_u32 s{T1}, s{T1}, 1')
                    a(f's_cmp_gt_u32 s{T0}, s{T1}')
                    a(f's_cbranch_scc1 {l1}')
                    spin_ready(f's{T1}')
                    a.label(l1)
                if t == 7:
                    a(f'v_add_u32 v{vP}, 1, v{vP}')
                    a(f'ds_write_b32 v{vDn}, v{vP}')
                if t == 5:
                    a(f'ds_read_b32 v{vR}, v{vF} offset:{F_KRDY}')
                kb = vK[0] if t + 2 < 8 else vK[1]
                b_ = 0 if t + 1 < 8 else 1
                a(f'ds_read_b128 {R(Kc,4)}, v{kb} offset:{((t+2)%8)*1024}')
                a(f'ds_read_b128 {R(Vn,4)}, v{vV0[b_]} offset:{((t+1)%8)*VT}')
                a(f'ds_read_b128 {R(Vn+4,4)}, v{vV1[b_]} offset:{((t+1)%8)*VT}')
            for s in ex[6:8] + cv[0:4] + ex[8:10]: a(s)
            a(pv0)
            for s in ex[10:16] + cv[4:8]: a(s)
    a(f'v_mov_b32 v{vK[0]}, v{vK[1]}'); a(f'v_mov_b32 v{vV0[0]}, v{vV0[1]}'); a(f'v_mov_b32 v{vV1[0]}, v{vV1[1]}')
    a(f's_add_u32 s{sBn}, s{sBn}, {ATT_BUF}')
    a(f's_cmp_eq_u32 s{sBn}, {NBUF*ATT_BUF}')
    a(f's_cselect_b32 s{sBn}, 0, s{sBn}')
    a(f'v_add_u32 v{vK[1]}, s{sBn}, v{vL16}')
    a(f'v_add_u32 v{vV0[1]}, s{sBn}, v{vV0b}')
    a(f'v_add_u32 v{vV1[1]}, s{sBn}, v{vV1b}')
    a(f's_add_u32 s{sC}, s{sC}, 1')
    a(f's_cmp_lt_u32 s{sC}, 8')
    a('s_cbranch_scc1 att_loop')
    a(f'{MF} {R(OB,16)}, {R(Vv[1]+4,4)}, {R(P+4,4)}, {R(OB,16)}')
    a('s_setprio 3')
    cstamp(a)
    a('s_waitcnt lgkmcnt(0)')
    a.label('att_fin')
    a('s_nop 12')
    LA, LB = SA, SA + 2
    for L_, O_ in ((LA, OA), (LB, OB)):
        a(f'v_mov_b32 v{L_}, v{O_+8}'); a(f'v_mov_b32 v{L_+1}, v{O_+8}')
    a('s_nop 1')
    a(f'v_permlane32_swap_b32 v{LA}, v{LA+1}')
    a(f'v_permlane32_swap_b32 v{LB}, v{LB+1}')
    lok = a.newlabel('att_ok')
    a(f's_cmp_lg_u32 s{sFb}, 0')
    a(f's_cbranch_scc1 {lok}')
    a(f's_mov_b32 s{T0}, {hex(f32bits(2.0**-60))}')
    a(f's_mov_b32 s{T1}, {hex(f32bits(2.0**60))}')
    a(f'v_cmp_nle_f32 vcc, s{T0}, v{LA}')
    a(f'v_cmp_nge_f32 s[54:55], s{T1}, v{LA}')
    a('s_or_b64 s[52:53], vcc, s[54:55]')
    a(f'v_cmp_nle_f32 vcc, s{T0}, v{LB}')
    a(f'v_cmp_nge_f32 s[54:55], s{T1}, v{LB}')
    a('s_or_b64 vcc, vcc, s[54:55]')
    a('s_or_b64 vcc, vcc, s[52:53]')
    a('s_cbranch_scc1 att_fallback')
    a.label(lok)
    a(f'v_rcp_f32 v{LA}, v{LA}')
    a(f'v_rcp_f32 v{LB}, v{LB}')
    a(f's_lshl_b32 s{T0}, s{sTT}, 5')
    a(f's_add_u32 s{T0}, s{T0}, s{sHead}')
    a(f's_lshl_b32 s{T0}, s{T0}, 10')
    a(f's_add_u32 s{T0}, s{T0}, {hex(OF)}')
    for n, (L_, O_) in enumerate(((LA, OA), (LB, OB))):
        for i in range(8): a(f'v_mul_f32 v{O_+i}, v{O_+i}, v{L_}')
        for i in range(4): a(f'v_cvt_pk_bf16_f32 v{P+4*n+i}, v{O_+2*i}, v{O_+2*i+1}')
        if n: a(f's_add_u32 s{T0}, s{T0}, 32768')
        a('s_nop 1')
        b = P + 4 * n
        a(f'v_permlane32_swap_b32 v{b}, v{b+2}')
        a(f'v_permlane32_swap_b32 v{b+1}, v{b+3}')
        a('s_nop 1')
        a(f'buffer_store_dwordx4 {R(b,4)}, v{vL16}, {ws}, s{T0} offen sc1')
    a(f's_lshr_b32 s{T0}, s{sTT}, 1')
    a(f's_lshl_b32 s{T0}, s{T0}, 7')
    a(f's_add_u32 s{T0}, s{T0}, {hex(CA)}')
    a(f'v_mov_b32 v{t0}, 0'); a(f'v_mov_b32 v{t1}, 1')
    a('s_waitcnt vmcnt(0)')
    a('s_mov_b64 exec, 1')
    a(f'buffer_atomic_add v{t1}, v{t0}, {ws}, s{T0} offen sc1')
    a('s_mov_b64 exec, -1')
    stamp_flush(a, 5, 1)
    a('s_endpgm')
    a.label('att_fallback')
    a(f's_mov_b32 s{sFb}, 1')
    a(f's_lshl_b32 s{sKoff}, s{sHead}, 10')
    a(f's_add_u32 s{sVoff}, s{sKoff}, {hex(VF)}')
    a(f's_add_u32 s{sKoff}, s{sKoff}, {hex(KF)}')
    for i in range(16):
        a(f'v_mov_b32 v{NA+i}, 0xff800000'); a(f'v_mov_b32 v{NB+i}, 0xff800000')
    a(f's_mov_b32 s{sC}, 0')
    a(f's_mov_b32 s{T0}, s{sKoff}')
    a.label('att_fb1')
    a(f'buffer_load_dwordx4 {R(K[0],4)}, v{vL16}, {ws}, s{T0} offen {LDF}')
    a('s_waitcnt vmcnt(0)')
    a(f'{MF} {R(SA,16)}, {R(K[0],4)}, {R(QA,4)}, 0')
    a(f'{MF} {R(SB_,16)}, {R(K[0],4)}, {R(QB,4)}, 0')
    a('s_nop 12')
    for i in range(16): a(f'v_max_f32 v{NA+i}, v{NA+i}, v{SA+i}')
    for i in range(16): a(f'v_max_f32 v{NB+i}, v{NB+i}, v{SB_+i}')
    a(f's_add_u32 s{T0}, s{T0}, 32768')
    a(f's_add_u32 s{sC}, s{sC}, 1')
    a(f's_cmp_lt_u32 s{sC}, 64')
    a('s_cbranch_scc1 att_fb1')
    for i in range(16):
        a(f'v_mov_b32 v{SA+i}, v{NA+i}'); a(f'v_mov_b32 v{SB_+i}, v{NB+i}')
    rowmax_to_neg(SA, NA)
    rowmax_to_neg(SB_, NB)
    for i in range(16):
        a(f'v_mov_b32 v{OA+i}, 0'); a(f'v_mov_b32 v{OB+i}, 0')
    a(f'v_and_b32 v{t0}, 31, v{l}')
    a(f'v_cmp_eq_u32 vcc, 16, v{t0}')
    a(f'v_mov_b32 v{t1}, 0x3f803f80')
    a('s_nop 0')
    for i in range(8): a(f'v_cndmask_b32 v{Vv[0]+i}, 0, v{t1}, vcc')
    a(f's_mov_b32 s{sC}, 0')
    a.label('att_fb2')
    a(f'buffer_load_dwordx4 {R(K[0],4)}, v{vL16}, {ws}, s{sKoff} offen {LDF}')
    a(f's_mov_b64 exec, s[{sEx}:{sEx+1}]')
    a(f'buffer_load_dwordx4 {R(Vv[0],4)}, v{vVo}, {ws}, s{sVoff} offen {LDF}')
    a(f'buffer_load_dwordx4 {R(Vv[0]+4,4)}, v{vVo}, {ws}, s{sVoff} offen offset:512 {LDF}')
    a('s_mov_b64 exec, -1')
    a('s_waitcnt vmcnt(0)')
    a(f'{MF} {R(SA,16)}, {R(K[0],4)}, {R(QA,4)}, {R(NA,16)}')
    a(f'{MF} {R(SB_,16)}, {R(K[0],4)}, {R(QB,4)}, {R(NB,16)}')
    a('s_nop 12')
    for S_, O_ in ((SA, OA), (SB_, OB)):
        for i in range(16): a(f'v_exp_f32 v{S_+i}, v{S_+i}')
        a('s_nop 0')
        for i in range(8): a(f'v_cvt_pk_bf16_f32 v{P+i}, v{S_+2*i}, v{S_+2*i+1}')
        a('s_nop 1')
        a(f'{MF} {R(O_,16)}, {R(Vv[0],4)}, {R(P,4)}, {R(O_,16)}')
        a(f'{MF} {R(O_,16)}, {R(Vv[0]+4,4)}, {R(P+4,4)}, {R(O_,16)}')
    a(f's_add_u32 s{sKoff}, s{sKoff}, 32768')
    a(f's_add_u32 s{sVoff}, s{sVoff}, 32768')
    a(f's_add_u32 s{sC}, s{sC}, 1')
    a(f's_cmp_lt_u32 s{sC}, 64')
    a('s_nop 7'); a('s_nop 7')
    a('s_cbranch_scc1 att_fb2')
    a('s_branch att_fin')
    return va.hi

def full_kernel(a):
    name = NAME + '_kernel'
    kernel_header(a, name)
    a('s_cmp_ge_u32 s2, 256')
    a('s_cbranch_scc1 k_end')
    stamp(a, 0)
    if os.environ.get('DBGT'):
        a('s_memtime s[64:65]'); a('s_memrealtime s[66:67]')
    a('s_mov_b32 s92, 0')
    a('s_load_dwordx4 s[24:27], s[0:1], 0')
    a('s_load_dwordx2 s[28:29], s[0:1], 16')
    a('s_load_dwordx2 s[30:31], s[0:1], 32')
    a('s_load_dwordx2 s[32:33], s[0:1], 40')
    a('s_load_dwordx8 s[84:91], s[0:1], 48')
    a('s_load_dwordx2 s[34:35], s[0:1], 80')
    SB.on = True; SB.base = FL + 64; SB.n = 0; SB.vA = vSA; SB.vB = vSB; SB.sT = T3; SB.maxn = 48
    a('v_cmp_gt_u32 vcc, 64, v0')
    a('s_and_saveexec_b64 s[36:37], vcc')
    lz = a.newlabel('Lz')
    a(f's_cbranch_execz {lz}')
    a('v_lshlrev_b32 v1, 2, v0')
    a(f'v_add_u32 v1, {FL}, v1')
    a('v_mov_b32 v2, 0')
    a('ds_write_b32 v1, v2')
    a.label(lz)
    a('s_mov_b64 exec, -1')
    sWv = 58
    wave_lane(a, sWv, 1)
    a('s_waitcnt lgkmcnt(0)')
    srd(a, sWS, pWS, WS_BYTES)
    a('s_barrier')
    a('s_setprio 3')
    a(f's_cmp_eq_u32 s{sWv}, 9')
    a('s_cbranch_scc1 k_sentinel')
    a(f's_cmp_eq_u32 s{sWv}, 4')
    a('s_cbranch_scc1 k_loader')
    sK = 59
    a(f's_sub_u32 s{sK}, s{sWv}, 1')
    a(f's_cmp_lt_u32 s{sWv}, 4')
    a(f's_cselect_b32 s{sK}, s{sWv}, s{sK}')
    hi = ln_stage(a, sK)
    a(f's_and_b32 s{sW}, s{sK}, 3')
    a(f's_cmp_ge_u32 s{sK}, 4')
    a('s_cbranch_scc1 k_chain')
    CS.n = 4 if LNST else 1
    hi = max(hi, qkv_compute(a))
    hi = max(hi, att_compute(a))
    a.label('k_chain')
    a(f's_setprio {PRIO}')
    a('v_subrev_u32 v0, 320, v0')
    CS.n = 4 if LNST else 1
    hi = max(hi, w1_stage(a))
    hi = max(hi, g2_stage(a))
    cstamp(a)
    hi = max(hi, g3_stage(a, 'k_g4'))
    a.label('k_g4')
    cstamp(a)
    hi = max(hi, g45_stage(a))
    stamp_flush(a, 5, 2)
    if os.environ.get('DBGT'):
        lq = a.newlabel('Ldbg')
        a('s_cmp_lg_u32 s2, 8')
        a(f's_cbranch_scc1 {lq}')
        a('s_waitcnt vmcnt(0)')
        a('s_memtime s[68:69]'); a('s_memrealtime s[70:71]')
        a('s_waitcnt lgkmcnt(0)')
        a('s_sub_u32 s68, s68, s64'); a('s_sub_u32 s70, s70, s66')
        srd(a, sDBG, pDBG, 256)
        a('v_mov_b32 v4, s68'); a('v_mov_b32 v5, s70'); a('v_mov_b32 v6, 4')
        a('s_mov_b64 exec, 1')
        a(f'buffer_store_dwordx2 v[4:5], v6, s[{sDBG}:{sDBG+3}], 0 offen')
        a.label(lq)
    a('s_endpgm')
    a.label('k_loader')
    a(f's_setprio {int(os.environ.get("LPRIO", "1"))}')
    qkv_loader(a)
    a('s_setprio 3')
    kv_loader(a)
    a.label('k_sentinel')
    sentinel(a)
    a.label('k_end')
    a('s_endpgm')
    SB.on = False
    return name, hi, LDS_TOTAL

if __name__ == '__main__':
    build([(full_kernel, 256, 640)], sys.argv[1])
```

```python
import sys, math, os
from asmlib import *

NAME = 'parallel_sum__softmax_full_mha__mixer_s_mlp__prompt'

QF  = 0x000000
KF  = 0x200000
VF  = 0x400000
HF  = 0x600000
X1F = 0x800000
OF  = 0xA00000
H3F = 0xC00000
YF  = 0x1200000
ST  = 0x1600000
PS  = 0x1610000
CS1 = 0x1650000
CS3 = 0x1660000
FLG = 0x1680000
WS_BYTES = 0x1800000
OOB = 0x7F000000

LOG2E = 1.4426950408889634
QSCALE = 0.25 * LOG2E
EPS = 1e-5
GC1 = -2.0 * 0.7978845608028654 * LOG2E
GC2 = GC1 * 0.044715

sXSRD, sWSRD, sWS, sAUX, sDBG = 4, 8, 12, 16, 20

class Opt:
    stamps = os.environ.get('STAMPS', '0') == '1'
STAMP_OFF = 0x1700000

def srd(a, d, base, nbytes):
    a(f's_mov_b32 s{d}, s{base}')
    a(f's_and_b32 s{d+1}, s{base+1}, 0xffff')
    a(f's_mov_b32 s{d+2}, {hex(nbytes)}')
    a(f's_mov_b32 s{d+3}, 0x20000')

def bf16_round(a, v):
    a(f'v_cvt_pk_bf16_f32 v{v}, v{v}, v{v}')
    a(f'v_lshlrev_b32 v{v}, 16, v{v}')

def stamp(a, idx):
    if not Opt.stamps: return
    a(f's_memtime s[{64+4*idx}:{65+4*idx}]')
    a(f's_memrealtime s[{66+4*idx}:{67+4*idx}]')
def stamp_flush(a, n, slot):
    if not Opt.stamps: return
    a('s_waitcnt lgkmcnt(0) vmcnt(0)')
    stamp(a, n)
    a('s_waitcnt lgkmcnt(0)')
    a('s_mov_b64 exec, -1')
    a('v_cmp_eq_u32 vcc, 0, v0')
    a('s_and_saveexec_b64 s[62:63], vcc')
    lab = a.newlabel('Lstamp')
    a(f's_cbranch_execz {lab}')
    a(f's_lshl_b32 s61, s2, 6')
    a(f's_add_u32 s61, s61, {hex(STAMP_OFF + slot * 0x10000)}')
    a('v_mov_b32 v2, 0')
    for i in range(n + 1):
        a(f'v_mov_b32 v4, s{64+4*i}')
        a(f'v_mov_b32 v5, s{66+4*i}')
        a(f'buffer_store_dwordx2 v[4:5], v2, s[{sWS}:{sWS+3}], s61 offen offset:{8*i}')
        a('s_nop 1')
    a.label(lab)

class G:
    pass

def spin_guard(a):
    a('s_add_u32 s92, s92, 1')
    a('s_cmp_gt_u32 s92, 0x400000')
    a('s_cbranch_scc1 k_end')

class SB:
    on = False; base = 0; n = 0; nw = 4; vA = None; vB = None; sT = None; maxn = 0
def BAR(a):
    if not SB.on:
        a('s_barrier'); return
    off = SB.n * 4; SB.n += 1
    assert SB.n <= SB.maxn
    lp = a.newlabel('Lsb'); ld = a.newlabel('Lsbd')
    a(f'v_mov_b32 v{SB.vA}, {SB.base}')
    a(f'v_mov_b32 v{SB.vB}, 1')
    a('s_waitcnt lgkmcnt(0)')
    a('s_mov_b64 exec, 1')
    a(f'ds_add_u32 v{SB.vA}, v{SB.vB} offset:{off}')
    a.label(lp)
    a(f'ds_read_b32 v{SB.vB}, v{SB.vA} offset:{off}')
    a('s_waitcnt lgkmcnt(0)')
    a(f'v_readfirstlane_b32 s{SB.sT}, v{SB.vB}')
    a(f's_cmp_ge_u32 s{SB.sT}, {SB.nw}')
    a(f's_cbranch_scc1 {ld}')
    a('s_sleep 1')
    spin_guard(a)
    a(f's_branch {lp}')
    a.label(ld)
    a('s_mov_b64 exec, -1')

def wave_lane(a, sW, vLane):
    a(f'v_lshrrev_b32 v{vLane}, 6, v0')
    a('s_nop 0')
    a(f'v_readfirstlane_b32 s{sW}, v{vLane}')
    a(f'v_and_b32 v{vLane}, 63, v0')

def gemm_setup(a, va, p):
    TT, FT, WR, WC, NST = p.TT, p.FT, p.WR, p.WC, p.NST
    NW = WR * WC
    G2 = NW // 4
    TW, FW = TT // WR, FT // WC
    p.TW, p.FW, p.NW, p.G2 = TW, FW, NW, G2
    XS, WSZ = TT * 4096, FT * 4096
    XW = getattr(p, 'lds_base', 0) + NST * XS
    p.XS, p.WSZ, p.XW = XS, WSZ, XW
    p.lds_bytes = getattr(p, 'lds_base', 0) + NST * (XS + WSZ)
    sT0, sT1, sM0x, sM0w, sWr, sWc, sS, sGr = [p.stmp + i for i in range(8)]
    p.sT0, p.sT1, p.sM0x, p.sM0w, p.sWr, p.sWc, p.sS, p.sGr = sT0, sT1, sM0x, sM0w, sWr, sWc, sS, sGr
    l = p.vLane
    t0 = va(); t1 = va(); t2 = va()
    p.t = (t0, t1, t2)
    lg = int(math.log2(WC))
    a(f's_lshr_b32 s{sWr}, s{p.sW}, {lg}')
    a(f's_and_b32 s{sWc}, s{p.sW}, {WC-1}')
    a(f's_and_b32 s{sS}, s{p.sW}, 3')
    a(f's_lshr_b32 s{sGr}, s{p.sW}, 2')
    assert TT % G2 == 0
    p.TD = TT // G2
    p.FD = (FT + G2 - 1) // G2
    assert FT % G2 == 0
    a(f's_lshl_b32 s{sM0x}, s{sS}, 10')
    a(f's_add_u32 s{sM0w}, s{sM0x}, {XW}')
    if getattr(p, 'lds_base', 0): a(f's_add_u32 s{sM0x}, s{sM0x}, {p.lds_base}')
    if G2 > 1:
        a(f's_mul_i32 s{sT0}, s{sGr}, {p.TD * 4096}')
        a(f's_add_u32 s{sM0x}, s{sM0x}, s{sT0}')
        a(f's_mul_i32 s{sT0}, s{sGr}, {p.FD * 4096}')
        a(f's_add_u32 s{sM0w}, s{sM0w}, s{sT0}')
    vW = va(); p.vW = vW
    a(f'v_lshrrev_b32 v{t0}, 2, v{l}')
    a(f's_mov_b32 s{sT0}, {p.rowbytes}')
    a(f'v_mul_lo_u32 v{vW}, v{t0}, s{sT0}')
    a(f'v_and_b32 v{t0}, 3, v{l}')
    a(f'v_lshl_add_u32 v{vW}, v{t0}, 4, v{vW}')
    vL16 = va(); p.vL16 = vL16
    a(f'v_lshlrev_b32 v{vL16}, 4, v{l}')
    if p.xmode == 'row':
        vX = va(); p.vX = vX
        a(f's_and_b32 s{sT0}, s{p.sW}, 1')
        a(f's_lshl_b32 s{sT0}, s{sT0}, 2')
        a(f'v_lshrrev_b32 v{t0}, 4, v{l}')
        a(f'v_add_u32 v{t0}, s{sT0}, v{t0}')
        a(f'v_and_b32 v{t1}, 7, v{l}')
        a(f'v_xor_b32 v{t0}, v{t0}, v{t1}')
        a(f'v_lshrrev_b32 v{t1}, 3, v{l}')
        a(f'v_lshlrev_b32 v{t1}, 10, v{t1}')
        a(f'v_lshl_add_u32 v{vX}, v{t0}, 4, v{t1}')
    elif p.xmode == 'shift':
        assert G2 == 1 and p.xtile == 32768
        vSh = [[va() for g in range(4)] for T in range(TT)]
        p.vSh = vSh
        shifts = [-1, 1, -2, 2]
        a(f'v_and_b32 v{t0}, 31, v{l}')
        a(f'v_add_u32 v{t0}, s{p.sRow0}, v{t0}')
        a(f'v_lshrrev_b32 v{t1}, 5, v{l}')
        a(f'v_lshlrev_b32 v{t1}, 9, v{t1}')
        a(f's_mov_b32 s{sT0}, 2048')
        a(f's_mov_b32 s{sT1}, {hex(OOB)}')
        for T in range(TT):
            for g in range(4):
                r = vSh[T][g]
                d = 32 * T + shifts[g]
                a(f'v_add_u32 v{t2}, {d}, v{t0}')
                a(f'v_cmp_gt_u32 vcc, s{sT0}, v{t2}')
                a(f'v_lshrrev_b32 v{r}, 5, v{t2}')
                a(f'v_lshlrev_b32 v{r}, 15, v{r}')
                a(f'v_and_b32 v{t2}, 31, v{t2}')
                a(f'v_lshl_add_u32 v{r}, v{t2}, 4, v{r}')
                a(f'v_add_u32 v{r}, v{r}, v{t1}')
                a(f'v_mov_b32 v{t2}, s{sT1}')
                a(f'v_cndmask_b32 v{r}, v{t2}, v{r}, vcc')
    base = getattr(p, 'lds_base', 0)
    if p.xmode == 'row':
        vXr = [va() for s in range(4)]; p.vXr = vXr
        a(f'v_and_b32 v{t0}, 31, v{l}')
        a(f'v_lshrrev_b32 v{t1}, 1, v{t0}')
        a(f'v_and_b32 v{t1}, 7, v{t1}')
        a(f'v_lshrrev_b32 v{t2}, 5, v{l}')
        a(f'v_xor_b32 v{t1}, v{t1}, v{t2}')
        a(f'v_lshlrev_b32 v{t0}, 7, v{t0}')
        a(f's_mul_i32 s{sT0}, s{sWr}, {TW * 4096}')
        if base: a(f's_add_u32 s{sT0}, s{sT0}, {base}')
        a(f'v_add_u32 v{t0}, s{sT0}, v{t0}')
        for s in range(4):
            a(f'v_xor_b32 v{t2}, {2*s}, v{t1}')
            a(f'v_lshl_add_u32 v{vXr[s]}, v{t2}, 4, v{t0}')
    else:
        vXb = va(); p.vXb = vXb
        a(f's_mul_i32 s{sT0}, s{sWr}, {TW * 4096}')
        if base: a(f's_add_u32 s{sT0}, s{sT0}, {base}')
        a(f'v_add_u32 v{vXb}, s{sT0}, v{vL16}')
    vWb = va(); p.vWb = vWb
    a(f'v_lshrrev_b32 v{t0}, 5, v{l}')
    a(f'v_lshlrev_b32 v{t0}, 9, v{t0}')
    a(f'v_bfe_u32 v{t1}, v{l}, 2, 2')
    a(f'v_lshl_add_u32 v{t0}, v{t1}, 6, v{t0}')
    a(f'v_bfe_u32 v{t1}, v{l}, 4, 1')
    a(f'v_lshl_add_u32 v{t0}, v{t1}, 5, v{t0}')
    a(f'v_and_b32 v{t1}, 3, v{l}')
    a(f'v_lshl_add_u32 v{t0}, v{t1}, 3, v{t0}')
    a(f's_mul_i32 s{sT0}, s{sWc}, {FW * 4096}')
    a(f's_add_u32 s{sT0}, s{sT0}, {XW}')
    a(f'v_add_u32 v{vWb}, s{sT0}, v{t0}')

def gemm_main(a, va, p):
    TT, FT, WR, WC, KS, NST = p.TT, p.FT, p.WR, p.WC, p.KS, p.NST
    TW, FW, XS, WSZ = p.TW, p.FW, p.XS, p.WSZ
    NCH = (KS + 3) // 4
    sT0, sT1 = p.sT0, p.sT1
    vm = []
    p.vm = vm
    rot = getattr(p, 'sRot', None) is not None

    def dma_ops(c):
        st = c % NST
        ops = []
        for T in range(p.TD):
            def f(T=T):
                a(f's_add_u32 m0, s{p.sM0x}, {st * XS + T * 4096}')
                if p.xmode == 'row' and rot:
                    if T == 0:
                        a(f's_add_u32 s{p.sRotC}, s{p.sRot}, {c}')
                        a(f's_and_b32 s{p.sRotC}, s{p.sRotC}, {NCH-1}')
                        a(f's_lshl_b32 s{p.sRotX}, s{p.sRotC}, 7')
                        a(f's_add_u32 s{p.sRotX}, s{p.sRotX}, s{p.sXoff}')
                        a(f's_mul_i32 s{p.sRotW}, s{p.sRotC}, {64 * p.rowbytes}')
                        a(f's_add_u32 s{p.sRotW}, s{p.sRotW}, s{p.sWoff}')
                    a(f's_add_u32 s{sT0}, s{p.sRotX}, {T * 32768}'); vo = p.vX
                elif p.xmode == 'row':
                    a(f's_add_u32 s{sT0}, s{p.sXoff}, {T * 32768 + c * 128}'); vo = p.vX
                elif p.xmode == 'shift':
                    a(f's_add_u32 s{sT0}, s{p.sXoff}, {c * 4096}'); vo = p.vSh[T][c // 2]
                else:
                    a(f's_add_u32 s{sT0}, s{p.sXoff}, {T * p.xtile + c * 4096}'); vo = p.vL16
                a(f'buffer_load_dwordx4 v{vo}, s[{p.xsrd}:{p.xsrd+3}], s{sT0} offen {p.ldflags} lds')
                vm.append(c)
            ops.append(f)
        for F in range(p.FD):
            def f(F=F):
                a(f's_add_u32 m0, s{p.sM0w}, {st * WSZ + F * 4096}')
                if rot: a(f's_add_u32 s{sT1}, s{p.sRotW}, {F * 64}')
                else: a(f's_add_u32 s{sT1}, s{p.sWoff}, {c * 64 * p.rowbytes + F * 64}')
                a(f'buffer_load_dwordx4 v{p.vW}, s[{sWSRD}:{sWSRD+3}], s{sT1} offen lds')
                vm.append(c)
            ops.append(f)
        return ops

    acc = [[va(16, 4) for F in range(FW)] for T in range(TW)]
    xf = [[va(4) for T in range(TW)] for b in range(2)]
    wf = [[va(4) for F in range(FW)] for b in range(2)]
    p.acc = acc; p.xf = xf; p.wf = wf
    xstats = getattr(p, 'xstats', False); wsum_on = getattr(p, 'wsum', False)
    if xstats:
        xs = [[va(), va()] for T in range(TW)]; p.xs = xs
    if wsum_on:
        wsum = [va() for F in range(FW)]; p.wsumr = wsum
    ninit = min(getattr(p, 'init_chunks', NST), NCH)
    for c in range(ninit):
        for f in dma_ops(c): f()
    nxt = ninit
    pending = []
    if getattr(p, 'acc_init', None):
        p.acc_init(acc)
    else:
        for T in range(TW):
            for F in range(FW):
                for i in range(16):
                    a(f'v_mov_b32 v{acc[T][F]+i}, 0')
    if xstats:
        for T in range(TW):
            a(f'v_mov_b32 v{xs[T][0]}, 0'); a(f'v_mov_b32 v{xs[T][1]}, 0')
    if wsum_on:
        for F in range(FW):
            a(f'v_mov_b32 v{wsum[F]}, 0')
    sOnes = p.stmp + 8
    if xstats or wsum_on:
        a(f's_mov_b32 s{sOnes}, 0x3f803f80')
    if getattr(p, 'after_issue', None): p.after_issue()

    def read_ops(i):
        c, s = i // 4, i % 4
        st = c % NST; b = i % 2
        def rx(T):
            if p.xmode == 'row':
                return f'ds_read_b128 {V(xf[b][T],4)}, v{p.vXr[s]} offset:{st * XS + T * 4096}'
            return f'ds_read_b128 {V(xf[b][T],4)}, v{p.vXb} offset:{st * XS + T * 4096 + s * 1024}'
        ops = [(rx(0), ('x', i, 0))]
        for F in range(FW):
            o = st * WSZ + F * 4096 + s * 1024
            ops.append((f'ds_read_b64_tr_b16 {V(wf[b][F],2)}, v{p.vWb} offset:{o}', ('w', i, F)))
            ops.append((f'ds_read_b64_tr_b16 {V(wf[b][F]+2,2)}, v{p.vWb} offset:{o+256}', ('w', i, F)))
        for T in range(1, TW):
            ops.append((rx(T), ('x', i, T)))
        return ops
    lg = []
    def emit_read(op):
        a(op[0]); lg.append(op[1])
    def wait_lds(tags):
        idx = [k for k, t in enumerate(lg) if t in tags]
        if not idx: return
        n = len(lg) - 1 - max(idx)
        a(f's_waitcnt lgkmcnt({n})')
        del lg[:max(idx) + 1]

    INIT = getattr(p, 'init_chunks', NST)
    def sync(c):
        nonlocal nxt, pending
        for f in pending: f()
        pending = []
        last = max(i for i, v in enumerate(vm) if v == c)
        n = len(vm) - 1 - last
        assert n <= 63
        a(f's_waitcnt vmcnt({n}) lgkmcnt(0)')
        lg.clear()
        BAR(a)
        while nxt < NCH and nxt <= c + NST - 1 and len(pending) < (2 if c == 0 else 1) * (p.TD + p.FD):
            pending += dma_ops(nxt); nxt += 1
        if getattr(p, 'after_sync', None):
            p.after_sync(c); lg.append('other')

    def compute(i, rops):
        nonlocal pending
        b = i % 2
        nm = TW * FW
        per_r = (len(rops) + nm - 1) // nm
        ndma = (len(pending) + (3 - i % 4)) // (4 - i % 4) if pending else 0
        if (i + 1) % 4 == 0: ndma = (len(pending) + 3) // 4
        k = 0
        for T in range(TW):
            for F in range(FW):
                wait_lds({('x', i, T), ('w', i, F)})
                ori = p.orient if len(p.orient) == 1 else p.orient[F].upper()
                A_, B_ = (wf[b][F], xf[b][T]) if ori == 'T' else (xf[b][T], wf[b][F])
                a(f'v_mfma_f32_32x32x16_bf16 {V(acc[T][F],16)}, {V(A_,4)}, {V(B_,4)}, {V(acc[T][F],16)}')
                for op in rops[k * per_r:(k + 1) * per_r]: emit_read(op)
                k += 1
                if k >= nm - 1 or nm == 1:
                    take = (ndma + 1) // 2 if k == nm - 1 else ndma
                    for f in pending[:take]: f()
                    pending = pending[take:]; ndma -= take
        if getattr(p, 'step_hook', None): p.step_hook(i, xf[b], wf[b])
        if xstats or wsum_on:
            lab = a.newlabel('Lst')
            a(f's_cmp_lg_u32 s{p.sPar}, {i % 2}')
            a(f's_cbranch_scc1 {lab}')
            for T in range(TW):
                for j in range(4):
                    a(f'v_dot2_f32_bf16 v{xs[T][0]}, v{xf[b][T]+j}, s{sOnes}, v{xs[T][0]}')
                    a(f'v_dot2_f32_bf16 v{xs[T][1]}, v{xf[b][T]+j}, v{xf[b][T]+j}, v{xs[T][1]}')
            for F in range(FW):
                for j in range(4):
                    a(f'v_dot2_f32_bf16 v{wsum[F]}, v{wf[b][F]+j}, s{sOnes}, v{wsum[F]}')
            a.label(lab)

    if xstats or wsum_on:
        assert WR == 2 and WC == 2
        p.sPar = p.stmp + 9
        a(f's_xor_b32 s{p.sPar}, s{p.sWr}, s{p.sWc}')
    sync(0)
    if getattr(p, 'stamp1', None): p.stamp1()
    else: stamp(a, 1)
    for op in read_ops(0): emit_read(op)
    for i in range(KS):
        rops = []
        if i + 1 < KS:
            if (i + 1) % 4 == 0:
                sync((i + 1) // 4)
            rops = read_ops(i + 1)
        compute(i, rops)
    assert not pending
    a('s_waitcnt lgkmcnt(0)')
    if not getattr(p, 'stamp1', None): stamp(a, 2)
    return acc

def gelu_scalar(a, base, n, tmp, sC1, vC2):
    for i in range(n):
        a(f'v_mul_f32 v{tmp+i}, v{base+i}, v{base+i}')
    for i in range(n):
        a(f'v_fma_f32 v{tmp+i}, v{tmp+i}, v{vC2}, s{sC1}')
    for i in range(n):
        a(f'v_mul_f32 v{tmp+i}, v{tmp+i}, v{base+i}')
    for i in range(n):
        a(f'v_exp_f32 v{tmp+i}, v{tmp+i}')
    a('s_nop 0')
    for i in range(n):
        a(f'v_add_f32 v{tmp+i}, 1.0, v{tmp+i}')
    for i in range(n):
        a(f'v_rcp_f32 v{tmp+i}, v{tmp+i}')
    a('s_nop 0')
    for i in range(n):
        a(f'v_mul_f32 v{base+i}, v{base+i}, v{tmp+i}')

def dpp_wave_sum(a, regs, tmp):
    steps = ['row_shr:1', 'row_shr:2', 'row_shr:4', 'row_shr:8', 'row_bcast:15 row_mask:0xa', 'row_bcast:31 row_mask:0xc']
    for st in steps:
        if len(regs) < 3: a('s_nop 1')
        for r in regs:
            m = st if 'row_mask' in st else st + ' row_mask:0xf'
            a(f'v_add_f32_dpp v{r}, v{r}, v{r} {m} bank_mask:0xf bound_ctrl:0' if False else f'v_add_f32_dpp v{r}, v{r}, v{r} {m} bank_mask:0xf')

def build(kernels, out):
    descs = []
    launches = []
    body = Asm()
    for fn, grid, block in kernels:
        name, nv, lds = fn(body)
        descs.append(kernel_desc(name, nv))
        launches.append(f'; @launch kernel={name} grid=({grid},1,1) block=({block},1,1) lds={lds}')
    txt = '\n'.join(launches) + '\n.amdgcn_target "amdgcn-amd-amdhsa--gfx950"\n' + body.text()
    txt += '.section .rodata,"a"\n' + ''.join('.p2align 6\n' + d for d in descs)
    open(out, 'w').write(txt)
```

```python
import sys
from core2 import *

XNF  = 0x1200000
XNNF = 0x1400000
CL, CQ, C1, C2, C3, CA, CC = [FLG + i * 128 for i in (0, 16, 32, 64, 96, 112, 144)]
NCNT = 192

A_SIZE = 73728
FL = A_SIZE
F_STATUS, F_WRDY, F_KRDY, F_REQ, F_WDONE, F_KDONE = 0, 4, 8, 12, 16, 32
B_BASE = FL + 256
B_SIZE = 74752
LDS_TOTAL = B_BASE + B_SIZE
ZOK = 1 << 31
B_QKV, B_C1, B_C2, B_C3, B_CA, B_XA, B_XB = 1, 2, 4, 8, 16, 0x100, 0x200
ALLB = 0x1f
M_QKV, M_C1, M_C2, M_C3, M_CA = 0, 4, 8, 12, 16
F_MZ = 48
F_QM, F_KVM = 52, 56

ws = f's[{sWS}:{sWS+3}]'
PRIO = int(os.environ.get('PRIO', '2'))
WD = int(os.environ.get('WD', '7')); WRING = 16384
sW, sRB, sCB, sRow0 = 36, 37, 38, 39
sX0, sX1, sW0, sW1 = 40, 41, 42, 47
T0, T1, T2, T3 = 43, 44, 45, 46
STMP = 48
sW2SRD = 20
sJ0, sJ1, sJ2, sJ3, sNN = 60, 61, 62, 63, 57
pX, pQKV, pWO, pW1, pW2, pW3, pW4, pOUT, pDBG, pWS = 24, 26, 28, 30, 32, 84, 86, 88, 90, 34
vSA, vSB = 2, 3
V0 = 4

LNST = os.environ.get('LNST', '0') == '1'
TOUCH = os.environ.get('TOUCH', '1') == '1'
LDF = os.environ.get('LDF', '')
class CS:
    n = 1
DST = [x for x in os.environ.get('DST', '').split(',') if x]
def cstamp(a):
    if DST: return
    if CS.n <= 4: stamp(a, CS.n)
    CS.n += 1
def dstamp(a, name):
    if name in DST: stamp(a, DST.index(name) + 1)

def request(a, mask):
    a(f'v_mov_b32 v{vSA}, {FL}')
    a(f'v_mov_b32 v{vSB}, {hex(mask)}')
    a('s_mov_b64 exec, 1')
    a(f'ds_or_b32 v{vSA}, v{vSB} offset:{F_REQ}')
    a('s_mov_b64 exec, -1')

def wait_status(a, mask, sleep=1):
    lp = a.newlabel('Lws'); ld = a.newlabel('Lwd')
    if mask != ZOK: request(a, mask)
    else: a(f'v_mov_b32 v{vSA}, {FL}')
    a.label(lp)
    a(f'ds_read_b32 v{vSB}, v{vSA} offset:{F_STATUS}')
    a('s_waitcnt lgkmcnt(0)')
    a(f'v_readfirstlane_b32 s{T3}, v{vSB}')
    a(f's_and_b32 s{T3}, s{T3}, {hex(mask)}')
    a(f's_cmp_eq_u32 s{T3}, {hex(mask)}')
    a(f's_cbranch_scc1 {ld}')
    a(f's_sleep {sleep}')
    spin_guard(a)
    a(f's_branch {lp}')
    a.label(ld)

def wait_lds_ge(a, off, val, sleep=1):
    lp = a.newlabel('Lwl'); ld = a.newlabel('Lwld')
    a(f'v_mov_b32 v{vSA}, {FL}')
    a.label(lp)
    a(f'ds_read_b32 v{vSB}, v{vSA} offset:{off}')
    a('s_waitcnt lgkmcnt(0)')
    a(f'v_readfirstlane_b32 s{T3}, v{vSB}')
    a(f's_cmp_ge_u32 s{T3}, {val}')
    a(f's_cbranch_scc1 {ld}')
    a(f's_sleep {sleep}')
    spin_guard(a)
    a(f's_branch {lp}')
    a.label(ld)

def wait_min4(a, off, val, q, sleep=2):
    lp = a.newlabel('Lwm'); ld = a.newlabel('Lwmd')
    a(f'v_mov_b32 v{vSA}, {FL}')
    a.label(lp)
    a(f'ds_read_b128 {V(q,4)}, v{vSA} offset:{off}')
    a('s_waitcnt lgkmcnt(0)')
    a(f'v_min_u32 v{q}, v{q}, v{q+1}')
    a(f'v_min3_u32 v{q}, v{q}, v{q+2}, v{q+3}')
    a('s_nop 0')
    a(f'v_readfirstlane_b32 s{T3}, v{q}')
    a(f's_cmp_ge_u32 s{T3}, {val}')
    a(f's_cbranch_scc1 {ld}')
    a(f's_sleep {sleep}')
    spin_guard(a)
    a(f's_branch {lp}')
    a.label(ld)

def signal(a, offs, nw=4, need_zok=False, srdn=sWS):
    a('s_waitcnt vmcnt(0)')
    SB.nw = nw; BAR(a); SB.nw = 4
    lab = a.newlabel('Lsig')
    a(f's_cmp_lg_u32 s{sW}, 0')
    a(f's_cbranch_scc1 {lab}')
    if need_zok: wait_status(a, ZOK)
    if srdn != sWS: wait_lds_ge(a, F_MZ, 1)
    a(f'v_mov_b32 v{vSA}, 0')
    a(f'v_mov_b32 v{vSB}, 1')
    a('s_mov_b64 exec, 1')
    for o in offs:
        a(f'buffer_atomic_add v{vSB}, v{vSA}, s[{srdn}:{srdn+3}], s{o} offen sc1')
    a('s_mov_b64 exec, -1')
    a.label(lab)

def mb_signal(a, word, nl, idfn, need_zok=False, group=True):
    a('s_waitcnt vmcnt(0)')
    if word == M_QKV: dstamp(a, 'qdrain')
    lab = a.newlabel('Lsig')
    if group:
        BAR(a)
        if word == M_QKV: dstamp(a, 'qbar')
        a(f's_cmp_lg_u32 s{sW}, 0')
        a(f's_cbranch_scc1 {lab}')
    if need_zok: wait_status(a, ZOK)
    masked = idfn(vSA, vSB)
    a(f'v_lshlrev_b32 v{vSA}, 7, v{vSA}')
    if word == M_QKV:
        a(f's_mul_i32 s{T0}, s{sCB}, 3')
        a(f'v_lshrrev_b32 v{vSB}, 4, v1')
        a(f'v_add_u32 v{vSB}, s{T0}, v{vSB}')
        a(f'v_lshrrev_b32 v{vSB}, 4, v{vSB}')
        a(f'v_lshl_add_u32 v{vSA}, v{vSB}, 2, v{vSA}')
        a(f's_lshl_b32 s{T0}, 1, s{sRB}')
        a(f'v_mov_b32 v{vSB}, s{T0}')
        a(f's_mov_b32 s{T0}, {hex(FLG + 20)}')
    else:
        a(f'v_mov_b32 v{vSB}, 1')
        a(f's_mov_b32 s{T0}, {hex(FLG + word)}')
    a(f's_mov_b32 exec_lo, {hex((1 << min(nl, 32)) - 1)}'); a(f's_mov_b32 exec_hi, {hex((1 << max(nl - 32, 0)) - 1)}')
    if masked: a('s_and_b64 exec, exec, vcc')
    a(f'buffer_atomic_{"or" if word == M_QKV else "add"} v{vSB}, v{vSA}, {ws}, s{T0} offen sc1')
    a('s_mov_b64 exec, -1')
    a.label(lab)

def id64(a, vId, vRb, vCb):
    a(f'v_lshlrev_b32 v{vCb}, 5, v{vCb}')
    a(f'v_lshrrev_b32 v{vId if vId != vRb else vCb+0}, 0, v{vId if vId != vRb else vCb+0}') if False else None

def map_64x64(a):
    a(f's_and_b32 s{T0}, s2, 7')
    a(f's_lshr_b32 s{T1}, s2, 3')
    a(f's_lshl_b32 s{sRB}, s{T0}, 2')
    a(f's_and_b32 s{T2}, s{T1}, 3')
    a(f's_add_u32 s{sRB}, s{sRB}, s{T2}')
    a(f's_lshr_b32 s{sCB}, s{T1}, 2')
def map_g3(a):
    a(f's_and_b32 s{T0}, s2, 7')
    a(f's_lshr_b32 s{T1}, s2, 3')
    a(f's_lshl_b32 s{sRB}, s{T0}, 1')
    a(f's_and_b32 s{T2}, s{T1}, 1')
    a(f's_add_u32 s{sRB}, s{sRB}, s{T2}')
    a(f's_lshr_b32 s{sCB}, s{T1}, 1')
def map_qkv(a):
    a(f's_and_b32 s{T0}, s2, 7')
    a(f's_lshr_b32 s{T1}, s2, 3')
    a(f's_lshr_b32 s{T2}, s{T0}, 1')
    a(f's_lshl_b32 s{T2}, s{T2}, 2')
    a(f's_and_b32 s{T3}, s{T1}, 3')
    a(f's_add_u32 s{sRB}, s{T2}, s{T3}')
    a(f's_and_b32 s{T2}, s{T0}, 1')
    a(f's_lshl_b32 s{T2}, s{T2}, 3')
    a(f's_lshr_b32 s{T3}, s{T1}, 2')
    a(f's_add_u32 s{sCB}, s{T2}, s{T3}')
def rot8(a, d0, d1, mul=1):
    a(f's_and_b32 s{T0}, s{sRB}, 3')
    a(f's_lshl_b32 s{T0}, s{T0}, 1')
    a(f's_add_u32 s{T0}, s{T0}, s{sCB}')
    a(f's_and_b32 s{d0}, s{T0}, 7')
    if mul != 1:
        a(f's_mul_i32 s{d0}, s{d0}, {mul}')
        a(f's_lshr_b32 s{d0}, s{d0}, 1')
    a(f's_mov_b32 s{d1}, s{d0}')

def pack_swap(a, ac, pk):
    for i in range(8):
        a(f'v_cvt_pk_bf16_f32 v{pk+i}, v{ac+2*i}, v{ac+2*i+1}')
    a('s_nop 1')
    for pr in range(2):
        b = pk + 4 * pr
        a(f'v_permlane32_swap_b32 v{b}, v{b+2}')
        a(f'v_permlane32_swap_b32 v{b+1}, v{b+3}')
    a('s_nop 1')
def pack_swap_store(a, ac, pk, voff, sOff):
    pack_swap(a, ac, pk)
    for pr in range(2):
        a(f'buffer_store_dwordx4 {V(pk+4*pr,4)}, v{voff}, {ws}, s{sOff} offen offset:{pr*1024} sc1')

def frag_tile_off(a, sDst, g, base, nks):
    a(f's_lshl_b32 s{sDst}, s{sRB}, 1')
    a(f's_add_u32 s{sDst}, s{sDst}, s{g.sWr}')
    a(f's_mul_i32 s{sDst}, s{sDst}, {nks}')
    a(f's_lshl_b32 s{T3}, s{sCB}, 2')
    a(f's_add_u32 s{sDst}, s{sDst}, s{T3}')
    a(f's_lshl_b32 s{T3}, s{g.sWc}, 1')
    a(f's_add_u32 s{sDst}, s{sDst}, s{T3}')
    a(f's_lshl_b32 s{sDst}, s{sDst}, 10')
    a(f's_add_u32 s{sDst}, s{sDst}, {hex(base)}')
def wsk_woffs(a, g):
    a(f's_lshl_b32 s{sW0}, s{sW}, 14')
    a(f's_lshl_b32 s{T0}, s{sCB}, 7')
    a(f's_add_u32 s{sW0}, s{sW0}, s{T0}')
    a(f's_lshl_b32 s{T0}, s{g.sWc}, 6')
    a(f's_xor_b32 s{T1}, s{T0}, 64')
    a(f's_add_u32 s{sW1}, s{sW0}, s{T1}')
    a(f's_add_u32 s{sW0}, s{sW0}, s{T0}')
def wsk_xoffs(a, g, base, xtile, d0=sX0, d1=sX1):
    a(f's_lshl_b32 s{T0}, s{sRB}, 1')
    a(f's_add_u32 s{T1}, s{T0}, s{g.sWr}')
    a(f's_mul_i32 s{d0}, s{T1}, {xtile}')
    a(f's_xor_b32 s{T1}, s{T1}, 1')
    a(f's_mul_i32 s{d1}, s{T1}, {xtile}')
    a(f's_lshl_b32 s{T0}, s{sW}, 10')
    a(f's_add_u32 s{T0}, s{T0}, {hex(base)}')
    a(f's_add_u32 s{d0}, s{d0}, s{T0}')
    a(f's_add_u32 s{d1}, s{d1}, s{T0}')
def x_rowmajor_off(a, g, sDst):
    a(f's_lshl_b32 s{sDst}, s{sRB}, 16')
    a(f's_lshl_b32 s{T1}, s{g.sWr}, 15')
    a(f's_add_u32 s{sDst}, s{sDst}, s{T1}')
    a(f's_lshl_b32 s{T1}, s{sCB}, 7')
    a(f's_add_u32 s{sDst}, s{sDst}, s{T1}')
    a(f's_lshl_b32 s{T1}, s{g.sWc}, 6')
    a(f's_add_u32 s{sDst}, s{sDst}, s{T1}')
def lane8_off(a, v, l, t):
    a(f'v_and_b32 v{v}, 31, v{l}')
    a(f'v_lshlrev_b32 v{v}, 4, v{v}')
    a(f'v_lshrrev_b32 v{t}, 5, v{l}')
    a(f'v_lshl_add_u32 v{v}, v{t}, 3, v{v}')
def unpack(a, src, dst, n):
    for j in range(n):
        a(f'v_lshlrev_b32 v{dst+2*j}, 16, v{src+j}')
        a(f'v_and_b32 v{dst+2*j+1}, 0xffff0000, v{src+j}')
def ln_scalars(a, mean, ex2, q, n):
    var, m1, s1, rs = q[0], q[1], q[2], q[3]
    a(f'v_mul_f32 v{mean}, {hex(f32bits(1/n))}, v{mean}')
    a(f'v_mul_f32 v{ex2}, {hex(f32bits(1/n))}, v{ex2}')
    a(f'v_fma_f32 v{var}, -v{mean}, v{mean}, v{ex2}')
    a(f'v_max_f32 v{var}, 0, v{var}')
    a(f'v_mov_b32 v{m1}, v{mean}'); bf16_round(a, m1)
    a(f'v_mov_b32 v{s1}, v{var}'); bf16_round(a, s1)
    a(f'v_add_f32 v{s1}, {hex(f32bits(EPS))}, v{s1}'); bf16_round(a, s1)
    a(f'v_sqrt_f32 v{s1}, v{s1}'); a('s_nop 0'); bf16_round(a, s1)
    a(f'v_rcp_f32 v{rs}, v{s1}'); a('s_nop 0')

def ln_stage(a, sK):
    va = RegAlloc(V0, 256); l = 1
    raw = va(4); x = va(8, 4); d = va(8, 4); pk = [va(4), va(4)]; s_ = va(); t_ = va(); vL16 = va(); vT = va()
    a(f'v_lshlrev_b32 v{vL16}, 4, v{l}')
    srd(a, sAUX, pX, 2048 * 1024)
    a(f's_lshl_b32 s{T0}, s2, 3')
    a(f's_add_u32 s{T0}, s{T0}, s{sK}')
    a(f's_lshl_b32 s{T0}, s{T0}, 10')
    a(f'buffer_load_dwordx4 {V(raw,4)}, v{vL16}, s[{sAUX}:{sAUX+3}], s{T0} offen')
    a('s_waitcnt vmcnt(0)')
    if LNST: stamp(a, 1)
    def wave_sum_to_sgpr(r, sD):
        dpp_wave_sum(a, [r], None)
        a('s_nop 0')
        a(f'v_readlane_b32 s{sD}, v{r}, 63')
    for which in range(2):
        src = raw if which == 0 else pk[0]
        unpack(a, src, x, 4)
        a(f'v_add_f32 v{s_}, v{x}, v{x+1}')
        a(f'v_mul_f32 v{t_}, v{x}, v{x}')
        a(f'v_add_f32 v{d}, v{x+2}, v{x+3}')
        a(f'v_mul_f32 v{d+1}, v{x+1}, v{x+1}')
        a(f'v_add_f32 v{d+2}, v{x+4}, v{x+5}')
        a(f'v_fma_f32 v{t_}, v{x+2}, v{x+2}, v{t_}')
        a(f'v_add_f32 v{d+3}, v{x+6}, v{x+7}')
        a(f'v_fma_f32 v{d+1}, v{x+3}, v{x+3}, v{d+1}')
        a(f'v_add_f32 v{s_}, v{s_}, v{d}')
        a(f'v_fma_f32 v{t_}, v{x+4}, v{x+4}, v{t_}')
        a(f'v_add_f32 v{d+2}, v{d+2}, v{d+3}')
        a(f'v_fma_f32 v{d+1}, v{x+5}, v{x+5}, v{d+1}')
        a(f'v_fma_f32 v{t_}, v{x+6}, v{x+6}, v{t_}')
        a(f'v_fma_f32 v{d+1}, v{x+7}, v{x+7}, v{d+1}')
        a(f'v_add_f32 v{s_}, v{s_}, v{d+2}')
        a(f'v_add_f32 v{t_}, v{t_}, v{d+1}')
        dpp_wave_sum(a, [s_, t_], None)
        a('s_nop 0')
        a(f'v_readlane_b32 s{T1}, v{s_}, 63')
        a(f'v_readlane_b32 s{T2}, v{t_}, 63')
        a('s_nop 1')
        a(f'v_mov_b32 v{s_}, s{T1}')
        a(f'v_mov_b32 v{t_}, s{T2}')
        a(f'v_mul_f32 v{s_}, {hex(f32bits(1/512))}, v{s_}')
        a(f'v_mul_f32 v{t_}, {hex(f32bits(1/512))}, v{t_}')
        a(f'v_fma_f32 v{t_}, -v{s_}, v{s_}, v{t_}')
        a(f'v_max_f32 v{t_}, 0, v{t_}')
        bf16_round(a, s_)
        bf16_round(a, t_)
        a(f'v_add_f32 v{t_}, {hex(f32bits(EPS))}, v{t_}'); bf16_round(a, t_)
        a(f'v_sqrt_f32 v{t_}, v{t_}'); a('s_nop 0'); bf16_round(a, t_)
        a(f'v_rcp_f32 v{t_}, v{t_}')
        for j in range(8): a(f'v_sub_f32 v{d+j}, v{x+j}, v{s_}')
        for j in range(4): a(f'v_cvt_pk_bf16_f32 v{x+j}, v{d+2*j}, v{d+2*j+1}')
        unpack(a, x, d, 4)
        for j in range(8): a(f'v_mul_f32 v{d+j}, v{d+j}, v{t_}')
        for j in range(4): a(f'v_cvt_pk_bf16_f32 v{pk[which]+j}, v{d+2*j}, v{d+2*j+1}')
    a(f's_mul_i32 s{T0}, s{sK}, 1040')
    a(f's_add_u32 s{T0}, s{T0}, {B_BASE}')
    a(f'v_add_u32 v{vT}, s{T0}, v{vL16}')
    a(f'ds_write_b128 v{vT}, {V(pk[0],4)}')
    a(f'ds_write_b128 v{vT}, {V(pk[1],4)} offset:8320')
    SB.nw = 8; BAR(a); SB.nw = 4
    a(f'v_and_b32 v{s_}, 7, v{l}')
    a(f's_mov_b32 s{T0}, 1040')
    a(f'v_mul_lo_u32 v{vT}, v{s_}, s{T0}')
    a(f'v_lshrrev_b32 v{t_}, 3, v{l}')
    a(f'v_lshl_add_u32 v{vT}, v{t_}, 4, v{vT}')
    a(f's_lshl_b32 s{T0}, s{sK}, 7')
    a(f's_add_u32 s{T0}, s{T0}, {B_BASE}')
    a(f'v_add_u32 v{vT}, s{T0}, v{vT}')
    a(f'ds_read_b128 {V(pk[0],4)}, v{vT}')
    a(f'ds_read_b128 {V(pk[1],4)}, v{vT} offset:8320')
    a(f'v_lshlrev_b32 v{vT}, 9, v{t_}')
    a(f'v_lshl_add_u32 v{vT}, v{s_}, 4, v{vT}')
    a(f's_lshr_b32 s{T0}, s2, 2')
    a(f's_lshl_b32 s{T0}, s{T0}, 15')
    a(f's_and_b32 s{T1}, s2, 3')
    a(f's_lshl_b32 s{T1}, s{T1}, 7')
    a(f's_add_u32 s{T0}, s{T0}, s{T1}')
    a(f's_lshl_b32 s{T1}, s{sK}, 12')
    a(f's_add_u32 s{T0}, s{T0}, s{T1}')
    a(f's_add_u32 s{T0}, s{T0}, {hex(XNF)}')
    a(f's_add_u32 s{T1}, s{T0}, {hex(XNNF - XNF)}')
    a('s_waitcnt lgkmcnt(0)')
    a(f'buffer_store_dwordx4 {V(pk[0],4)}, v{vT}, {ws}, s{T0} offen sc1')
    a(f'buffer_store_dwordx4 {V(pk[1],4)}, v{vT}, {ws}, s{T1} offen sc1')
    if LNST: stamp(a, 2)
    a(f's_and_b32 s{T0}, s2, 0xf0')
    a(f's_mov_b32 s{sW}, s{sK}')
    srd(a, sDBG, pDBG, 256)
    signal(a, [T0], nw=8, srdn=sDBG)
    if LNST: stamp(a, 3)
    return va.hi

def sentinel(a):
    l = 1
    vOff, vTgt, vVal, vZ, vF, vD = 4, 5, 6, 7, 8, 9
    sDone, sAct, sMA, sMB, sMb = sX0, sX1, sW0, sW1, sRow0
    srd(a, sDBG, pDBG, 256)
    a(f'v_mov_b32 v{vZ}, 0')
    a(f'v_mov_b32 v{vF}, {FL}')
    a(f'v_lshlrev_b32 v{vOff}, 2, v{l}')
    a(f's_lshl_b32 s{sMb}, s2, 7')
    a(f's_add_u32 s{sMb}, s{sMb}, {hex(FLG)}')
    a('s_mov_b64 exec, 0xff')
    a(f'buffer_store_dword v{vZ}, v{vOff}, {ws}, s{sMb} offen sc1')
    a('s_mov_b64 exec, -1')
    a(f'v_lshlrev_b32 v{vD}, 4, v{l}')
    map_qkv(a)
    a(f's_mov_b32 s{sMA}, s{sRB}')
    map_g3(a)
    a(f's_cmp_ge_u32 s{sCB}, 15')
    a(f's_cselect_b32 s{sDone}, {hex(B_C2)}, 0')
    map_64x64(a)
    a(f's_lshr_b32 s{sMB}, s{sRB}, 1')
    a(f'v_mov_b32 v{vTgt}, 0')
    a(f's_mov_b32 s{T3}, -1')
    for ln_ in (0, 5, 6, 7): a(f'v_writelane_b32 v{vTgt}, s{T3}, {ln_}')
    a(f's_sub_u32 s{T0}, s{sRB}, 1')
    a(f's_cmp_lt_u32 s{T0}, 30')
    a(f's_cselect_b32 s{T3}, 24, 16'); a(f'v_writelane_b32 v{vTgt}, s{T3}, 1')
    a(f's_mov_b32 s{T3}, 16'); a(f'v_writelane_b32 v{vTgt}, s{T3}, 2')
    a(f's_mov_b32 s{T3}, 15'); a(f'v_writelane_b32 v{vTgt}, s{T3}, 3')
    a(f's_mov_b32 s{T3}, 32'); a(f'v_writelane_b32 v{vTgt}, s{T3}, 4')
    a(f'v_mov_b32 v{vVal}, 1')
    a('s_waitcnt vmcnt(0)')
    a(f'ds_write_b32 v{vF}, v{vVal} offset:{F_MZ}')
    lp = a.newlabel('Lp1'); lw = a.newlabel('Lp1w')
    a.label(lw)
    spin_guard(a)
    a('s_sleep 2')
    a(f'ds_read_b32 v{vVal}, v{vF} offset:{F_REQ}')
    a('s_waitcnt lgkmcnt(0)')
    a(f'v_readfirstlane_b32 s{T0}, v{vVal}')
    a(f's_cmp_eq_u32 s{T0}, 0')
    a(f's_cbranch_scc1 {lw}')
    a('s_mov_b64 exec, 0xffff')
    a.label(lp)
    spin_guard(a)
    a(f's_sleep {int(os.environ.get("P1S", "12"))}')
    a(f'buffer_load_dword v{vVal}, v{vD}, s[{sDBG}:{sDBG+3}], 0 offen sc1')
    a('s_waitcnt vmcnt(0)')
    a(f'v_cmp_le_u32 vcc, 16, v{vVal}')
    a(f's_lshr_b32 s{T0}, vcc_lo, s{sMA}')
    a(f's_and_b32 s{T0}, s{T0}, 1')
    a(f's_lshl_b32 s{T0}, s{T0}, 8')
    a(f's_or_b32 s{sDone}, s{sDone}, s{T0}')
    a(f's_lshr_b32 s{T0}, vcc_lo, s{sMB}')
    a(f's_and_b32 s{T0}, s{T0}, 1')
    a(f's_lshl_b32 s{T0}, s{T0}, 9')
    a(f's_or_b32 s{sDone}, s{sDone}, s{T0}')
    a('s_cmp_eq_u32 vcc_lo, 0xffff')
    a(f's_cselect_b32 s{T0}, {hex(ZOK)}, 0')
    a(f's_or_b32 s{sDone}, s{sDone}, s{T0}')
    a(f'v_mov_b32 v{vVal}, s{sDone}')
    a(f'ds_write_b32 v{vF}, v{vVal} offset:{F_STATUS}')
    a('s_cmp_lg_u32 vcc_lo, 0xffff')
    a(f's_cbranch_scc1 {lp}')
    lp = a.newlabel('Lp2')
    a('s_mov_b64 exec, 0xff')
    a.label(lp)
    spin_guard(a)
    a('s_sleep 1')
    a(f'ds_read_b32 v{vVal}, v{vF} offset:{F_REQ}')
    a('s_waitcnt lgkmcnt(0)')
    a(f'v_readfirstlane_b32 s{sAct}, v{vVal}')
    a(f's_andn2_b32 s{sAct}, s{sAct}, s{sDone}')
    a(f's_cbranch_scc0 {lp}')
    a(f'buffer_load_dword v{vVal}, v{vOff}, {ws}, s{sMb} offen sc1')
    a('s_waitcnt vmcnt(0)')
    a(f'v_cmp_ge_u32 vcc, v{vVal}, v{vTgt}')
    a(f'v_readlane_b32 s{T0}, v{vVal}, 5')
    a(f'v_readlane_b32 s{T1}, v{vVal}, 6')
    a(f'v_readlane_b32 s{T2}, v{vVal}, 7')
    a(f's_or_b32 s{sDone}, s{sDone}, vcc_lo')
    a(f's_and_b32 s{T1}, s{T1}, s{T2}')
    a(f'v_mov_b32 v10, s{T0}')
    a(f'v_mov_b32 v11, s{T1}')
    a(f's_and_b32 s{T0}, s{T0}, s{T1}')
    a(f's_cmp_eq_u32 s{T0}, 0xffff')
    a(f's_cselect_b32 s{T0}, {B_QKV}, 0')
    a(f's_or_b32 s{sDone}, s{sDone}, s{T0}')
    a(f'v_mov_b32 v{vVal}, s{sDone}')
    a(f'ds_write2_b32 v{vF}, v10, v11 offset0:{F_QM//4} offset1:{F_KVM//4}')
    a(f'ds_write_b32 v{vF}, v{vVal} offset:{F_STATUS}')
    a(f's_and_b32 s{T0}, s{sDone}, {hex(ALLB)}')
    a(f's_cmp_lg_u32 s{T0}, {hex(ALLB)}')
    a(f's_cbranch_scc1 {lp}')
    a('s_waitcnt lgkmcnt(0)')
    a('s_endpgm')

QCK = 4; QSLOT = QCK * 3072; QNS = 6

def qkv_loader(a):
    l = 1; vW, t0, vF, vV = 4, 5, 6, 7
    map_qkv(a)
    srd(a, sWSRD, pQKV, 512 * 3072)
    wdma_voff(a, vW, l, t0, 3072, T0)
    a(f'v_mov_b32 v{vF}, {FL}')
    a(f's_mul_i32 s{sW0}, s{sCB}, 192')
    rot8(a, sJ0, sJ1)
    def chunk(c):
        a(f's_mul_i32 s{sJ1}, s{sJ0}, {64 * 3072}')
        a(f's_add_u32 s{sJ1}, s{sJ1}, s{sW0}')
        for s in range(QCK):
            for F in range(3):
                a(f's_mov_b32 m0, {(c % QNS) * QSLOT + s * 3072 + F * 1024}')
                a(f's_add_u32 s{T0}, s{sJ1}, {s * 16 * 3072 + F * 64}')
                a(f'buffer_load_dwordx4 v{vW}, s[{sWSRD}:{sWSRD+3}], s{T0} offen lds')
        a(f's_add_u32 s{sJ0}, s{sJ0}, 1')
        a(f's_and_b32 s{sJ0}, s{sJ0}, 7')
    def publish(c):
        a(f'v_mov_b32 v{vV}, {c + 1}')
        a(f'ds_write_b32 v{vF}, v{vV} offset:{F_WRDY}')
    chunk(0); chunk(1); chunk(2)
    for c in range(3, 8):
        a('s_waitcnt vmcnt(24)'); publish(c - 3)
        if c >= QNS: wait_min4(a, F_WDONE, c - QNS + 1, 8)
        chunk(c)
    a('s_waitcnt vmcnt(24)'); publish(5)
    a('s_waitcnt vmcnt(12)'); publish(6)
    a('s_waitcnt vmcnt(0)'); publish(7)
    if TOUCH:
        a(f'v_lshlrev_b32 v12, 7, v{l}')
        l2_touch(a, pW2, 512 * 1024, 12, 13)
        l2_touch(a, pW3, 512 * 2752, 12, 13)

def l2_touch(a, ptr, nbytes, vT, vD):
    share = nbytes // 32
    srd(a, sAUX, ptr, nbytes)
    a(f's_lshr_b32 s{T0}, s2, 3')
    a(f's_mul_i32 s{T0}, s{T0}, {share}')
    n = (share + 8191) // 8192
    for i in range(n):
        a(f'buffer_load_dword v{vD}, v{vT}, s[{sAUX}:{sAUX+3}], s{T0} offen')
        if i + 1 < n: a(f's_add_u32 s{T0}, s{T0}, 8192')

def qkv_compute(a):
    l = 1
    map_qkv(a)
    rot8(a, sJ0, sJ1)
    hi = 0
    a(f's_cmp_ge_u32 s{sCB}, 11')
    a('s_cbranch_scc1 qkv_nnn')
    a(f's_cmp_eq_u32 s{sCB}, 10')
    a('s_cbranch_scc1 qkv_ttn')
    for var in ('ttt', 'ttn', 'nnn'):
        if var != 'ttt': a.label('qkv_' + var)
        va = RegAlloc(V0, 256); vm = VM()
        D = 16
        t0 = va(); t1 = va(); vL16 = va(); vTr = va(); vTr2 = va(); vF = va(); vOne = va(); vR = va()
        acc = [va(16, 4) for F in range(3)]
        xr = [va(4) for d in range(D)]
        wf = [[va(4) for F in range(3)] for b in range(3)]
        a(f'v_lshlrev_b32 v{vL16}, 4, v{l}')
        trbase(a, vTr, l, t0)
        a(f'v_add_u32 v{vTr2}, 49152, v{vTr}')
        a(f's_lshl_b32 s{T0}, s{sW}, 2')
        a(f's_add_u32 s{T0}, s{T0}, {FL + F_WDONE}')
        a(f'v_mov_b32 v{vF}, s{T0}')
        vSt0 = t1
        a(f'v_mov_b32 v{vSt0}, {FL}')
        for F in range(3):
            for i in range(16): a(f'v_mov_b32 v{acc[F]+i}, 0')
        a(f's_lshl_b32 s{sX0}, s{sRB}, 2')
        a(f's_add_u32 s{sX0}, s{sX0}, s{sW}')
        a(f's_lshl_b32 s{sX0}, s{sX0}, 15')
        a(f's_add_u32 s{sX0}, s{sX0}, {hex(XNF)}')
        def xld(ks):
            if ks % QCK == 0:
                a(f's_lshl_b32 s{sJ2}, s{sJ0}, 12')
                a(f's_add_u32 s{sJ2}, s{sJ2}, s{sX0}')
                a(f's_add_u32 s{sJ0}, s{sJ0}, 1')
                a(f's_and_b32 s{sJ0}, s{sJ0}, 7')
            a(f'buffer_load_dwordx4 {V(xr[ks % D],4)}, v{vL16}, {ws}, s{sJ2} offen offset:{(ks % QCK) * 1024} {LDF}')
            vm.add(('x', ks))
        def reads(ks, only=None):
            c, s = ks // QCK, ks % QCK; b = ks % 3
            for F in (range(3) if only is None else [only]):
                o = (c % QNS) * QSLOT + s * 3072 + F * 1024
                base = vTr
                if o + 256 > 65535: base, o = vTr2, o - 49152
                a(f'ds_read_b64_tr_b16 {V(wf[b][F],2)}, v{base} offset:{o}')
                a(f'ds_read_b64_tr_b16 {V(wf[b][F]+2,2)}, v{base} offset:{o+256}')
        wait_status(a, B_XA)
        if var == 'ttt': n0 = CS.n
        CS.n = n0; cstamp(a); dstamp(a, 'qx')
        for ks in range(D): xld(ks)
        wait_lds_ge(a, F_WRDY, 1)
        reads(0); reads(1)
        for ks in range(32):
            nx = ks + 2
            if nx < 32 and nx % QCK == 0:
                lr = a.newlabel('Lqr')
                a('s_waitcnt lgkmcnt(0)')
                a(f'v_readfirstlane_b32 s{T3}, v{vR}')
                a(f's_cmp_ge_u32 s{T3}, {nx // QCK + 1}')
                a(f's_cbranch_scc1 {lr}')
                wait_lds_ge(a, F_WRDY, nx // QCK + 1)
                a.label(lr)
                a(f'v_mov_b32 v{vOne}, {nx // QCK}')
                a(f'ds_write_b32 v{vF}, v{vOne}')
                a(f's_waitcnt vmcnt({vm.wait_for(("x", ks))})')
            else:
                extra = 1 if (ks >= 1 and (ks + 2) % QCK == 1 and ks + 1 < 32) else 0
                a(f's_waitcnt vmcnt({vm.wait_for(("x", ks))}) lgkmcnt({6 if ks + 1 < 32 else 0})')
            for F in range(3):
                A_, B_ = (wf[ks % 3][F], xr[ks % D]) if var[F] == 't' else (xr[ks % D], wf[ks % 3][F])
                a(f'{MF} {V(acc[F],16)}, {V(A_,4)}, {V(B_,4)}, {V(acc[F],16)}')
                if F == 0 and nx + 1 < 32 and (nx + 1) % QCK == 0:
                    a(f'ds_read_b32 v{vR}, v{vSt0} offset:{F_WRDY}')
                if nx < 32: reads(nx, F)
            if ks + D < 32: xld(ks + D)
        a(f'v_mov_b32 v{vOne}, 8')
        a(f'ds_write_b32 v{vF}, v{vOne}')
        cstamp(a); dstamp(a, 'qloop')
        vSt = t1
        a(f'v_and_b32 v{vSt}, 15, v{l}')
        a(f'v_lshlrev_b32 v{vSt}, 4, v{vSt}')
        a(f'v_lshrrev_b32 v{t0}, 5, v{l}')
        a(f'v_lshl_add_u32 v{vSt}, v{t0}, 8, v{vSt}')
        a(f'v_bfe_u32 v{t0}, v{l}, 4, 1')
        a(f'v_lshl_add_u32 v{vSt}, v{t0}, 10, v{vSt}')
        a(f's_lshl_b32 s{sX0}, s{sRB}, 2')
        a(f's_add_u32 s{sX0}, s{sX0}, s{sW}')
        a(f's_lshl_b32 s{sX0}, s{sX0}, 15')
        a(f's_mul_i32 s{sX1}, s{sCB}, 3')
        a(f's_mov_b32 s{sJ1}, {hex(f32bits(QSCALE))}')
        for F in range(3):
            pk = xr[2 * F]
            a(f's_add_u32 s{T0}, s{sX1}, {F}')
            a(f's_lshr_b32 s{T1}, s{T0}, 4')
            a(f's_lshl_b32 s{T1}, s{T1}, 21')
            a(f's_and_b32 s{T2}, s{T0}, 15')
            a(f's_lshl_b32 s{T2}, s{T2}, 11')
            a(f's_add_u32 s{T1}, s{T1}, s{T2}')
            a(f's_add_u32 s{T1}, s{T1}, s{sX0}')
            ac = acc[F]
            if var[F] == 't':
                if var == 'ttt':
                    lq = a.newlabel('Lnq')
                    a(f's_cmp_ge_u32 s{T0}, 16')
                    a(f's_cbranch_scc1 {lq}')
                    for i in range(16): a(f'v_mul_f32 v{ac+i}, s{sJ1}, v{ac+i}')
                    a.label(lq)
                pack_swap_store(a, ac, pk, vL16, T1)
            else:
                for i in range(8): a(f'v_cvt_pk_bf16_f32 v{pk+i}, v{ac+2*i}, v{ac+2*i+1}')
                for f in range(2):
                    a(f'buffer_store_dwordx4 {V(pk+4*f,4)}, v{vSt}, {ws}, s{T1} offen offset:{f*512} sc1')
        hi = max(hi, va.hi)
        if var != 'nnn': a('s_branch qkv_done')
    a.label('qkv_done')
    dstamp(a, 'qepi')
    def idq(vI, vT):
        a(f's_mul_i32 s{T0}, s{sCB}, 3')
        a(f'v_lshrrev_b32 v{vI}, 4, v1')
        a(f'v_add_u32 v{vI}, s{T0}, v{vI}')
        a(f'v_and_b32 v{vI}, 15, v{vI}')
        a(f'v_bfe_u32 v{vT}, v1, 3, 1')
        a(f'v_lshl_add_u32 v{vI}, v{vI}, 1, v{vT}')
        a(f'v_and_b32 v{vT}, 3, v{vI}')
        a(f'v_lshrrev_b32 v{vI}, 2, v{vI}')
        a(f'v_lshl_add_u32 v{vI}, v{vT}, 3, v{vI}')
        a(f'v_and_b32 v{vT}, 7, v1')
        a(f'v_lshl_add_u32 v{vI}, v{vT}, 5, v{vI}')
        return False
    mb_signal(a, M_QKV, 48, idq, need_zok=True)
    dstamp(a, 'qsig')
    return hi

def id_rows(a, sBase, check):
    def f(vI, vT):
        a(f'v_lshrrev_b32 v{vI}, 3, v1')
        a(f'v_add_u32 v{vI}, s{sBase}, v{vI}')
        if check: a(f'v_cmp_gt_u32 vcc, 32, v{vI}')
        a(f'v_and_b32 v{vT}, 3, v{vI}')
        a(f'v_lshrrev_b32 v{vI}, 2, v{vI}')
        a(f'v_lshl_add_u32 v{vI}, v{vT}, 3, v{vI}')
        a(f'v_and_b32 v{vT}, 7, v1')
        a(f'v_lshl_add_u32 v{vI}, v{vT}, 5, v{vI}')
        return check
    return f

def colsum3_job_issue(a, va):
    r = G()
    r.l3 = [va(4), va(4)]; r.tA = va(); r.tB = va()
    srd(a, sAUX, pW3, 512 * 2752)
    a(f's_and_b32 s{T0}, s2, 15')
    a(f's_mul_i32 s{T0}, s{T0}, {32 * 2752}')
    a(f's_lshr_b32 s{T1}, s2, 4')
    a(f's_min_u32 s{T1}, s{T1}, 10')
    a(f's_lshl_b32 s{T1}, s{T1}, 8')
    a(f's_add_u32 s{T0}, s{T0}, s{T1}')
    a(f'v_lshrrev_b32 v{r.tA}, 4, v0')
    a(f's_mov_b32 s{T1}, 2752')
    a(f'v_mul_lo_u32 v{r.tA}, v{r.tA}, s{T1}')
    a(f'v_and_b32 v{r.tB}, 15, v0')
    a(f'v_lshl_add_u32 v{r.tA}, v{r.tB}, 4, v{r.tA}')
    a(f'buffer_load_dwordx4 {V(r.l3[0],4)}, v{r.tA}, s[{sAUX}:{sAUX+3}], s{T0} offen')
    a(f's_add_u32 s{T0}, s{T0}, {16 * 2752}')
    a(f'buffer_load_dwordx4 {V(r.l3[1],4)}, v{r.tA}, s[{sAUX}:{sAUX+3}], s{T0} offen')
    return r
def colsum3_job_finish(a, r, u):
    SCR = B_BASE + 65536
    unpack(a, r.l3[0], u, 4); unpack(a, r.l3[1], u + 8, 4)
    for j in range(8): a(f'v_add_f32 v{u+j}, v{u+j}, v{u+8+j}')
    a(f'v_lshrrev_b32 v{r.tA}, 4, v0')
    a(f'v_lshlrev_b32 v{r.tA}, 9, v{r.tA}')
    a(f'v_lshl_add_u32 v{r.tA}, v{r.tB}, 5, v{r.tA}')
    a(f'v_add_u32 v{r.tA}, {SCR}, v{r.tA}')
    a(f'ds_write_b128 v{r.tA}, {V(u,4)}')
    a(f'ds_write_b128 v{r.tA}, {V(u+4,4)} offset:16')
    BAR(a)
    lab = a.newlabel('Lc3')
    a(f's_cmp_ge_u32 s{sW}, 2')
    a(f's_cbranch_scc1 {lab}')
    a('s_cmp_ge_u32 s2, 176')
    a(f's_cbranch_scc1 {lab}')
    a(f'v_lshlrev_b32 v{r.tA}, 2, v0')
    a(f'v_add_u32 v{r.tB}, {SCR}, v{r.tA}')
    for k in range(16): a(f'ds_read_b32 v{u+k}, v{r.tB} offset:{k*512}')
    a('s_waitcnt lgkmcnt(0)')
    for k in range(1, 16): a(f'v_add_f32 v{u}, v{u}, v{u+k}')
    a(f's_and_b32 s{T0}, s2, 15')
    a(f's_mul_i32 s{T0}, s{T0}, {1408 * 4}')
    a(f's_lshr_b32 s{T1}, s2, 4')
    a(f's_lshl_b32 s{T1}, s{T1}, 9')
    a(f's_add_u32 s{T0}, s{T0}, s{T1}')
    a(f's_add_u32 s{T0}, s{T0}, {hex(CS3)}')
    a(f'buffer_store_dword v{u}, v{r.tA}, {ws}, s{T0} offen sc1')
    a.label(lab)

def w1_stage(a):
    va = RegAlloc(V0, 256); l = 1; vm = VM()
    map_64x64(a)
    srd(a, sWSRD, pW1, 512 * 1024)
    g = WSK(a, va, sW, l, STMP, WD, vm, lds_base=B_BASE, ring_bytes=WRING)
    t0, t1, t2 = g.t
    wsk_woffs(a, g)
    wsk_xoffs(a, g, XNNF, 32768)
    rot8(a, sJ0, sJ1)
    g.add_segment(8, sWS, [sX0, sX1], g.vL16, LDF, sWSRD, [sW0, sW1], sJ0, sJ1, 8)
    for i in range(WD): g.issue_w(i)
    g.nw = WD
    g.zero_acc()
    wait_status(a, B_XB)
    if os.environ.get('BDELAY'): wait_min4(a, F_WDONE, int(os.environ['BDELAY']), g.wf[0][0], sleep=2)
    cstamp(a); dstamp(a, 'w1x')
    g.run(0, 8)
    dstamp(a, 'w1loop')
    ac = g.reduce()
    dstamp(a, 'w1red')
    tmp = g.acc[0][1]; pk = g.acc[1][0]; vC2 = g.acc[1][1]; vSt = g.acc[1][1] + 1
    a(f'v_mov_b32 v{vC2}, {hex(f32bits(GC2))}')
    a(f's_mov_b32 s{T2}, {hex(f32bits(GC1))}')
    gelu_scalar(a, ac, 16, tmp, T2, vC2)
    a(f's_lshr_b32 s{T1}, s{sCB}, 1')
    a(f's_lshr_b32 s{T3}, s{T1}, 1')
    a(f's_add_u32 s{T3}, s{T3}, 1')
    a(f's_mov_b32 s{sJ2}, s{T3}')
    a(f's_sub_u32 s{T2}, 0, s{T3}')
    a(f's_and_b32 s{sJ3}, s{T1}, 1')
    a(f's_cmp_eq_u32 s{sJ3}, 0')
    a(f's_cselect_b32 s{T3}, s{T3}, s{T2}')
    a(f's_lshl_b32 s{T1}, s{sRB}, 6')
    a(f's_add_u32 s{T3}, s{T3}, s{T1}')
    a(f's_lshl_b32 s{T1}, s{g.sWr}, 5')
    a(f's_add_u32 s{T3}, s{T3}, s{T1}')
    a(f's_mov_b32 s{T2}, 2048')
    a(f'v_and_b32 v{t2}, 31, v{l}')
    a(f'v_add_u32 v{t2}, s{T3}, v{t2}')
    a(f'v_cmp_gt_u32 vcc, s{T2}, v{t2}')
    a(f'v_lshrrev_b32 v{vSt}, 5, v{t2}')
    a(f'v_lshlrev_b32 v{vSt}, 15, v{vSt}')
    a(f'v_and_b32 v{t2}, 31, v{t2}')
    a(f'v_lshl_add_u32 v{vSt}, v{t2}, 4, v{vSt}')
    a(f'v_lshrrev_b32 v{t2}, 5, v{l}')
    a(f'v_lshl_add_u32 v{vSt}, v{t2}, 9, v{vSt}')
    a(f'v_mov_b32 v{t2}, {hex(OOB)}')
    a(f'v_cndmask_b32 v{vSt}, v{t2}, v{vSt}, vcc')
    a(f's_lshl_b32 s{T0}, s{sCB}, 2')
    a(f's_lshl_b32 s{T1}, s{g.sWc}, 1')
    a(f's_add_u32 s{T0}, s{T0}, s{T1}')
    a(f's_lshl_b32 s{T0}, s{T0}, 10')
    a(f's_add_u32 s{T0}, s{T0}, {hex(HF)}')
    pack_swap_store(a, ac, pk, vSt, T0)
    lz = a.newlabel('Lzf')
    a(f's_cmp_lg_u32 s{g.sWr}, 0')
    a(f's_cbranch_scc1 {lz}')
    a(f's_mul_i32 s{T1}, s{sJ3}, 31')
    a(f's_cmp_lg_u32 s{sRB}, s{T1}')
    a(f's_cbranch_scc1 {lz}')
    a(f'v_and_b32 v{t2}, 31, v{l}')
    a(f'v_cmp_gt_u32 vcc, s{sJ2}, v{t2}')
    a(f'v_xor_b32 v{t2}, s{T1}, v{t2}')
    a(f'v_lshlrev_b32 v{t2}, 4, v{t2}')
    a(f's_mul_i32 s{T1}, s{sJ3}, {63 * 32768}')
    a(f'v_add_u32 v{t2}, s{T1}, v{t2}')
    a(f'v_lshrrev_b32 v{t1}, 5, v{l}')
    a(f'v_lshl_add_u32 v{t2}, v{t1}, 9, v{t2}')
    for i in range(4): a(f'v_mov_b32 v{tmp+i}, 0')
    a('s_and_saveexec_b64 s[54:55], vcc')
    for kk in range(2):
        a(f'buffer_store_dwordx4 {V(tmp,4)}, v{t2}, {ws}, s{T0} offen offset:{kk*1024} sc1')
    a('s_mov_b64 exec, -1')
    a.label(lz)
    a(f's_sub_u32 s{T1}, s{sRB}, 1')
    dstamp(a, 'w1epi')
    mb_signal(a, M_C1, 24, id_rows(a, T1, True), need_zok=True)
    dstamp(a, 'w1sig')
    return va.hi

def g2_stage(a):
    va = RegAlloc(V0, 256); l = 1; vm = VM()
    srd(a, sWSRD, pW2, 512 * 1024)
    g = WSK(a, va, sW, l, STMP, WD, vm, lds_base=B_BASE, ring_bytes=WRING)
    t0, t1, t2 = g.t
    wsk_woffs(a, g)
    wsk_xoffs(a, g, HF, 32768)
    rot8(a, sJ0, sJ1)
    g.add_segment(8, sWS, [sX0, sX1], g.vL16, LDF, sWSRD, [sW0, sW1], sJ0, sJ1, 8)
    vSt = va(); xr = va(8, 4)
    request(a, B_C1)
    lane8_off(a, vSt, l, t0)
    frag_tile_off(a, T0, g, XNF, 32)
    for q in range(4):
        a(f'buffer_load_dwordx2 {V(xr+2*q,2)}, v{vSt}, {ws}, s{T0} offen offset:{q*512} {LDF}'); vm.add('xn')
    for i in range(WD): g.issue_w(i)
    g.nw = WD
    g.zero_acc(skip00=True)
    a(f's_waitcnt vmcnt({vm.wait_for("xn")})')
    unpack(a, xr, g.acc[0][0], 8)
    dstamp(a, 'g2pre')
    wait_status(a, B_C1)
    dstamp(a, 'g2x')
    g.run(0, 8)
    dstamp(a, 'g2loop')
    ac = g.reduce()
    xf = g.acc[0][1]; pk = g.acc[1][0]; s1, s2, s1b, s2b, pr = [g.acc[1][1] + i for i in (0, 1, 2, 3, 4)]
    frag_tile_off(a, T0, g, X1F, 32)
    pack_swap_store(a, ac, pk, g.vL16, T0)
    unpack(a, pk, xf, 8)
    a(f'v_add_f32 v{s1}, v{xf}, v{xf+1}')
    a(f'v_mul_f32 v{s2}, v{xf}, v{xf}')
    a(f'v_fma_f32 v{s2}, v{xf+1}, v{xf+1}, v{s2}')
    for i in range(2, 16):
        a(f'v_add_f32 v{s1}, v{s1}, v{xf+i}')
        a(f'v_fma_f32 v{s2}, v{xf+i}, v{xf+i}, v{s2}')
    a(f'v_mov_b32 v{s1b}, v{s1}'); a(f'v_mov_b32 v{s2b}, v{s2}')
    a('s_nop 1')
    a(f'v_permlane32_swap_b32 v{s1}, v{s1b}')
    a(f'v_permlane32_swap_b32 v{s2}, v{s2b}')
    a('s_nop 1')
    a(f'v_add_f32 v{pr}, v{s1}, v{s1b}')
    a(f'v_add_f32 v{pr+1}, v{s2}, v{s2b}')
    a(f's_lshl_b32 s{T0}, s{sCB}, 1')
    a(f's_add_u32 s{T0}, s{T0}, s{g.sWc}')
    a(f's_lshl_b32 s{T0}, s{T0}, 14')
    a(f's_lshl_b32 s{T1}, s{sRB}, 9')
    a(f's_add_u32 s{T0}, s{T0}, s{T1}')
    a(f's_lshl_b32 s{T1}, s{g.sWr}, 8')
    a(f's_add_u32 s{T0}, s{T0}, s{T1}')
    a(f's_add_u32 s{T0}, s{T0}, {hex(PS)}')
    a(f'v_lshlrev_b32 v{t0}, 3, v{l}')
    a('s_mov_b32 exec_hi, 0')
    a(f'buffer_store_dwordx2 {V(pr,2)}, v{t0}, {ws}, s{T0} offen sc1')
    a('s_mov_b64 exec, -1')
    dstamp(a, 'g2epi')
    def id3(vI, vT):
        a(f's_lshr_b32 s{T0}, s{sRB}, 1')
        a(f's_and_b32 s{T1}, s{T0}, 1')
        a(f's_lshl_b32 s{T1}, s{T1}, 3')
        a(f's_lshr_b32 s{T0}, s{T0}, 1')
        a(f's_or_b32 s{T0}, s{T0}, s{T1}')
        a(f'v_lshlrev_b32 v{vI}, 4, v1')
        a(f'v_or_b32 v{vI}, s{T0}, v{vI}')
        return False
    mb_signal(a, M_C2, 15, id3)
    dstamp(a, 'g2sig')
    return va.hi

def g3_stage(a, endlabel):
    va = RegAlloc(V0, 256); l = 1; vm = VM()
    map_g3(a)
    a(f's_cmp_ge_u32 s{sCB}, 15')
    a(f's_cbranch_scc1 {endlabel}')
    srd(a, sWSRD, pW3, 512 * 2752)
    D = 7; CK = 8; NST = 3; STG = CK * 3 * 1024; CSL = B_BASE + NST * STG
    sT0, sT1, sM0 = STMP, STMP + 1, STMP + 2
    t0 = va(); t1 = va(); t2 = va(); vL16 = va(); vTr = va(); vW = va(); vTr2 = va()
    a(f'v_lshlrev_b32 v{vL16}, 4, v{l}')
    trbase(a, vTr, l, t0)
    a(f'v_add_u32 v{vTr}, {B_BASE}, v{vTr}')
    a(f'v_add_u32 v{vTr2}, 49152, v{vTr}')
    wdma_voff(a, vW, l, t0, 2752, sT0)
    acc = [va(16, 4) for F in range(3)]
    xr = [va(4) for d in range(D)]
    wf = [[va(4) for F in range(3)] for b in range(3)]
    ps = va(16, 4); cp = va(16, 4)
    mr = va(); rr = va(); z = [va() for _ in range(4)]
    ones = va(4)
    for i in range(4): a(f'v_mov_b32 v{ones+i}, 0x3f803f80')
    for i in range(16): a(f'v_mov_b32 v{cp+i}, 0')
    a(f's_mul_i32 s{sW0}, s{sW}, {16 * 2752}')
    a(f's_mul_i32 s{T0}, s{sCB}, 192')
    a(f's_add_u32 s{sW0}, s{sW0}, s{T0}')
    a(f's_mul_i32 s{sM0}, s{sW}, 3072')
    a(f's_add_u32 s{sM0}, s{sM0}, {B_BASE}')
    a(f's_and_b32 s{T0}, s{sRB}, 1')
    a(f's_lshl_b32 s{T0}, s{T0}, 1')
    a(f's_add_u32 s{sJ0}, s{T0}, s{sCB}')
    def wdma(c):
        a(f's_add_u32 s{sJ1}, s{sJ0}, {c}')
        a(f's_and_b32 s{sJ1}, s{sJ1}, 3')
        a(f's_mul_i32 s{sJ1}, s{sJ1}, {128 * 2752}')
        a(f's_add_u32 s{sJ1}, s{sJ1}, s{sW0}')
        for hh in range(2):
            for F in range(3):
                a(f's_add_u32 m0, s{sM0}, {(c % NST) * STG + hh * 4 * 3072 + F * 1024}')
                a(f's_add_u32 s{sT1}, s{sJ1}, {(hh * 4) * 16 * 2752 + F * 64}')
                a(f'buffer_load_dwordx4 v{vW}, s[{sWSRD}:{sWSRD+3}], s{sT1} offen lds')
                vm.add(('w', c))
    request(a, B_C2)
    for c in range(NST): wdma(c)
    for F in range(3):
        for i in range(16): a(f'v_mov_b32 v{acc[F]+i}, 0')
    a(f's_lshl_b32 s{sX0}, s{sRB}, 2')
    a(f's_add_u32 s{sX0}, s{sX0}, s{sW}')
    a(f's_lshl_b32 s{sX0}, s{sX0}, 15')
    a(f's_add_u32 s{sX0}, s{sX0}, {hex(X1F)}')
    dstamp(a, 'g3pre')
    wait_status(a, B_C2)
    dstamp(a, 'g3x')
    def xld(ks):
        if ks % 8 == 0:
            a(f's_add_u32 s{sJ2}, s{sJ0}, {ks // 8}')
            a(f's_and_b32 s{sJ2}, s{sJ2}, 3')
            a(f's_lshl_b32 s{sJ2}, s{sJ2}, 13')
            a(f's_add_u32 s{sJ2}, s{sJ2}, s{sX0}')
        a(f's_add_u32 s{sT0}, s{sJ2}, {(ks % 8) * 1024}')
        a(f'buffer_load_dwordx4 {V(xr[ks % D],4)}, v{vL16}, {ws}, s{sT0} offen {LDF}')
        vm.add(('x', ks))
    for ks in range(D): xld(ks)
    a(f'v_and_b32 v{t0}, 31, v{l}')
    a(f'v_lshlrev_b32 v{t0}, 3, v{t0}')
    a(f'v_lshrrev_b32 v{t2}, 5, v{l}')
    a(f'v_lshl_add_u32 v{t0}, v{t2}, 17, v{t0}')
    a(f's_lshl_b32 s{T0}, s{sRB}, 10')
    a(f's_lshl_b32 s{T1}, s{sW}, 8')
    a(f's_add_u32 s{T0}, s{T0}, s{T1}')
    a(f's_add_u32 s{T0}, s{T0}, {hex(PS)}')
    for f in range(8):
        a(f'buffer_load_dwordx2 {V(ps+2*f,2)}, v{t0}, {ws}, s{T0} offen {LDF}'); vm.add('ps')
        a(f's_add_u32 s{T0}, s{T0}, 16384')
    def reads(ks, only=None):
        c, s = ks // CK, ks % CK; b = ks % 3
        for F in (range(3) if only is None else [only]):
            o = (c % NST) * STG + s * 3072 + F * 1024
            base = vTr
            if o + 256 > 65535: base, o = vTr2, o - 49152
            a(f'ds_read_b64_tr_b16 {V(wf[b][F],2)}, v{base} offset:{o}')
            a(f'ds_read_b64_tr_b16 {V(wf[b][F]+2,2)}, v{base} offset:{o+256}')
    def sync(c):
        if c == 0:
            a(f's_waitcnt vmcnt({vm.wait_for(("w", 2))})'); BAR(a)
        elif c == 1:
            BAR(a); wdma(3)
        elif c == 3:
            a(f's_waitcnt vmcnt({vm.wait_for(("w", 3))})'); BAR(a)
    sync(0)
    reads(0); reads(1)
    for ks in range(32):
        nx = ks + 2
        if nx < 32 and nx % CK == 0: sync(nx // CK)
        a(f's_waitcnt vmcnt({vm.wait_for(("x", ks))}) lgkmcnt({6 if ks + 1 < 32 else 0})')
        for F in range(3):
            a(f'{MF} {V(acc[F],16)}, {V(wf[ks%3][F],4)}, {V(xr[ks%D],4)}, {V(acc[F],16)}')
            if nx < 32: reads(nx, F)
        le = a.newlabel('Lcs')
        for F in range(3):
            ln = a.newlabel('Lcn')
            a(f's_cmp_lg_u32 s{sW}, {F}')
            a(f's_cbranch_scc1 {ln}')
            a(f'{MF} {V(cp,16)}, {V(ones,4)}, {V(wf[ks%3][F],4)}, {V(cp,16)}')
            if F < 2: a(f's_branch {le}')
            a.label(ln)
        a.label(le)
        if ks + D < 32: xld(ks + D)
        if ks == 12:
            for f in range(1, 8):
                a(f'v_add_f32 v{ps}, v{ps}, v{ps+2*f}')
                a(f'v_add_f32 v{ps+1}, v{ps+1}, v{ps+2*f+1}')
            a(f'v_mov_b32 v{ps+2}, v{ps}'); a(f'v_mov_b32 v{ps+3}, v{ps+1}')
            a('s_nop 1')
            a(f'v_permlane32_swap_b32 v{ps}, v{ps+2}')
            a(f'v_permlane32_swap_b32 v{ps+1}, v{ps+3}')
            a('s_nop 1')
            a(f'v_add_f32 v{ps}, v{ps}, v{ps+2}')
            a(f'v_add_f32 v{ps+1}, v{ps+1}, v{ps+3}')
            ln_scalars(a, ps, ps + 1, z, 512)
            a(f'v_mov_b32 v{rr}, v{z[3]}')
            a(f'v_mul_f32 v{mr}, v{z[1]}, v{z[3]}')
            a(f'v_sub_f32 v{mr}, 0, v{mr}')
    dstamp(a, 'g3loop')
    a(f'v_and_b32 v{t1}, 31, v{l}')
    a(f'v_lshlrev_b32 v{t1}, 2, v{t1}')
    a(f's_lshl_b32 s{T0}, s{sW}, 7')
    a(f's_add_u32 s{T0}, s{T0}, {CSL}')
    a(f'v_add_u32 v{t1}, s{T0}, v{t1}')
    a('s_nop 7')
    a(f'ds_write_b32 v{t1}, v{cp}')
    BAR(a)
    tmp = ps; cs = cp
    pk = [xr[0], xr[2]]; vC2 = z[0]
    a(f'v_mov_b32 v{vC2}, {hex(f32bits(GC2))}')
    a(f's_mov_b32 s{T2}, {hex(f32bits(GC1))}')
    a(f'v_lshrrev_b32 v{t1}, 5, v{l}')
    a(f'v_lshlrev_b32 v{t1}, 4, v{t1}')
    a(f'v_add_u32 v{t1}, {CSL}, v{t1}')
    a(f's_lshl_b32 s{T0}, s{sRB}, 2')
    a(f's_add_u32 s{T0}, s{T0}, s{sW}')
    a(f's_mul_i32 s{T0}, s{T0}, 86')
    a(f's_mul_i32 s{T1}, s{sCB}, 6')
    a(f's_add_u32 s{T0}, s{T0}, s{T1}')
    a(f's_lshl_b32 s{T0}, s{T0}, 10')
    a(f's_add_u32 s{T0}, s{T0}, {hex(H3F)}')
    lskip = a.newlabel('g3_skip')
    for F in range(3):
        if F == 1:
            a(f's_cmp_eq_u32 s{sCB}, 14')
            a(f's_cbranch_scc1 {lskip}')
        for q in range(4):
            a(f'ds_read_b128 {V(cs+4*q,4)}, v{t1} offset:{F*128 + q*32}')
        ac = acc[F]
        for i in range(16): a(f'v_mul_f32 v{ac+i}, v{ac+i}, v{rr}')
        a('s_waitcnt lgkmcnt(0)')
        for i in range(16): a(f'v_fma_f32 v{ac+i}, v{mr}, v{cs+i}, v{ac+i}')
        gelu_scalar(a, ac, 16, tmp, T2, vC2)
        a(f's_add_u32 s{T1}, s{T0}, {F*2048}')
        pack_swap_store(a, ac, pk[F % 2], vL16, T1)
    a.label(lskip)
    a(f's_lshl_b32 s{T1}, s{sRB}, 1')
    dstamp(a, 'g3epi')
    mb_signal(a, M_C3, 16, id_rows(a, T1, False))
    dstamp(a, 'g3sig')
    return va.hi

def g45_stage(a):
    va = RegAlloc(V0, 256); l = 1; vm = VM()
    map_64x64(a)
    srd(a, sWSRD, pW4, 1376 * 1024)
    srd(a, sW2SRD, pWO, 512 * 1024)
    srd(a, sAUX, pX, 2048 * 1024)
    g = WSK(a, va, sW, l, STMP, WD, vm, lds_base=B_BASE, ring_bytes=WRING)
    t0, t1, t2 = g.t
    wsk_woffs(a, g)
    wsk_xoffs(a, g, H3F, 86 * 1024)
    sO0, sO1 = 55, 56
    wsk_xoffs(a, g, OF, 32768, sO0, sO1)
    def cond(lab):
        a(f's_cmp_ge_u32 s{sW}, 2')
        a(f's_cbranch_scc1 {lab}')
    a(f's_cmp_lt_u32 s{sW}, 2')
    a(f's_cselect_b32 s{sNN}, 22, 21')
    rot8(a, sJ0, sJ1, 5)
    rot8(a, sJ2, sJ3)
    g.add_segment(22, sWS, [sX0, sX1], g.vL16, LDF, sWSRD, [sW0, sW1], sJ0, sJ1, [sNN], last_cond=cond)
    g.add_segment(8, sWS, [sO0, sO1], g.vL16, LDF, sW2SRD, [sW0, sW1], sJ2, sJ3, 8)
    vSt = va(); x1r = va(8, 4); xr = va(8, 4)
    request(a, B_C3)
    a(f'v_and_b32 v{t2}, 31, v{l}')
    a(f'v_lshlrev_b32 v{t2}, 10, v{t2}')
    a(f'v_lshrrev_b32 v{t0}, 5, v{l}')
    a(f'v_lshl_add_u32 v{t2}, v{t0}, 3, v{t2}')
    x_rowmajor_off(a, g, T0)
    for q in range(4):
        a(f'buffer_load_dwordx2 {V(xr+2*q,2)}, v{t2}, s[{sAUX}:{sAUX+3}], s{T0} offen offset:{q*16}'); vm.add('p')
    lane8_off(a, vSt, l, t0)
    frag_tile_off(a, T0, g, X1F, 32)
    for q in range(4):
        a(f'buffer_load_dwordx2 {V(x1r+2*q,2)}, v{vSt}, {ws}, s{T0} offen offset:{q*512} {LDF}'); vm.add('p')
    for i in range(WD): g.issue_w(i)
    g.nw = WD
    g.zero_acc(skip00=True)
    ac = g.acc[0][0]
    a(f's_waitcnt vmcnt({vm.wait_for("p")})')
    for j in range(8):
        a(f'v_lshlrev_b32 v{ac+2*j}, 16, v{xr+j}')
        a(f'v_and_b32 v{ac+2*j+1}, 0xffff0000, v{xr+j}')
        a(f'v_lshlrev_b32 v{t0}, 16, v{x1r+j}')
        a(f'v_and_b32 v{t1}, 0xffff0000, v{x1r+j}')
        a(f'v_add_f32 v{ac+2*j}, v{ac+2*j}, v{t0}')
        a(f'v_add_f32 v{ac+2*j+1}, v{ac+2*j+1}, v{t1}')
    dstamp(a, 'g4pre')
    wait_status(a, B_C3)
    dstamp(a, 'g4x')
    g.run(0, 22, xlimit=22)
    cstamp(a); dstamp(a, 'g4loop')
    wait_status(a, B_CA)
    dstamp(a, 'g5x')
    g.run(22, 30)
    dstamp(a, 'g5loop')
    ac = g.reduce()
    srd(a, sAUX, pOUT, 2048 * 1024)
    pk = g.acc[1][0]; vo = vSt
    a(f'v_and_b32 v{vo}, 31, v{l}')
    a(f'v_lshlrev_b32 v{vo}, 10, v{vo}')
    a(f'v_lshrrev_b32 v{t0}, 5, v{l}')
    a(f'v_lshl_add_u32 v{vo}, v{t0}, 4, v{vo}')
    x_rowmajor_off(a, g, T0)
    pack_swap(a, ac, pk)
    for pr in range(2):
        a(f'buffer_store_dwordx4 {V(pk+4*pr,4)}, v{vo}, s[{sAUX}:{sAUX+3}], s{T0} offen offset:{pr*32}')
    return va.hi

VT = 1056
ATT_BUF = 8192 + 8 * VT
NBUF = 4
def R(b, n): return V(b, n)

def att_head(a, sHead):
    a(f's_and_b32 s{T0}, s2, 7')
    a(f's_lshl_b32 s{sHead}, s{T0}, 2')
    a(f's_lshr_b32 s{T0}, s2, 3')
    a(f's_and_b32 s{T0}, s{T0}, 3')
    a(f's_add_u32 s{sHead}, s{sHead}, s{T0}')

def kv_loader(a):
    l = 1; vL16, vF, vV = 4, 6, 7
    sHead, sKoff, sVoff = sRB, sX0, sX1
    att_head(a, sHead)
    a(f'v_lshlrev_b32 v{vL16}, 4, v{l}')
    a(f's_lshl_b32 s{sKoff}, s{sHead}, 10')
    a(f's_add_u32 s{sVoff}, s{sKoff}, {hex(VF)}')
    a(f's_add_u32 s{sKoff}, s{sKoff}, {hex(KF)}')
    sLd, sCh = sW0, sW1
    a(f's_mov_b32 s{sLd}, 0')
    def lchunk(c):
        lp = a.newlabel('Lpk'); ld = a.newlabel('Lpkd')
        a.label(lp)
        a(f'ds_read_b32 v{vV}, v{vF} offset:{F_KVM}')
        a('s_waitcnt lgkmcnt(0)')
        a(f'v_readfirstlane_b32 s{T0}, v{vV}')
        a(f's_lshr_b32 s{T1}, s{T0}, 1')
        a(f's_and_b32 s{T0}, s{T0}, s{T1}')
        a(f's_and_b32 s{T0}, s{T0}, 0x5555')
        a(f's_andn2_b32 s{T0}, s{T0}, s{sLd}')
        a(f's_cbranch_scc1 {ld}')
        a('s_sleep 1')
        spin_guard(a)
        a(f's_branch {lp}')
        a.label(ld)
        a(f's_ff1_i32_b32 s{sCh}, s{T0}')
        a(f's_bitset1_b32 s{sLd}, s{sCh}')
        a(f's_lshl_b32 s{sCh}, s{sCh}, 17')
        a(f's_add_u32 s{T1}, s{sKoff}, s{sCh}')
        a(f's_add_u32 s{T2}, s{sVoff}, s{sCh}')
        b = (c % NBUF) * ATT_BUF
        for j in range(8):
            a(f's_mov_b32 m0, {b + j*1024}')
            a(f's_add_u32 s{T0}, s{T1}, {j*32768}')
            a(f'buffer_load_dwordx4 v{vL16}, {ws}, s{T0} offen {LDF} lds')
            a(f's_mov_b32 m0, {b + 8192 + j*VT}')
            a(f's_add_u32 s{T0}, s{T2}, {j*32768}')
            a(f'buffer_load_dwordx4 v{vL16}, {ws}, s{T0} offen {LDF} lds')
    def publish(c):
        a(f'v_mov_b32 v{vV}, {c + 1}')
        a(f'ds_write_b32 v{vF}, v{vV} offset:{F_KRDY}')
    wait_min4(a, F_WDONE, 8, 8)
    request(a, B_QKV)
    lchunk(0)
    a('s_waitcnt vmcnt(0)'); publish(0)
    lchunk(1)
    a('s_waitcnt vmcnt(0)'); publish(1)
    lchunk(2)
    lchunk(3) if False else None
    a('s_waitcnt vmcnt(0)'); publish(2)
    lchunk(3)
    if TOUCH:
        a('s_waitcnt vmcnt(0)'); publish(3)
        a('s_setprio 1')
        l2_touch(a, pW4, 1376 * 1024, 12, 13)
        l2_touch(a, pWO, 512 * 1024, 12, 13)
        a('s_setprio 3')
    for c in range(4, 8):
        wait_min4(a, F_KDONE, c - 3, 8, sleep=8)
        lchunk(c)
        a('s_waitcnt vmcnt(16)'); publish(c - 1)
    a('s_waitcnt vmcnt(0)'); publish(7)
    a('s_waitcnt lgkmcnt(0)')
    a('s_endpgm')

def att_compute(a):
    va = RegAlloc(V0, 256); l = 1
    sHead, sTT, sKoff, sVoff, sC, sBn, sFb = sRB, sCB, sX0, sX1, sW0, sW1, sRow0
    sEx = 50
    att_head(a, sHead)
    a(f's_lshr_b32 s{sTT}, s2, 5')
    a(f's_lshl_b32 s{sTT}, s{sTT}, 3')
    a(f's_lshl_b32 s{T0}, s{sW}, 1')
    a(f's_add_u32 s{sTT}, s{sTT}, s{T0}')
    a(f's_mov_b32 s{sEx}, 0x0000ffff'); a(f's_mov_b32 s{sEx+1}, 0x0000ffff')
    vL16 = va(); vVo = va(); t0 = va(); t1 = va()
    vK = [va(), va()]; vV0 = [va(), va()]; vV1 = [va(), va()]
    vV0b = va(); vV1b = va(); vF = va(); vDn = va(); vR = va(); vP = va()
    SA, SB_, NA, NB, OA, OB = [va(16, 4) for _ in range(6)]
    P = va(8, 4); QA = va(4); QB = va(4)
    K = [va(4), va(4)]; Vv = [va(8, 4), va(8, 4)]
    a(f'v_lshlrev_b32 v{vL16}, 4, v{l}')
    a(f's_mov_b32 s{sBn}, {ATT_BUF}')
    a(f'v_and_b32 v{vVo}, 15, v{l}')
    a(f'v_lshlrev_b32 v{vVo}, 4, v{vVo}')
    a(f'v_lshrrev_b32 v{t0}, 5, v{l}')
    a(f'v_lshl_add_u32 v{vVo}, v{t0}, 8, v{vVo}')
    a(f'v_and_b32 v{t0}, 31, v{l}')
    a(f'v_cmp_eq_u32 vcc, 16, v{t0}')
    a(f'v_mov_b32 v{t1}, {8192+1040}')
    a(f'v_mov_b32 v{vV0b}, {8192+1024}')
    a(f'v_cndmask_b32 v{t1}, v{t1}, v{vV0b}, vcc')
    a(f'v_cmp_gt_u32 vcc, 16, v{t0}')
    a(f'v_add_u32 v{vV0b}, 8192, v{vVo}')
    a(f'v_add_u32 v{vV1b}, {8192+512}, v{vVo}')
    a(f'v_cndmask_b32 v{vV0b}, v{t1}, v{vV0b}, vcc')
    a(f'v_cndmask_b32 v{vV1b}, v{t1}, v{vV1b}, vcc')
    a(f'v_and_b32 v{t0}, 1, v{l}')
    a(f'v_cmp_eq_u32 vcc, 0, v{t0}')
    a(f'v_mov_b32 v{t1}, 0x3f803f80')
    a(f'v_lshlrev_b32 v{t0}, 4, v{t0}')
    for i in range(4): a(f'v_cndmask_b32 v{P+i}, 0, v{t1}, vcc')
    a(f'v_lshrrev_b32 v{t1}, 4, v{l}')
    a(f's_mov_b32 s{T0}, {ATT_BUF}')
    a(f'v_mul_lo_u32 v{t1}, v{t1}, s{T0}')
    a(f'v_add_u32 v{t0}, v{t0}, v{t1}')
    a(f'v_bfe_u32 v{t1}, v{l}, 1, 3')
    a(f's_mov_b32 s{T0}, {VT}')
    a(f'v_mul_lo_u32 v{t1}, v{t1}, s{T0}')
    a(f'v_add_u32 v{t0}, v{t0}, v{t1}')
    a(f'ds_write_b128 v{t0}, {R(P,4)} offset:{8192+1024}')
    for i in range(16):
        a(f'v_mov_b32 v{OA+i}, 0'); a(f'v_mov_b32 v{OB+i}, 0')
    for i in range(4):
        a(f'v_mov_b32 v{P+4+i}, 0'); a(f'v_mov_b32 v{Vv[1]+4+i}, 0')
    a(f'v_mov_b32 v{vK[0]}, v{vL16}'); a(f'v_mov_b32 v{vV0[0]}, v{vV0b}'); a(f'v_mov_b32 v{vV1[0]}, v{vV1b}')
    a(f'v_add_u32 v{vK[1]}, {ATT_BUF}, v{vL16}')
    a(f'v_add_u32 v{vV0[1]}, {ATT_BUF}, v{vV0b}')
    a(f'v_add_u32 v{vV1[1]}, {ATT_BUF}, v{vV1b}')
    a(f's_mov_b32 s{sFb}, 0')
    a(f'v_mov_b32 v{vF}, {FL}')
    a(f's_lshl_b32 s{T0}, s{sW}, 2')
    a(f's_add_u32 s{T0}, s{T0}, {FL + F_KDONE}')
    a(f'v_mov_b32 v{vDn}, s{T0}')
    a(f'v_mov_b32 v{vP}, 0')
    request(a, B_QKV)
    lpq = a.newlabel('Lqm'); ldq = a.newlabel('Lqmd')
    a(f's_lshr_b32 s{T1}, s{sTT}, 2')
    a.label(lpq)
    a(f'ds_read_b32 v{vR}, v{vF} offset:{F_QM}')
    a('s_waitcnt lgkmcnt(0)')
    a(f'v_readfirstlane_b32 s{T0}, v{vR}')
    a(f's_bitcmp1_b32 s{T0}, s{T1}')
    a(f's_cbranch_scc1 {ldq}')
    a('s_sleep 1')
    spin_guard(a)
    a(f's_branch {lpq}')
    a.label(ldq)
    dstamp(a, 'aflag')
    a(f's_lshl_b32 s{T0}, s{sTT}, 5')
    a(f's_add_u32 s{T0}, s{T0}, s{sHead}')
    a(f's_lshl_b32 s{T0}, s{T0}, 10')
    a(f'buffer_load_dwordx4 {R(QA,4)}, v{vL16}, {ws}, s{T0} offen {LDF}')
    a(f's_add_u32 s{T0}, s{T0}, 32768')
    a(f'buffer_load_dwordx4 {R(QB,4)}, v{vL16}, {ws}, s{T0} offen {LDF}')
    def spin_ready(val):
        lp = a.newlabel('at_sp'); ld = a.newlabel('at_ok')
        a.label(lp)
        a(f'ds_read_b32 v{vR}, v{vF} offset:{F_KRDY}')
        a('s_waitcnt lgkmcnt(0)')
        a(f'v_readfirstlane_b32 s{T0}, v{vR}')
        a(f's_cmp_gt_u32 s{T0}, {val}')
        a(f's_cbranch_scc1 {ld}')
        a('s_sleep 1')
        spin_guard(a)
        a(f's_branch {lp}')
        a.label(ld)
    spin_ready('0')
    a('s_waitcnt vmcnt(0)')
    cstamp(a); dstamp(a, 'astart')
    a(f'ds_read_b128 {R(K[0],4)}, v{vK[0]}')
    a(f'ds_read_b128 {R(K[1],4)}, v{vK[0]} offset:1024')
    a(f'ds_read_b128 {R(Vv[0],4)}, v{vV0[0]}')
    a(f'ds_read_b128 {R(Vv[0]+4,4)}, v{vV1[0]}')
    a('s_waitcnt lgkmcnt(3)')
    a(f'{MF} {R(SA,16)}, {R(K[0],4)}, {R(QA,4)}, 0')
    a(f'{MF} {R(SB_,16)}, {R(K[0],4)}, {R(QB,4)}, 0')
    a('s_nop 10')
    def rowmax_to_neg(S_, N_):
        a(f'v_max3_f32 v{t0}, v{S_}, v{S_+1}, v{S_+2}')
        for i in range(3, 15, 2): a(f'v_max3_f32 v{t0}, v{t0}, v{S_+i}, v{S_+i+1}')
        a(f'v_max_f32 v{t0}, v{t0}, v{S_+15}')
        a(f'v_mov_b32 v{t1}, v{t0}')
        a('s_nop 1')
        a(f'v_permlane32_swap_b32 v{t0}, v{t1}')
        a('s_nop 1')
        a(f'v_max_f32 v{t0}, v{t0}, v{t1}')
        for i in range(16): a(f'v_sub_f32 v{N_+i}, 0, v{t0}')
    rowmax_to_neg(SA, NA)
    rowmax_to_neg(SB_, NB)
    a('s_nop 1')
    a(f'{MF} {R(SA,16)}, {R(K[0],4)}, {R(QA,4)}, {R(NA,16)}')
    a(f's_mov_b32 s{sC}, 0')
    a('s_waitcnt lgkmcnt(0)')
    a('s_nop 8')
    a('s_setprio 0')
    a.label('att_loop')
    for t in range(8):
        Kc, Kn = K[t % 2], K[(t + 1) % 2]
        Vc, Vn = Vv[t % 2], Vv[(t + 1) % 2]
        for sub in range(2):
            cur = [SA, SB_][sub]
            if sub == 0:
                qk = f'{MF} {R(SB_,16)}, {R(Kc,4)}, {R(QB,4)}, {R(NB,16)}'
                pv1 = f'{MF} {R(OB,16)}, {R(Vn+4,4)}, {R(P+4,4)}, {R(OB,16)}'
            else:
                qk = f'{MF} {R(SA,16)}, {R(Kn,4)}, {R(QA,4)}, {R(NA,16)}'
                pv1 = f'{MF} {R(OA,16)}, {R(Vc+4,4)}, {R(P+4,4)}, {R(OA,16)}'
            Oc = [OA, OB][sub]
            pv0 = f'{MF} {R(Oc,16)}, {R(Vc,4)}, {R(P,4)}, {R(Oc,16)}'
            ex = [f'v_exp_f32 v{cur+i}, v{cur+i}' for i in range(16)]
            cv = [f'v_cvt_pk_bf16_f32 v{P+i}, v{cur+2*i}, v{cur+2*i+1}' for i in range(8)]
            a(qk)
            for s in ex[0:6]: a(s)
            a(pv1)
            if sub == 0:
                a('s_waitcnt lgkmcnt(0)')
                if t == 6:
                    l1 = a.newlabel('att_rdy')
                    a(f'v_readfirstlane_b32 s{T0}, v{vR}')
                    a(f's_min_u32 s{T1}, s{sC}, 6')
                    a(f's_add_u32 s{T1}, s{T1}, 1')
                    a(f's_cmp_gt_u32 s{T0}, s{T1}')
                    a(f's_cbranch_scc1 {l1}')
                    spin_ready(f's{T1}')
                    a.label(l1)
                if t == 7:
                    a(f'v_add_u32 v{vP}, 1, v{vP}')
                    a(f'ds_write_b32 v{vDn}, v{vP}')
                if t == 5:
                    a(f'ds_read_b32 v{vR}, v{vF} offset:{F_KRDY}')
                kb = vK[0] if t + 2 < 8 else vK[1]
                b_ = 0 if t + 1 < 8 else 1
                a(f'ds_read_b128 {R(Kc,4)}, v{kb} offset:{((t+2)%8)*1024}')
                a(f'ds_read_b128 {R(Vn,4)}, v{vV0[b_]} offset:{((t+1)%8)*VT}')
                a(f'ds_read_b128 {R(Vn+4,4)}, v{vV1[b_]} offset:{((t+1)%8)*VT}')
            for s in ex[6:8] + cv[0:4] + ex[8:10]: a(s)
            a(pv0)
            for s in ex[10:16] + cv[4:8]: a(s)
    a(f'v_mov_b32 v{vK[0]}, v{vK[1]}'); a(f'v_mov_b32 v{vV0[0]}, v{vV0[1]}'); a(f'v_mov_b32 v{vV1[0]}, v{vV1[1]}')
    a(f's_add_u32 s{sBn}, s{sBn}, {ATT_BUF}')
    a(f's_cmp_eq_u32 s{sBn}, {NBUF*ATT_BUF}')
    a(f's_cselect_b32 s{sBn}, 0, s{sBn}')
    a(f'v_add_u32 v{vK[1]}, s{sBn}, v{vL16}')
    a(f'v_add_u32 v{vV0[1]}, s{sBn}, v{vV0b}')
    a(f'v_add_u32 v{vV1[1]}, s{sBn}, v{vV1b}')
    a(f's_add_u32 s{sC}, s{sC}, 1')
    a(f's_cmp_lt_u32 s{sC}, 8')
    a('s_cbranch_scc1 att_loop')
    a(f'{MF} {R(OB,16)}, {R(Vv[1]+4,4)}, {R(P+4,4)}, {R(OB,16)}')
    a('s_setprio 3')
    cstamp(a)
    a('s_waitcnt lgkmcnt(0)')
    a.label('att_fin')
    a('s_nop 12')
    LA, LB = SA, SA + 2
    for L_, O_ in ((LA, OA), (LB, OB)):
        a(f'v_mov_b32 v{L_}, v{O_+8}'); a(f'v_mov_b32 v{L_+1}, v{O_+8}')
    a('s_nop 1')
    a(f'v_permlane32_swap_b32 v{LA}, v{LA+1}')
    a(f'v_permlane32_swap_b32 v{LB}, v{LB+1}')
    lok = a.newlabel('att_ok')
    a(f's_cmp_lg_u32 s{sFb}, 0')
    a(f's_cbranch_scc1 {lok}')
    a(f's_mov_b32 s{T0}, {hex(f32bits(2.0**-60))}')
    a(f's_mov_b32 s{T1}, {hex(f32bits(2.0**60))}')
    a(f'v_cmp_nle_f32 vcc, s{T0}, v{LA}')
    a(f'v_cmp_nge_f32 s[54:55], s{T1}, v{LA}')
    a('s_or_b64 s[52:53], vcc, s[54:55]')
    a(f'v_cmp_nle_f32 vcc, s{T0}, v{LB}')
    a(f'v_cmp_nge_f32 s[54:55], s{T1}, v{LB}')
    a('s_or_b64 vcc, vcc, s[54:55]')
    a('s_or_b64 vcc, vcc, s[52:53]')
    a('s_cbranch_scc1 att_fallback')
    a.label(lok)
    a(f'v_rcp_f32 v{LA}, v{LA}')
    a(f'v_rcp_f32 v{LB}, v{LB}')
    a(f's_lshl_b32 s{T0}, s{sTT}, 5')
    a(f's_add_u32 s{T0}, s{T0}, s{sHead}')
    a(f's_lshl_b32 s{T0}, s{T0}, 10')
    a(f's_add_u32 s{T0}, s{T0}, {hex(OF)}')
    for n, (L_, O_) in enumerate(((LA, OA), (LB, OB))):
        for i in range(8): a(f'v_mul_f32 v{O_+i}, v{O_+i}, v{L_}')
        for i in range(4): a(f'v_cvt_pk_bf16_f32 v{P+4*n+i}, v{O_+2*i}, v{O_+2*i+1}')
        if n: a(f's_add_u32 s{T0}, s{T0}, 32768')
        a('s_nop 1')
        b = P + 4 * n
        a(f'v_permlane32_swap_b32 v{b}, v{b+2}')
        a(f'v_permlane32_swap_b32 v{b+1}, v{b+3}')
        a('s_nop 1')
        a(f'buffer_store_dwordx4 {R(b,4)}, v{vL16}, {ws}, s{T0} offen sc1')
    a(f's_lshr_b32 s{T1}, s{sTT}, 1')
    mb_signal(a, M_CA, 8, id_rows(a, T1, False), group=False)
    stamp_flush(a, 5, 1)
    a('s_endpgm')
    a.label('att_fallback')
    a(f's_mov_b32 s{sFb}, 1')
    a(f's_lshl_b32 s{sKoff}, s{sHead}, 10')
    a(f's_add_u32 s{sVoff}, s{sKoff}, {hex(VF)}')
    a(f's_add_u32 s{sKoff}, s{sKoff}, {hex(KF)}')
    for i in range(16):
        a(f'v_mov_b32 v{NA+i}, 0xff800000'); a(f'v_mov_b32 v{NB+i}, 0xff800000')
    a(f's_mov_b32 s{sC}, 0')
    a(f's_mov_b32 s{T0}, s{sKoff}')
    a.label('att_fb1')
    a(f'buffer_load_dwordx4 {R(K[0],4)}, v{vL16}, {ws}, s{T0} offen {LDF}')
    a('s_waitcnt vmcnt(0)')
    a(f'{MF} {R(SA,16)}, {R(K[0],4)}, {R(QA,4)}, 0')
    a(f'{MF} {R(SB_,16)}, {R(K[0],4)}, {R(QB,4)}, 0')
    a('s_nop 12')
    for i in range(16): a(f'v_max_f32 v{NA+i}, v{NA+i}, v{SA+i}')
    for i in range(16): a(f'v_max_f32 v{NB+i}, v{NB+i}, v{SB_+i}')
    a(f's_add_u32 s{T0}, s{T0}, 32768')
    a(f's_add_u32 s{sC}, s{sC}, 1')
    a(f's_cmp_lt_u32 s{sC}, 64')
    a('s_cbranch_scc1 att_fb1')
    for i in range(16):
        a(f'v_mov_b32 v{SA+i}, v{NA+i}'); a(f'v_mov_b32 v{SB_+i}, v{NB+i}')
    rowmax_to_neg(SA, NA)
    rowmax_to_neg(SB_, NB)
    for i in range(16):
        a(f'v_mov_b32 v{OA+i}, 0'); a(f'v_mov_b32 v{OB+i}, 0')
    a(f'v_and_b32 v{t0}, 31, v{l}')
    a(f'v_cmp_eq_u32 vcc, 16, v{t0}')
    a(f'v_mov_b32 v{t1}, 0x3f803f80')
    a('s_nop 0')
    for i in range(8): a(f'v_cndmask_b32 v{Vv[0]+i}, 0, v{t1}, vcc')
    a(f's_mov_b32 s{sC}, 0')
    a.label('att_fb2')
    a(f'buffer_load_dwordx4 {R(K[0],4)}, v{vL16}, {ws}, s{sKoff} offen {LDF}')
    a(f's_mov_b64 exec, s[{sEx}:{sEx+1}]')
    a(f'buffer_load_dwordx4 {R(Vv[0],4)}, v{vVo}, {ws}, s{sVoff} offen {LDF}')
    a(f'buffer_load_dwordx4 {R(Vv[0]+4,4)}, v{vVo}, {ws}, s{sVoff} offen offset:512 {LDF}')
    a('s_mov_b64 exec, -1')
    a('s_waitcnt vmcnt(0)')
    a(f'{MF} {R(SA,16)}, {R(K[0],4)}, {R(QA,4)}, {R(NA,16)}')
    a(f'{MF} {R(SB_,16)}, {R(K[0],4)}, {R(QB,4)}, {R(NB,16)}')
    a('s_nop 12')
    for S_, O_ in ((SA, OA), (SB_, OB)):
        for i in range(16): a(f'v_exp_f32 v{S_+i}, v{S_+i}')
        a('s_nop 0')
        for i in range(8): a(f'v_cvt_pk_bf16_f32 v{P+i}, v{S_+2*i}, v{S_+2*i+1}')
        a('s_nop 1')
        a(f'{MF} {R(O_,16)}, {R(Vv[0],4)}, {R(P,4)}, {R(O_,16)}')
        a(f'{MF} {R(O_,16)}, {R(Vv[0]+4,4)}, {R(P+4,4)}, {R(O_,16)}')
    a(f's_add_u32 s{sKoff}, s{sKoff}, 32768')
    a(f's_add_u32 s{sVoff}, s{sVoff}, 32768')
    a(f's_add_u32 s{sC}, s{sC}, 1')
    a(f's_cmp_lt_u32 s{sC}, 64')
    a('s_nop 7'); a('s_nop 7')
    a('s_cbranch_scc1 att_fb2')
    a('s_branch att_fin')
    return va.hi

def full_kernel(a):
    name = NAME + '_kernel'
    kernel_header(a, name)
    a('s_cmp_ge_u32 s2, 256')
    a('s_cbranch_scc1 k_end')
    stamp(a, 0)
    if os.environ.get('DBGT'):
        a('s_memtime s[64:65]'); a('s_memrealtime s[66:67]')
    a('s_mov_b32 s92, 0')
    a('s_load_dwordx4 s[24:27], s[0:1], 0')
    a('s_load_dwordx2 s[28:29], s[0:1], 16')
    a('s_load_dwordx2 s[30:31], s[0:1], 32')
    a('s_load_dwordx2 s[32:33], s[0:1], 40')
    a('s_load_dwordx8 s[84:91], s[0:1], 48')
    a('s_load_dwordx2 s[34:35], s[0:1], 80')
    SB.on = True; SB.base = FL + 64; SB.n = 0; SB.vA = vSA; SB.vB = vSB; SB.sT = T3; SB.maxn = 48
    a('v_cmp_gt_u32 vcc, 64, v0')
    a('s_and_saveexec_b64 s[36:37], vcc')
    lz = a.newlabel('Lz')
    a(f's_cbranch_execz {lz}')
    a('v_lshlrev_b32 v1, 2, v0')
    a(f'v_add_u32 v1, {FL}, v1')
    a('v_mov_b32 v2, 0')
    a('ds_write_b32 v1, v2')
    a.label(lz)
    a('s_mov_b64 exec, -1')
    sWv = 58
    wave_lane(a, sWv, 1)
    a('s_waitcnt lgkmcnt(0)')
    srd(a, sWS, pWS, WS_BYTES)
    a('s_barrier')
    a('s_setprio 3')
    a(f's_cmp_eq_u32 s{sWv}, 9')
    a('s_cbranch_scc1 k_sentinel')
    a(f's_cmp_eq_u32 s{sWv}, 4')
    a('s_cbranch_scc1 k_loader')
    sK = 59
    a(f's_sub_u32 s{sK}, s{sWv}, 1')
    a(f's_cmp_lt_u32 s{sWv}, 4')
    a(f's_cselect_b32 s{sK}, s{sWv}, s{sK}')
    hi = ln_stage(a, sK)
    a(f's_and_b32 s{sW}, s{sK}, 3')
    a(f's_cmp_ge_u32 s{sK}, 4')
    a('s_cbranch_scc1 k_chain')
    CS.n = 4 if LNST else 1
    hi = max(hi, qkv_compute(a))
    hi = max(hi, att_compute(a))
    a.label('k_chain')
    a(f's_setprio {PRIO}')
    a('v_subrev_u32 v0, 320, v0')
    CS.n = 4 if LNST else 1
    hi = max(hi, w1_stage(a))
    hi = max(hi, g2_stage(a))
    cstamp(a)
    hi = max(hi, g3_stage(a, 'k_g4'))
    a.label('k_g4')
    cstamp(a)
    hi = max(hi, g45_stage(a))
    stamp_flush(a, 5, 2)
    if os.environ.get('DBGT'):
        lq = a.newlabel('Ldbg')
        a('s_cmp_lg_u32 s2, 8')
        a(f's_cbranch_scc1 {lq}')
        a('s_waitcnt vmcnt(0)')
        a('s_memtime s[68:69]'); a('s_memrealtime s[70:71]')
        a('s_waitcnt lgkmcnt(0)')
        a('s_sub_u32 s68, s68, s64'); a('s_sub_u32 s70, s70, s66')
        srd(a, sDBG, pDBG, 256)
        a('v_mov_b32 v4, s68'); a('v_mov_b32 v5, s70'); a('v_mov_b32 v6, 4')
        a('s_mov_b64 exec, 1')
        a(f'buffer_store_dwordx2 v[4:5], v6, s[{sDBG}:{sDBG+3}], 0 offen')
        a.label(lq)
    a('s_endpgm')
    a.label('k_loader')
    a(f's_setprio {int(os.environ.get("LPRIO", "1"))}')
    qkv_loader(a)
    a('s_setprio 3')
    kv_loader(a)
    a.label('k_sentinel')
    sentinel(a)
    a.label('k_end')
    a('s_endpgm')
    SB.on = False
    return name, hi, LDS_TOTAL

if __name__ == '__main__':
    build([(full_kernel, 256, 640)], sys.argv[1])
```

```python
from core import *
MF = 'v_mfma_f32_32x32x16_bf16'
MPRIO = int(os.environ.get('MPRIO', '0'))

def trbase(a, v, l, t):
    a(f'v_lshrrev_b32 v{v}, 5, v{l}')
    a(f'v_lshlrev_b32 v{v}, 9, v{v}')
    a(f'v_bfe_u32 v{t}, v{l}, 2, 2')
    a(f'v_lshl_add_u32 v{v}, v{t}, 6, v{v}')
    a(f'v_bfe_u32 v{t}, v{l}, 4, 1')
    a(f'v_lshl_add_u32 v{v}, v{t}, 5, v{v}')
    a(f'v_and_b32 v{t}, 3, v{l}')
    a(f'v_lshl_add_u32 v{v}, v{t}, 3, v{v}')

def wdma_voff(a, v, l, t, rowbytes, sT):
    a(f'v_lshrrev_b32 v{t}, 2, v{l}')
    a(f's_mov_b32 s{sT}, {rowbytes}')
    a(f'v_mul_lo_u32 v{v}, v{t}, s{sT}')
    a(f'v_and_b32 v{t}, 3, v{l}')
    a(f'v_lshl_add_u32 v{v}, v{t}, 4, v{v}')

class VM:
    def __init__(self): self.l = []
    def add(self, tag='x'): self.l.append(tag)
    def wait_for(self, tag):
        last = max(i for i, v in enumerate(self.l) if v == tag)
        n = len(self.l) - 1 - last
        assert n <= 63, n
        return n

class WSK:
    def __init__(self, a, va, sW, vLane, stmp, D, vm, lds_base=0, ring_bytes=16384):
        self.a, self.va, self.sW, self.l, self.D, self.vm = a, va, sW, vLane, D, vm
        self.sT0, self.sT1, self.sM0, self.sWr, self.sWc = [stmp + i for i in range(5)]
        self.ring = ring_bytes; self.base = lds_base
        assert D * 2048 <= ring_bytes
        self.t0 = va(); self.t1 = va(); self.t2 = va()
        self.t = (self.t0, self.t1, self.t2)
        self.vL16 = va(); self.vTr = va(); self.vW = va()
        a(f's_lshr_b32 s{self.sWr}, s{sW}, 1')
        a(f's_and_b32 s{self.sWc}, s{sW}, 1')
        a(f's_mul_i32 s{self.sM0}, s{sW}, {ring_bytes}')
        if lds_base: a(f's_add_u32 s{self.sM0}, s{self.sM0}, {lds_base}')
        a(f'v_lshlrev_b32 v{self.vL16}, 4, v{vLane}')
        trbase(a, self.vTr, vLane, self.t0)
        a(f'v_add_u32 v{self.vTr}, s{self.sM0}, v{self.vTr}')
        wdma_voff(a, self.vW, vLane, self.t0, 1024, self.sT0)
        self.acc = [[va(16, 4) for F in range(2)] for T in range(2)]
        self.xr = [[va(4) for T in range(2)] for d in range(D)]
        self.wf = [[va(4) for F in range(2)] for b in range(2)]
        self.steps = []

    def zero_acc(self, skip00=False):
        if os.environ.get('C0', '1') == '1':
            self.fresh = {(T, F) for T in range(2) for F in range(2) if not (skip00 and T == 0 and F == 0)}
            return
        for T in range(2):
            for F in range(2):
                if skip00 and T == 0 and F == 0: continue
                for i in range(16):
                    self.a(f'v_mov_b32 v{self.acc[T][F]+i}, 0')

    def add_segment(self, n, xsrd, sX, xvoff, xflags, wsrd, sWo, sJx, sJw, sN, last_cond=None):
        a = self.a
        def adv(sJ):
            a(f's_add_u32 s{sJ}, s{sJ}, 1')
            if isinstance(sN, int) and (sN & (sN - 1)) == 0:
                a(f's_and_b32 s{sJ}, s{sJ}, {sN-1}')
            else:
                a(f's_cmp_lt_u32 s{sJ}, {sN if isinstance(sN, int) else "s%d" % sN[0]}')
                a(f's_cselect_b32 s{sJ}, s{sJ}, 0')
        for j in range(n):
            idx = len(self.steps)
            slot = idx % self.D
            def ix(T, slot=slot, idx=idx):
                a(f's_lshl_b32 s{self.sT1}, s{sJx}, 12')
                a(f's_add_u32 s{self.sT0}, s{sX[T]}, s{self.sT1}')
                a(f'buffer_load_dwordx4 {V(self.xr[slot][T],4)}, v{xvoff}, s[{xsrd}:{xsrd+3}], s{self.sT0} offen {xflags}')
                self.vm.add(('x', idx))
                if T == 1: adv(sJx)
            def iw(F, slot=slot, idx=idx):
                a(f's_add_u32 m0, s{self.sM0}, {slot * 2048 + F * 1024}')
                a(f's_lshl_b32 s{self.sT0}, s{sJw}, 16')
                a(f's_add_u32 s{self.sT1}, s{sWo[F]}, s{self.sT0}')
                a(f'buffer_load_dwordx4 v{self.vW}, s[{wsrd}:{wsrd+3}], s{self.sT1} offen lds')
                self.vm.add(('w', idx))
                if F == 1: adv(sJw)
            self.steps.append((ix, iw, last_cond if j == n - 1 else None))

    def issue_w(self, i):
        self.steps[i][1](0); self.steps[i][1](1)
    def issue_x(self, i):
        self.steps[i][0](0); self.steps[i][0](1)

    def _reads(self, idx):
        a = self.a
        slot = idx % self.D; b = idx % 2
        a(f's_waitcnt vmcnt({self.vm.wait_for(("w", idx))})')
        for F in range(2):
            o = slot * 2048 + F * 1024
            a(f'ds_read_b64_tr_b16 {V(self.wf[b][F],2)}, v{self.vTr} offset:{o}')
            a(f'ds_read_b64_tr_b16 {V(self.wf[b][F]+2,2)}, v{self.vTr} offset:{o+256}')

    def run(self, lo, hi, xlimit=None, wlimit=None, pre_issued_x=0, pre_issued_w=0):
        a = self.a
        N = len(self.steps)
        if xlimit is None: xlimit = N
        if wlimit is None: wlimit = N
        def issue_upto(done):
            while self.nw < min(wlimit, done + self.D):
                self.issue_w(self.nw); self.nw += 1
                if self.nx < min(xlimit, done + self.D) and self.nx < self.nw:
                    self.issue_x(self.nx); self.nx += 1
            while self.nx < min(xlimit, done + self.D):
                self.issue_x(self.nx); self.nx += 1
        issue_upto(lo)
        if getattr(self, 'after_issue', None):
            self.after_issue(); self.after_issue = None
        self._reads(lo)
        for idx in range(lo, hi):
            b = idx % 2; slot = idx % self.D
            cond = self.steps[idx][2]
            if idx + 1 < hi:
                self._reads(idx + 1)
                a(f's_waitcnt vmcnt({self.vm.wait_for(("x", idx))}) lgkmcnt(4)')
            else:
                a(f's_waitcnt vmcnt({self.vm.wait_for(("x", idx))}) lgkmcnt(0)')
            dow = self.nw == idx + self.D and self.nw < wlimit
            dox = self.nx == idx + self.D and self.nx < xlimit
            fresh = getattr(self, 'fresh', set()) if idx == 0 else set()
            mf = [f'{MF} {V(self.acc[T][F],16)}, {V(self.wf[b][F],4)}, {V(self.xr[slot][T],4)}, ' + ('0' if (T, F) in fresh else V(self.acc[T][F],16)) for T in range(2) for F in range(2)]
            if cond:
                lab = a.newlabel('Lsk'); cond(lab)
                if MPRIO: a('s_setprio 0')
                for m in mf: a(m)
                if MPRIO: a(f's_setprio {MPRIO}')
                a.label(lab)
            elif MPRIO:
                a('s_setprio 0')
                for m in mf: a(m)
                a(f's_setprio {MPRIO}')
            else:
                a(mf[0])
                if dow: self.steps[self.nw][1](0)
                a(mf[1])
                if dow: self.steps[self.nw][1](1); self.nw += 1
                a(mf[2])
                if dox: self.steps[self.nx][0](0)
                a(mf[3])
                if dox: self.steps[self.nx][0](1); self.nx += 1
            issue_upto(idx + 1)
    nx = 0; nw = 0

    def reduce(self):
        a = self.a
        vW_ = self.t0; vR = self.t1
        a(f'v_add_u32 v{vW_}, s{self.sM0}, v{self.vL16}')
        a('s_nop 10')
        for q in range(1, 4):
            ac = self.acc[q >> 1][q & 1]
            for i in range(4):
                a(f'ds_write_b128 v{vW_}, {V(ac+4*i,4)} offset:{(q-1)*4096 + i*1024}')
        a('s_waitcnt lgkmcnt(0)')
        BAR(a)
        for q in range(1, 4):
            ac = self.acc[q >> 1][q & 1]
            a(f's_xor_b32 s{self.sT0}, s{self.sW}, {q}')
            a(f's_mul_i32 s{self.sT0}, s{self.sT0}, {self.ring}')
            if self.base: a(f's_add_u32 s{self.sT0}, s{self.sT0}, {self.base}')
            a(f'v_add_u32 v{vR}, s{self.sT0}, v{self.vL16}')
            for i in range(4):
                a(f'ds_read_b128 {V(ac+4*i,4)}, v{vR} offset:{(q-1)*4096 + i*1024}')
        o = self.acc[0][0]
        for q in range(1, 4):
            ac = self.acc[q >> 1][q & 1]
            a(f's_waitcnt lgkmcnt({(3-q)*4})')
            for i in range(16):
                a(f'v_add_f32 v{o+i}, v{o+i}, v{ac+i}')
        return o
```

```python
import sys
from core2 import *

XNF  = 0x1200000
XNNF = 0x1400000
CL, CQ, C1, C2, C3, CA, CC = [FLG + i * 128 for i in (0, 16, 32, 64, 96, 112, 144)]
NCNT = 192

A_SIZE = 73728
FL = A_SIZE
F_STATUS, F_WRDY, F_KRDY, F_REQ, F_WDONE, F_KDONE = 0, 4, 8, 12, 16, 32
B_BASE = FL + 256
B_SIZE = 74752
LDS_TOTAL = B_BASE + B_SIZE
ZOK = 1 << 31
B_QKV, B_C1, B_C2, B_C3, B_CA, B_XA, B_XB = 1, 2, 4, 8, 16, 0x100, 0x200
ALLB = 0x1f
M_QKV, M_C1, M_C2, M_C3, M_CA = 0, 4, 8, 12, 16
F_MZ = 48
F_QM, F_KVM = 52, 56

ws = f's[{sWS}:{sWS+3}]'
PRIO = int(os.environ.get('PRIO', '2'))
WD = int(os.environ.get('WD', '7')); WRING = 16384
sW, sRB, sCB, sRow0 = 36, 37, 38, 39
sX0, sX1, sW0, sW1 = 40, 41, 42, 47
T0, T1, T2, T3 = 43, 44, 45, 46
STMP = 48
sW2SRD = 20
sJ0, sJ1, sJ2, sJ3, sNN = 60, 61, 62, 63, 57
pX, pQKV, pWO, pW1, pW2, pW3, pW4, pOUT, pDBG, pWS = 24, 26, 28, 30, 32, 84, 86, 88, 90, 34
vSA, vSB = 2, 3
V0 = 4

LNST = os.environ.get('LNST', '0') == '1'
TOUCH = os.environ.get('TOUCH', '1') == '1'
LDF = os.environ.get('LDF', '')
class CS:
    n = 1
DST = [x for x in os.environ.get('DST', '').split(',') if x]
def cstamp(a):
    if DST: return
    if CS.n <= 4: stamp(a, CS.n)
    CS.n += 1
def dstamp(a, name):
    if name in DST: stamp(a, DST.index(name) + 1)

def request(a, mask):
    a(f'v_mov_b32 v{vSA}, {FL}')
    a(f'v_mov_b32 v{vSB}, {hex(mask)}')
    a('s_mov_b64 exec, 1')
    a(f'ds_or_b32 v{vSA}, v{vSB} offset:{F_REQ}')
    a('s_mov_b64 exec, -1')

def wait_status(a, mask, sleep=1):
    lp = a.newlabel('Lws'); ld = a.newlabel('Lwd')
    if mask != ZOK: request(a, mask)
    else: a(f'v_mov_b32 v{vSA}, {FL}')
    a.label(lp)
    a(f'ds_read_b32 v{vSB}, v{vSA} offset:{F_STATUS}')
    a('s_waitcnt lgkmcnt(0)')
    a(f'v_readfirstlane_b32 s{T3}, v{vSB}')
    a(f's_and_b32 s{T3}, s{T3}, {hex(mask)}')
    a(f's_cmp_eq_u32 s{T3}, {hex(mask)}')
    a(f's_cbranch_scc1 {ld}')
    a(f's_sleep {sleep}')
    spin_guard(a)
    a(f's_branch {lp}')
    a.label(ld)

def wait_lds_ge(a, off, val, sleep=1):
    lp = a.newlabel('Lwl'); ld = a.newlabel('Lwld')
    a(f'v_mov_b32 v{vSA}, {FL}')
    a.label(lp)
    a(f'ds_read_b32 v{vSB}, v{vSA} offset:{off}')
    a('s_waitcnt lgkmcnt(0)')
    a(f'v_readfirstlane_b32 s{T3}, v{vSB}')
    a(f's_cmp_ge_u32 s{T3}, {val}')
    a(f's_cbranch_scc1 {ld}')
    a(f's_sleep {sleep}')
    spin_guard(a)
    a(f's_branch {lp}')
    a.label(ld)

def wait_min4(a, off, val, q, sleep=2):
    lp = a.newlabel('Lwm'); ld = a.newlabel('Lwmd')
    a(f'v_mov_b32 v{vSA}, {FL}')
    a.label(lp)
    a(f'ds_read_b128 {V(q,4)}, v{vSA} offset:{off}')
    a('s_waitcnt lgkmcnt(0)')
    a(f'v_min_u32 v{q}, v{q}, v{q+1}')
    a(f'v_min3_u32 v{q}, v{q}, v{q+2}, v{q+3}')
    a('s_nop 0')
    a(f'v_readfirstlane_b32 s{T3}, v{q}')
    a(f's_cmp_ge_u32 s{T3}, {val}')
    a(f's_cbranch_scc1 {ld}')
    a(f's_sleep {sleep}')
    spin_guard(a)
    a(f's_branch {lp}')
    a.label(ld)

def signal(a, offs, nw=4, need_zok=False, srdn=sWS):
    a('s_waitcnt vmcnt(0)')
    SB.nw = nw; BAR(a); SB.nw = 4
    lab = a.newlabel('Lsig')
    a(f's_cmp_lg_u32 s{sW}, 0')
    a(f's_cbranch_scc1 {lab}')
    if need_zok: wait_status(a, ZOK)
    if srdn != sWS: wait_lds_ge(a, F_MZ, 1)
    a(f'v_mov_b32 v{vSA}, 0')
    a(f'v_mov_b32 v{vSB}, 1')
    a('s_mov_b64 exec, 1')
    for o in offs:
        a(f'buffer_atomic_add v{vSB}, v{vSA}, s[{srdn}:{srdn+3}], s{o} offen sc1')
    a('s_mov_b64 exec, -1')
    a.label(lab)

def mb_signal(a, word, nl, idfn, need_zok=False, group=True):
    a('s_waitcnt vmcnt(0)')
    if word == M_QKV: dstamp(a, 'qdrain')
    lab = a.newlabel('Lsig')
    if group:
        BAR(a)
        if word == M_QKV: dstamp(a, 'qbar')
        a(f's_cmp_lg_u32 s{sW}, 0')
        a(f's_cbranch_scc1 {lab}')
    if need_zok: wait_status(a, ZOK)
    masked = idfn(vSA, vSB)
    a(f'v_lshlrev_b32 v{vSA}, 7, v{vSA}')
    if word == M_QKV:
        a(f's_mul_i32 s{T0}, s{sCB}, 3')
        a(f'v_lshrrev_b32 v{vSB}, 4, v1')
        a(f'v_add_u32 v{vSB}, s{T0}, v{vSB}')
        a(f'v_lshrrev_b32 v{vSB}, 4, v{vSB}')
        a(f'v_lshl_add_u32 v{vSA}, v{vSB}, 2, v{vSA}')
        a(f's_lshl_b32 s{T0}, 1, s{sRB}')
        a(f'v_mov_b32 v{vSB}, s{T0}')
        a(f's_mov_b32 s{T0}, {hex(FLG + 20)}')
    else:
        a(f'v_mov_b32 v{vSB}, 1')
        a(f's_mov_b32 s{T0}, {hex(FLG + word)}')
    a(f's_mov_b32 exec_lo, {hex((1 << min(nl, 32)) - 1)}'); a(f's_mov_b32 exec_hi, {hex((1 << max(nl - 32, 0)) - 1)}')
    if masked: a('s_and_b64 exec, exec, vcc')
    a(f'buffer_atomic_{"or" if word == M_QKV else "add"} v{vSB}, v{vSA}, {ws}, s{T0} offen sc1')
    a('s_mov_b64 exec, -1')
    a.label(lab)

def id64(a, vId, vRb, vCb):
    a(f'v_lshlrev_b32 v{vCb}, 5, v{vCb}')
    a(f'v_lshrrev_b32 v{vId if vId != vRb else vCb+0}, 0, v{vId if vId != vRb else vCb+0}') if False else None

def map_64x64(a):
    a(f's_and_b32 s{T0}, s2, 7')
    a(f's_lshr_b32 s{T1}, s2, 3')
    a(f's_lshl_b32 s{sRB}, s{T0}, 2')
    a(f's_and_b32 s{T2}, s{T1}, 3')
    a(f's_add_u32 s{sRB}, s{sRB}, s{T2}')
    a(f's_lshr_b32 s{sCB}, s{T1}, 2')
def map_g3(a):
    a(f's_and_b32 s{T0}, s2, 7')
    a(f's_lshr_b32 s{T1}, s2, 3')
    a(f's_lshl_b32 s{sRB}, s{T0}, 1')
    a(f's_and_b32 s{T2}, s{T1}, 1')
    a(f's_add_u32 s{sRB}, s{sRB}, s{T2}')
    a(f's_lshr_b32 s{sCB}, s{T1}, 1')
def map_qkv(a):
    a(f's_and_b32 s{T0}, s2, 7')
    a(f's_lshr_b32 s{T1}, s2, 3')
    a(f's_lshr_b32 s{T2}, s{T0}, 1')
    a(f's_lshl_b32 s{T2}, s{T2}, 2')
    a(f's_and_b32 s{T3}, s{T1}, 3')
    a(f's_add_u32 s{sRB}, s{T2}, s{T3}')
    a(f's_and_b32 s{T2}, s{T0}, 1')
    a(f's_lshl_b32 s{T2}, s{T2}, 3')
    a(f's_lshr_b32 s{T3}, s{T1}, 2')
    a(f's_add_u32 s{sCB}, s{T2}, s{T3}')
def rot8(a, d0, d1, mul=1):
    a(f's_and_b32 s{T0}, s{sRB}, 3')
    a(f's_lshl_b32 s{T0}, s{T0}, 1')
    a(f's_add_u32 s{T0}, s{T0}, s{sCB}')
    a(f's_and_b32 s{d0}, s{T0}, 7')
    if mul != 1:
        a(f's_mul_i32 s{d0}, s{d0}, {mul}')
        a(f's_lshr_b32 s{d0}, s{d0}, 1')
    a(f's_mov_b32 s{d1}, s{d0}')

def pack_swap(a, ac, pk):
    for i in range(8):
        a(f'v_cvt_pk_bf16_f32 v{pk+i}, v{ac+2*i}, v{ac+2*i+1}')
    a('s_nop 1')
    for pr in range(2):
        b = pk + 4 * pr
        a(f'v_permlane32_swap_b32 v{b}, v{b+2}')
        a(f'v_permlane32_swap_b32 v{b+1}, v{b+3}')
    a('s_nop 1')
def pack_swap_store(a, ac, pk, voff, sOff):
    pack_swap(a, ac, pk)
    for pr in range(2):
        a(f'buffer_store_dwordx4 {V(pk+4*pr,4)}, v{voff}, {ws}, s{sOff} offen offset:{pr*1024} sc1')

def frag_tile_off(a, sDst, g, base, nks):
    a(f's_lshl_b32 s{sDst}, s{sRB}, 1')
    a(f's_add_u32 s{sDst}, s{sDst}, s{g.sWr}')
    a(f's_mul_i32 s{sDst}, s{sDst}, {nks}')
    a(f's_lshl_b32 s{T3}, s{sCB}, 2')
    a(f's_add_u32 s{sDst}, s{sDst}, s{T3}')
    a(f's_lshl_b32 s{T3}, s{g.sWc}, 1')
    a(f's_add_u32 s{sDst}, s{sDst}, s{T3}')
    a(f's_lshl_b32 s{sDst}, s{sDst}, 10')
    a(f's_add_u32 s{sDst}, s{sDst}, {hex(base)}')
def wsk_woffs(a, g):
    a(f's_lshl_b32 s{sW0}, s{sW}, 14')
    a(f's_lshl_b32 s{T0}, s{sCB}, 7')
    a(f's_add_u32 s{sW0}, s{sW0}, s{T0}')
    a(f's_lshl_b32 s{T0}, s{g.sWc}, 6')
    a(f's_xor_b32 s{T1}, s{T0}, 64')
    a(f's_add_u32 s{sW1}, s{sW0}, s{T1}')
    a(f's_add_u32 s{sW0}, s{sW0}, s{T0}')
def wsk_xoffs(a, g, base, xtile, d0=sX0, d1=sX1):
    a(f's_lshl_b32 s{T0}, s{sRB}, 1')
    a(f's_add_u32 s{T1}, s{T0}, s{g.sWr}')
    a(f's_mul_i32 s{d0}, s{T1}, {xtile}')
    a(f's_xor_b32 s{T1}, s{T1}, 1')
    a(f's_mul_i32 s{d1}, s{T1}, {xtile}')
    a(f's_lshl_b32 s{T0}, s{sW}, 10')
    a(f's_add_u32 s{T0}, s{T0}, {hex(base)}')
    a(f's_add_u32 s{d0}, s{d0}, s{T0}')
    a(f's_add_u32 s{d1}, s{d1}, s{T0}')
def x_rowmajor_off(a, g, sDst):
    a(f's_lshl_b32 s{sDst}, s{sRB}, 16')
    a(f's_lshl_b32 s{T1}, s{g.sWr}, 15')
    a(f's_add_u32 s{sDst}, s{sDst}, s{T1}')
    a(f's_lshl_b32 s{T1}, s{sCB}, 7')
    a(f's_add_u32 s{sDst}, s{sDst}, s{T1}')
    a(f's_lshl_b32 s{T1}, s{g.sWc}, 6')
    a(f's_add_u32 s{sDst}, s{sDst}, s{T1}')
def lane8_off(a, v, l, t):
    a(f'v_and_b32 v{v}, 31, v{l}')
    a(f'v_lshlrev_b32 v{v}, 4, v{v}')
    a(f'v_lshrrev_b32 v{t}, 5, v{l}')
    a(f'v_lshl_add_u32 v{v}, v{t}, 3, v{v}')
def unpack(a, src, dst, n):
    for j in range(n):
        a(f'v_lshlrev_b32 v{dst+2*j}, 16, v{src+j}')
        a(f'v_and_b32 v{dst+2*j+1}, 0xffff0000, v{src+j}')
def ln_scalars(a, mean, ex2, q, n):
    var, m1, s1, rs = q[0], q[1], q[2], q[3]
    a(f'v_mul_f32 v{mean}, {hex(f32bits(1/n))}, v{mean}')
    a(f'v_mul_f32 v{ex2}, {hex(f32bits(1/n))}, v{ex2}')
    a(f'v_fma_f32 v{var}, -v{mean}, v{mean}, v{ex2}')
    a(f'v_max_f32 v{var}, 0, v{var}')
    a(f'v_mov_b32 v{m1}, v{mean}'); bf16_round(a, m1)
    a(f'v_mov_b32 v{s1}, v{var}'); bf16_round(a, s1)
    a(f'v_add_f32 v{s1}, {hex(f32bits(EPS))}, v{s1}'); bf16_round(a, s1)
    a(f'v_sqrt_f32 v{s1}, v{s1}'); a('s_nop 0'); bf16_round(a, s1)
    a(f'v_rcp_f32 v{rs}, v{s1}'); a('s_nop 0')

def ln_stage(a, sK):
    va = RegAlloc(V0, 256); l = 1
    raw = va(4); x = va(8, 4); d = va(8, 4); pk = [va(4), va(4)]; s_ = va(); t_ = va(); vL16 = va(); vT = va()
    a(f'v_lshlrev_b32 v{vL16}, 4, v{l}')
    srd(a, sAUX, pX, 2048 * 1024)
    a(f's_lshl_b32 s{T0}, s2, 3')
    a(f's_add_u32 s{T0}, s{T0}, s{sK}')
    a(f's_lshl_b32 s{T0}, s{T0}, 10')
    a(f'buffer_load_dwordx4 {V(raw,4)}, v{vL16}, s[{sAUX}:{sAUX+3}], s{T0} offen')
    a('s_waitcnt vmcnt(0)')
    if LNST: stamp(a, 1)
    def wave_sum_to_sgpr(r, sD):
        dpp_wave_sum(a, [r], None)
        a('s_nop 0')
        a(f'v_readlane_b32 s{sD}, v{r}, 63')
    for which in range(2):
        src = raw if which == 0 else pk[0]
        unpack(a, src, x, 4)
        a(f'v_add_f32 v{s_}, v{x}, v{x+1}')
        a(f'v_mul_f32 v{t_}, v{x}, v{x}')
        a(f'v_add_f32 v{d}, v{x+2}, v{x+3}')
        a(f'v_mul_f32 v{d+1}, v{x+1}, v{x+1}')
        a(f'v_add_f32 v{d+2}, v{x+4}, v{x+5}')
        a(f'v_fma_f32 v{t_}, v{x+2}, v{x+2}, v{t_}')
        a(f'v_add_f32 v{d+3}, v{x+6}, v{x+7}')
        a(f'v_fma_f32 v{d+1}, v{x+3}, v{x+3}, v{d+1}')
        a(f'v_add_f32 v{s_}, v{s_}, v{d}')
        a(f'v_fma_f32 v{t_}, v{x+4}, v{x+4}, v{t_}')
        a(f'v_add_f32 v{d+2}, v{d+2}, v{d+3}')
        a(f'v_fma_f32 v{d+1}, v{x+5}, v{x+5}, v{d+1}')
        a(f'v_fma_f32 v{t_}, v{x+6}, v{x+6}, v{t_}')
        a(f'v_fma_f32 v{d+1}, v{x+7}, v{x+7}, v{d+1}')
        a(f'v_add_f32 v{s_}, v{s_}, v{d+2}')
        a(f'v_add_f32 v{t_}, v{t_}, v{d+1}')
        dpp_wave_sum(a, [s_, t_], None)
        a('s_nop 0')
        a(f'v_readlane_b32 s{T1}, v{s_}, 63')
        a(f'v_readlane_b32 s{T2}, v{t_}, 63')
        a('s_nop 1')
        a(f'v_mov_b32 v{s_}, s{T1}')
        a(f'v_mov_b32 v{t_}, s{T2}')
        a(f'v_mul_f32 v{s_}, {hex(f32bits(1/512))}, v{s_}')
        a(f'v_mul_f32 v{t_}, {hex(f32bits(1/512))}, v{t_}')
        a(f'v_fma_f32 v{t_}, -v{s_}, v{s_}, v{t_}')
        a(f'v_max_f32 v{t_}, 0, v{t_}')
        bf16_round(a, s_)
        bf16_round(a, t_)
        a(f'v_add_f32 v{t_}, {hex(f32bits(EPS))}, v{t_}'); bf16_round(a, t_)
        a(f'v_sqrt_f32 v{t_}, v{t_}'); a('s_nop 0'); bf16_round(a, t_)
        a(f'v_rcp_f32 v{t_}, v{t_}')
        for j in range(8): a(f'v_sub_f32 v{d+j}, v{x+j}, v{s_}')
        for j in range(4): a(f'v_cvt_pk_bf16_f32 v{x+j}, v{d+2*j}, v{d+2*j+1}')
        unpack(a, x, d, 4)
        for j in range(8): a(f'v_mul_f32 v{d+j}, v{d+j}, v{t_}')
        for j in range(4): a(f'v_cvt_pk_bf16_f32 v{pk[which]+j}, v{d+2*j}, v{d+2*j+1}')
    a(f's_mul_i32 s{T0}, s{sK}, 1040')
    a(f's_add_u32 s{T0}, s{T0}, {B_BASE}')
    a(f'v_add_u32 v{vT}, s{T0}, v{vL16}')
    a(f'ds_write_b128 v{vT}, {V(pk[0],4)}')
    a(f'ds_write_b128 v{vT}, {V(pk[1],4)} offset:8320')
    SB.nw = 8; BAR(a); SB.nw = 4
    a(f'v_and_b32 v{s_}, 7, v{l}')
    a(f's_mov_b32 s{T0}, 1040')
    a(f'v_mul_lo_u32 v{vT}, v{s_}, s{T0}')
    a(f'v_lshrrev_b32 v{t_}, 3, v{l}')
    a(f'v_lshl_add_u32 v{vT}, v{t_}, 4, v{vT}')
    a(f's_lshl_b32 s{T0}, s{sK}, 7')
    a(f's_add_u32 s{T0}, s{T0}, {B_BASE}')
    a(f'v_add_u32 v{vT}, s{T0}, v{vT}')
    a(f'ds_read_b128 {V(pk[0],4)}, v{vT}')
    a(f'ds_read_b128 {V(pk[1],4)}, v{vT} offset:8320')
    a(f'v_lshlrev_b32 v{vT}, 9, v{t_}')
    a(f'v_lshl_add_u32 v{vT}, v{s_}, 4, v{vT}')
    a(f's_lshr_b32 s{T0}, s2, 2')
    a(f's_lshl_b32 s{T0}, s{T0}, 15')
    a(f's_and_b32 s{T1}, s2, 3')
    a(f's_lshl_b32 s{T1}, s{T1}, 7')
    a(f's_add_u32 s{T0}, s{T0}, s{T1}')
    a(f's_lshl_b32 s{T1}, s{sK}, 12')
    a(f's_add_u32 s{T0}, s{T0}, s{T1}')
    a(f's_add_u32 s{T0}, s{T0}, {hex(XNF)}')
    a(f's_add_u32 s{T1}, s{T0}, {hex(XNNF - XNF)}')
    a('s_waitcnt lgkmcnt(0)')
    a(f'buffer_store_dwordx4 {V(pk[0],4)}, v{vT}, {ws}, s{T0} offen sc1')
    a(f'buffer_store_dwordx4 {V(pk[1],4)}, v{vT}, {ws}, s{T1} offen sc1')
    if LNST: stamp(a, 2)
    a(f's_and_b32 s{T0}, s2, 0xf0')
    a(f's_mov_b32 s{sW}, s{sK}')
    srd(a, sDBG, pDBG, 256)
    signal(a, [T0], nw=8, srdn=sDBG)
    if LNST: stamp(a, 3)
    return va.hi

def sentinel(a):
    l = 1
    vOff, vTgt, vVal, vZ, vF, vD = 4, 5, 6, 7, 8, 9
    sDone, sAct, sMA, sMB, sMb = sX0, sX1, sW0, sW1, sRow0
    srd(a, sDBG, pDBG, 256)
    a(f'v_mov_b32 v{vZ}, 0')
    a(f'v_mov_b32 v{vF}, {FL}')
    a(f'v_lshlrev_b32 v{vOff}, 2, v{l}')
    a(f's_lshl_b32 s{sMb}, s2, 7')
    a(f's_add_u32 s{sMb}, s{sMb}, {hex(FLG)}')
    a('s_mov_b64 exec, 0xff')
    a(f'buffer_store_dword v{vZ}, v{vOff}, {ws}, s{sMb} offen sc1')
    a('s_mov_b64 exec, -1')
    a(f'v_lshlrev_b32 v{vD}, 4, v{l}')
    map_qkv(a)
    a(f's_mov_b32 s{sMA}, s{sRB}')
    map_g3(a)
    a(f's_cmp_ge_u32 s{sCB}, 15')
    a(f's_cselect_b32 s{sDone}, {hex(B_C2)}, 0')
    map_64x64(a)
    a(f's_lshr_b32 s{sMB}, s{sRB}, 1')
    a(f'v_mov_b32 v{vTgt}, 0')
    a(f's_mov_b32 s{T3}, -1')
    for ln_ in (0, 5, 6, 7): a(f'v_writelane_b32 v{vTgt}, s{T3}, {ln_}')
    a(f's_sub_u32 s{T0}, s{sRB}, 1')
    a(f's_cmp_lt_u32 s{T0}, 30')
    a(f's_cselect_b32 s{T3}, 24, 16'); a(f'v_writelane_b32 v{vTgt}, s{T3}, 1')
    a(f's_mov_b32 s{T3}, 16'); a(f'v_writelane_b32 v{vTgt}, s{T3}, 2')
    a(f's_mov_b32 s{T3}, 15'); a(f'v_writelane_b32 v{vTgt}, s{T3}, 3')
    a(f's_mov_b32 s{T3}, 32'); a(f'v_writelane_b32 v{vTgt}, s{T3}, 4')
    a(f'v_mov_b32 v{vVal}, 1')
    a('s_waitcnt vmcnt(0)')
    a(f'ds_write_b32 v{vF}, v{vVal} offset:{F_MZ}')
    lp = a.newlabel('Lp1'); lw = a.newlabel('Lp1w')
    a.label(lw)
    spin_guard(a)
    a('s_sleep 2')
    a(f'ds_read_b32 v{vVal}, v{vF} offset:{F_REQ}')
    a('s_waitcnt lgkmcnt(0)')
    a(f'v_readfirstlane_b32 s{T0}, v{vVal}')
    a(f's_cmp_eq_u32 s{T0}, 0')
    a(f's_cbranch_scc1 {lw}')
    a('s_mov_b64 exec, 0xffff')
    a.label(lp)
    spin_guard(a)
    a(f's_sleep {int(os.environ.get("P1S", "12"))}')
    a(f'buffer_load_dword v{vVal}, v{vD}, s[{sDBG}:{sDBG+3}], 0 offen sc1')
    a('s_waitcnt vmcnt(0)')
    a(f'v_cmp_le_u32 vcc, 16, v{vVal}')
    a(f's_lshr_b32 s{T0}, vcc_lo, s{sMA}')
    a(f's_and_b32 s{T0}, s{T0}, 1')
    a(f's_lshl_b32 s{T0}, s{T0}, 8')
    a(f's_or_b32 s{sDone}, s{sDone}, s{T0}')
    a(f's_lshr_b32 s{T0}, vcc_lo, s{sMB}')
    a(f's_and_b32 s{T0}, s{T0}, 1')
    a(f's_lshl_b32 s{T0}, s{T0}, 9')
    a(f's_or_b32 s{sDone}, s{sDone}, s{T0}')
    a('s_cmp_eq_u32 vcc_lo, 0xffff')
    a(f's_cselect_b32 s{T0}, {hex(ZOK)}, 0')
    a(f's_or_b32 s{sDone}, s{sDone}, s{T0}')
    a(f'v_mov_b32 v{vVal}, s{sDone}')
    a(f'ds_write_b32 v{vF}, v{vVal} offset:{F_STATUS}')
    a('s_cmp_lg_u32 vcc_lo, 0xffff')
    a(f's_cbranch_scc1 {lp}')
    lp = a.newlabel('Lp2')
    a('s_mov_b64 exec, 0xff')
    a.label(lp)
    spin_guard(a)
    a('s_sleep 1')
    a(f'ds_read_b32 v{vVal}, v{vF} offset:{F_REQ}')
    a('s_waitcnt lgkmcnt(0)')
    a(f'v_readfirstlane_b32 s{sAct}, v{vVal}')
    a(f's_andn2_b32 s{sAct}, s{sAct}, s{sDone}')
    a(f's_cbranch_scc0 {lp}')
    a(f'buffer_load_dword v{vVal}, v{vOff}, {ws}, s{sMb} offen sc1')
    a('s_waitcnt vmcnt(0)')
    a(f'v_cmp_ge_u32 vcc, v{vVal}, v{vTgt}')
    a(f'v_readlane_b32 s{T0}, v{vVal}, 5')
    a(f'v_readlane_b32 s{T1}, v{vVal}, 6')
    a(f'v_readlane_b32 s{T2}, v{vVal}, 7')
    a(f's_or_b32 s{sDone}, s{sDone}, vcc_lo')
    a(f's_and_b32 s{T1}, s{T1}, s{T2}')
    a(f'v_mov_b32 v10, s{T0}')
    a(f'v_mov_b32 v11, s{T1}')
    a(f's_and_b32 s{T0}, s{T0}, s{T1}')
    a(f's_cmp_eq_u32 s{T0}, 0xffff')
    a(f's_cselect_b32 s{T0}, {B_QKV}, 0')
    a(f's_or_b32 s{sDone}, s{sDone}, s{T0}')
    a(f'v_mov_b32 v{vVal}, s{sDone}')
    a(f'ds_write2_b32 v{vF}, v10, v11 offset0:{F_QM//4} offset1:{F_KVM//4}')
    a(f'ds_write_b32 v{vF}, v{vVal} offset:{F_STATUS}')
    a(f's_and_b32 s{T0}, s{sDone}, {hex(ALLB)}')
    a(f's_cmp_lg_u32 s{T0}, {hex(ALLB)}')
    a(f's_cbranch_scc1 {lp}')
    a('s_waitcnt lgkmcnt(0)')
    a('s_endpgm')

QCK = 4; QSLOT = QCK * 3072; QNS = 6

def qkv_loader(a):
    l = 1; vW, t0, vF, vV = 4, 5, 6, 7
    map_qkv(a)
    srd(a, sWSRD, pQKV, 512 * 3072)
    wdma_voff(a, vW, l, t0, 3072, T0)
    a(f'v_mov_b32 v{vF}, {FL}')
    a(f's_mul_i32 s{sW0}, s{sCB}, 192')
    rot8(a, sJ0, sJ1)
    def chunk(c):
        a(f's_mul_i32 s{sJ1}, s{sJ0}, {64 * 3072}')
        a(f's_add_u32 s{sJ1}, s{sJ1}, s{sW0}')
        for s in range(QCK):
            for F in range(3):
                a(f's_mov_b32 m0, {(c % QNS) * QSLOT + s * 3072 + F * 1024}')
                a(f's_add_u32 s{T0}, s{sJ1}, {s * 16 * 3072 + F * 64}')
                a(f'buffer_load_dwordx4 v{vW}, s[{sWSRD}:{sWSRD+3}], s{T0} offen lds')
        a(f's_add_u32 s{sJ0}, s{sJ0}, 1')
        a(f's_and_b32 s{sJ0}, s{sJ0}, 7')
    def publish(c):
        a(f'v_mov_b32 v{vV}, {c + 1}')
        a(f'ds_write_b32 v{vF}, v{vV} offset:{F_WRDY}')
    chunk(0); chunk(1); chunk(2)
    for c in range(3, 8):
        a('s_waitcnt vmcnt(24)'); publish(c - 3)
        if c >= QNS: wait_min4(a, F_WDONE, c - QNS + 1, 8)
        chunk(c)
    a('s_waitcnt vmcnt(24)'); publish(5)
    a('s_waitcnt vmcnt(12)'); publish(6)
    a('s_waitcnt vmcnt(0)'); publish(7)
    if TOUCH:
        a(f'v_lshlrev_b32 v12, 7, v{l}')
        l2_touch(a, pW2, 512 * 1024, 12, 13)
        l2_touch(a, pW3, 512 * 2752, 12, 13)

def l2_touch(a, ptr, nbytes, vT, vD):
    share = nbytes // 32
    srd(a, sAUX, ptr, nbytes)
    a(f's_lshr_b32 s{T0}, s2, 3')
    a(f's_mul_i32 s{T0}, s{T0}, {share}')
    n = (share + 8191) // 8192
    for i in range(n):
        a(f'buffer_load_dword v{vD}, v{vT}, s[{sAUX}:{sAUX+3}], s{T0} offen')
        if i + 1 < n: a(f's_add_u32 s{T0}, s{T0}, 8192')

def qkv_compute(a):
    l = 1
    map_qkv(a)
    rot8(a, sJ0, sJ1)
    hi = 0
    a(f's_cmp_ge_u32 s{sCB}, 11')
    a('s_cbranch_scc1 qkv_nnn')
    a(f's_cmp_eq_u32 s{sCB}, 10')
    a('s_cbranch_scc1 qkv_ttn')
    for var in ('ttt', 'ttn', 'nnn'):
        if var != 'ttt': a.label('qkv_' + var)
        va = RegAlloc(V0, 256); vm = VM()
        D = 16
        t0 = va(); t1 = va(); vL16 = va(); vTr = va(); vTr2 = va(); vF = va(); vOne = va(); vR = va()
        acc = [va(16, 4) for F in range(3)]
        xr = [va(4) for d in range(D)]
        wf = [[va(4) for F in range(3)] for b in range(3)]
        a(f'v_lshlrev_b32 v{vL16}, 4, v{l}')
        trbase(a, vTr, l, t0)
        a(f'v_add_u32 v{vTr2}, 49152, v{vTr}')
        a(f's_lshl_b32 s{T0}, s{sW}, 2')
        a(f's_add_u32 s{T0}, s{T0}, {FL + F_WDONE}')
        a(f'v_mov_b32 v{vF}, s{T0}')
        vSt0 = t1
        a(f'v_mov_b32 v{vSt0}, {FL}')
        a(f's_lshl_b32 s{sX0}, s{sRB}, 2')
        a(f's_add_u32 s{sX0}, s{sX0}, s{sW}')
        a(f's_lshl_b32 s{sX0}, s{sX0}, 15')
        a(f's_add_u32 s{sX0}, s{sX0}, {hex(XNF)}')
        def xld(ks):
            if ks % QCK == 0:
                a(f's_lshl_b32 s{sJ2}, s{sJ0}, 12')
                a(f's_add_u32 s{sJ2}, s{sJ2}, s{sX0}')
                a(f's_add_u32 s{sJ0}, s{sJ0}, 1')
                a(f's_and_b32 s{sJ0}, s{sJ0}, 7')
            a(f'buffer_load_dwordx4 {V(xr[ks % D],4)}, v{vL16}, {ws}, s{sJ2} offen offset:{(ks % QCK) * 1024} {LDF}')
            vm.add(('x', ks))
        def reads(ks, only=None):
            c, s = ks // QCK, ks % QCK; b = ks % 3
            for F in (range(3) if only is None else [only]):
                o = (c % QNS) * QSLOT + s * 3072 + F * 1024
                base = vTr
                if o + 256 > 65535: base, o = vTr2, o - 49152
                a(f'ds_read_b64_tr_b16 {V(wf[b][F],2)}, v{base} offset:{o}')
                a(f'ds_read_b64_tr_b16 {V(wf[b][F]+2,2)}, v{base} offset:{o+256}')
        wait_status(a, B_XA)
        if var == 'ttt': n0 = CS.n
        CS.n = n0; cstamp(a); dstamp(a, 'qx')
        for ks in range(D): xld(ks)
        wait_lds_ge(a, F_WRDY, 1)
        reads(0); reads(1)
        for ks in range(32):
            nx = ks + 2
            if nx < 32 and nx % QCK == 0:
                lr = a.newlabel('Lqr')
                a('s_waitcnt lgkmcnt(0)')
                a(f'v_readfirstlane_b32 s{T3}, v{vR}')
                a(f's_cmp_ge_u32 s{T3}, {nx // QCK + 1}')
                a(f's_cbranch_scc1 {lr}')
                wait_lds_ge(a, F_WRDY, nx // QCK + 1)
                a.label(lr)
                a(f'v_mov_b32 v{vOne}, {nx // QCK}')
                a(f'ds_write_b32 v{vF}, v{vOne}')
                a(f's_waitcnt vmcnt({vm.wait_for(("x", ks))})')
            else:
                extra = 1 if (ks >= 1 and (ks + 2) % QCK == 1 and ks + 1 < 32) else 0
                a(f's_waitcnt vmcnt({vm.wait_for(("x", ks))}) lgkmcnt({6 if ks + 1 < 32 else 0})')
            for F in range(3):
                A_, B_ = (wf[ks % 3][F], xr[ks % D]) if var[F] == 't' else (xr[ks % D], wf[ks % 3][F])
                a(f'{MF} {V(acc[F],16)}, {V(A_,4)}, {V(B_,4)}, ' + ('0' if ks == 0 else V(acc[F],16)))
                if F == 0 and nx + 1 < 32 and (nx + 1) % QCK == 0:
                    a(f'ds_read_b32 v{vR}, v{vSt0} offset:{F_WRDY}')
                if nx < 32: reads(nx, F)
            if ks + D < 32: xld(ks + D)
        a(f'v_mov_b32 v{vOne}, 8')
        a(f'ds_write_b32 v{vF}, v{vOne}')
        if os.environ.get('APRIO'): a('s_setprio 3')
        cstamp(a); dstamp(a, 'qloop')
        vSt = t1
        a(f'v_and_b32 v{vSt}, 15, v{l}')
        a(f'v_lshlrev_b32 v{vSt}, 4, v{vSt}')
        a(f'v_lshrrev_b32 v{t0}, 5, v{l}')
        a(f'v_lshl_add_u32 v{vSt}, v{t0}, 8, v{vSt}')
        a(f'v_bfe_u32 v{t0}, v{l}, 4, 1')
        a(f'v_lshl_add_u32 v{vSt}, v{t0}, 10, v{vSt}')
        a(f's_lshl_b32 s{sX0}, s{sRB}, 2')
        a(f's_add_u32 s{sX0}, s{sX0}, s{sW}')
        a(f's_lshl_b32 s{sX0}, s{sX0}, 15')
        a(f's_mul_i32 s{sX1}, s{sCB}, 3')
        a(f's_mov_b32 s{sJ1}, {hex(f32bits(QSCALE))}')
        for F in range(3):
            pk = xr[2 * F]
            a(f's_add_u32 s{T0}, s{sX1}, {F}')
            a(f's_lshr_b32 s{T1}, s{T0}, 4')
            a(f's_lshl_b32 s{T1}, s{T1}, 21')
            a(f's_and_b32 s{T2}, s{T0}, 15')
            a(f's_lshl_b32 s{T2}, s{T2}, 11')
            a(f's_add_u32 s{T1}, s{T1}, s{T2}')
            a(f's_add_u32 s{T1}, s{T1}, s{sX0}')
            ac = acc[F]
            if var[F] == 't':
                if var == 'ttt':
                    lq = a.newlabel('Lnq')
                    a(f's_cmp_ge_u32 s{T0}, 16')
                    a(f's_cbranch_scc1 {lq}')
                    for i in range(16): a(f'v_mul_f32 v{ac+i}, s{sJ1}, v{ac+i}')
                    a.label(lq)
                pack_swap_store(a, ac, pk, vL16, T1)
            else:
                for i in range(8): a(f'v_cvt_pk_bf16_f32 v{pk+i}, v{ac+2*i}, v{ac+2*i+1}')
                for f in range(2):
                    a(f'buffer_store_dwordx4 {V(pk+4*f,4)}, v{vSt}, {ws}, s{T1} offen offset:{f*512} sc1')
        hi = max(hi, va.hi)
        if var != 'nnn': a('s_branch qkv_done')
    a.label('qkv_done')
    dstamp(a, 'qepi')
    def idq(vI, vT):
        a(f's_mul_i32 s{T0}, s{sCB}, 3')
        a(f'v_lshrrev_b32 v{vI}, 4, v1')
        a(f'v_add_u32 v{vI}, s{T0}, v{vI}')
        a(f'v_and_b32 v{vI}, 15, v{vI}')
        a(f'v_bfe_u32 v{vT}, v1, 3, 1')
        a(f'v_lshl_add_u32 v{vI}, v{vI}, 1, v{vT}')
        a(f'v_and_b32 v{vT}, 3, v{vI}')
        a(f'v_lshrrev_b32 v{vI}, 2, v{vI}')
        a(f'v_lshl_add_u32 v{vI}, v{vT}, 3, v{vI}')
        a(f'v_and_b32 v{vT}, 7, v1')
        a(f'v_lshl_add_u32 v{vI}, v{vT}, 5, v{vI}')
        return False
    mb_signal(a, M_QKV, 48, idq, need_zok=True)
    dstamp(a, 'qsig')
    return hi

def id_rows(a, sBase, check):
    def f(vI, vT):
        a(f'v_lshrrev_b32 v{vI}, 3, v1')
        a(f'v_add_u32 v{vI}, s{sBase}, v{vI}')
        if check: a(f'v_cmp_gt_u32 vcc, 32, v{vI}')
        a(f'v_and_b32 v{vT}, 3, v{vI}')
        a(f'v_lshrrev_b32 v{vI}, 2, v{vI}')
        a(f'v_lshl_add_u32 v{vI}, v{vT}, 3, v{vI}')
        a(f'v_and_b32 v{vT}, 7, v1')
        a(f'v_lshl_add_u32 v{vI}, v{vT}, 5, v{vI}')
        return check
    return f

def colsum3_job_issue(a, va):
    r = G()
    r.l3 = [va(4), va(4)]; r.tA = va(); r.tB = va()
    srd(a, sAUX, pW3, 512 * 2752)
    a(f's_and_b32 s{T0}, s2, 15')
    a(f's_mul_i32 s{T0}, s{T0}, {32 * 2752}')
    a(f's_lshr_b32 s{T1}, s2, 4')
    a(f's_min_u32 s{T1}, s{T1}, 10')
    a(f's_lshl_b32 s{T1}, s{T1}, 8')
    a(f's_add_u32 s{T0}, s{T0}, s{T1}')
    a(f'v_lshrrev_b32 v{r.tA}, 4, v0')
    a(f's_mov_b32 s{T1}, 2752')
    a(f'v_mul_lo_u32 v{r.tA}, v{r.tA}, s{T1}')
    a(f'v_and_b32 v{r.tB}, 15, v0')
    a(f'v_lshl_add_u32 v{r.tA}, v{r.tB}, 4, v{r.tA}')
    a(f'buffer_load_dwordx4 {V(r.l3[0],4)}, v{r.tA}, s[{sAUX}:{sAUX+3}], s{T0} offen')
    a(f's_add_u32 s{T0}, s{T0}, {16 * 2752}')
    a(f'buffer_load_dwordx4 {V(r.l3[1],4)}, v{r.tA}, s[{sAUX}:{sAUX+3}], s{T0} offen')
    return r
def colsum3_job_finish(a, r, u):
    SCR = B_BASE + 65536
    unpack(a, r.l3[0], u, 4); unpack(a, r.l3[1], u + 8, 4)
    for j in range(8): a(f'v_add_f32 v{u+j}, v{u+j}, v{u+8+j}')
    a(f'v_lshrrev_b32 v{r.tA}, 4, v0')
    a(f'v_lshlrev_b32 v{r.tA}, 9, v{r.tA}')
    a(f'v_lshl_add_u32 v{r.tA}, v{r.tB}, 5, v{r.tA}')
    a(f'v_add_u32 v{r.tA}, {SCR}, v{r.tA}')
    a(f'ds_write_b128 v{r.tA}, {V(u,4)}')
    a(f'ds_write_b128 v{r.tA}, {V(u+4,4)} offset:16')
    BAR(a)
    lab = a.newlabel('Lc3')
    a(f's_cmp_ge_u32 s{sW}, 2')
    a(f's_cbranch_scc1 {lab}')
    a('s_cmp_ge_u32 s2, 176')
    a(f's_cbranch_scc1 {lab}')
    a(f'v_lshlrev_b32 v{r.tA}, 2, v0')
    a(f'v_add_u32 v{r.tB}, {SCR}, v{r.tA}')
    for k in range(16): a(f'ds_read_b32 v{u+k}, v{r.tB} offset:{k*512}')
    a('s_waitcnt lgkmcnt(0)')
    for k in range(1, 16): a(f'v_add_f32 v{u}, v{u}, v{u+k}')
    a(f's_and_b32 s{T0}, s2, 15')
    a(f's_mul_i32 s{T0}, s{T0}, {1408 * 4}')
    a(f's_lshr_b32 s{T1}, s2, 4')
    a(f's_lshl_b32 s{T1}, s{T1}, 9')
    a(f's_add_u32 s{T0}, s{T0}, s{T1}')
    a(f's_add_u32 s{T0}, s{T0}, {hex(CS3)}')
    a(f'buffer_store_dword v{u}, v{r.tA}, {ws}, s{T0} offen sc1')
    a.label(lab)

def w1_stage(a):
    va = RegAlloc(V0, 256); l = 1; vm = VM()
    map_64x64(a)
    srd(a, sWSRD, pW1, 512 * 1024)
    g = WSK(a, va, sW, l, STMP, WD, vm, lds_base=B_BASE, ring_bytes=WRING)
    t0, t1, t2 = g.t
    wsk_woffs(a, g)
    wsk_xoffs(a, g, XNNF, 32768)
    rot8(a, sJ0, sJ1)
    g.add_segment(8, sWS, [sX0, sX1], g.vL16, LDF, sWSRD, [sW0, sW1], sJ0, sJ1, 8)
    for i in range(WD): g.issue_w(i)
    g.nw = WD
    g.zero_acc()
    wait_status(a, B_XB)
    if os.environ.get('BDELAY'): wait_min4(a, F_WDONE, int(os.environ['BDELAY']), g.wf[0][0], sleep=2)
    cstamp(a); dstamp(a, 'w1x')
    g.run(0, 8)
    dstamp(a, 'w1loop')
    ac = g.reduce()
    dstamp(a, 'w1red')
    tmp = g.acc[0][1]; pk = g.acc[1][0]; vC2 = g.acc[1][1]; vSt = g.acc[1][1] + 1
    a(f'v_mov_b32 v{vC2}, {hex(f32bits(GC2))}')
    a(f's_mov_b32 s{T2}, {hex(f32bits(GC1))}')
    gelu_scalar(a, ac, 16, tmp, T2, vC2)
    a(f's_lshr_b32 s{T1}, s{sCB}, 1')
    a(f's_lshr_b32 s{T3}, s{T1}, 1')
    a(f's_add_u32 s{T3}, s{T3}, 1')
    a(f's_mov_b32 s{sJ2}, s{T3}')
    a(f's_sub_u32 s{T2}, 0, s{T3}')
    a(f's_and_b32 s{sJ3}, s{T1}, 1')
    a(f's_cmp_eq_u32 s{sJ3}, 0')
    a(f's_cselect_b32 s{T3}, s{T3}, s{T2}')
    a(f's_lshl_b32 s{T1}, s{sRB}, 6')
    a(f's_add_u32 s{T3}, s{T3}, s{T1}')
    a(f's_lshl_b32 s{T1}, s{g.sWr}, 5')
    a(f's_add_u32 s{T3}, s{T3}, s{T1}')
    a(f's_mov_b32 s{T2}, 2048')
    a(f'v_and_b32 v{t2}, 31, v{l}')
    a(f'v_add_u32 v{t2}, s{T3}, v{t2}')
    a(f'v_cmp_gt_u32 vcc, s{T2}, v{t2}')
    a(f'v_lshrrev_b32 v{vSt}, 5, v{t2}')
    a(f'v_lshlrev_b32 v{vSt}, 15, v{vSt}')
    a(f'v_and_b32 v{t2}, 31, v{t2}')
    a(f'v_lshl_add_u32 v{vSt}, v{t2}, 4, v{vSt}')
    a(f'v_lshrrev_b32 v{t2}, 5, v{l}')
    a(f'v_lshl_add_u32 v{vSt}, v{t2}, 9, v{vSt}')
    a(f'v_mov_b32 v{t2}, {hex(OOB)}')
    a(f'v_cndmask_b32 v{vSt}, v{t2}, v{vSt}, vcc')
    a(f's_lshl_b32 s{T0}, s{sCB}, 2')
    a(f's_lshl_b32 s{T1}, s{g.sWc}, 1')
    a(f's_add_u32 s{T0}, s{T0}, s{T1}')
    a(f's_lshl_b32 s{T0}, s{T0}, 10')
    a(f's_add_u32 s{T0}, s{T0}, {hex(HF)}')
    pack_swap_store(a, ac, pk, vSt, T0)
    lz = a.newlabel('Lzf')
    a(f's_cmp_lg_u32 s{g.sWr}, 0')
    a(f's_cbranch_scc1 {lz}')
    a(f's_mul_i32 s{T1}, s{sJ3}, 31')
    a(f's_cmp_lg_u32 s{sRB}, s{T1}')
    a(f's_cbranch_scc1 {lz}')
    a(f'v_and_b32 v{t2}, 31, v{l}')
    a(f'v_cmp_gt_u32 vcc, s{sJ2}, v{t2}')
    a(f'v_xor_b32 v{t2}, s{T1}, v{t2}')
    a(f'v_lshlrev_b32 v{t2}, 4, v{t2}')
    a(f's_mul_i32 s{T1}, s{sJ3}, {63 * 32768}')
    a(f'v_add_u32 v{t2}, s{T1}, v{t2}')
    a(f'v_lshrrev_b32 v{t1}, 5, v{l}')
    a(f'v_lshl_add_u32 v{t2}, v{t1}, 9, v{t2}')
    for i in range(4): a(f'v_mov_b32 v{tmp+i}, 0')
    a('s_and_saveexec_b64 s[54:55], vcc')
    for kk in range(2):
        a(f'buffer_store_dwordx4 {V(tmp,4)}, v{t2}, {ws}, s{T0} offen offset:{kk*1024} sc1')
    a('s_mov_b64 exec, -1')
    a.label(lz)
    a(f's_sub_u32 s{T1}, s{sRB}, 1')
    dstamp(a, 'w1epi')
    mb_signal(a, M_C1, 24, id_rows(a, T1, True), need_zok=True)
    dstamp(a, 'w1sig')
    return va.hi

def g2_stage(a):
    va = RegAlloc(V0, 256); l = 1; vm = VM()
    srd(a, sWSRD, pW2, 512 * 1024)
    g = WSK(a, va, sW, l, STMP, WD, vm, lds_base=B_BASE, ring_bytes=WRING)
    t0, t1, t2 = g.t
    wsk_woffs(a, g)
    wsk_xoffs(a, g, HF, 32768)
    rot8(a, sJ0, sJ1)
    g.add_segment(8, sWS, [sX0, sX1], g.vL16, LDF, sWSRD, [sW0, sW1], sJ0, sJ1, 8)
    vSt = va(); xr = va(8, 4)
    request(a, B_C1)
    lane8_off(a, vSt, l, t0)
    frag_tile_off(a, T0, g, XNF, 32)
    for q in range(4):
        a(f'buffer_load_dwordx2 {V(xr+2*q,2)}, v{vSt}, {ws}, s{T0} offen offset:{q*512} {LDF}'); vm.add('xn')
    for i in range(WD): g.issue_w(i)
    g.nw = WD
    g.zero_acc(skip00=True)
    a(f's_waitcnt vmcnt({vm.wait_for("xn")})')
    unpack(a, xr, g.acc[0][0], 8)
    dstamp(a, 'g2pre')
    wait_status(a, B_C1)
    dstamp(a, 'g2x')
    g.run(0, 8)
    dstamp(a, 'g2loop')
    ac = g.reduce()
    xf = g.acc[0][1]; pk = g.acc[1][0]; s1, s2, s1b, s2b, pr = [g.acc[1][1] + i for i in (0, 1, 2, 3, 4)]
    frag_tile_off(a, T0, g, X1F, 32)
    pack_swap_store(a, ac, pk, g.vL16, T0)
    unpack(a, pk, xf, 8)
    a(f'v_add_f32 v{s1}, v{xf}, v{xf+1}')
    a(f'v_mul_f32 v{s2}, v{xf}, v{xf}')
    a(f'v_fma_f32 v{s2}, v{xf+1}, v{xf+1}, v{s2}')
    for i in range(2, 16):
        a(f'v_add_f32 v{s1}, v{s1}, v{xf+i}')
        a(f'v_fma_f32 v{s2}, v{xf+i}, v{xf+i}, v{s2}')
    a(f'v_mov_b32 v{s1b}, v{s1}'); a(f'v_mov_b32 v{s2b}, v{s2}')
    a('s_nop 1')
    a(f'v_permlane32_swap_b32 v{s1}, v{s1b}')
    a(f'v_permlane32_swap_b32 v{s2}, v{s2b}')
    a('s_nop 1')
    a(f'v_add_f32 v{pr}, v{s1}, v{s1b}')
    a(f'v_add_f32 v{pr+1}, v{s2}, v{s2b}')
    a(f's_lshl_b32 s{T0}, s{sCB}, 1')
    a(f's_add_u32 s{T0}, s{T0}, s{g.sWc}')
    a(f's_lshl_b32 s{T0}, s{T0}, 14')
    a(f's_lshl_b32 s{T1}, s{sRB}, 9')
    a(f's_add_u32 s{T0}, s{T0}, s{T1}')
    a(f's_lshl_b32 s{T1}, s{g.sWr}, 8')
    a(f's_add_u32 s{T0}, s{T0}, s{T1}')
    a(f's_add_u32 s{T0}, s{T0}, {hex(PS)}')
    a(f'v_lshlrev_b32 v{t0}, 3, v{l}')
    a('s_mov_b32 exec_hi, 0')
    a(f'buffer_store_dwordx2 {V(pr,2)}, v{t0}, {ws}, s{T0} offen sc1')
    a('s_mov_b64 exec, -1')
    dstamp(a, 'g2epi')
    def id3(vI, vT):
        a(f's_lshr_b32 s{T0}, s{sRB}, 1')
        a(f's_and_b32 s{T1}, s{T0}, 1')
        a(f's_lshl_b32 s{T1}, s{T1}, 3')
        a(f's_lshr_b32 s{T0}, s{T0}, 1')
        a(f's_or_b32 s{T0}, s{T0}, s{T1}')
        a(f'v_lshlrev_b32 v{vI}, 4, v1')
        a(f'v_or_b32 v{vI}, s{T0}, v{vI}')
        return False
    mb_signal(a, M_C2, 15, id3)
    dstamp(a, 'g2sig')
    return va.hi

def g3_stage(a, endlabel):
    va = RegAlloc(V0, 256); l = 1; vm = VM()
    map_g3(a)
    a(f's_cmp_ge_u32 s{sCB}, 15')
    a(f's_cbranch_scc1 {endlabel}')
    srd(a, sWSRD, pW3, 512 * 2752)
    D = 7; CK = 8; NST = 3; STG = CK * 3 * 1024; CSL = B_BASE + NST * STG
    sT0, sT1, sM0 = STMP, STMP + 1, STMP + 2
    t0 = va(); t1 = va(); t2 = va(); vL16 = va(); vTr = va(); vW = va(); vTr2 = va()
    a(f'v_lshlrev_b32 v{vL16}, 4, v{l}')
    trbase(a, vTr, l, t0)
    a(f'v_add_u32 v{vTr}, {B_BASE}, v{vTr}')
    a(f'v_add_u32 v{vTr2}, 49152, v{vTr}')
    wdma_voff(a, vW, l, t0, 2752, sT0)
    acc = [va(16, 4) for F in range(3)]
    xr = [va(4) for d in range(D)]
    wf = [[va(4) for F in range(3)] for b in range(3)]
    ps = va(16, 4); cp = va(16, 4)
    mr = va(); rr = va(); z = [va() for _ in range(4)]
    ones = va(4)
    for i in range(4): a(f'v_mov_b32 v{ones+i}, 0x3f803f80')
    a(f's_mul_i32 s{sW0}, s{sW}, {16 * 2752}')
    a(f's_mul_i32 s{T0}, s{sCB}, 192')
    a(f's_add_u32 s{sW0}, s{sW0}, s{T0}')
    a(f's_mul_i32 s{sM0}, s{sW}, 3072')
    a(f's_add_u32 s{sM0}, s{sM0}, {B_BASE}')
    a(f's_and_b32 s{T0}, s{sRB}, 1')
    a(f's_lshl_b32 s{T0}, s{T0}, 1')
    a(f's_add_u32 s{sJ0}, s{T0}, s{sCB}')
    def wdma(c):
        a(f's_add_u32 s{sJ1}, s{sJ0}, {c}')
        a(f's_and_b32 s{sJ1}, s{sJ1}, 3')
        a(f's_mul_i32 s{sJ1}, s{sJ1}, {128 * 2752}')
        a(f's_add_u32 s{sJ1}, s{sJ1}, s{sW0}')
        for hh in range(2):
            for F in range(3):
                a(f's_add_u32 m0, s{sM0}, {(c % NST) * STG + hh * 4 * 3072 + F * 1024}')
                a(f's_add_u32 s{sT1}, s{sJ1}, {(hh * 4) * 16 * 2752 + F * 64}')
                a(f'buffer_load_dwordx4 v{vW}, s[{sWSRD}:{sWSRD+3}], s{sT1} offen lds')
                vm.add(('w', c))
    request(a, B_C2)
    for c in range(NST): wdma(c)
    a(f's_lshl_b32 s{sX0}, s{sRB}, 2')
    a(f's_add_u32 s{sX0}, s{sX0}, s{sW}')
    a(f's_lshl_b32 s{sX0}, s{sX0}, 15')
    a(f's_add_u32 s{sX0}, s{sX0}, {hex(X1F)}')
    dstamp(a, 'g3pre')
    wait_status(a, B_C2)
    dstamp(a, 'g3x')
    def xld(ks):
        if ks % 8 == 0:
            a(f's_add_u32 s{sJ2}, s{sJ0}, {ks // 8}')
            a(f's_and_b32 s{sJ2}, s{sJ2}, 3')
            a(f's_lshl_b32 s{sJ2}, s{sJ2}, 13')
            a(f's_add_u32 s{sJ2}, s{sJ2}, s{sX0}')
        a(f's_add_u32 s{sT0}, s{sJ2}, {(ks % 8) * 1024}')
        a(f'buffer_load_dwordx4 {V(xr[ks % D],4)}, v{vL16}, {ws}, s{sT0} offen {LDF}')
        vm.add(('x', ks))
    for ks in range(D): xld(ks)
    a(f'v_and_b32 v{t0}, 31, v{l}')
    a(f'v_lshlrev_b32 v{t0}, 3, v{t0}')
    a(f'v_lshrrev_b32 v{t2}, 5, v{l}')
    a(f'v_lshl_add_u32 v{t0}, v{t2}, 17, v{t0}')
    a(f's_lshl_b32 s{T0}, s{sRB}, 10')
    a(f's_lshl_b32 s{T1}, s{sW}, 8')
    a(f's_add_u32 s{T0}, s{T0}, s{T1}')
    a(f's_add_u32 s{T0}, s{T0}, {hex(PS)}')
    for f in range(8):
        a(f'buffer_load_dwordx2 {V(ps+2*f,2)}, v{t0}, {ws}, s{T0} offen {LDF}'); vm.add('ps')
        a(f's_add_u32 s{T0}, s{T0}, 16384')
    def reads(ks, only=None):
        c, s = ks // CK, ks % CK; b = ks % 3
        for F in (range(3) if only is None else [only]):
            o = (c % NST) * STG + s * 3072 + F * 1024
            base = vTr
            if o + 256 > 65535: base, o = vTr2, o - 49152
            a(f'ds_read_b64_tr_b16 {V(wf[b][F],2)}, v{base} offset:{o}')
            a(f'ds_read_b64_tr_b16 {V(wf[b][F]+2,2)}, v{base} offset:{o+256}')
    def sync(c):
        if c == 0:
            a(f's_waitcnt vmcnt({vm.wait_for(("w", 2))})'); BAR(a)
        elif c == 1:
            BAR(a); wdma(3)
        elif c == 3:
            a(f's_waitcnt vmcnt({vm.wait_for(("w", 3))})'); BAR(a)
    sync(0)
    reads(0); reads(1)
    for ks in range(32):
        nx = ks + 2
        if nx < 32 and nx % CK == 0: sync(nx // CK)
        a(f's_waitcnt vmcnt({vm.wait_for(("x", ks))}) lgkmcnt({6 if ks + 1 < 32 else 0})')
        for F in range(3):
            a(f'{MF} {V(acc[F],16)}, {V(wf[ks%3][F],4)}, {V(xr[ks%D],4)}, ' + ('0' if ks == 0 else V(acc[F],16)))
            if nx < 32: reads(nx, F)
        le = a.newlabel('Lcs')
        for F in range(3):
            ln = a.newlabel('Lcn')
            a(f's_cmp_lg_u32 s{sW}, {F}')
            a(f's_cbranch_scc1 {ln}')
            a(f'{MF} {V(cp,16)}, {V(ones,4)}, {V(wf[ks%3][F],4)}, ' + ('0' if ks == 0 else V(cp,16)))
            if F < 2: a(f's_branch {le}')
            a.label(ln)
        a.label(le)
        if ks + D < 32: xld(ks + D)
        if ks == 12:
            for f in range(1, 8):
                a(f'v_add_f32 v{ps}, v{ps}, v{ps+2*f}')
                a(f'v_add_f32 v{ps+1}, v{ps+1}, v{ps+2*f+1}')
            a(f'v_mov_b32 v{ps+2}, v{ps}'); a(f'v_mov_b32 v{ps+3}, v{ps+1}')
            a('s_nop 1')
            a(f'v_permlane32_swap_b32 v{ps}, v{ps+2}')
            a(f'v_permlane32_swap_b32 v{ps+1}, v{ps+3}')
            a('s_nop 1')
            a(f'v_add_f32 v{ps}, v{ps}, v{ps+2}')
            a(f'v_add_f32 v{ps+1}, v{ps+1}, v{ps+3}')
            ln_scalars(a, ps, ps + 1, z, 512)
            a(f'v_mov_b32 v{rr}, v{z[3]}')
            a(f'v_mul_f32 v{mr}, v{z[1]}, v{z[3]}')
            a(f'v_sub_f32 v{mr}, 0, v{mr}')
    dstamp(a, 'g3loop')
    a(f'v_and_b32 v{t1}, 31, v{l}')
    a(f'v_lshlrev_b32 v{t1}, 2, v{t1}')
    a(f's_lshl_b32 s{T0}, s{sW}, 7')
    a(f's_add_u32 s{T0}, s{T0}, {CSL}')
    a(f'v_add_u32 v{t1}, s{T0}, v{t1}')
    a('s_nop 7')
    a(f'ds_write_b32 v{t1}, v{cp}')
    BAR(a)
    tmp = ps; cs = cp
    pk = [xr[0], xr[2]]; vC2 = z[0]
    a(f'v_mov_b32 v{vC2}, {hex(f32bits(GC2))}')
    a(f's_mov_b32 s{T2}, {hex(f32bits(GC1))}')
    a(f'v_lshrrev_b32 v{t1}, 5, v{l}')
    a(f'v_lshlrev_b32 v{t1}, 4, v{t1}')
    a(f'v_add_u32 v{t1}, {CSL}, v{t1}')
    a(f's_lshl_b32 s{T0}, s{sRB}, 2')
    a(f's_add_u32 s{T0}, s{T0}, s{sW}')
    a(f's_mul_i32 s{T0}, s{T0}, 86')
    a(f's_mul_i32 s{T1}, s{sCB}, 6')
    a(f's_add_u32 s{T0}, s{T0}, s{T1}')
    a(f's_lshl_b32 s{T0}, s{T0}, 10')
    a(f's_add_u32 s{T0}, s{T0}, {hex(H3F)}')
    lskip = a.newlabel('g3_skip')
    for F in range(3):
        if F == 1:
            a(f's_cmp_eq_u32 s{sCB}, 14')
            a(f's_cbranch_scc1 {lskip}')
        for q in range(4):
            a(f'ds_read_b128 {V(cs+4*q,4)}, v{t1} offset:{F*128 + q*32}')
        ac = acc[F]
        for i in range(16): a(f'v_mul_f32 v{ac+i}, v{ac+i}, v{rr}')
        a('s_waitcnt lgkmcnt(0)')
        for i in range(16): a(f'v_fma_f32 v{ac+i}, v{mr}, v{cs+i}, v{ac+i}')
        gelu_scalar(a, ac, 16, tmp, T2, vC2)
        a(f's_add_u32 s{T1}, s{T0}, {F*2048}')
        pack_swap_store(a, ac, pk[F % 2], vL16, T1)
    a.label(lskip)
    a(f's_lshl_b32 s{T1}, s{sRB}, 1')
    dstamp(a, 'g3epi')
    mb_signal(a, M_C3, 16, id_rows(a, T1, False))
    dstamp(a, 'g3sig')
    return va.hi

def g45_stage(a):
    va = RegAlloc(V0, 256); l = 1; vm = VM()
    map_64x64(a)
    srd(a, sWSRD, pW4, 1376 * 1024)
    srd(a, sW2SRD, pWO, 512 * 1024)
    srd(a, sAUX, pX, 2048 * 1024)
    g = WSK(a, va, sW, l, STMP, WD, vm, lds_base=B_BASE, ring_bytes=WRING)
    t0, t1, t2 = g.t
    wsk_woffs(a, g)
    wsk_xoffs(a, g, H3F, 86 * 1024)
    sO0, sO1 = 55, 56
    wsk_xoffs(a, g, OF, 32768, sO0, sO1)
    def cond(lab):
        a(f's_cmp_ge_u32 s{sW}, 2')
        a(f's_cbranch_scc1 {lab}')
    a(f's_cmp_lt_u32 s{sW}, 2')
    a(f's_cselect_b32 s{sNN}, 22, 21')
    rot8(a, sJ0, sJ1, 5)
    rot8(a, sJ2, sJ3)
    g.add_segment(22, sWS, [sX0, sX1], g.vL16, LDF, sWSRD, [sW0, sW1], sJ0, sJ1, [sNN], last_cond=cond)
    g.add_segment(8, sWS, [sO0, sO1], g.vL16, LDF, sW2SRD, [sW0, sW1], sJ2, sJ3, 8)
    vSt = va(); x1r = va(8, 4); xr = va(8, 4)
    request(a, B_C3)
    a(f'v_and_b32 v{t2}, 31, v{l}')
    a(f'v_lshlrev_b32 v{t2}, 10, v{t2}')
    a(f'v_lshrrev_b32 v{t0}, 5, v{l}')
    a(f'v_lshl_add_u32 v{t2}, v{t0}, 3, v{t2}')
    x_rowmajor_off(a, g, T0)
    for q in range(4):
        a(f'buffer_load_dwordx2 {V(xr+2*q,2)}, v{t2}, s[{sAUX}:{sAUX+3}], s{T0} offen offset:{q*16}'); vm.add('p')
    lane8_off(a, vSt, l, t0)
    frag_tile_off(a, T0, g, X1F, 32)
    for q in range(4):
        a(f'buffer_load_dwordx2 {V(x1r+2*q,2)}, v{vSt}, {ws}, s{T0} offen offset:{q*512} {LDF}'); vm.add('p')
    for i in range(WD): g.issue_w(i)
    g.nw = WD
    g.zero_acc(skip00=True)
    ac = g.acc[0][0]
    a(f's_waitcnt vmcnt({vm.wait_for("p")})')
    for j in range(8):
        a(f'v_lshlrev_b32 v{ac+2*j}, 16, v{xr+j}')
        a(f'v_and_b32 v{ac+2*j+1}, 0xffff0000, v{xr+j}')
        a(f'v_lshlrev_b32 v{t0}, 16, v{x1r+j}')
        a(f'v_and_b32 v{t1}, 0xffff0000, v{x1r+j}')
        a(f'v_add_f32 v{ac+2*j}, v{ac+2*j}, v{t0}')
        a(f'v_add_f32 v{ac+2*j+1}, v{ac+2*j+1}, v{t1}')
    dstamp(a, 'g4pre')
    wait_status(a, B_C3)
    dstamp(a, 'g4x')
    g.run(0, 22, xlimit=22)
    cstamp(a); dstamp(a, 'g4loop')
    wait_status(a, B_CA)
    dstamp(a, 'g5x')
    g.run(22, 30)
    dstamp(a, 'g5loop')
    ac = g.reduce()
    srd(a, sAUX, pOUT, 2048 * 1024)
    pk = g.acc[1][0]; vo = vSt
    a(f'v_and_b32 v{vo}, 31, v{l}')
    a(f'v_lshlrev_b32 v{vo}, 10, v{vo}')
    a(f'v_lshrrev_b32 v{t0}, 5, v{l}')
    a(f'v_lshl_add_u32 v{vo}, v{t0}, 4, v{vo}')
    x_rowmajor_off(a, g, T0)
    pack_swap(a, ac, pk)
    for pr in range(2):
        a(f'buffer_store_dwordx4 {V(pk+4*pr,4)}, v{vo}, s[{sAUX}:{sAUX+3}], s{T0} offen offset:{pr*32}')
    return va.hi

VT = 1056
ATT_BUF = 8192 + 8 * VT
NBUF = 4
def R(b, n): return V(b, n)

def att_head(a, sHead):
    a(f's_and_b32 s{T0}, s2, 7')
    a(f's_lshl_b32 s{sHead}, s{T0}, 2')
    a(f's_lshr_b32 s{T0}, s2, 3')
    a(f's_and_b32 s{T0}, s{T0}, 3')
    a(f's_add_u32 s{sHead}, s{sHead}, s{T0}')

def kv_loader(a):
    l = 1; vL16, vF, vV = 4, 6, 7
    sHead, sKoff, sVoff = sRB, sX0, sX1
    att_head(a, sHead)
    a(f'v_lshlrev_b32 v{vL16}, 4, v{l}')
    a(f's_lshl_b32 s{sKoff}, s{sHead}, 10')
    a(f's_add_u32 s{sVoff}, s{sKoff}, {hex(VF)}')
    a(f's_add_u32 s{sKoff}, s{sKoff}, {hex(KF)}')
    sLd, sCh = sW0, sW1
    a(f's_mov_b32 s{sLd}, 0')
    def lchunk(c):
        lp = a.newlabel('Lpk'); ld = a.newlabel('Lpkd')
        a.label(lp)
        a(f'ds_read_b32 v{vV}, v{vF} offset:{F_KVM}')
        a('s_waitcnt lgkmcnt(0)')
        a(f'v_readfirstlane_b32 s{T0}, v{vV}')
        a(f's_lshr_b32 s{T1}, s{T0}, 1')
        a(f's_and_b32 s{T0}, s{T0}, s{T1}')
        a(f's_and_b32 s{T0}, s{T0}, 0x5555')
        a(f's_andn2_b32 s{T0}, s{T0}, s{sLd}')
        a(f's_cbranch_scc1 {ld}')
        a('s_sleep 1')
        spin_guard(a)
        a(f's_branch {lp}')
        a.label(ld)
        a(f's_ff1_i32_b32 s{sCh}, s{T0}')
        a(f's_bitset1_b32 s{sLd}, s{sCh}')
        a(f's_lshl_b32 s{sCh}, s{sCh}, 17')
        a(f's_add_u32 s{T1}, s{sKoff}, s{sCh}')
        a(f's_add_u32 s{T2}, s{sVoff}, s{sCh}')
        b = (c % NBUF) * ATT_BUF
        for j in range(8):
            a(f's_mov_b32 m0, {b + j*1024}')
            a(f's_add_u32 s{T0}, s{T1}, {j*32768}')
            a(f'buffer_load_dwordx4 v{vL16}, {ws}, s{T0} offen {LDF} lds')
            a(f's_mov_b32 m0, {b + 8192 + j*VT}')
            a(f's_add_u32 s{T0}, s{T2}, {j*32768}')
            a(f'buffer_load_dwordx4 v{vL16}, {ws}, s{T0} offen {LDF} lds')
    def publish(c):
        a(f'v_mov_b32 v{vV}, {c + 1}')
        a(f'ds_write_b32 v{vF}, v{vV} offset:{F_KRDY}')
    wait_min4(a, F_WDONE, 8, 8)
    request(a, B_QKV)
    lchunk(0)
    a('s_waitcnt vmcnt(0)'); publish(0)
    lchunk(1)
    a('s_waitcnt vmcnt(0)'); publish(1)
    lchunk(2)
    lchunk(3) if False else None
    a('s_waitcnt vmcnt(0)'); publish(2)
    lchunk(3)
    if TOUCH:
        a('s_waitcnt vmcnt(0)'); publish(3)
        a('s_setprio 1')
        l2_touch(a, pW4, 1376 * 1024, 12, 13)
        l2_touch(a, pWO, 512 * 1024, 12, 13)
        a('s_setprio 3')
    for c in range(4, 8):
        wait_min4(a, F_KDONE, c - 3, 8, sleep=8)
        lchunk(c)
        a('s_waitcnt vmcnt(16)'); publish(c - 1)
    a('s_waitcnt vmcnt(0)'); publish(7)
    a('s_waitcnt lgkmcnt(0)')
    a('s_endpgm')

def att_compute(a):
    va = RegAlloc(V0, 256); l = 1
    sHead, sTT, sKoff, sVoff, sC, sBn, sFb = sRB, sCB, sX0, sX1, sW0, sW1, sRow0
    sEx = 50
    att_head(a, sHead)
    a(f's_lshr_b32 s{sTT}, s2, 5')
    a(f's_lshl_b32 s{sTT}, s{sTT}, 3')
    a(f's_lshl_b32 s{T0}, s{sW}, 1')
    a(f's_add_u32 s{sTT}, s{sTT}, s{T0}')
    a(f's_mov_b32 s{sEx}, 0x0000ffff'); a(f's_mov_b32 s{sEx+1}, 0x0000ffff')
    vL16 = va(); vVo = va(); t0 = va(); t1 = va()
    vK = [va(), va()]; vV0 = [va(), va()]; vV1 = [va(), va()]
    vV0b = va(); vV1b = va(); vF = va(); vDn = va(); vR = va(); vP = va()
    SA, SB_, NA, NB, OA, OB = [va(16, 4) for _ in range(6)]
    P = va(8, 4); QA = va(4); QB = va(4)
    K = [va(4), va(4)]; Vv = [va(8, 4), va(8, 4)]
    a(f'v_lshlrev_b32 v{vL16}, 4, v{l}')
    a(f's_mov_b32 s{sBn}, {ATT_BUF}')
    a(f'v_and_b32 v{vVo}, 15, v{l}')
    a(f'v_lshlrev_b32 v{vVo}, 4, v{vVo}')
    a(f'v_lshrrev_b32 v{t0}, 5, v{l}')
    a(f'v_lshl_add_u32 v{vVo}, v{t0}, 8, v{vVo}')
    a(f'v_and_b32 v{t0}, 31, v{l}')
    a(f'v_cmp_eq_u32 vcc, 16, v{t0}')
    a(f'v_mov_b32 v{t1}, {8192+1040}')
    a(f'v_mov_b32 v{vV0b}, {8192+1024}')
    a(f'v_cndmask_b32 v{t1}, v{t1}, v{vV0b}, vcc')
    a(f'v_cmp_gt_u32 vcc, 16, v{t0}')
    a(f'v_add_u32 v{vV0b}, 8192, v{vVo}')
    a(f'v_add_u32 v{vV1b}, {8192+512}, v{vVo}')
    a(f'v_cndmask_b32 v{vV0b}, v{t1}, v{vV0b}, vcc')
    a(f'v_cndmask_b32 v{vV1b}, v{t1}, v{vV1b}, vcc')
    a(f'v_and_b32 v{t0}, 1, v{l}')
    a(f'v_cmp_eq_u32 vcc, 0, v{t0}')
    a(f'v_mov_b32 v{t1}, 0x3f803f80')
    a(f'v_lshlrev_b32 v{t0}, 4, v{t0}')
    for i in range(4): a(f'v_cndmask_b32 v{P+i}, 0, v{t1}, vcc')
    a(f'v_lshrrev_b32 v{t1}, 4, v{l}')
    a(f's_mov_b32 s{T0}, {ATT_BUF}')
    a(f'v_mul_lo_u32 v{t1}, v{t1}, s{T0}')
    a(f'v_add_u32 v{t0}, v{t0}, v{t1}')
    a(f'v_bfe_u32 v{t1}, v{l}, 1, 3')
    a(f's_mov_b32 s{T0}, {VT}')
    a(f'v_mul_lo_u32 v{t1}, v{t1}, s{T0}')
    a(f'v_add_u32 v{t0}, v{t0}, v{t1}')
    a(f'ds_write_b128 v{t0}, {R(P,4)} offset:{8192+1024}')
    for i in range(16):
        a(f'v_mov_b32 v{OA+i}, 0'); a(f'v_mov_b32 v{OB+i}, 0')
    for i in range(4):
        a(f'v_mov_b32 v{P+4+i}, 0'); a(f'v_mov_b32 v{Vv[1]+4+i}, 0')
    a(f'v_mov_b32 v{vK[0]}, v{vL16}'); a(f'v_mov_b32 v{vV0[0]}, v{vV0b}'); a(f'v_mov_b32 v{vV1[0]}, v{vV1b}')
    a(f'v_add_u32 v{vK[1]}, {ATT_BUF}, v{vL16}')
    a(f'v_add_u32 v{vV0[1]}, {ATT_BUF}, v{vV0b}')
    a(f'v_add_u32 v{vV1[1]}, {ATT_BUF}, v{vV1b}')
    a(f's_mov_b32 s{sFb}, 0')
    a(f'v_mov_b32 v{vF}, {FL}')
    a(f's_lshl_b32 s{T0}, s{sW}, 2')
    a(f's_add_u32 s{T0}, s{T0}, {FL + F_KDONE}')
    a(f'v_mov_b32 v{vDn}, s{T0}')
    a(f'v_mov_b32 v{vP}, 0')
    request(a, B_QKV)
    lpq = a.newlabel('Lqm'); ldq = a.newlabel('Lqmd')
    a(f's_lshr_b32 s{T1}, s{sTT}, 2')
    a.label(lpq)
    a(f'ds_read_b32 v{vR}, v{vF} offset:{F_QM}')
    a('s_waitcnt lgkmcnt(0)')
    a(f'v_readfirstlane_b32 s{T0}, v{vR}')
    a(f's_bitcmp1_b32 s{T0}, s{T1}')
    a(f's_cbranch_scc1 {ldq}')
    a('s_sleep 1')
    spin_guard(a)
    a(f's_branch {lpq}')
    a.label(ldq)
    dstamp(a, 'aflag')
    a(f's_lshl_b32 s{T0}, s{sTT}, 5')
    a(f's_add_u32 s{T0}, s{T0}, s{sHead}')
    a(f's_lshl_b32 s{T0}, s{T0}, 10')
    a(f'buffer_load_dwordx4 {R(QA,4)}, v{vL16}, {ws}, s{T0} offen {LDF}')
    a(f's_add_u32 s{T0}, s{T0}, 32768')
    a(f'buffer_load_dwordx4 {R(QB,4)}, v{vL16}, {ws}, s{T0} offen {LDF}')
    def spin_ready(val):
        lp = a.newlabel('at_sp'); ld = a.newlabel('at_ok')
        a.label(lp)
        a(f'ds_read_b32 v{vR}, v{vF} offset:{F_KRDY}')
        a('s_waitcnt lgkmcnt(0)')
        a(f'v_readfirstlane_b32 s{T0}, v{vR}')
        a(f's_cmp_gt_u32 s{T0}, {val}')
        a(f's_cbranch_scc1 {ld}')
        a('s_sleep 1')
        spin_guard(a)
        a(f's_branch {lp}')
        a.label(ld)
    spin_ready('0')
    a('s_waitcnt vmcnt(0)')
    cstamp(a); dstamp(a, 'astart')
    a(f'ds_read_b128 {R(K[0],4)}, v{vK[0]}')
    a(f'ds_read_b128 {R(K[1],4)}, v{vK[0]} offset:1024')
    a(f'ds_read_b128 {R(Vv[0],4)}, v{vV0[0]}')
    a(f'ds_read_b128 {R(Vv[0]+4,4)}, v{vV1[0]}')
    a('s_waitcnt lgkmcnt(3)')
    a(f'{MF} {R(SA,16)}, {R(K[0],4)}, {R(QA,4)}, 0')
    a(f'{MF} {R(SB_,16)}, {R(K[0],4)}, {R(QB,4)}, 0')
    a('s_nop 10')
    def rowmax_to_neg(S_, N_):
        a(f'v_max3_f32 v{t0}, v{S_}, v{S_+1}, v{S_+2}')
        for i in range(3, 15, 2): a(f'v_max3_f32 v{t0}, v{t0}, v{S_+i}, v{S_+i+1}')
        a(f'v_max_f32 v{t0}, v{t0}, v{S_+15}')
        a(f'v_mov_b32 v{t1}, v{t0}')
        a('s_nop 1')
        a(f'v_permlane32_swap_b32 v{t0}, v{t1}')
        a('s_nop 1')
        a(f'v_max_f32 v{t0}, v{t0}, v{t1}')
        for i in range(16): a(f'v_sub_f32 v{N_+i}, 0, v{t0}')
    rowmax_to_neg(SA, NA)
    rowmax_to_neg(SB_, NB)
    a('s_nop 1')
    a(f'{MF} {R(SA,16)}, {R(K[0],4)}, {R(QA,4)}, {R(NA,16)}')
    a(f's_mov_b32 s{sC}, 0')
    a('s_waitcnt lgkmcnt(0)')
    a('s_nop 8')
    a('s_setprio 0')
    a.label('att_loop')
    for t in range(8):
        Kc, Kn = K[t % 2], K[(t + 1) % 2]
        Vc, Vn = Vv[t % 2], Vv[(t + 1) % 2]
        for sub in range(2):
            cur = [SA, SB_][sub]
            if sub == 0:
                qk = f'{MF} {R(SB_,16)}, {R(Kc,4)}, {R(QB,4)}, {R(NB,16)}'
                pv1 = f'{MF} {R(OB,16)}, {R(Vn+4,4)}, {R(P+4,4)}, {R(OB,16)}'
            else:
                qk = f'{MF} {R(SA,16)}, {R(Kn,4)}, {R(QA,4)}, {R(NA,16)}'
                pv1 = f'{MF} {R(OA,16)}, {R(Vc+4,4)}, {R(P+4,4)}, {R(OA,16)}'
            Oc = [OA, OB][sub]
            pv0 = f'{MF} {R(Oc,16)}, {R(Vc,4)}, {R(P,4)}, {R(Oc,16)}'
            ex = [f'v_exp_f32 v{cur+i}, v{cur+i}' for i in range(16)]
            cv = [f'v_cvt_pk_bf16_f32 v{P+i}, v{cur+2*i}, v{cur+2*i+1}' for i in range(8)]
            a(qk)
            for s in ex[0:6]: a(s)
            a(pv1)
            if sub == 0:
                a('s_waitcnt lgkmcnt(0)')
                if t == 6:
                    l1 = a.newlabel('att_rdy')
                    a(f'v_readfirstlane_b32 s{T0}, v{vR}')
                    a(f's_min_u32 s{T1}, s{sC}, 6')
                    a(f's_add_u32 s{T1}, s{T1}, 1')
                    a(f's_cmp_gt_u32 s{T0}, s{T1}')
                    a(f's_cbranch_scc1 {l1}')
                    spin_ready(f's{T1}')
                    a.label(l1)
                if t == 7:
                    a(f'v_add_u32 v{vP}, 1, v{vP}')
                    a(f'ds_write_b32 v{vDn}, v{vP}')
                if t == 5:
                    a(f'ds_read_b32 v{vR}, v{vF} offset:{F_KRDY}')
                kb = vK[0] if t + 2 < 8 else vK[1]
                b_ = 0 if t + 1 < 8 else 1
                a(f'ds_read_b128 {R(Kc,4)}, v{kb} offset:{((t+2)%8)*1024}')
                a(f'ds_read_b128 {R(Vn,4)}, v{vV0[b_]} offset:{((t+1)%8)*VT}')
                a(f'ds_read_b128 {R(Vn+4,4)}, v{vV1[b_]} offset:{((t+1)%8)*VT}')
            for s in ex[6:8] + cv[0:4] + ex[8:10]: a(s)
            a(pv0)
            for s in ex[10:16] + cv[4:8]: a(s)
    a(f'v_mov_b32 v{vK[0]}, v{vK[1]}'); a(f'v_mov_b32 v{vV0[0]}, v{vV0[1]}'); a(f'v_mov_b32 v{vV1[0]}, v{vV1[1]}')
    a(f's_add_u32 s{sBn}, s{sBn}, {ATT_BUF}')
    a(f's_cmp_eq_u32 s{sBn}, {NBUF*ATT_BUF}')
    a(f's_cselect_b32 s{sBn}, 0, s{sBn}')
    a(f'v_add_u32 v{vK[1]}, s{sBn}, v{vL16}')
    a(f'v_add_u32 v{vV0[1]}, s{sBn}, v{vV0b}')
    a(f'v_add_u32 v{vV1[1]}, s{sBn}, v{vV1b}')
    a(f's_add_u32 s{sC}, s{sC}, 1')
    a(f's_cmp_lt_u32 s{sC}, 8')
    a('s_cbranch_scc1 att_loop')
    a(f'{MF} {R(OB,16)}, {R(Vv[1]+4,4)}, {R(P+4,4)}, {R(OB,16)}')
    a('s_setprio 3')
    cstamp(a)
    a('s_waitcnt lgkmcnt(0)')
    a.label('att_fin')
    a('s_nop 12')
    LA, LB = SA, SA + 2
    for L_, O_ in ((LA, OA), (LB, OB)):
        a(f'v_mov_b32 v{L_}, v{O_+8}'); a(f'v_mov_b32 v{L_+1}, v{O_+8}')
    a('s_nop 1')
    a(f'v_permlane32_swap_b32 v{LA}, v{LA+1}')
    a(f'v_permlane32_swap_b32 v{LB}, v{LB+1}')
    lok = a.newlabel('att_ok')
    a(f's_cmp_lg_u32 s{sFb}, 0')
    a(f's_cbranch_scc1 {lok}')
    a(f's_mov_b32 s{T0}, {hex(f32bits(2.0**-60))}')
    a(f's_mov_b32 s{T1}, {hex(f32bits(2.0**60))}')
    a(f'v_cmp_nle_f32 vcc, s{T0}, v{LA}')
    a(f'v_cmp_nge_f32 s[54:55], s{T1}, v{LA}')
    a('s_or_b64 s[52:53], vcc, s[54:55]')
    a(f'v_cmp_nle_f32 vcc, s{T0}, v{LB}')
    a(f'v_cmp_nge_f32 s[54:55], s{T1}, v{LB}')
    a('s_or_b64 vcc, vcc, s[54:55]')
    a('s_or_b64 vcc, vcc, s[52:53]')
    a('s_cbranch_scc1 att_fallback')
    a.label(lok)
    a(f'v_rcp_f32 v{LA}, v{LA}')
    a(f'v_rcp_f32 v{LB}, v{LB}')
    a(f's_lshl_b32 s{T0}, s{sTT}, 5')
    a(f's_add_u32 s{T0}, s{T0}, s{sHead}')
    a(f's_lshl_b32 s{T0}, s{T0}, 10')
    a(f's_add_u32 s{T0}, s{T0}, {hex(OF)}')
    for n, (L_, O_) in enumerate(((LA, OA), (LB, OB))):
        for i in range(8): a(f'v_mul_f32 v{O_+i}, v{O_+i}, v{L_}')
        for i in range(4): a(f'v_cvt_pk_bf16_f32 v{P+4*n+i}, v{O_+2*i}, v{O_+2*i+1}')
        if n: a(f's_add_u32 s{T0}, s{T0}, 32768')
        a('s_nop 1')
        b = P + 4 * n
        a(f'v_permlane32_swap_b32 v{b}, v{b+2}')
        a(f'v_permlane32_swap_b32 v{b+1}, v{b+3}')
        a('s_nop 1')
        a(f'buffer_store_dwordx4 {R(b,4)}, v{vL16}, {ws}, s{T0} offen sc1')
    a(f's_lshr_b32 s{T1}, s{sTT}, 1')
    mb_signal(a, M_CA, 8, id_rows(a, T1, False), group=False)
    stamp_flush(a, 5, 1)
    a('s_endpgm')
    a.label('att_fallback')
    a(f's_mov_b32 s{sFb}, 1')
    a(f's_lshl_b32 s{sKoff}, s{sHead}, 10')
    a(f's_add_u32 s{sVoff}, s{sKoff}, {hex(VF)}')
    a(f's_add_u32 s{sKoff}, s{sKoff}, {hex(KF)}')
    for i in range(16):
        a(f'v_mov_b32 v{NA+i}, 0xff800000'); a(f'v_mov_b32 v{NB+i}, 0xff800000')
    a(f's_mov_b32 s{sC}, 0')
    a(f's_mov_b32 s{T0}, s{sKoff}')
    a.label('att_fb1')
    a(f'buffer_load_dwordx4 {R(K[0],4)}, v{vL16}, {ws}, s{T0} offen {LDF}')
    a('s_waitcnt vmcnt(0)')
    a(f'{MF} {R(SA,16)}, {R(K[0],4)}, {R(QA,4)}, 0')
    a(f'{MF} {R(SB_,16)}, {R(K[0],4)}, {R(QB,4)}, 0')
    a('s_nop 12')
    for i in range(16): a(f'v_max_f32 v{NA+i}, v{NA+i}, v{SA+i}')
    for i in range(16): a(f'v_max_f32 v{NB+i}, v{NB+i}, v{SB_+i}')
    a(f's_add_u32 s{T0}, s{T0}, 32768')
    a(f's_add_u32 s{sC}, s{sC}, 1')
    a(f's_cmp_lt_u32 s{sC}, 64')
    a('s_cbranch_scc1 att_fb1')
    for i in range(16):
        a(f'v_mov_b32 v{SA+i}, v{NA+i}'); a(f'v_mov_b32 v{SB_+i}, v{NB+i}')
    rowmax_to_neg(SA, NA)
    rowmax_to_neg(SB_, NB)
    for i in range(16):
        a(f'v_mov_b32 v{OA+i}, 0'); a(f'v_mov_b32 v{OB+i}, 0')
    a(f'v_and_b32 v{t0}, 31, v{l}')
    a(f'v_cmp_eq_u32 vcc, 16, v{t0}')
    a(f'v_mov_b32 v{t1}, 0x3f803f80')
    a('s_nop 0')
    for i in range(8): a(f'v_cndmask_b32 v{Vv[0]+i}, 0, v{t1}, vcc')
    a(f's_mov_b32 s{sC}, 0')
    a.label('att_fb2')
    a(f'buffer_load_dwordx4 {R(K[0],4)}, v{vL16}, {ws}, s{sKoff} offen {LDF}')
    a(f's_mov_b64 exec, s[{sEx}:{sEx+1}]')
    a(f'buffer_load_dwordx4 {R(Vv[0],4)}, v{vVo}, {ws}, s{sVoff} offen {LDF}')
    a(f'buffer_load_dwordx4 {R(Vv[0]+4,4)}, v{vVo}, {ws}, s{sVoff} offen offset:512 {LDF}')
    a('s_mov_b64 exec, -1')
    a('s_waitcnt vmcnt(0)')
    a(f'{MF} {R(SA,16)}, {R(K[0],4)}, {R(QA,4)}, {R(NA,16)}')
    a(f'{MF} {R(SB_,16)}, {R(K[0],4)}, {R(QB,4)}, {R(NB,16)}')
    a('s_nop 12')
    for S_, O_ in ((SA, OA), (SB_, OB)):
        for i in range(16): a(f'v_exp_f32 v{S_+i}, v{S_+i}')
        a('s_nop 0')
        for i in range(8): a(f'v_cvt_pk_bf16_f32 v{P+i}, v{S_+2*i}, v{S_+2*i+1}')
        a('s_nop 1')
        a(f'{MF} {R(O_,16)}, {R(Vv[0],4)}, {R(P,4)}, {R(O_,16)}')
        a(f'{MF} {R(O_,16)}, {R(Vv[0]+4,4)}, {R(P+4,4)}, {R(O_,16)}')
    a(f's_add_u32 s{sKoff}, s{sKoff}, 32768')
    a(f's_add_u32 s{sVoff}, s{sVoff}, 32768')
    a(f's_add_u32 s{sC}, s{sC}, 1')
    a(f's_cmp_lt_u32 s{sC}, 64')
    a('s_nop 7'); a('s_nop 7')
    a('s_cbranch_scc1 att_fb2')
    a('s_branch att_fin')
    return va.hi

def full_kernel(a):
    name = NAME + '_kernel'
    kernel_header(a, name)
    a('s_cmp_ge_u32 s2, 256')
    a('s_cbranch_scc1 k_end')
    stamp(a, 0)
    if os.environ.get('DBGT'):
        a('s_memtime s[64:65]'); a('s_memrealtime s[66:67]')
    a('s_mov_b32 s92, 0')
    a('s_load_dwordx4 s[24:27], s[0:1], 0')
    a('s_load_dwordx2 s[28:29], s[0:1], 16')
    a('s_load_dwordx2 s[30:31], s[0:1], 32')
    a('s_load_dwordx2 s[32:33], s[0:1], 40')
    a('s_load_dwordx8 s[84:91], s[0:1], 48')
    a('s_load_dwordx2 s[34:35], s[0:1], 80')
    SB.on = True; SB.base = FL + 64; SB.n = 0; SB.vA = vSA; SB.vB = vSB; SB.sT = T3; SB.maxn = 48
    a('v_cmp_gt_u32 vcc, 64, v0')
    a('s_and_saveexec_b64 s[36:37], vcc')
    lz = a.newlabel('Lz')
    a(f's_cbranch_execz {lz}')
    a('v_lshlrev_b32 v1, 2, v0')
    a(f'v_add_u32 v1, {FL}, v1')
    a('v_mov_b32 v2, 0')
    a('ds_write_b32 v1, v2')
    a.label(lz)
    a('s_mov_b64 exec, -1')
    sWv = 58
    wave_lane(a, sWv, 1)
    a('s_waitcnt lgkmcnt(0)')
    srd(a, sWS, pWS, WS_BYTES)
    a('s_barrier')
    a('s_setprio 3')
    a(f's_cmp_eq_u32 s{sWv}, 9')
    a('s_cbranch_scc1 k_sentinel')
    a(f's_cmp_eq_u32 s{sWv}, 4')
    a('s_cbranch_scc1 k_loader')
    sK = 59
    a(f's_sub_u32 s{sK}, s{sWv}, 1')
    a(f's_cmp_lt_u32 s{sWv}, 4')
    a(f's_cselect_b32 s{sK}, s{sWv}, s{sK}')
    hi = ln_stage(a, sK)
    a(f's_and_b32 s{sW}, s{sK}, 3')
    a(f's_cmp_ge_u32 s{sK}, 4')
    a('s_cbranch_scc1 k_chain')
    CS.n = 4 if LNST else 1
    if os.environ.get('APRIO'): a(f's_setprio {os.environ["APRIO"]}')
    hi = max(hi, qkv_compute(a))
    hi = max(hi, att_compute(a))
    a.label('k_chain')
    a(f's_setprio {PRIO}')
    a('v_subrev_u32 v0, 320, v0')
    CS.n = 4 if LNST else 1
    hi = max(hi, w1_stage(a))
    hi = max(hi, g2_stage(a))
    cstamp(a)
    hi = max(hi, g3_stage(a, 'k_g4'))
    a.label('k_g4')
    cstamp(a)
    hi = max(hi, g45_stage(a))
    stamp_flush(a, 5, 2)
    if os.environ.get('DBGT'):
        lq = a.newlabel('Ldbg')
        a('s_cmp_lg_u32 s2, 8')
        a(f's_cbranch_scc1 {lq}')
        a('s_waitcnt vmcnt(0)')
        a('s_memtime s[68:69]'); a('s_memrealtime s[70:71]')
        a('s_waitcnt lgkmcnt(0)')
        a('s_sub_u32 s68, s68, s64'); a('s_sub_u32 s70, s70, s66')
        srd(a, sDBG, pDBG, 256)
        a('v_mov_b32 v4, s68'); a('v_mov_b32 v5, s70'); a('v_mov_b32 v6, 4')
        a('s_mov_b64 exec, 1')
        a(f'buffer_store_dwordx2 v[4:5], v6, s[{sDBG}:{sDBG+3}], 0 offen')
        a.label(lq)
    a('s_endpgm')
    a.label('k_loader')
    a(f's_setprio {int(os.environ.get("LPRIO", "1"))}')
    qkv_loader(a)
    a('s_setprio 3')
    kv_loader(a)
    a.label('k_sentinel')
    sentinel(a)
    a.label('k_end')
    a('s_endpgm')
    SB.on = False
    return name, hi, LDS_TOTAL

if __name__ == '__main__':
    build([(full_kernel, 256, 640)], sys.argv[1])
```

```python
import sys, math, os
from asmlib import *

NAME = 'parallel_sum__softmax_full_mha__mixer_s_mlp__prompt'

QF  = 0x000000
KF  = 0x200000
VF  = 0x400000
HF  = 0x600000
X1F = 0x800000
OF  = 0xA00000
H3F = 0xC00000
YF  = 0x1200000
ST  = 0x1600000
PS  = 0x1610000
CS1 = 0x1650000
CS3 = 0x1660000
FLG = 0x1680000
WS_BYTES = 0x1800000
OOB = 0x7F000000

LOG2E = 1.4426950408889634
QSCALE = 0.25 * LOG2E
EPS = 1e-5
GC1 = -2.0 * 0.7978845608028654 * LOG2E
GC2 = GC1 * 0.044715

sXSRD, sWSRD, sWS, sAUX, sDBG = 4, 8, 12, 16, 20

class Opt:
    stamps = os.environ.get('STAMPS', '0') == '1'
STAMP_OFF = 0x1700000

def srd(a, d, base, nbytes):
    a(f's_mov_b32 s{d}, s{base}')
    a(f's_and_b32 s{d+1}, s{base+1}, 0xffff')
    a(f's_mov_b32 s{d+2}, {hex(nbytes)}')
    a(f's_mov_b32 s{d+3}, 0x20000')

def bf16_round(a, v):
    a(f'v_cvt_pk_bf16_f32 v{v}, v{v}, v{v}')
    a(f'v_lshlrev_b32 v{v}, 16, v{v}')

def stamp(a, idx):
    if not Opt.stamps: return
    a(f's_memtime s[{64+4*idx}:{65+4*idx}]')
    a(f's_memrealtime s[{66+4*idx}:{67+4*idx}]')
def stamp_flush(a, n, slot):
    if not Opt.stamps: return
    a('s_waitcnt lgkmcnt(0) vmcnt(0)')
    stamp(a, n)
    a('s_waitcnt lgkmcnt(0)')
    a('s_mov_b64 exec, -1')
    a('v_cmp_eq_u32 vcc, 0, v0')
    a('s_and_saveexec_b64 s[62:63], vcc')
    lab = a.newlabel('Lstamp')
    a(f's_cbranch_execz {lab}')
    a(f's_lshl_b32 s61, s2, 6')
    a(f's_add_u32 s61, s61, {hex(STAMP_OFF + slot * 0x10000)}')
    a('v_mov_b32 v2, 0')
    for i in range(n + 1):
        a(f'v_mov_b32 v4, s{64+4*i}')
        a(f'v_mov_b32 v5, s{66+4*i}')
        a(f'buffer_store_dwordx2 v[4:5], v2, s[{sWS}:{sWS+3}], s61 offen offset:{8*i}')
        a('s_nop 1')
    a.label(lab)

class G:
    pass

def spin_guard(a):
    a('s_add_u32 s92, s92, 1')
    a('s_cmp_gt_u32 s92, 0x400000')
    a('s_cbranch_scc1 k_end')

class SB:
    on = False; base = 0; n = 0; nw = 4; vA = None; vB = None; sT = None; maxn = 0
def BAR(a):
    if not SB.on:
        a('s_barrier'); return
    off = SB.n * 4; SB.n += 1
    assert SB.n <= SB.maxn
    lp = a.newlabel('Lsb'); ld = a.newlabel('Lsbd')
    a(f'v_mov_b32 v{SB.vA}, {SB.base}')
    a(f'v_mov_b32 v{SB.vB}, 1')
    a('s_waitcnt lgkmcnt(0)')
    a('s_mov_b64 exec, 1')
    if os.environ.get('BARV', '2') == '2':
        a(f'ds_add_rtn_u32 v{SB.vB}, v{SB.vA}, v{SB.vB} offset:{off}')
        a('s_waitcnt lgkmcnt(0)')
        a(f'v_readfirstlane_b32 s{SB.sT}, v{SB.vB}')
        a(f's_cmp_ge_u32 s{SB.sT}, {SB.nw - 1}')
        a(f's_cbranch_scc1 {ld}')
        a.label(lp)
        a(f'ds_read_b32 v{SB.vB}, v{SB.vA} offset:{off}')
        spin_guard(a)
        a('s_waitcnt lgkmcnt(0)')
        a(f'v_readfirstlane_b32 s{SB.sT}, v{SB.vB}')
        a(f's_cmp_lt_u32 s{SB.sT}, {SB.nw}')
        a(f's_cbranch_scc1 {lp}')
    else:
        a(f'ds_add_u32 v{SB.vA}, v{SB.vB} offset:{off}')
        a.label(lp)
        a(f'ds_read_b32 v{SB.vB}, v{SB.vA} offset:{off}')
        a('s_waitcnt lgkmcnt(0)')
        a(f'v_readfirstlane_b32 s{SB.sT}, v{SB.vB}')
        a(f's_cmp_ge_u32 s{SB.sT}, {SB.nw}')
        a(f's_cbranch_scc1 {ld}')
        a('s_sleep 1')
        spin_guard(a)
        a(f's_branch {lp}')
    a.label(ld)
    a('s_mov_b64 exec, -1')

def wave_lane(a, sW, vLane):
    a(f'v_lshrrev_b32 v{vLane}, 6, v0')
    a('s_nop 0')
    a(f'v_readfirstlane_b32 s{sW}, v{vLane}')
    a(f'v_and_b32 v{vLane}, 63, v0')

def gemm_setup(a, va, p):
    TT, FT, WR, WC, NST = p.TT, p.FT, p.WR, p.WC, p.NST
    NW = WR * WC
    G2 = NW // 4
    TW, FW = TT // WR, FT // WC
    p.TW, p.FW, p.NW, p.G2 = TW, FW, NW, G2
    XS, WSZ = TT * 4096, FT * 4096
    XW = getattr(p, 'lds_base', 0) + NST * XS
    p.XS, p.WSZ, p.XW = XS, WSZ, XW
    p.lds_bytes = getattr(p, 'lds_base', 0) + NST * (XS + WSZ)
    sT0, sT1, sM0x, sM0w, sWr, sWc, sS, sGr = [p.stmp + i for i in range(8)]
    p.sT0, p.sT1, p.sM0x, p.sM0w, p.sWr, p.sWc, p.sS, p.sGr = sT0, sT1, sM0x, sM0w, sWr, sWc, sS, sGr
    l = p.vLane
    t0 = va(); t1 = va(); t2 = va()
    p.t = (t0, t1, t2)
    lg = int(math.log2(WC))
    a(f's_lshr_b32 s{sWr}, s{p.sW}, {lg}')
    a(f's_and_b32 s{sWc}, s{p.sW}, {WC-1}')
    a(f's_and_b32 s{sS}, s{p.sW}, 3')
    a(f's_lshr_b32 s{sGr}, s{p.sW}, 2')
    assert TT % G2 == 0
    p.TD = TT // G2
    p.FD = (FT + G2 - 1) // G2
    assert FT % G2 == 0
    a(f's_lshl_b32 s{sM0x}, s{sS}, 10')
    a(f's_add_u32 s{sM0w}, s{sM0x}, {XW}')
    if getattr(p, 'lds_base', 0): a(f's_add_u32 s{sM0x}, s{sM0x}, {p.lds_base}')
    if G2 > 1:
        a(f's_mul_i32 s{sT0}, s{sGr}, {p.TD * 4096}')
        a(f's_add_u32 s{sM0x}, s{sM0x}, s{sT0}')
        a(f's_mul_i32 s{sT0}, s{sGr}, {p.FD * 4096}')
        a(f's_add_u32 s{sM0w}, s{sM0w}, s{sT0}')
    vW = va(); p.vW = vW
    a(f'v_lshrrev_b32 v{t0}, 2, v{l}')
    a(f's_mov_b32 s{sT0}, {p.rowbytes}')
    a(f'v_mul_lo_u32 v{vW}, v{t0}, s{sT0}')
    a(f'v_and_b32 v{t0}, 3, v{l}')
    a(f'v_lshl_add_u32 v{vW}, v{t0}, 4, v{vW}')
    vL16 = va(); p.vL16 = vL16
    a(f'v_lshlrev_b32 v{vL16}, 4, v{l}')
    if p.xmode == 'row':
        vX = va(); p.vX = vX
        a(f's_and_b32 s{sT0}, s{p.sW}, 1')
        a(f's_lshl_b32 s{sT0}, s{sT0}, 2')
        a(f'v_lshrrev_b32 v{t0}, 4, v{l}')
        a(f'v_add_u32 v{t0}, s{sT0}, v{t0}')
        a(f'v_and_b32 v{t1}, 7, v{l}')
        a(f'v_xor_b32 v{t0}, v{t0}, v{t1}')
        a(f'v_lshrrev_b32 v{t1}, 3, v{l}')
        a(f'v_lshlrev_b32 v{t1}, 10, v{t1}')
        a(f'v_lshl_add_u32 v{vX}, v{t0}, 4, v{t1}')
    elif p.xmode == 'shift':
        assert G2 == 1 and p.xtile == 32768
        vSh = [[va() for g in range(4)] for T in range(TT)]
        p.vSh = vSh
        shifts = [-1, 1, -2, 2]
        a(f'v_and_b32 v{t0}, 31, v{l}')
        a(f'v_add_u32 v{t0}, s{p.sRow0}, v{t0}')
        a(f'v_lshrrev_b32 v{t1}, 5, v{l}')
        a(f'v_lshlrev_b32 v{t1}, 9, v{t1}')
        a(f's_mov_b32 s{sT0}, 2048')
        a(f's_mov_b32 s{sT1}, {hex(OOB)}')
        for T in range(TT):
            for g in range(4):
                r = vSh[T][g]
                d = 32 * T + shifts[g]
                a(f'v_add_u32 v{t2}, {d}, v{t0}')
                a(f'v_cmp_gt_u32 vcc, s{sT0}, v{t2}')
                a(f'v_lshrrev_b32 v{r}, 5, v{t2}')
                a(f'v_lshlrev_b32 v{r}, 15, v{r}')
                a(f'v_and_b32 v{t2}, 31, v{t2}')
                a(f'v_lshl_add_u32 v{r}, v{t2}, 4, v{r}')
                a(f'v_add_u32 v{r}, v{r}, v{t1}')
                a(f'v_mov_b32 v{t2}, s{sT1}')
                a(f'v_cndmask_b32 v{r}, v{t2}, v{r}, vcc')
    base = getattr(p, 'lds_base', 0)
    if p.xmode == 'row':
        vXr = [va() for s in range(4)]; p.vXr = vXr
        a(f'v_and_b32 v{t0}, 31, v{l}')
        a(f'v_lshrrev_b32 v{t1}, 1, v{t0}')
        a(f'v_and_b32 v{t1}, 7, v{t1}')
        a(f'v_lshrrev_b32 v{t2}, 5, v{l}')
        a(f'v_xor_b32 v{t1}, v{t1}, v{t2}')
        a(f'v_lshlrev_b32 v{t0}, 7, v{t0}')
        a(f's_mul_i32 s{sT0}, s{sWr}, {TW * 4096}')
        if base: a(f's_add_u32 s{sT0}, s{sT0}, {base}')
        a(f'v_add_u32 v{t0}, s{sT0}, v{t0}')
        for s in range(4):
            a(f'v_xor_b32 v{t2}, {2*s}, v{t1}')
            a(f'v_lshl_add_u32 v{vXr[s]}, v{t2}, 4, v{t0}')
    else:
        vXb = va(); p.vXb = vXb
        a(f's_mul_i32 s{sT0}, s{sWr}, {TW * 4096}')
        if base: a(f's_add_u32 s{sT0}, s{sT0}, {base}')
        a(f'v_add_u32 v{vXb}, s{sT0}, v{vL16}')
    vWb = va(); p.vWb = vWb
    a(f'v_lshrrev_b32 v{t0}, 5, v{l}')
    a(f'v_lshlrev_b32 v{t0}, 9, v{t0}')
    a(f'v_bfe_u32 v{t1}, v{l}, 2, 2')
    a(f'v_lshl_add_u32 v{t0}, v{t1}, 6, v{t0}')
    a(f'v_bfe_u32 v{t1}, v{l}, 4, 1')
    a(f'v_lshl_add_u32 v{t0}, v{t1}, 5, v{t0}')
    a(f'v_and_b32 v{t1}, 3, v{l}')
    a(f'v_lshl_add_u32 v{t0}, v{t1}, 3, v{t0}')
    a(f's_mul_i32 s{sT0}, s{sWc}, {FW * 4096}')
    a(f's_add_u32 s{sT0}, s{sT0}, {XW}')
    a(f'v_add_u32 v{vWb}, s{sT0}, v{t0}')

def gemm_main(a, va, p):
    TT, FT, WR, WC, KS, NST = p.TT, p.FT, p.WR, p.WC, p.KS, p.NST
    TW, FW, XS, WSZ = p.TW, p.FW, p.XS, p.WSZ
    NCH = (KS + 3) // 4
    sT0, sT1 = p.sT0, p.sT1
    vm = []
    p.vm = vm
    rot = getattr(p, 'sRot', None) is not None

    def dma_ops(c):
        st = c % NST
        ops = []
        for T in range(p.TD):
            def f(T=T):
                a(f's_add_u32 m0, s{p.sM0x}, {st * XS + T * 4096}')
                if p.xmode == 'row' and rot:
                    if T == 0:
                        a(f's_add_u32 s{p.sRotC}, s{p.sRot}, {c}')
                        a(f's_and_b32 s{p.sRotC}, s{p.sRotC}, {NCH-1}')
                        a(f's_lshl_b32 s{p.sRotX}, s{p.sRotC}, 7')
                        a(f's_add_u32 s{p.sRotX}, s{p.sRotX}, s{p.sXoff}')
                        a(f's_mul_i32 s{p.sRotW}, s{p.sRotC}, {64 * p.rowbytes}')
                        a(f's_add_u32 s{p.sRotW}, s{p.sRotW}, s{p.sWoff}')
                    a(f's_add_u32 s{sT0}, s{p.sRotX}, {T * 32768}'); vo = p.vX
                elif p.xmode == 'row':
                    a(f's_add_u32 s{sT0}, s{p.sXoff}, {T * 32768 + c * 128}'); vo = p.vX
                elif p.xmode == 'shift':
                    a(f's_add_u32 s{sT0}, s{p.sXoff}, {c * 4096}'); vo = p.vSh[T][c // 2]
                else:
                    a(f's_add_u32 s{sT0}, s{p.sXoff}, {T * p.xtile + c * 4096}'); vo = p.vL16
                a(f'buffer_load_dwordx4 v{vo}, s[{p.xsrd}:{p.xsrd+3}], s{sT0} offen {p.ldflags} lds')
                vm.append(c)
            ops.append(f)
        for F in range(p.FD):
            def f(F=F):
                a(f's_add_u32 m0, s{p.sM0w}, {st * WSZ + F * 4096}')
                if rot: a(f's_add_u32 s{sT1}, s{p.sRotW}, {F * 64}')
                else: a(f's_add_u32 s{sT1}, s{p.sWoff}, {c * 64 * p.rowbytes + F * 64}')
                a(f'buffer_load_dwordx4 v{p.vW}, s[{sWSRD}:{sWSRD+3}], s{sT1} offen lds')
                vm.append(c)
            ops.append(f)
        return ops

    acc = [[va(16, 4) for F in range(FW)] for T in range(TW)]
    xf = [[va(4) for T in range(TW)] for b in range(2)]
    wf = [[va(4) for F in range(FW)] for b in range(2)]
    p.acc = acc; p.xf = xf; p.wf = wf
    xstats = getattr(p, 'xstats', False); wsum_on = getattr(p, 'wsum', False)
    if xstats:
        xs = [[va(), va()] for T in range(TW)]; p.xs = xs
    if wsum_on:
        wsum = [va() for F in range(FW)]; p.wsumr = wsum
    ninit = min(getattr(p, 'init_chunks', NST), NCH)
    for c in range(ninit):
        for f in dma_ops(c): f()
    nxt = ninit
    pending = []
    if getattr(p, 'acc_init', None):
        p.acc_init(acc)
    else:
        for T in range(TW):
            for F in range(FW):
                for i in range(16):
                    a(f'v_mov_b32 v{acc[T][F]+i}, 0')
    if xstats:
        for T in range(TW):
            a(f'v_mov_b32 v{xs[T][0]}, 0'); a(f'v_mov_b32 v{xs[T][1]}, 0')
    if wsum_on:
        for F in range(FW):
            a(f'v_mov_b32 v{wsum[F]}, 0')
    sOnes = p.stmp + 8
    if xstats or wsum_on:
        a(f's_mov_b32 s{sOnes}, 0x3f803f80')
    if getattr(p, 'after_issue', None): p.after_issue()

    def read_ops(i):
        c, s = i // 4, i % 4
        st = c % NST; b = i % 2
        def rx(T):
            if p.xmode == 'row':
                return f'ds_read_b128 {V(xf[b][T],4)}, v{p.vXr[s]} offset:{st * XS + T * 4096}'
            return f'ds_read_b128 {V(xf[b][T],4)}, v{p.vXb} offset:{st * XS + T * 4096 + s * 1024}'
        ops = [(rx(0), ('x', i, 0))]
        for F in range(FW):
            o = st * WSZ + F * 4096 + s * 1024
            ops.append((f'ds_read_b64_tr_b16 {V(wf[b][F],2)}, v{p.vWb} offset:{o}', ('w', i, F)))
            ops.append((f'ds_read_b64_tr_b16 {V(wf[b][F]+2,2)}, v{p.vWb} offset:{o+256}', ('w', i, F)))
        for T in range(1, TW):
            ops.append((rx(T), ('x', i, T)))
        return ops
    lg = []
    def emit_read(op):
        a(op[0]); lg.append(op[1])
    def wait_lds(tags):
        idx = [k for k, t in enumerate(lg) if t in tags]
        if not idx: return
        n = len(lg) - 1 - max(idx)
        a(f's_waitcnt lgkmcnt({n})')
        del lg[:max(idx) + 1]

    INIT = getattr(p, 'init_chunks', NST)
    def sync(c):
        nonlocal nxt, pending
        for f in pending: f()
        pending = []
        last = max(i for i, v in enumerate(vm) if v == c)
        n = len(vm) - 1 - last
        assert n <= 63
        a(f's_waitcnt vmcnt({n}) lgkmcnt(0)')
        lg.clear()
        BAR(a)
        while nxt < NCH and nxt <= c + NST - 1 and len(pending) < (2 if c == 0 else 1) * (p.TD + p.FD):
            pending += dma_ops(nxt); nxt += 1
        if getattr(p, 'after_sync', None):
            p.after_sync(c); lg.append('other')

    def compute(i, rops):
        nonlocal pending
        b = i % 2
        nm = TW * FW
        per_r = (len(rops) + nm - 1) // nm
        ndma = (len(pending) + (3 - i % 4)) // (4 - i % 4) if pending else 0
        if (i + 1) % 4 == 0: ndma = (len(pending) + 3) // 4
        if os.environ.get('BURST') == '1': ndma = len(pending)
        if os.environ.get('BURST') == '2' and pending: ndma = max(ndma, (p.TD + p.FD + 1) // 2)
        k = 0
        for T in range(TW):
            for F in range(FW):
                wait_lds({('x', i, T), ('w', i, F)})
                ori = p.orient if len(p.orient) == 1 else p.orient[F].upper()
                A_, B_ = (wf[b][F], xf[b][T]) if ori == 'T' else (xf[b][T], wf[b][F])
                a(f'v_mfma_f32_32x32x16_bf16 {V(acc[T][F],16)}, {V(A_,4)}, {V(B_,4)}, {V(acc[T][F],16)}')
                for op in rops[k * per_r:(k + 1) * per_r]: emit_read(op)
                k += 1
                if k >= nm - 1 or nm == 1:
                    take = (ndma + 1) // 2 if k == nm - 1 else ndma
                    for f in pending[:take]: f()
                    pending = pending[take:]; ndma -= take
        if getattr(p, 'step_hook', None): p.step_hook(i, xf[b], wf[b])
        if xstats or wsum_on:
            lab = a.newlabel('Lst')
            a(f's_cmp_lg_u32 s{p.sPar}, {i % 2}')
            a(f's_cbranch_scc1 {lab}')
            for T in range(TW):
                for j in range(4):
                    a(f'v_dot2_f32_bf16 v{xs[T][0]}, v{xf[b][T]+j}, s{sOnes}, v{xs[T][0]}')
                    a(f'v_dot2_f32_bf16 v{xs[T][1]}, v{xf[b][T]+j}, v{xf[b][T]+j}, v{xs[T][1]}')
            for F in range(FW):
                for j in range(4):
                    a(f'v_dot2_f32_bf16 v{wsum[F]}, v{wf[b][F]+j}, s{sOnes}, v{wsum[F]}')
            a.label(lab)

    if xstats or wsum_on:
        assert WR == 2 and WC == 2
        p.sPar = p.stmp + 9
        a(f's_xor_b32 s{p.sPar}, s{p.sWr}, s{p.sWc}')
    sync(0)
    if getattr(p, 'stamp1', None): p.stamp1()
    else: stamp(a, 1)
    for op in read_ops(0): emit_read(op)
    for i in range(KS):
        rops = []
        if i + 1 < KS:
            if (i + 1) % 4 == 0:
                sync((i + 1) // 4)
            rops = read_ops(i + 1)
        compute(i, rops)
    assert not pending
    a('s_waitcnt lgkmcnt(0)')
    if not getattr(p, 'stamp1', None): stamp(a, 2)
    return acc

def gelu_scalar(a, base, n, tmp, sC1, vC2):
    for i in range(n):
        a(f'v_mul_f32 v{tmp+i}, v{base+i}, v{base+i}')
    for i in range(n):
        a(f'v_fma_f32 v{tmp+i}, v{tmp+i}, v{vC2}, s{sC1}')
    for i in range(n):
        a(f'v_mul_f32 v{tmp+i}, v{tmp+i}, v{base+i}')
    for i in range(n):
        a(f'v_exp_f32 v{tmp+i}, v{tmp+i}')
    a('s_nop 0')
    for i in range(n):
        a(f'v_add_f32 v{tmp+i}, 1.0, v{tmp+i}')
    for i in range(n):
        a(f'v_rcp_f32 v{tmp+i}, v{tmp+i}')
    a('s_nop 0')
    for i in range(n):
        a(f'v_mul_f32 v{base+i}, v{base+i}, v{tmp+i}')

def gelu_packed(a, base, n, tmp, c1, c2):
    for i in range(0, n, 2): a(f'v_pk_mul_f32 {V(tmp+i,2)}, {V(base+i,2)}, {V(base+i,2)}')
    for i in range(0, n, 2): a(f'v_pk_fma_f32 {V(tmp+i,2)}, {V(tmp+i,2)}, {V(c2,2)}, {V(c1,2)}')
    for i in range(0, n, 2): a(f'v_pk_mul_f32 {V(tmp+i,2)}, {V(tmp+i,2)}, {V(base+i,2)}')
    for i in range(n): a(f'v_exp_f32 v{tmp+i}, v{tmp+i}')
    a('s_nop 0')
    for i in range(0, n, 2): a(f'v_pk_add_f32 {V(tmp+i,2)}, {V(tmp+i,2)}, 1.0 op_sel_hi:[1,0]')
    for i in range(n): a(f'v_rcp_f32 v{tmp+i}, v{tmp+i}')
    a('s_nop 0')
    for i in range(0, n, 2): a(f'v_pk_mul_f32 {V(base+i,2)}, {V(base+i,2)}, {V(tmp+i,2)}')

def dpp_wave_sum(a, regs, tmp):
    steps = ['row_shr:1', 'row_shr:2', 'row_shr:4', 'row_shr:8', 'row_bcast:15 row_mask:0xa', 'row_bcast:31 row_mask:0xc']
    for st in steps:
        if len(regs) < 3: a('s_nop 1')
        for r in regs:
            m = st if 'row_mask' in st else st + ' row_mask:0xf'
            a(f'v_add_f32_dpp v{r}, v{r}, v{r} {m} bank_mask:0xf bound_ctrl:0' if False else f'v_add_f32_dpp v{r}, v{r}, v{r} {m} bank_mask:0xf')

def build(kernels, out):
    descs = []
    launches = []
    body = Asm()
    for fn, grid, block in kernels:
        name, nv, lds = fn(body)
        descs.append(kernel_desc(name, nv))
        launches.append(f'; @launch kernel={name} grid=({grid},1,1) block=({block},1,1) lds={lds}')
    txt = '\n'.join(launches) + '\n.amdgcn_target "amdgcn-amd-amdhsa--gfx950"\n' + body.text()
    txt += '.section .rodata,"a"\n' + ''.join('.p2align 6\n' + d for d in descs)
    open(out, 'w').write(txt)
```

```python
from core import *

ST_MR1, ST_R1 = ST, ST + 0x2000
SCR = 4 * 32768
STF = os.environ.get('G1STF', 'sc1')
G1HELP = os.environ.get('G1HELP', '1') == '1'
G1_LDS = SCR + 16384

def unpack8(a, src, dst):
    for j in range(4):
        a(f'v_lshlrev_b32 v{dst+2*j}, 16, v{src+j}')
        a(f'v_and_b32 v{dst+2*j+1}, 0xffff0000, v{src+j}')

def g1_kernel(a):
    name = 'g1_kernel'
    kernel_header(a, name)
    a('s_cmp_ge_u32 s2, 256')
    a('s_cbranch_scc1 g1_end')
    stamp(a, 0)
    a('s_load_dwordx4 s[24:27], s[0:1], 0')
    a('s_load_dwordx2 s[28:29], s[0:1], 32')
    a('s_load_dwordx2 s[30:31], s[0:1], 48')
    a('s_load_dwordx2 s[32:33], s[0:1], 40')
    a('s_load_dwordx2 s[34:35], s[0:1], 80')
    sW, sRB, sCB, sXoff, sWoff, sCol0 = 36, 37, 38, 39, 40, 41
    T0, T1, T2, T3 = 43, 44, 45, 46
    vLane = 1
    wave_lane(a, sW, vLane)
    a(f's_and_b32 s{T0}, s2, 7')
    a(f's_lshr_b32 s{T1}, s2, 3')
    a(f's_lshr_b32 s{T2}, s{T0}, 1')
    a(f's_lshl_b32 s{T2}, s{T2}, 2')
    a(f's_and_b32 s{T3}, s{T1}, 3')
    a(f's_add_u32 s{sRB}, s{T2}, s{T3}')
    a(f's_and_b32 s{T2}, s{T0}, 1')
    a(f's_lshl_b32 s{T2}, s{T2}, 3')
    a(f's_lshr_b32 s{T3}, s{T1}, 2')
    a(f's_add_u32 s{sCB}, s{T2}, s{T3}')
    a('s_waitcnt lgkmcnt(0)')
    srd(a, sXSRD, 24, 2048 * 1024)
    srd(a, sWS, 34, WS_BYTES)
    srd(a, sAUX, 30, 512 * 2752)
    a(f's_lshl_b32 s{sXoff}, s{sRB}, 17')
    a(f's_lshl_b32 s{T0}, s{sW}, 13')
    a(f's_add_u32 s{sXoff}, s{sXoff}, s{T0}')
    a(f's_cmp_ge_u32 s{sCB}, 12')
    a('s_cbranch_scc1 g1_w1')
    srd(a, sWSRD, 26, 512 * 3072)
    a(f's_lshl_b32 s{sCol0}, s{sCB}, 8')
    a(f's_cmp_ge_u32 s{sCB}, 8')
    a('s_cbranch_scc1 g1_v')
    hi = 0
    for kind in ('qk', 'v', 'w1'):
        if kind == 'v': a.label('g1_v')
        if kind == 'w1':
            a.label('g1_w1')
            srd(a, sWSRD, 28, 512 * 1024)
            a(f's_sub_u32 s{sCol0}, s{sCB}, 12')
            a(f's_lshl_b32 s{sCol0}, s{sCol0}, 8')
        va = RegAlloc(2, 256)
        p = G()
        p.TT, p.FT, p.WR, p.WC, p.KS, p.NST = 4, 4, 2, 2, 32, 4
        p.xmode = 'row'; p.rowbytes = 1024 if kind == 'w1' else 3072
        p.orient = 'N' if kind == 'v' else 'T'
        p.xstats = True; p.wsum = True
        p.sW, p.sXoff, p.sWoff, p.vLane, p.xsrd, p.ldflags, p.stmp = sW, sXoff, sWoff, vLane, sXSRD, '', 48
        p.xtile = 32768
        p.sRot, p.sRotC, p.sRotX, p.sRotW = 42, 58, 59, 60
        p.init_chunks = int(os.environ.get('G1INIT', '2'))
        a(f's_and_b32 s{T0}, s{sRB}, 3')
        a(f's_lshl_b32 s{T0}, s{T0}, 1')
        a(f's_add_u32 s{p.sRot}, s{T0}, s{sCB}')
        if os.environ.get('G1ROT', '1') == '0': a(f's_mov_b32 s{p.sRot}, 0')
        if os.environ.get('G1ROT', '1') == '2':
            a(f's_and_b32 s{p.sRot}, s{p.sRot}, 1')
            a(f's_lshl_b32 s{p.sRot}, s{p.sRot}, 2')
        a(f's_mul_i32 s{sWoff}, s{sW}, {16 * p.rowbytes}')
        a(f's_add_u32 s{sWoff}, s{sWoff}, s{sCol0}')
        if G1HELP:
            lh = a.newlabel('Lnoh')
            a(f's_cmp_lt_u32 s{sW}, 4')
            a(f's_cbranch_scc1 {lh}')
            vT, vD = 2, 4
            a(f'v_lshrrev_b32 v{vT}, 1, v{vLane}')
            a(f's_mov_b32 s{T0}, {p.rowbytes}')
            a(f'v_mul_lo_u32 v{vT}, v{vT}, s{T0}')
            a(f'v_and_b32 v{vD}, 1, v{vLane}')
            a(f'v_lshl_add_u32 v{vT}, v{vD}, 7, v{vT}')
            a(f's_and_b32 s{T0}, s{sRB}, 3')
            a(f's_mul_i32 s{T0}, s{T0}, {128 * p.rowbytes}')
            a(f's_add_u32 s{T0}, s{T0}, s{sCol0}')
            a(f'v_lshlrev_b32 v3, 10, v{vLane}')
            a(f's_lshl_b32 s{T2}, s{sRB}, 17')
            a(f's_and_b32 s{T1}, s{sCB}, 7')
            a(f's_lshl_b32 s{T1}, s{T1}, 7')
            a(f's_add_u32 s{T2}, s{T2}, s{T1}')
            a('s_barrier')
            for i in range(4):
                a(f'buffer_load_dword v{vD+i}, v{vT}, s[{sWSRD}:{sWSRD+3}], s{T0} offen')
                a(f's_add_u32 s{T0}, s{T0}, {32 * p.rowbytes}')
                if i % 2 == 0:
                    a(f'buffer_load_dword v{vD+4+i}, v3, s[{sXSRD}:{sXSRD+3}], s{T2} offen')
                    a(f's_add_u32 s{T2}, s{T2}, 65536')
            a('s_endpgm')
            a.label(lh)
        gemm_setup(a, va, p)
        l3 = [va(4), va(4)]; u = va(8, 4); tA = va(); tB = va()

        def after_issue():
            if G1HELP: a('s_barrier')
            lab = a.newlabel('Lz')
            a('s_cmp_lg_u32 s2, 255')
            a(f's_cbranch_scc1 {lab}')
            a(f'v_lshlrev_b32 v{tA}, 6, v0')
            a(f'v_mov_b32 v{tB}, 0')
            a(f's_mov_b32 s{T0}, {hex(FLG)}')
            a(f'buffer_store_dword v{tB}, v{tA}, s[{sWS}:{sWS+3}], s{T0} offen')
            a.label(lab)
            a(f's_and_b32 s{T0}, s2, 15')
            a(f's_mul_i32 s{T0}, s{T0}, {32 * 2752}')
            a(f's_lshr_b32 s{T1}, s2, 4')
            a(f's_min_u32 s{T1}, s{T1}, 10')
            a(f's_lshl_b32 s{T1}, s{T1}, 8')
            a(f's_add_u32 s{T0}, s{T0}, s{T1}')
            a(f'v_lshrrev_b32 v{tA}, 4, v0')
            a(f's_mov_b32 s{T1}, 2752')
            a(f'v_mul_lo_u32 v{tA}, v{tA}, s{T1}')
            a(f'v_and_b32 v{tB}, 15, v0')
            a(f'v_lshl_add_u32 v{tA}, v{tB}, 4, v{tA}')
            a(f'buffer_load_dwordx4 {V(l3[0],4)}, v{tA}, s[{sAUX}:{sAUX+3}], s{T0} offen')
            a(f's_add_u32 s{T0}, s{T0}, {16 * 2752}')
            a(f'buffer_load_dwordx4 {V(l3[1],4)}, v{tA}, s[{sAUX}:{sAUX+3}], s{T0} offen')
            p.vm.append('x'); p.vm.append('x')
        p.after_issue = after_issue

        def after_sync(c):
            if c == 6 and os.environ.get('G1WARM', '1') == '1':
                srd(a, sDBG, 32, 512 * 1024)
                a(f'v_lshlrev_b32 v{tA}, 7, v0')
                a(f's_lshr_b32 s{T0}, s2, 3')
                a(f's_lshl_b32 s{T1}, s{T0}, 14')
                a(f'v_and_b32 v{tB}, 0x3fff, v{tA}')
                a(f'buffer_load_dword v{u}, v{tB}, s[{sDBG}:{sDBG+3}], s{T1} offen'); p.vm.append('x')
                a(f's_mul_i32 s{T1}, s{T0}, 44032')
                a(f'buffer_load_dword v{u+1}, v{tA}, s[{sAUX}:{sAUX+3}], s{T1} offen'); p.vm.append('x')
                a(f's_add_u32 s{T1}, s{T1}, 32768')
                a(f'v_and_b32 v{tB}, 0x3fff, v{tA}')
                a(f'buffer_load_dword v{u+2}, v{tB}, s[{sAUX}:{sAUX+3}], s{T1} offen'); p.vm.append('x')
            if c == 4:
                a(f'v_lshrrev_b32 v{tA}, 4, v0')
                a(f'v_lshlrev_b32 v{tA}, 9, v{tA}')
                a(f'v_and_b32 v{tB}, 15, v0')
                a(f'v_lshl_add_u32 v{tA}, v{tB}, 5, v{tA}')
                a(f'v_add_u32 v{tA}, {SCR}, v{tA}')
                for hf in range(2):
                    unpack8(a, l3[hf], u)
                    a(f'ds_write_b128 v{tA}, {V(u,4)} offset:{hf*8192}')
                    a(f'ds_write_b128 v{tA}, {V(u+4,4)} offset:{hf*8192+16}')
            if c == 5:
                lab = a.newlabel('Lc3')
                a(f's_cmp_ge_u32 s{sW}, 2')
                a(f's_cbranch_scc1 {lab}')
                a('s_cmp_ge_u32 s2, 176')
                a(f's_cbranch_scc1 {lab}')
                a(f'v_lshlrev_b32 v{tA}, 2, v0')
                a(f'v_add_u32 v{tB}, {SCR}, v{tA}')
                acc_ = l3[0]
                for blk in range(4):
                    for r in range(8):
                        a(f'ds_read_b32 v{u+r}, v{tB} offset:{(blk*8+r)*512}')
                    a('s_waitcnt lgkmcnt(0)')
                    for r in range(8):
                        if blk == 0 and r == 0: a(f'v_mov_b32 v{acc_}, v{u}')
                        else: a(f'v_add_f32 v{acc_}, v{acc_}, v{u+r}')
                a(f's_and_b32 s{T0}, s2, 15')
                a(f's_mul_i32 s{T0}, s{T0}, {1408 * 4}')
                a(f's_lshr_b32 s{T1}, s2, 4')
                a(f's_lshl_b32 s{T1}, s{T1}, 9')
                a(f's_add_u32 s{T0}, s{T0}, s{T1}')
                a(f's_add_u32 s{T0}, s{T0}, {hex(CS3)}')
                a(f'buffer_store_dword v{acc_}, v{tA}, s[{sWS}:{sWS+3}], s{T0} offen')
                a.label(lab)
        p.after_sync = after_sync
        acc = gemm_main(a, va, p)
        g1_epilogue(a, va, p, acc, kind, sRB, sCB, (T0, T1, T2, T3))
        stamp_flush(a, 3, 0)
        a('s_endpgm')
        hi = max(hi, va.hi)
    a.label('g1_end')
    a('s_endpgm')
    return name, hi, G1_LDS

def ln_scalars(a, mean, ex2, q, n):
    var, m1, s1, rs = q[0], q[1], q[2], q[3]
    a(f'v_mul_f32 v{mean}, {hex(f32bits(1/n))}, v{mean}')
    a(f'v_mul_f32 v{ex2}, {hex(f32bits(1/n))}, v{ex2}')
    a(f'v_fma_f32 v{var}, -v{mean}, v{mean}, v{ex2}')
    a(f'v_max_f32 v{var}, 0, v{var}')
    a(f'v_mov_b32 v{m1}, v{mean}'); bf16_round(a, m1)
    a(f'v_mov_b32 v{s1}, v{var}'); bf16_round(a, s1)
    a(f'v_add_f32 v{s1}, {hex(f32bits(EPS))}, v{s1}'); bf16_round(a, s1)
    a(f'v_sqrt_f32 v{s1}, v{s1}'); a('s_nop 0'); bf16_round(a, s1)
    a(f'v_rcp_f32 v{rs}, v{s1}'); a('s_nop 0')

def ln_finalize(a, va, p, mode, sQ, sRB, sCB, T):
    T0, T1, T2, T3 = T
    t0, t1, t2 = p.t
    TW, FW = p.TW, p.FW
    m = va.mark()
    BAR(a)
    vL4 = va()
    a(f'v_lshlrev_b32 v{vL4}, 2, v{p.vLane}')
    a(f's_mul_i32 s{T0}, s{p.sWc}, {p.TT}')
    a(f's_mul_i32 s{T1}, s{p.sWr}, {TW}')
    a(f's_add_u32 s{T0}, s{T0}, s{T1}')
    a(f's_lshl_b32 s{T0}, s{T0}, 9')
    a(f'v_add_u32 v{t0}, s{T0}, v{vL4}')
    a('s_nop 1')
    for Tt in range(TW):
        for wh in range(2):
            a(f'ds_write_b32 v{t0}, v{p.xs[Tt][wh]} offset:{(Tt*2+wh)*256}')
    a(f's_mul_i32 s{T0}, s{p.sWr}, {p.FT}')
    a(f's_mul_i32 s{T1}, s{p.sWc}, {FW}')
    a(f's_add_u32 s{T0}, s{T0}, s{T1}')
    a(f's_lshl_b32 s{T0}, s{T0}, 8')
    a(f'v_add_u32 v{t0}, s{T0}, v{vL4}')
    for F in range(FW):
        a(f'ds_write_b32 v{t0}, v{p.wsumr[F]} offset:{4096 + F*256}')
    a('s_waitcnt lgkmcnt(0)')
    BAR(a)
    lf = a.newlabel('Lfeat'); ld = a.newlabel('Ldone')
    a(f's_cmp_ge_u32 s{p.sW}, 2')
    a(f's_cbranch_scc1 {lf}')
    q = [va() for _ in range(8)]
    z = [va() for _ in range(6)]
    a(f'v_lshrrev_b32 v{t0}, 5, v0')
    a(f'v_lshlrev_b32 v{t0}, 9, v{t0}')
    a(f'v_and_b32 v{t1}, 31, v0')
    a(f'v_lshl_add_u32 v{t0}, v{t1}, 2, v{t0}')
    k = 0
    for wh in range(2):
        for wc in range(p.WC):
            for h in range(2):
                a(f'ds_read_b32 v{q[k]}, v{t0} offset:{wc*p.TT*512 + wh*256 + h*128}'); k += 1
    a('s_waitcnt lgkmcnt(0)')
    npart = 2 * p.WC
    for wh in range(2):
        b = q[wh * npart]
        for j in range(1, npart):
            a(f'v_add_f32 v{b}, v{b}, v{q[wh*npart+j]}')
    mean, ex2 = q[0], q[npart]
    ln_scalars(a, mean, ex2, z, 512)
    var, m1, s1, rs, m2, s2 = z
    if mode == 'ln2':
        ls = a.newlabel('Lst')
        a(f's_cmp_lg_u32 s{sCB}, 12')
        a(f's_cbranch_scc1 {ls}')
        a(f's_lshl_b32 s{T0}, s{sRB}, 9')
        a(f's_add_u32 s{T0}, s{T0}, {hex(ST_MR1)}')
        a(f'v_lshlrev_b32 v{t1}, 2, v0')
        a(f'v_mul_f32 v{m2}, v{m1}, v{rs}')
        a(f'v_sub_f32 v{m2}, 0, v{m2}')
        a(f'buffer_store_dword v{m2}, v{t1}, s[{sWS}:{sWS+3}], s{T0} offen {STF}')
        a(f's_add_u32 s{T0}, s{T0}, 0x2000')
        a(f'buffer_store_dword v{rs}, v{t1}, s[{sWS}:{sWS+3}], s{T0} offen {STF}')
        a.label(ls)
        a(f'v_sub_f32 v{m2}, v{mean}, v{m1}')
        a(f'v_mul_f32 v{m2}, v{m2}, v{rs}'); bf16_round(a, m2)
        a(f'v_mul_f32 v{s2}, v{var}, v{rs}')
        a(f'v_mul_f32 v{s2}, v{s2}, v{rs}'); bf16_round(a, s2)
        a(f'v_add_f32 v{s2}, {hex(f32bits(EPS))}, v{s2}'); bf16_round(a, s2)
        a(f'v_sqrt_f32 v{s2}, v{s2}'); a('s_nop 0'); bf16_round(a, s2)
        a(f'v_rcp_f32 v{s2}, v{s2}'); a('s_nop 0')
        a(f'v_fma_f32 v{m1}, v{m2}, v{s1}, v{m1}')
        a(f'v_mul_f32 v{q[1]}, v{rs}, v{s2}')
        rs = q[1]
    if sQ is not None:
        a(f'v_mul_f32 v{rs}, s{sQ}, v{rs}')
    a(f'v_mul_f32 v{m1}, v{m1}, v{rs}')
    a(f'v_sub_f32 v{m1}, 0, v{m1}')
    a(f'v_lshlrev_b32 v{t1}, 2, v0')
    a(f'ds_write_b32 v{t1}, v{m1} offset:8192')
    a(f'ds_write_b32 v{t1}, v{rs} offset:8704')
    a(f's_branch {ld}')
    a.label(lf)
    a(f'v_subrev_u32 v{t2}, 128, v0')
    a(f'v_lshrrev_b32 v{t0}, 5, v{t2}')
    a(f'v_lshlrev_b32 v{t0}, 8, v{t0}')
    a(f'v_and_b32 v{t1}, 31, v{t2}')
    a(f'v_lshl_add_u32 v{t0}, v{t1}, 2, v{t0}')
    k = 0
    for wr in range(p.WR):
        for h in range(2):
            a(f'ds_read_b32 v{q[k]}, v{t0} offset:{4096 + wr*p.FT*256 + h*128}'); k += 1
    a('s_waitcnt lgkmcnt(0)')
    for j in range(1, k):
        a(f'v_add_f32 v{q[0]}, v{q[0]}, v{q[j]}')
    a(f'v_lshlrev_b32 v{t1}, 2, v{t2}')
    a(f'ds_write_b32 v{t1}, v{q[0]} offset:9216')
    a.label(ld)
    a('s_waitcnt lgkmcnt(0)')
    BAR(a)
    va.release(m)

def g1_epilogue(a, va, p, acc, kind, sRB, sCB, T):
    T0, T1, T2, T3 = T
    t0, t1, t2 = p.t
    TW, FW = 2, 2
    sQ = None
    if kind == 'qk':
        sQ = T2
        a(f's_mov_b32 s{T2}, 1.0')
        a(f's_mov_b32 s{T3}, {hex(f32bits(QSCALE))}')
        a(f's_cmp_lt_u32 s{sCB}, 4')
        a(f's_cselect_b32 s{T2}, s{T3}, s{T2}')
    ln_finalize(a, va, p, 'ln2' if kind == 'w1' else 'ln1', sQ, sRB, sCB, T)
    l = p.vLane
    vec = p.xf[0][0]; vec2 = p.wf[0][0]
    sc0 = va(4); sc = [sc0, sc0 + 1, sc0 + 2, sc0 + 3]
    PKD = os.environ.get('PKD', '1') == '1'
    tmp = getattr(p, 'tmp16', None) or va(16, 4)
    pk = [va(8, 4), va(8, 4)]
    ws = f's[{sWS}:{sWS+3}]'
    a(f'v_and_b32 v{t0}, 31, v{l}')
    a(f'v_lshlrev_b32 v{t0}, 2, v{t0}')
    a(f'v_lshrrev_b32 v{t1}, 5, v{l}')
    a(f'v_lshlrev_b32 v{t1}, 4, v{t1}')
    if getattr(p, 'ebase', 0):
        a(f'v_add_u32 v{t0}, {p.ebase}, v{t0}')
        a(f'v_add_u32 v{t1}, {p.ebase}, v{t1}')
    vSt = va()
    a(f's_lshl_b32 s{T0}, s{sRB}, 2')
    a(f's_lshl_b32 s{T1}, s{p.sWr}, 1')
    a(f's_add_u32 s{T0}, s{T0}, s{T1}')
    a(f's_lshl_b32 s{T0}, s{T0}, 5')
    a(f's_and_b32 s{T1}, s{sCB}, 3')
    a(f's_lshl_b32 s{T1}, s{T1}, 3')
    a(f's_add_u32 s{T0}, s{T0}, s{T1}')
    a(f's_lshl_b32 s{T1}, s{p.sWc}, 2')
    a(f's_add_u32 s{T0}, s{T0}, s{T1}')
    a(f's_lshl_b32 s{T0}, s{T0}, 10')
    a(f's_lshr_b32 s{T1}, s{sCB}, 2')
    a(f's_lshl_b32 s{T1}, s{T1}, 21')
    a(f's_add_u32 s{T0}, s{T0}, s{T1}')
    n = 0
    if kind != 'v':
        if kind == 'w1':
            vC2 = va(2); vC1 = va(2)
            for j in range(2):
                a(f'v_mov_b32 v{vC2+j}, {hex(f32bits(GC2))}')
                a(f'v_mov_b32 v{vC1+j}, {hex(f32bits(GC1))}')
            a(f's_mov_b32 s{T2}, {hex(f32bits(GC1))}')
        vStT = [vSt, vSt]
        if kind == 'qk':
            a(f'v_lshlrev_b32 v{vSt}, 4, v{l}')
        else:
            vStT = [vSt, va()]
            a(f's_sub_u32 s{T1}, s{sCB}, 12')
            a(f's_lshr_b32 s{T3}, s{T1}, 1')
            a(f's_add_u32 s{T3}, s{T3}, 1')
            a(f's_sub_u32 s61, 0, s{T3}')
            a(f's_and_b32 s{T1}, s{T1}, 1')
            a(f's_cmp_eq_u32 s{T1}, 0')
            a(f's_cselect_b32 s{T3}, s{T3}, s61')
            a(f's_lshl_b32 s{T1}, s{sRB}, 7')
            a(f's_add_u32 s{T3}, s{T3}, s{T1}')
            a(f's_lshl_b32 s{T1}, s{p.sWr}, 6')
            a(f's_add_u32 s{T3}, s{T3}, s{T1}')
            a(f's_mov_b32 s61, 2048')
            for Tt in range(2):
                r = vStT[Tt]
                a(f'v_and_b32 v{t2}, 31, v{l}')
                a(f'v_add_u32 v{t2}, s{T3}, v{t2}')
                if Tt: a(f'v_add_u32 v{t2}, 32, v{t2}')
                a(f'v_cmp_gt_u32 vcc, s61, v{t2}')
                a(f'v_lshrrev_b32 v{r}, 5, v{t2}')
                a(f'v_lshlrev_b32 v{r}, 15, v{r}')
                a(f'v_and_b32 v{t2}, 31, v{t2}')
                a(f'v_lshl_add_u32 v{r}, v{t2}, 4, v{r}')
                a(f'v_lshrrev_b32 v{t2}, 5, v{l}')
                a(f'v_lshl_add_u32 v{r}, v{t2}, 9, v{r}')
                a(f'v_mov_b32 v{t2}, {hex(OOB)}')
                a(f'v_cndmask_b32 v{r}, v{t2}, v{r}, vcc')
            a(f's_and_b32 s{T0}, s{sCB}, 3')
            a(f's_lshl_b32 s{T0}, s{T0}, 3')
            a(f's_lshl_b32 s{T1}, s{p.sWc}, 2')
            a(f's_add_u32 s{T0}, s{T0}, s{T1}')
            a(f's_lshl_b32 s{T0}, s{T0}, 10')
            a(f's_add_u32 s{T0}, s{T0}, {hex(HF)}')
            lz = a.newlabel('Lzf')
            if getattr(p, 'nofill', False): a(f's_branch {lz}')
            a(f's_cmp_lg_u32 s{p.sWr}, 0')
            a(f's_cbranch_scc1 {lz}')
            a(f's_and_b32 s{T1}, s{sCB}, 1')
            a(f's_mul_i32 s{T1}, s{T1}, 15')
            a(f's_cmp_lg_u32 s{sRB}, s{T1}')
            a(f's_cbranch_scc1 {lz}')
            a(f's_sub_u32 s{T1}, s{sCB}, 12')
            a(f's_lshr_b32 s61, s{T1}, 1')
            a(f's_add_u32 s61, s61, 1')
            a(f'v_and_b32 v{t2}, 31, v{l}')
            a(f'v_cmp_gt_u32 vcc, s61, v{t2}')
            a(f's_and_b32 s{T1}, s{T1}, 1')
            a(f's_mul_i32 s61, s{T1}, 31')
            a(f'v_xor_b32 v{t2}, s61, v{t2}')
            a(f'v_lshlrev_b32 v{t2}, 4, v{t2}')
            a(f's_mul_i32 s61, s{T1}, {63 * 32768}')
            a(f'v_add_u32 v{t2}, s61, v{t2}')
            a(f'v_lshrrev_b32 v{tmp}, 5, v{l}')
            a(f'v_lshl_add_u32 v{t2}, v{tmp}, 9, v{t2}')
            for i in range(4): a(f'v_mov_b32 v{tmp+i}, 0')
            a('s_and_saveexec_b64 s[62:63], vcc')
            for kk in range(4):
                a(f'buffer_store_dwordx4 {V(tmp,4)}, v{t2}, {ws}, s{T0} offen offset:{kk*1024} {STF}')
            a('s_mov_b64 exec, -1')
            a.label(lz)
        a(f's_lshl_b32 s{T1}, s{p.sWr}, 8')
        a(f'v_add_u32 v{t0}, s{T1}, v{t0}')
        a(f's_lshl_b32 s{T1}, s{p.sWc}, 8')
        a(f'v_add_u32 v{t1}, s{T1}, v{t1}')
        cs = [vec, vec2]
        for F in range(FW):
            for q in range(4):
                a(f'ds_read_b128 {V(cs[F]+4*q,4)}, v{t1} offset:{9216 + F*128 + q*32}')
        for Tt in range(TW):
            a(f'ds_read_b32 v{sc[2*Tt]}, v{t0} offset:{8192 + Tt*128}')
            a(f'ds_read_b32 v{sc[2*Tt+1]}, v{t0} offset:{8704 + Tt*128}')
        a('s_waitcnt lgkmcnt(0)')
        for Tt in getattr(p, 'Tlist', range(TW)):
            for F in range(FW):
                ac = acc[Tt][F]
                if PKD:
                    for i in range(0, 16, 2):
                        a(f'v_pk_mul_f32 {V(ac+i,2)}, {V(ac+i,2)}, {V(sc[2*Tt],2)} op_sel:[0,1] op_sel_hi:[1,1]')
                    for i in range(0, 16, 2):
                        a(f'v_pk_fma_f32 {V(ac+i,2)}, {V(sc[2*Tt],2)}, {V(cs[F]+i,2)}, {V(ac+i,2)} op_sel:[0,0,0] op_sel_hi:[0,1,1]')
                    if kind == 'w1': gelu_packed(a, ac, 16, tmp, vC1, vC2)
                else:
                    for i in range(16):
                        a(f'v_mul_f32 v{ac+i}, v{ac+i}, v{sc[2*Tt+1]}')
                    for i in range(16):
                        a(f'v_fma_f32 v{ac+i}, v{sc[2*Tt]}, v{cs[F]+i}, v{ac+i}')
                    if kind == 'w1':
                        gelu_scalar(a, ac, 16, tmp, T2, vC2)
                pp = pk[n % 2]; n += 1
                for i in range(8):
                    a(f'v_cvt_pk_bf16_f32 v{pp+i}, v{ac+2*i}, v{ac+2*i+1}')
                a(f's_add_u32 s{T1}, s{T0}, {(Tt*32768 if kind == "qk" else 0) + F*2048}')
                a('s_nop 0')
                for pr in range(2):
                    b = pp + 4 * pr
                    a(f'v_permlane32_swap_b32 v{b}, v{b+2}')
                    a(f'v_permlane32_swap_b32 v{b+1}, v{b+3}')
                a('s_nop 1')
                for pr in range(2):
                    a(f'buffer_store_dwordx4 {V(pp+4*pr,4)}, v{vStT[Tt]}, {ws}, s{T1} offen offset:{pr*1024} {STF}')
    else:
        a(f'v_and_b32 v{vSt}, 15, v{l}')
        a(f'v_lshlrev_b32 v{vSt}, 4, v{vSt}')
        a(f'v_lshrrev_b32 v{t2}, 5, v{l}')
        a(f'v_lshl_add_u32 v{vSt}, v{t2}, 8, v{vSt}')
        a(f'v_bfe_u32 v{t2}, v{l}, 4, 1')
        a(f'v_lshl_add_u32 v{vSt}, v{t2}, 10, v{vSt}')
        a(f's_lshl_b32 s{T1}, s{p.sWc}, 8')
        a(f'v_add_u32 v{t0}, s{T1}, v{t0}')
        a(f's_lshl_b32 s{T1}, s{p.sWr}, 8')
        a(f'v_add_u32 v{t1}, s{T1}, v{t1}')
        for F in range(FW):
            a(f'ds_read_b32 v{sc[F]}, v{t0} offset:{9216 + F*128}')
        for Tt in range(TW):
            for q in range(4):
                a(f'ds_read_b128 {V(vec+4*q,4)}, v{t1} offset:{8192 + Tt*128 + q*32}')
                a(f'ds_read_b128 {V(vec2+4*q,4)}, v{t1} offset:{8704 + Tt*128 + q*32}')
            a('s_waitcnt lgkmcnt(0)')
            for F in range(FW):
                ac = acc[Tt][F]
                if PKD:
                    for i in range(0, 16, 2):
                        a(f'v_pk_mul_f32 {V(ac+i,2)}, {V(ac+i,2)}, {V(vec2+i,2)}')
                    for i in range(0, 16, 2):
                        a(f'v_pk_fma_f32 {V(ac+i,2)}, {V(vec+i,2)}, {V(sc[0],2)}, {V(ac+i,2)} op_sel:[0,{F},0] op_sel_hi:[1,{F},1]')
                else:
                    for i in range(16):
                        a(f'v_mul_f32 v{ac+i}, v{ac+i}, v{vec2+i}')
                    for i in range(16):
                        a(f'v_fma_f32 v{ac+i}, v{vec+i}, v{sc[F]}, v{ac+i}')
                pp = pk[n % 2]; n += 1
                for i in range(8):
                    a(f'v_cvt_pk_bf16_f32 v{pp+i}, v{ac+2*i}, v{ac+2*i+1}')
                a(f's_add_u32 s{T1}, s{T0}, {Tt*32768 + F*2048}')
                for f in range(2):
                    a(f'buffer_store_dwordx4 {V(pp+4*f,4)}, v{vSt}, {ws}, s{T1} offen offset:{f*512} {STF}')
```

```python
import sys
from core2 import *

XNF  = 0x1200000
XNNF = 0x1400000
CL, CQ, C1, C2, C3, CA, CC = [FLG + i * 128 for i in (0, 16, 32, 64, 96, 112, 144)]
NCNT = 192

FL = 163584
F_STATUS, F_WRDY, F_KRDY, F_REQ, F_WDONE, F_KDONE = 0, 4, 8, 12, 16, 32
B_BASE = 98304
G3_BASE = 81920
LDS_TOTAL = 163840
ZOK = 1 << 31
B_QKV, B_C1, B_C2, B_C3, B_CA, B_XA, B_XB = 1, 2, 4, 8, 16, 0x100, 0x200
ALLB = 0x1f
M_QKV, M_C1, M_C2, M_C3, M_CA = 0, 4, 8, 12, 16
F_MZ = 48
F_QM, F_KVM = 52, 56

ws = f's[{sWS}:{sWS+3}]'
PRIO = int(os.environ.get('PRIO', '2'))
WD = 7; WRING = 14336
sW, sRB, sCB, sRow0 = 36, 37, 38, 39
sX0, sX1, sW0, sW1 = 40, 41, 42, 47
T0, T1, T2, T3 = 43, 44, 45, 46
STMP = 48
sW2SRD = 20
sJ0, sJ1, sJ2, sJ3, sNN = 60, 61, 62, 63, 57
pX, pQKV, pWO, pW1, pW2, pW3, pW4, pOUT, pDBG, pWS = 24, 26, 28, 30, 32, 84, 86, 88, 90, 34
vSA, vSB = 2, 3
V0 = 4

LNST = os.environ.get('LNST', '0') == '1'
TOUCH = os.environ.get('TOUCH', '1') == '1'
LDF = os.environ.get('LDF', '')
class CS:
    n = 1
DST = [x for x in os.environ.get('DST', '').split(',') if x]
def cstamp(a):
    if DST: return
    if CS.n <= 4: stamp(a, CS.n)
    CS.n += 1
def dstamp(a, name):
    if name in DST: stamp(a, DST.index(name) + 1)

def request(a, mask):
    a(f'v_mov_b32 v{vSA}, {FL}')
    a(f'v_mov_b32 v{vSB}, {hex(mask)}')
    a('s_mov_b64 exec, 1')
    a(f'ds_or_b32 v{vSA}, v{vSB} offset:{F_REQ}')
    a('s_mov_b64 exec, -1')

def wait_status(a, mask, sleep=1):
    lp = a.newlabel('Lws'); ld = a.newlabel('Lwd')
    if mask != ZOK: request(a, mask)
    else: a(f'v_mov_b32 v{vSA}, {FL}')
    a.label(lp)
    a(f'ds_read_b32 v{vSB}, v{vSA} offset:{F_STATUS}')
    a('s_waitcnt lgkmcnt(0)')
    a(f'v_readfirstlane_b32 s{T3}, v{vSB}')
    a(f's_and_b32 s{T3}, s{T3}, {hex(mask)}')
    a(f's_cmp_eq_u32 s{T3}, {hex(mask)}')
    a(f's_cbranch_scc1 {ld}')
    a(f's_sleep {sleep}')
    spin_guard(a)
    a(f's_branch {lp}')
    a.label(ld)

def wait_lds_ge(a, off, val, sleep=1):
    lp = a.newlabel('Lwl'); ld = a.newlabel('Lwld')
    a(f'v_mov_b32 v{vSA}, {FL}')
    a.label(lp)
    a(f'ds_read_b32 v{vSB}, v{vSA} offset:{off}')
    a('s_waitcnt lgkmcnt(0)')
    a(f'v_readfirstlane_b32 s{T3}, v{vSB}')
    a(f's_cmp_ge_u32 s{T3}, {val}')
    a(f's_cbranch_scc1 {ld}')
    a(f's_sleep {sleep}')
    spin_guard(a)
    a(f's_branch {lp}')
    a.label(ld)

def wait_min4(a, off, val, q, sleep=2):
    lp = a.newlabel('Lwm'); ld = a.newlabel('Lwmd')
    a(f'v_mov_b32 v{vSA}, {FL}')
    a.label(lp)
    a(f'ds_read_b128 {V(q,4)}, v{vSA} offset:{off}')
    a('s_waitcnt lgkmcnt(0)')
    a(f'v_min_u32 v{q}, v{q}, v{q+1}')
    a(f'v_min3_u32 v{q}, v{q}, v{q+2}, v{q+3}')
    a('s_nop 0')
    a(f'v_readfirstlane_b32 s{T3}, v{q}')
    a(f's_cmp_ge_u32 s{T3}, {val}')
    a(f's_cbranch_scc1 {ld}')
    a(f's_sleep {sleep}')
    spin_guard(a)
    a(f's_branch {lp}')
    a.label(ld)

def signal(a, offs, nw=4, need_zok=False, srdn=sWS):
    a('s_waitcnt vmcnt(0)')
    SB.nw = nw; BAR(a); SB.nw = 4
    lab = a.newlabel('Lsig')
    a(f's_cmp_lg_u32 s{sW}, 0')
    a(f's_cbranch_scc1 {lab}')
    if need_zok: wait_status(a, ZOK)
    if srdn != sWS: wait_lds_ge(a, F_MZ, 1)
    a(f'v_mov_b32 v{vSA}, 0')
    a(f'v_mov_b32 v{vSB}, 1')
    a('s_mov_b64 exec, 1')
    for o in offs:
        a(f'buffer_atomic_add v{vSB}, v{vSA}, s[{srdn}:{srdn+3}], s{o} offen sc1')
    a('s_mov_b64 exec, -1')
    a.label(lab)

def mb_signal(a, word, nl, idfn, need_zok=False, group=True, hw=False):
    a('s_waitcnt vmcnt(0)')
    if word == M_QKV: dstamp(a, 'qdrain')
    lab = a.newlabel('Lsig')
    if group:
        if hw: a('s_barrier')
        else: BAR(a)
        if word == M_QKV: dstamp(a, 'qbar')
        a(f's_cmp_lg_u32 s{sW}, 0')
        a(f's_cbranch_scc1 {lab}')
    if need_zok: wait_status(a, ZOK)
    masked = idfn(vSA, vSB)
    a(f'v_lshlrev_b32 v{vSA}, 7, v{vSA}')
    if word == M_QKV:
        a(f's_lshl_b32 s{T0}, 1, s{sRB}')
        a(f'v_mov_b32 v{vSB}, s{T0}')
        a(f's_and_b32 s{T0}, s{sCB}, 12')
        a(f's_add_u32 s{T0}, s{T0}, {hex(FLG + 20)}')
    else:
        a(f'v_mov_b32 v{vSB}, 1')
        a(f's_mov_b32 s{T0}, {hex(FLG + word)}')
    a(f's_mov_b32 exec_lo, {hex((1 << min(nl, 32)) - 1)}'); a(f's_mov_b32 exec_hi, {hex((1 << max(nl - 32, 0)) - 1)}')
    if masked: a('s_and_b64 exec, exec, vcc')
    a(f'buffer_atomic_{"or" if word == M_QKV else "add"} v{vSB}, v{vSA}, {ws}, s{T0} offen sc1')
    a('s_mov_b64 exec, -1')
    a.label(lab)

def id64(a, vId, vRb, vCb):
    a(f'v_lshlrev_b32 v{vCb}, 5, v{vCb}')
    a(f'v_lshrrev_b32 v{vId if vId != vRb else vCb+0}, 0, v{vId if vId != vRb else vCb+0}') if False else None

def map_64x64(a):
    a(f's_and_b32 s{T0}, s2, 7')
    a(f's_lshr_b32 s{T1}, s2, 3')
    a(f's_lshl_b32 s{sRB}, s{T0}, 2')
    a(f's_and_b32 s{T2}, s{T1}, 3')
    a(f's_add_u32 s{sRB}, s{sRB}, s{T2}')
    a(f's_lshr_b32 s{sCB}, s{T1}, 2')
def map_g3(a):
    a(f's_and_b32 s{T0}, s2, 7')
    a(f's_lshr_b32 s{T1}, s2, 3')
    a(f's_lshl_b32 s{sRB}, s{T0}, 1')
    a(f's_and_b32 s{T2}, s{T1}, 1')
    a(f's_add_u32 s{sRB}, s{sRB}, s{T2}')
    a(f's_lshr_b32 s{sCB}, s{T1}, 1')
def map_qkv(a):
    a(f's_and_b32 s{T0}, s2, 7')
    a(f's_lshr_b32 s{T1}, s2, 3')
    a(f's_lshr_b32 s{T2}, s{T0}, 1')
    a(f's_lshl_b32 s{T2}, s{T2}, 2')
    a(f's_and_b32 s{T3}, s{T1}, 3')
    a(f's_add_u32 s{sRB}, s{T2}, s{T3}')
    a(f's_and_b32 s{T2}, s{T0}, 1')
    a(f's_lshl_b32 s{T2}, s{T2}, 3')
    a(f's_lshr_b32 s{T3}, s{T1}, 2')
    a(f's_add_u32 s{sCB}, s{T2}, s{T3}')
def rot8(a, d0, d1, mul=1):
    a(f's_and_b32 s{T0}, s{sRB}, 3')
    a(f's_lshl_b32 s{T0}, s{T0}, 1')
    a(f's_add_u32 s{T0}, s{T0}, s{sCB}')
    a(f's_and_b32 s{d0}, s{T0}, 7')
    if mul != 1:
        a(f's_mul_i32 s{d0}, s{d0}, {mul}')
        a(f's_lshr_b32 s{d0}, s{d0}, 1')
    a(f's_mov_b32 s{d1}, s{d0}')

def pack_swap(a, ac, pk):
    for i in range(8):
        a(f'v_cvt_pk_bf16_f32 v{pk+i}, v{ac+2*i}, v{ac+2*i+1}')
    a('s_nop 1')
    for pr in range(2):
        b = pk + 4 * pr
        a(f'v_permlane32_swap_b32 v{b}, v{b+2}')
        a(f'v_permlane32_swap_b32 v{b+1}, v{b+3}')
    a('s_nop 1')
def pack_swap_store(a, ac, pk, voff, sOff):
    pack_swap(a, ac, pk)
    for pr in range(2):
        a(f'buffer_store_dwordx4 {V(pk+4*pr,4)}, v{voff}, {ws}, s{sOff} offen offset:{pr*1024} sc1')

def frag_tile_off(a, sDst, g, base, nks):
    a(f's_lshl_b32 s{sDst}, s{sRB}, 1')
    a(f's_add_u32 s{sDst}, s{sDst}, s{g.sWr}')
    a(f's_mul_i32 s{sDst}, s{sDst}, {nks}')
    a(f's_lshl_b32 s{T3}, s{sCB}, 2')
    a(f's_add_u32 s{sDst}, s{sDst}, s{T3}')
    a(f's_lshl_b32 s{T3}, s{g.sWc}, 1')
    a(f's_add_u32 s{sDst}, s{sDst}, s{T3}')
    a(f's_lshl_b32 s{sDst}, s{sDst}, 10')
    a(f's_add_u32 s{sDst}, s{sDst}, {hex(base)}')
def wsk_woffs(a, g):
    a(f's_lshl_b32 s{sW0}, s{sW}, 14')
    a(f's_lshl_b32 s{T0}, s{sCB}, 7')
    a(f's_add_u32 s{sW0}, s{sW0}, s{T0}')
    a(f's_lshl_b32 s{T0}, s{g.sWc}, 6')
    a(f's_xor_b32 s{T1}, s{T0}, 64')
    a(f's_add_u32 s{sW1}, s{sW0}, s{T1}')
    a(f's_add_u32 s{sW0}, s{sW0}, s{T0}')
def wsk_xoffs(a, g, base, xtile, d0=sX0, d1=sX1):
    a(f's_lshl_b32 s{T0}, s{sRB}, 1')
    a(f's_add_u32 s{T1}, s{T0}, s{g.sWr}')
    a(f's_mul_i32 s{d0}, s{T1}, {xtile}')
    a(f's_xor_b32 s{T1}, s{T1}, 1')
    a(f's_mul_i32 s{d1}, s{T1}, {xtile}')
    a(f's_lshl_b32 s{T0}, s{sW}, 10')
    a(f's_add_u32 s{T0}, s{T0}, {hex(base)}')
    a(f's_add_u32 s{d0}, s{d0}, s{T0}')
    a(f's_add_u32 s{d1}, s{d1}, s{T0}')
def x_rowmajor_off(a, g, sDst):
    a(f's_lshl_b32 s{sDst}, s{sRB}, 16')
    a(f's_lshl_b32 s{T1}, s{g.sWr}, 15')
    a(f's_add_u32 s{sDst}, s{sDst}, s{T1}')
    a(f's_lshl_b32 s{T1}, s{sCB}, 7')
    a(f's_add_u32 s{sDst}, s{sDst}, s{T1}')
    a(f's_lshl_b32 s{T1}, s{g.sWc}, 6')
    a(f's_add_u32 s{sDst}, s{sDst}, s{T1}')
def lane8_off(a, v, l, t):
    a(f'v_and_b32 v{v}, 31, v{l}')
    a(f'v_lshlrev_b32 v{v}, 4, v{v}')
    a(f'v_lshrrev_b32 v{t}, 5, v{l}')
    a(f'v_lshl_add_u32 v{v}, v{t}, 3, v{v}')
def unpack(a, src, dst, n):
    for j in range(n):
        a(f'v_lshlrev_b32 v{dst+2*j}, 16, v{src+j}')
        a(f'v_and_b32 v{dst+2*j+1}, 0xffff0000, v{src+j}')
def ln_scalars(a, mean, ex2, q, n):
    var, m1, s1, rs = q[0], q[1], q[2], q[3]
    a(f'v_mul_f32 v{mean}, {hex(f32bits(1/n))}, v{mean}')
    a(f'v_mul_f32 v{ex2}, {hex(f32bits(1/n))}, v{ex2}')
    a(f'v_fma_f32 v{var}, -v{mean}, v{mean}, v{ex2}')
    a(f'v_max_f32 v{var}, 0, v{var}')
    a(f'v_mov_b32 v{m1}, v{mean}'); bf16_round(a, m1)
    a(f'v_mov_b32 v{s1}, v{var}'); bf16_round(a, s1)
    a(f'v_add_f32 v{s1}, {hex(f32bits(EPS))}, v{s1}'); bf16_round(a, s1)
    a(f'v_sqrt_f32 v{s1}, v{s1}'); a('s_nop 0'); bf16_round(a, s1)
    a(f'v_rcp_f32 v{rs}, v{s1}'); a('s_nop 0')

def ln_issue(a, va):
    r = G(); l = 1
    r.raw = [va(4), va(4)]; r.vL16 = va()
    a(f'v_lshlrev_b32 v{r.vL16}, 4, v{l}')
    srd(a, sAUX, pX, 2048 * 1024)
    a(f's_lshl_b32 s{T0}, s2, 3')
    a(f's_lshl_b32 s{T1}, s{sW}, 1')
    a(f's_add_u32 s{sRow0}, s{T0}, s{T1}')
    a(f's_lshl_b32 s{T0}, s{sRow0}, 10')
    for k in range(2):
        a(f'buffer_load_dwordx4 {V(r.raw[k],4)}, v{r.vL16}, s[{sAUX}:{sAUX+3}], s{T0} offen offset:{k*1024}')
    return r

def ln_stats(a, r, tmp):
    RR = range(2)
    x = [tmp, tmp + 8]; s_ = [tmp + 16, tmp + 17]; t_ = [tmp + 18, tmp + 19]
    m1 = [tmp + 20, tmp + 21]; s1 = [tmp + 22, tmp + 23]; rs = [tmp + 24, tmp + 25]; m2 = [tmp + 26, tmp + 27]; s2 = [tmp + 28, tmp + 29]
    o = [tmp + 30 + k for k in range(6)]; vZ = tmp + 36
    def each(f):
        for k in RR: f(k)
    def rnd(regs):
        for rg in regs: a(f'v_cvt_pk_bf16_f32 v{rg}, v{rg}, v{rg}')
        for rg in regs: a(f'v_lshlrev_b32 v{rg}, 16, v{rg}')
    a(f'v_mov_b32 v{vZ}, 0')
    for k in RR: unpack(a, r.raw[k], x[k], 4)
    each(lambda k: a(f'v_add_f32 v{s_[k]}, v{x[k]}, v{x[k]+1}'))
    each(lambda k: a(f'v_mul_f32 v{t_[k]}, v{x[k]}, v{x[k]}'))
    each(lambda k: a(f'v_fma_f32 v{t_[k]}, v{x[k]+1}, v{x[k]+1}, v{t_[k]}'))
    for j in range(2, 8):
        each(lambda k: a(f'v_add_f32 v{s_[k]}, v{s_[k]}, v{x[k]+j}'))
        each(lambda k: a(f'v_fma_f32 v{t_[k]}, v{x[k]+j}, v{x[k]+j}, v{t_[k]}'))
    a('s_nop 1')
    dpp_wave_sum(a, s_ + t_, None)
    for rg in s_ + t_: a(f'v_mul_f32 v{rg}, {hex(f32bits(1/512))}, v{rg}')
    each(lambda k: a(f'v_fma_f32 v{t_[k]}, -v{s_[k]}, v{s_[k]}, v{t_[k]}'))
    each(lambda k: a(f'v_max_f32 v{t_[k]}, 0, v{t_[k]}'))
    each(lambda k: a(f'v_mov_b32 v{m1[k]}, v{s_[k]}'))
    each(lambda k: a(f'v_mov_b32 v{s1[k]}, v{t_[k]}'))
    rnd(m1 + s1)
    each(lambda k: a(f'v_add_f32 v{s1[k]}, {hex(f32bits(EPS))}, v{s1[k]}')); rnd(s1)
    each(lambda k: a(f'v_sqrt_f32 v{s1[k]}, v{s1[k]}')); a('s_nop 0'); rnd(s1)
    each(lambda k: a(f'v_rcp_f32 v{rs[k]}, v{s1[k]}')); a('s_nop 0')
    each(lambda k: a(f'v_sub_f32 v{m2[k]}, v{s_[k]}, v{m1[k]}'))
    each(lambda k: a(f'v_mul_f32 v{m2[k]}, v{m2[k]}, v{rs[k]}'))
    each(lambda k: a(f'v_mul_f32 v{s2[k]}, v{t_[k]}, v{rs[k]}'))
    each(lambda k: a(f'v_mul_f32 v{s2[k]}, v{s2[k]}, v{rs[k]}'))
    rnd(m2 + s2)
    each(lambda k: a(f'v_add_f32 v{s2[k]}, {hex(f32bits(EPS))}, v{s2[k]}')); rnd(s2)
    each(lambda k: a(f'v_sqrt_f32 v{s2[k]}, v{s2[k]}')); a('s_nop 0'); rnd(s2)
    each(lambda k: a(f'v_rcp_f32 v{s2[k]}, v{s2[k]}')); a('s_nop 0')
    each(lambda k: a(f'v_mul_f32 v{o[k]}, v{m1[k]}, v{rs[k]}'))
    each(lambda k: a(f'v_sub_f32 v{o[k]}, 0, v{o[k]}'))
    each(lambda k: a(f'v_mul_f32 v{o[2+k]}, v{rs[k]}, v{s2[k]}'))
    each(lambda k: a(f'v_fma_f32 v{o[4+k]}, v{m2[k]}, v{s1[k]}, v{m1[k]}'))
    each(lambda k: a(f'v_mul_f32 v{o[4+k]}, v{o[4+k]}, v{o[2+k]}'))
    each(lambda k: a(f'v_sub_f32 v{o[4+k]}, 0, v{o[4+k]}'))
    a(f's_lshl_b32 s{T1}, s{sRow0}, 2')
    a(f's_add_u32 s{T1}, s{T1}, {hex(ST)}')
    a('s_mov_b32 exec_lo, 0'); a('s_mov_b32 exec_hi, 0x80000000')
    for idx, rg in ((0, o[0]), (1, rs[0]), (2, o[4]), (3, o[2])):
        a(f's_add_u32 s{T2}, s{T1}, {idx * 0x2000}')
        a(f'buffer_store_dwordx2 {V(rg,2)}, v{vZ}, {ws}, s{T2} offen sc1')
    a('s_mov_b64 exec, -1')

def sentinel(a):
    l = 1
    vOff, vTgt, vVal, vZ, vF, vD = 4, 5, 6, 7, 8, 9
    sDone, sAct, sMA, sMB, sMb = sX0, sX1, sW0, sW1, sRow0
    srd(a, sDBG, pDBG, 256)
    a(f'v_mov_b32 v{vZ}, 0')
    a(f'v_mov_b32 v{vF}, {FL}')
    a(f'v_lshlrev_b32 v{vOff}, 2, v{l}')
    a(f's_lshl_b32 s{sMb}, s2, 7')
    a(f's_add_u32 s{sMb}, s{sMb}, {hex(FLG)}')
    a('s_mov_b64 exec, 0xff')
    a(f'buffer_store_dword v{vZ}, v{vOff}, {ws}, s{sMb} offen sc1')
    a('s_mov_b64 exec, -1')
    a(f'v_lshlrev_b32 v{vD}, 4, v{l}')
    map_qkv(a)
    a(f's_mov_b32 s{sMA}, s{sRB}')
    map_g3(a)
    a(f's_cmp_ge_u32 s{sCB}, 15')
    a(f's_cselect_b32 s{sDone}, {hex(B_C2)}, 0')
    map_64x64(a)
    a(f's_lshr_b32 s{sMB}, s{sRB}, 1')
    a(f'v_mov_b32 v{vTgt}, 0')
    a(f's_mov_b32 s{T3}, -1')
    for ln_ in (0, 5, 6, 7): a(f'v_writelane_b32 v{vTgt}, s{T3}, {ln_}')
    a(f's_sub_u32 s{T0}, s{sRB}, 1')
    a(f's_cmp_lt_u32 s{T0}, 30')
    a(f's_cselect_b32 s{T3}, 8, 4'); a(f'v_writelane_b32 v{vTgt}, s{T3}, 1')
    a(f's_mov_b32 s{T3}, 16'); a(f'v_writelane_b32 v{vTgt}, s{T3}, 2')
    a(f's_mov_b32 s{T3}, 15'); a(f'v_writelane_b32 v{vTgt}, s{T3}, 3')
    a(f's_mov_b32 s{T3}, 32'); a(f'v_writelane_b32 v{vTgt}, s{T3}, 4')
    a(f'v_mov_b32 v{vVal}, 1')
    a('s_barrier')
    a('s_waitcnt vmcnt(0)')
    for k in range(1, 6): a('s_barrier')
    lp = a.newlabel('Lp1'); lok = a.newlabel('Lp1ok')
    a('s_mov_b64 exec, 0xffff')
    a(f'buffer_load_dword v{vVal}, v{vD}, s[{sDBG}:{sDBG+3}], 0 offen sc1')
    a('s_barrier')
    a.label(lp)
    a('s_waitcnt vmcnt(0)')
    a(f'v_cmp_le_u32 vcc, 16, v{vVal}')
    a('s_cmp_eq_u32 vcc_lo, 0xffff')
    a(f's_cbranch_scc1 {lok}')
    spin_guard(a)
    a(f's_sleep {int(os.environ.get("P1S", "4"))}')
    a(f'buffer_load_dword v{vVal}, v{vD}, s[{sDBG}:{sDBG+3}], 0 offen sc1')
    a(f's_branch {lp}')
    a.label(lok)
    for k in range(7, 10): a('s_barrier')
    lp = a.newlabel('Lp2')
    a('s_mov_b64 exec, 0xff')
    a.label(lp)
    spin_guard(a)
    a('s_sleep 1')
    a(f'ds_read_b32 v{vVal}, v{vF} offset:{F_REQ}')
    a('s_waitcnt lgkmcnt(0)')
    a(f'v_readfirstlane_b32 s{sAct}, v{vVal}')
    a(f's_andn2_b32 s{sAct}, s{sAct}, s{sDone}')
    a(f's_cbranch_scc0 {lp}')
    a(f'buffer_load_dword v{vVal}, v{vOff}, {ws}, s{sMb} offen sc1')
    a('s_waitcnt vmcnt(0)')
    a(f'v_cmp_ge_u32 vcc, v{vVal}, v{vTgt}')
    a(f'v_readlane_b32 s{T0}, v{vVal}, 5')
    a(f'v_readlane_b32 s{T1}, v{vVal}, 6')
    a(f'v_readlane_b32 s{T2}, v{vVal}, 7')
    a(f's_or_b32 s{sDone}, s{sDone}, vcc_lo')
    a(f's_and_b32 s{T1}, s{T1}, s{T2}')
    a(f'v_mov_b32 v10, s{T0}')
    a(f'v_mov_b32 v11, s{T1}')
    a(f's_and_b32 s{T0}, s{T0}, s{T1}')
    a(f's_cmp_eq_u32 s{T0}, 0xffff')
    a(f's_cselect_b32 s{T0}, {B_QKV}, 0')
    a(f's_or_b32 s{sDone}, s{sDone}, s{T0}')
    a(f'v_mov_b32 v{vVal}, s{sDone}')
    a(f'ds_write2_b32 v{vF}, v10, v11 offset0:{F_QM//4} offset1:{F_KVM//4}')
    a(f'ds_write_b32 v{vF}, v{vVal} offset:{F_STATUS}')
    a(f's_and_b32 s{T0}, s{sDone}, {hex(ALLB)}')
    a(f's_cmp_lg_u32 s{T0}, {hex(ALLB)}')
    a(f's_cbranch_scc1 {lp}')
    a('s_waitcnt lgkmcnt(0)')
    a('s_endpgm')

import k_g1
def l2_touch(a, ptr, nbytes, vT, vD):
    pass

def g1_stage(a):
    l = 1
    sCol0 = sRow0
    map_qkv(a)
    srd(a, sXSRD, pX, 2048 * 1024)
    a(f's_lshl_b32 s{sX0}, s{sRB}, 17')
    a(f's_lshl_b32 s{T0}, s{sW}, 13')
    a(f's_add_u32 s{sX0}, s{sX0}, s{T0}')
    rot8(a, sJ0, sJ1)
    a(f's_cmp_ge_u32 s{sCB}, 12')
    a('s_cbranch_scc1 g1_w1')
    srd(a, sWSRD, pQKV, 512 * 3072)
    a(f's_lshl_b32 s{sCol0}, s{sCB}, 8')
    a(f's_cmp_ge_u32 s{sCB}, 8')
    a('s_cbranch_scc1 g1_v')
    hi = 0; sb0 = SB.n; n0 = CS.n
    for kind in ('qk', 'v', 'w1'):
        if kind == 'v': a.label('g1_v')
        if kind == 'w1':
            a.label('g1_w1')
            srd(a, sWSRD, pW1, 512 * 1024)
            a(f's_sub_u32 s{sCol0}, s{sCB}, 12')
            a(f's_lshl_b32 s{sCol0}, s{sCol0}, 8')
        SB.n = sb0; CS.n = n0
        va = RegAlloc(V0, 168)
        p = G()
        p.TT, p.FT, p.WR, p.WC, p.KS, p.NST = 4, 4, 2, 2, 32, 3
        p.xmode = 'row'; p.rowbytes = 1024 if kind == 'w1' else 3072
        p.orient = 'N' if kind == 'v' else 'T'
        p.sW, p.sXoff, p.sWoff, p.vLane, p.xsrd, p.ldflags, p.stmp = sW, sX0, sW0, l, sXSRD, '', STMP
        p.xtile = 32768
        p.sRot, p.sRotC, p.sRotX, p.sRotW = sJ0, 58, 59, sJ3
        p.init_chunks = int(os.environ.get('QINIT', '2'))
        a(f's_mul_i32 s{sW0}, s{sW}, {16 * p.rowbytes}')
        a(f's_add_u32 s{sW0}, s{sW0}, s{sCol0}')
        gemm_setup(a, va, p)
        acs = va(16, 4); ones = va(4); p.tmp16 = acs
        for i in range(4): a(f'v_mov_b32 v{ones+i}, 0x3f803f80')
        def step_hook(i, xfb, wfb):
            l0 = a.newlabel('Lc0'); l1 = a.newlabel('Lc1')
            c = '0' if i == 0 else V(acs,16)
            a(f's_cmp_lg_u32 s{p.sWr}, 0')
            a(f's_cbranch_scc1 {l0}')
            a(f'{MF} {V(acs,16)}, {V(ones,4)}, {V(wfb[0],4)}, {c}')
            a(f's_branch {l1}')
            a.label(l0)
            a(f'{MF} {V(acs,16)}, {V(ones,4)}, {V(wfb[1],4)}, {c}')
            a.label(l1)
        p.step_hook = step_hook
        EB = 155648 - 8192
        p.ebase = EB
        stv = va(2); vTid = va()
        def fin(a_, va_, p_, mode, sQ, sRB_, sCB_, T):
            t0, t1, t2 = p.t
            a(f'v_and_b32 v{t0}, 31, v{l}')
            a(f'v_lshlrev_b32 v{t0}, 2, v{t0}')
            a(f's_lshl_b32 s{T0}, s{p.sWc}, 8')
            a(f's_lshl_b32 s{T1}, s{p.sWr}, 7')
            a(f's_add_u32 s{T0}, s{T0}, s{T1}')
            a(f's_add_u32 s{T0}, s{T0}, {EB}')
            a(f'v_add_u32 v{t1}, s{T0}, v{t0}')
            a(f'v_add_u32 v{vTid}, {EB}, v{vTid}')
            a('s_waitcnt vmcnt(0)')
            if sQ is not None:
                a(f'v_mul_f32 v{stv}, s{sQ}, v{stv}')
                a(f'v_mul_f32 v{stv+1}, s{sQ}, v{stv+1}')
            a('s_nop 3')
            a(f'ds_write_b32 v{t1}, v{acs} offset:9216')
            lt = a.newlabel('Ltk')
            a(f's_cmp_ge_u32 s{sW}, 2')
            a(f's_cbranch_scc1 {lt}')
            a(f'ds_write_b32 v{vTid}, v{stv} offset:8192')
            a(f'ds_write_b32 v{vTid}, v{stv+1} offset:8704')
            a.label(lt)
            a('s_waitcnt lgkmcnt(0)')
            a('s_barrier')
            dstamp(a, 'qstat')
        k_g1.ln_finalize = fin
        def after_sync(c):
            if c == 7:
                a(f'v_and_b32 v{vTid}, 127, v0')
                a(f'v_lshlrev_b32 v{vTid}, 2, v{vTid}')
                a(f's_lshl_b32 s{T0}, s{sRB}, 9')
                a(f's_add_u32 s{T0}, s{T0}, {hex(ST + (0x4000 if kind == "w1" else 0))}')
                a(f'buffer_load_dword v{stv}, v{vTid}, {ws}, s{T0} offen sc1')
                a(f's_add_u32 s{T0}, s{T0}, 0x2000')
                a(f'buffer_load_dword v{stv+1}, v{vTid}, {ws}, s{T0} offen sc1')
        p.after_sync = after_sync
        p.stamp1 = lambda: (cstamp(a), dstamp(a, 'qx'))
        SB.on = False
        acc = gemm_main(a, va, p)
        SB.on = True
        cstamp(a); dstamp(a, 'qloop')
        k_g1.g1_epilogue(a, va, p, acc, kind, sRB, sCB, (T0, T1, T2, sJ2))
        hi = max(hi, va.hi)
        dstamp(a, 'qepi')
        if kind == 'w1':
            a(f's_lshl_b32 s{T1}, s{sRB}, 1')
            a(f's_sub_u32 s{T1}, s{T1}, 1')
            mb_signal(a, M_C1, 32, id_rows(a, T1, True), hw=True)
        else:
            def idq(vI, vT):
                a(f's_and_b32 s{T0}, s{sCB}, 3')
                a(f's_lshl_b32 s{T0}, s{T0}, 3')
                a(f'v_lshrrev_b32 v{vI}, 3, v1')
                a(f'v_add_u32 v{vI}, s{T0}, v{vI}')
                a(f'v_and_b32 v{vT}, 3, v{vI}')
                a(f'v_lshrrev_b32 v{vI}, 2, v{vI}')
                a(f'v_lshl_add_u32 v{vI}, v{vT}, 3, v{vI}')
                a(f'v_and_b32 v{vT}, 7, v1')
                a(f'v_lshl_add_u32 v{vI}, v{vT}, 5, v{vI}')
                return False
            mb_signal(a, M_QKV, 64, idq, hw=True)
            a('s_branch g1_done')
    a.label('g1_done')
    a(f'v_mov_b32 v{vSA}, {FL}'); a(f'v_mov_b32 v{vSB}, 1')
    a(f'ds_write_b32 v{vSA}, v{vSB} offset:{F_WDONE}')
    dstamp(a, 'qsig')
    return hi

def id_rows(a, sBase, check):
    def f(vI, vT):
        a(f'v_lshrrev_b32 v{vI}, 3, v1')
        a(f'v_add_u32 v{vI}, s{sBase}, v{vI}')
        if check: a(f'v_cmp_gt_u32 vcc, 32, v{vI}')
        a(f'v_and_b32 v{vT}, 3, v{vI}')
        a(f'v_lshrrev_b32 v{vI}, 2, v{vI}')
        a(f'v_lshl_add_u32 v{vI}, v{vT}, 3, v{vI}')
        a(f'v_and_b32 v{vT}, 7, v1')
        a(f'v_lshl_add_u32 v{vI}, v{vT}, 5, v{vI}')
        return check
    return f

def colsum3_job_issue(a, va):
    r = G()
    r.l3 = [va(4), va(4)]; r.tA = va(); r.tB = va()
    srd(a, sAUX, pW3, 512 * 2752)
    a(f's_and_b32 s{T0}, s2, 15')
    a(f's_mul_i32 s{T0}, s{T0}, {32 * 2752}')
    a(f's_lshr_b32 s{T1}, s2, 4')
    a(f's_min_u32 s{T1}, s{T1}, 10')
    a(f's_lshl_b32 s{T1}, s{T1}, 8')
    a(f's_add_u32 s{T0}, s{T0}, s{T1}')
    a(f'v_lshrrev_b32 v{r.tA}, 4, v0')
    a(f's_mov_b32 s{T1}, 2752')
    a(f'v_mul_lo_u32 v{r.tA}, v{r.tA}, s{T1}')
    a(f'v_and_b32 v{r.tB}, 15, v0')
    a(f'v_lshl_add_u32 v{r.tA}, v{r.tB}, 4, v{r.tA}')
    a(f'buffer_load_dwordx4 {V(r.l3[0],4)}, v{r.tA}, s[{sAUX}:{sAUX+3}], s{T0} offen')
    a(f's_add_u32 s{T0}, s{T0}, {16 * 2752}')
    a(f'buffer_load_dwordx4 {V(r.l3[1],4)}, v{r.tA}, s[{sAUX}:{sAUX+3}], s{T0} offen')
    return r
def colsum3_job_finish(a, r, u):
    SCR = B_BASE + 65536
    unpack(a, r.l3[0], u, 4); unpack(a, r.l3[1], u + 8, 4)
    for j in range(8): a(f'v_add_f32 v{u+j}, v{u+j}, v{u+8+j}')
    a(f'v_lshrrev_b32 v{r.tA}, 4, v0')
    a(f'v_lshlrev_b32 v{r.tA}, 9, v{r.tA}')
    a(f'v_lshl_add_u32 v{r.tA}, v{r.tB}, 5, v{r.tA}')
    a(f'v_add_u32 v{r.tA}, {SCR}, v{r.tA}')
    a(f'ds_write_b128 v{r.tA}, {V(u,4)}')
    a(f'ds_write_b128 v{r.tA}, {V(u+4,4)} offset:16')
    BAR(a)
    lab = a.newlabel('Lc3')
    a(f's_cmp_ge_u32 s{sW}, 2')
    a(f's_cbranch_scc1 {lab}')
    a('s_cmp_ge_u32 s2, 176')
    a(f's_cbranch_scc1 {lab}')
    a(f'v_lshlrev_b32 v{r.tA}, 2, v0')
    a(f'v_add_u32 v{r.tB}, {SCR}, v{r.tA}')
    for k in range(16): a(f'ds_read_b32 v{u+k}, v{r.tB} offset:{k*512}')
    a('s_waitcnt lgkmcnt(0)')
    for k in range(1, 16): a(f'v_add_f32 v{u}, v{u}, v{u+k}')
    a(f's_and_b32 s{T0}, s2, 15')
    a(f's_mul_i32 s{T0}, s{T0}, {1408 * 4}')
    a(f's_lshr_b32 s{T1}, s2, 4')
    a(f's_lshl_b32 s{T1}, s{T1}, 9')
    a(f's_add_u32 s{T0}, s{T0}, s{T1}')
    a(f's_add_u32 s{T0}, s{T0}, {hex(CS3)}')
    a(f'buffer_store_dword v{u}, v{r.tA}, {ws}, s{T0} offen sc1')
    a.label(lab)

def g2_stage(a):
    va = RegAlloc(V0, 256); l = 1; vm = VM()
    map_64x64(a)
    srd(a, sAUX, pX, 2048 * 1024)
    srd(a, sWSRD, pW2, 512 * 1024)
    g = WSK(a, va, sW, l, STMP, WD, vm, lds_base=B_BASE, ring_bytes=WRING)
    t0, t1, t2 = g.t
    wsk_woffs(a, g)
    wsk_xoffs(a, g, HF, 32768)
    rot8(a, sJ0, sJ1)
    g.add_segment(8, sWS, [sX0, sX1], g.vL16, LDF, sWSRD, [sW0, sW1], sJ0, sJ1, 8)
    xr = va(8, 4); mr = va(); rr = va()
    B8 = int(os.environ.get('B8', '0'))
    for k in range(6 + B8): a('s_barrier')
    a(f'v_and_b32 v{t2}, 31, v{l}')
    a(f'v_lshlrev_b32 v{t2}, 10, v{t2}')
    a(f'v_lshrrev_b32 v{t0}, 5, v{l}')
    a(f'v_lshl_add_u32 v{t2}, v{t0}, 3, v{t2}')
    x_rowmajor_off(a, g, T0)
    for q in range(4):
        a(f'buffer_load_dwordx2 {V(xr+2*q,2)}, v{t2}, s[{sAUX}:{sAUX+3}], s{T0} offen offset:{q*16}'); vm.add('xn')
    for i in range(WD): g.issue_w(i)
    g.nw = WD
    g.zero_acc(skip00=True)
    dstamp(a, 'g2pre')
    for k in range(2 - B8): a('s_barrier')
    wait_status(a, B_C1)
    cstamp(a); dstamp(a, 'g2x')
    a(f'v_and_b32 v{t0}, 31, v{l}')
    a(f'v_lshlrev_b32 v{t0}, 2, v{t0}')
    a(f's_lshl_b32 s{T0}, s{sRB}, 8')
    a(f's_lshl_b32 s{T1}, s{g.sWr}, 7')
    a(f's_add_u32 s{T0}, s{T0}, s{T1}')
    a(f's_add_u32 s{T0}, s{T0}, {hex(ST)}')
    a(f'buffer_load_dword v{mr}, v{t0}, {ws}, s{T0} offen sc1'); vm.add('st')
    a(f's_add_u32 s{T0}, s{T0}, 0x2000')
    a(f'buffer_load_dword v{rr}, v{t0}, {ws}, s{T0} offen sc1'); vm.add('st')
    def after_issue():
        a(f's_waitcnt vmcnt({vm.wait_for("st")})')
        unpack(a, xr, g.acc[0][0], 8)
        for i in range(16): a(f'v_fma_f32 v{g.acc[0][0]+i}, v{g.acc[0][0]+i}, v{rr}, v{mr}')
    g.after_issue = after_issue
    g.run(0, 8)
    dstamp(a, 'g2loop')
    ac = g.reduce()
    xf = g.acc[0][1]; pk = g.acc[1][0]; s1, s2, s1b, s2b, pr = [g.acc[1][1] + i for i in (0, 1, 2, 3, 4)]
    frag_tile_off(a, T0, g, X1F, 32)
    pack_swap_store(a, ac, pk, g.vL16, T0)
    unpack(a, pk, xf, 8)
    a(f'v_add_f32 v{s1}, v{xf}, v{xf+1}')
    a(f'v_mul_f32 v{s2}, v{xf}, v{xf}')
    a(f'v_fma_f32 v{s2}, v{xf+1}, v{xf+1}, v{s2}')
    for i in range(2, 16):
        a(f'v_add_f32 v{s1}, v{s1}, v{xf+i}')
        a(f'v_fma_f32 v{s2}, v{xf+i}, v{xf+i}, v{s2}')
    a(f'v_mov_b32 v{s1b}, v{s1}'); a(f'v_mov_b32 v{s2b}, v{s2}')
    a('s_nop 1')
    a(f'v_permlane32_swap_b32 v{s1}, v{s1b}')
    a(f'v_permlane32_swap_b32 v{s2}, v{s2b}')
    a('s_nop 1')
    a(f'v_add_f32 v{pr}, v{s1}, v{s1b}')
    a(f'v_add_f32 v{pr+1}, v{s2}, v{s2b}')
    a(f's_lshl_b32 s{T0}, s{sCB}, 1')
    a(f's_add_u32 s{T0}, s{T0}, s{g.sWc}')
    a(f's_lshl_b32 s{T0}, s{T0}, 14')
    a(f's_lshl_b32 s{T1}, s{sRB}, 9')
    a(f's_add_u32 s{T0}, s{T0}, s{T1}')
    a(f's_lshl_b32 s{T1}, s{g.sWr}, 8')
    a(f's_add_u32 s{T0}, s{T0}, s{T1}')
    a(f's_add_u32 s{T0}, s{T0}, {hex(PS)}')
    a(f'v_lshlrev_b32 v{t0}, 3, v{l}')
    a('s_mov_b32 exec_hi, 0')
    a(f'buffer_store_dwordx2 {V(pr,2)}, v{t0}, {ws}, s{T0} offen sc1')
    a('s_mov_b64 exec, -1')
    dstamp(a, 'g2epi')
    def id3(vI, vT):
        a(f's_lshr_b32 s{T0}, s{sRB}, 1')
        a(f's_and_b32 s{T1}, s{T0}, 1')
        a(f's_lshl_b32 s{T1}, s{T1}, 3')
        a(f's_lshr_b32 s{T0}, s{T0}, 1')
        a(f's_or_b32 s{T0}, s{T0}, s{T1}')
        a(f'v_lshlrev_b32 v{vI}, 4, v1')
        a(f'v_or_b32 v{vI}, s{T0}, v{vI}')
        return False
    mb_signal(a, M_C2, 15, id3)
    dstamp(a, 'g2sig')
    return va.hi

def g3_stage(a, endlabel):
    va = RegAlloc(V0, 256); l = 1; vm = VM()
    map_g3(a)
    a(f's_cmp_ge_u32 s{sCB}, 15')
    a(f's_cbranch_scc1 {endlabel}')
    srd(a, sWSRD, pW3, 512 * 2752)
    D = 7; CK = 8; NST = 3; STG = CK * 3 * 1024; CSL = G3_BASE + NST * STG
    sT0, sT1, sM0 = STMP, STMP + 1, STMP + 2
    t0 = va(); t1 = va(); t2 = va(); vL16 = va(); vTr = va(); vW = va(); vTr2 = va()
    a(f'v_lshlrev_b32 v{vL16}, 4, v{l}')
    trbase(a, vTr, l, t0)
    a(f'v_add_u32 v{vTr}, {G3_BASE}, v{vTr}')
    a(f'v_add_u32 v{vTr2}, 49152, v{vTr}')
    wdma_voff(a, vW, l, t0, 2752, sT0)
    acc = [va(16, 4) for F in range(3)]
    xr = [va(4) for d in range(D)]
    wf = [[va(4) for F in range(3)] for b in range(3)]
    ps = va(16, 4); cp = va(16, 4)
    mr = va(); rr = va(); z = [va() for _ in range(4)]
    ones = va(4)
    for i in range(4): a(f'v_mov_b32 v{ones+i}, 0x3f803f80')
    a(f's_mul_i32 s{sW0}, s{sW}, {16 * 2752}')
    a(f's_mul_i32 s{T0}, s{sCB}, 192')
    a(f's_add_u32 s{sW0}, s{sW0}, s{T0}')
    a(f's_mul_i32 s{sM0}, s{sW}, 3072')
    a(f's_add_u32 s{sM0}, s{sM0}, {G3_BASE}')
    a(f's_and_b32 s{T0}, s{sRB}, 1')
    a(f's_lshl_b32 s{T0}, s{T0}, 1')
    a(f's_add_u32 s{sJ0}, s{T0}, s{sCB}')
    def wdma(c):
        a(f's_add_u32 s{sJ1}, s{sJ0}, {c}')
        a(f's_and_b32 s{sJ1}, s{sJ1}, 3')
        a(f's_mul_i32 s{sJ1}, s{sJ1}, {128 * 2752}')
        a(f's_add_u32 s{sJ1}, s{sJ1}, s{sW0}')
        for hh in range(2):
            for F in range(3):
                a(f's_add_u32 m0, s{sM0}, {(c % NST) * STG + hh * 4 * 3072 + F * 1024}')
                a(f's_add_u32 s{sT1}, s{sJ1}, {(hh * 4) * 16 * 2752 + F * 64}')
                a(f'buffer_load_dwordx4 v{vW}, s[{sWSRD}:{sWSRD+3}], s{sT1} offen lds')
                vm.add(('w', c))
    request(a, B_C2)
    for c in range(NST): wdma(c)
    a(f's_lshl_b32 s{sX0}, s{sRB}, 2')
    a(f's_add_u32 s{sX0}, s{sX0}, s{sW}')
    a(f's_lshl_b32 s{sX0}, s{sX0}, 15')
    a(f's_add_u32 s{sX0}, s{sX0}, {hex(X1F)}')
    dstamp(a, 'g3pre')
    wait_status(a, B_C2)
    dstamp(a, 'g3x')
    def xld(ks):
        if ks % 8 == 0:
            a(f's_add_u32 s{sJ2}, s{sJ0}, {ks // 8}')
            a(f's_and_b32 s{sJ2}, s{sJ2}, 3')
            a(f's_lshl_b32 s{sJ2}, s{sJ2}, 13')
            a(f's_add_u32 s{sJ2}, s{sJ2}, s{sX0}')
        a(f's_add_u32 s{sT0}, s{sJ2}, {(ks % 8) * 1024}')
        a(f'buffer_load_dwordx4 {V(xr[ks % D],4)}, v{vL16}, {ws}, s{sT0} offen {LDF}')
        vm.add(('x', ks))
    for ks in range(D): xld(ks)
    a(f'v_and_b32 v{t0}, 31, v{l}')
    a(f'v_lshlrev_b32 v{t0}, 3, v{t0}')
    a(f'v_lshrrev_b32 v{t2}, 5, v{l}')
    a(f'v_lshl_add_u32 v{t0}, v{t2}, 17, v{t0}')
    a(f's_lshl_b32 s{T0}, s{sRB}, 10')
    a(f's_lshl_b32 s{T1}, s{sW}, 8')
    a(f's_add_u32 s{T0}, s{T0}, s{T1}')
    a(f's_add_u32 s{T0}, s{T0}, {hex(PS)}')
    for f in range(8):
        a(f'buffer_load_dwordx2 {V(ps+2*f,2)}, v{t0}, {ws}, s{T0} offen {LDF}'); vm.add('ps')
        a(f's_add_u32 s{T0}, s{T0}, 16384')
    def reads(ks, only=None):
        c, s = ks // CK, ks % CK; b = ks % 3
        for F in (range(3) if only is None else [only]):
            o = (c % NST) * STG + s * 3072 + F * 1024
            base = vTr
            if o + 256 > 65535: base, o = vTr2, o - 49152
            a(f'ds_read_b64_tr_b16 {V(wf[b][F],2)}, v{base} offset:{o}')
            a(f'ds_read_b64_tr_b16 {V(wf[b][F]+2,2)}, v{base} offset:{o+256}')
    def sync(c):
        if c == 0:
            a(f's_waitcnt vmcnt({vm.wait_for(("w", 2))})'); BAR(a)
        elif c == 1:
            BAR(a); wdma(3)
        elif c == 3:
            a(f's_waitcnt vmcnt({vm.wait_for(("w", 3))})'); BAR(a)
    sync(0)
    reads(0); reads(1)
    for ks in range(32):
        nx = ks + 2
        if nx < 32 and nx % CK == 0: sync(nx // CK)
        a(f's_waitcnt vmcnt({vm.wait_for(("x", ks))}) lgkmcnt({6 if ks + 1 < 32 else 0})')
        for F in range(3):
            a(f'{MF} {V(acc[F],16)}, {V(wf[ks%3][F],4)}, {V(xr[ks%D],4)}, ' + ('0' if ks == 0 else V(acc[F],16)))
            if nx < 32: reads(nx, F)
        le = a.newlabel('Lcs')
        for F in range(3):
            ln = a.newlabel('Lcn')
            a(f's_cmp_lg_u32 s{sW}, {F}')
            a(f's_cbranch_scc1 {ln}')
            a(f'{MF} {V(cp,16)}, {V(ones,4)}, {V(wf[ks%3][F],4)}, ' + ('0' if ks == 0 else V(cp,16)))
            if F < 2: a(f's_branch {le}')
            a.label(ln)
        a.label(le)
        if ks + D < 32: xld(ks + D)
        if ks == 12:
            for f in range(1, 8):
                a(f'v_add_f32 v{ps}, v{ps}, v{ps+2*f}')
                a(f'v_add_f32 v{ps+1}, v{ps+1}, v{ps+2*f+1}')
            a(f'v_mov_b32 v{ps+2}, v{ps}'); a(f'v_mov_b32 v{ps+3}, v{ps+1}')
            a('s_nop 1')
            a(f'v_permlane32_swap_b32 v{ps}, v{ps+2}')
            a(f'v_permlane32_swap_b32 v{ps+1}, v{ps+3}')
            a('s_nop 1')
            a(f'v_add_f32 v{ps}, v{ps}, v{ps+2}')
            a(f'v_add_f32 v{ps+1}, v{ps+1}, v{ps+3}')
            ln_scalars(a, ps, ps + 1, z, 512)
            a(f'v_mov_b32 v{rr}, v{z[3]}')
            a(f'v_mul_f32 v{mr}, v{z[1]}, v{z[3]}')
            a(f'v_sub_f32 v{mr}, 0, v{mr}')
    dstamp(a, 'g3loop')
    a(f'v_and_b32 v{t1}, 31, v{l}')
    a(f'v_lshlrev_b32 v{t1}, 2, v{t1}')
    a(f's_lshl_b32 s{T0}, s{sW}, 7')
    a(f's_add_u32 s{T0}, s{T0}, {CSL}')
    a(f'v_add_u32 v{t1}, s{T0}, v{t1}')
    a('s_nop 7')
    a(f'ds_write_b32 v{t1}, v{cp}')
    BAR(a)
    tmp = ps; cs = cp
    pk = [xr[0], xr[2]]; vC2 = z[0]
    a(f'v_mov_b32 v{vC2}, {hex(f32bits(GC2))}')
    a(f's_mov_b32 s{T2}, {hex(f32bits(GC1))}')
    a(f'v_lshrrev_b32 v{t1}, 5, v{l}')
    a(f'v_lshlrev_b32 v{t1}, 4, v{t1}')
    a(f'v_add_u32 v{t1}, {CSL}, v{t1}')
    a(f's_lshl_b32 s{T0}, s{sRB}, 2')
    a(f's_add_u32 s{T0}, s{T0}, s{sW}')
    a(f's_mul_i32 s{T0}, s{T0}, 86')
    a(f's_mul_i32 s{T1}, s{sCB}, 6')
    a(f's_add_u32 s{T0}, s{T0}, s{T1}')
    a(f's_lshl_b32 s{T0}, s{T0}, 10')
    a(f's_add_u32 s{T0}, s{T0}, {hex(H3F)}')
    lskip = a.newlabel('g3_skip')
    for F in range(3):
        if F == 1:
            a(f's_cmp_eq_u32 s{sCB}, 14')
            a(f's_cbranch_scc1 {lskip}')
        for q in range(4):
            a(f'ds_read_b128 {V(cs+4*q,4)}, v{t1} offset:{F*128 + q*32}')
        ac = acc[F]
        for i in range(16): a(f'v_mul_f32 v{ac+i}, v{ac+i}, v{rr}')
        a('s_waitcnt lgkmcnt(0)')
        for i in range(16): a(f'v_fma_f32 v{ac+i}, v{mr}, v{cs+i}, v{ac+i}')
        gelu_scalar(a, ac, 16, tmp, T2, vC2)
        a(f's_add_u32 s{T1}, s{T0}, {F*2048}')
        pack_swap_store(a, ac, pk[F % 2], vL16, T1)
    a.label(lskip)
    a(f's_lshl_b32 s{T1}, s{sRB}, 1')
    dstamp(a, 'g3epi')
    mb_signal(a, M_C3, 16, id_rows(a, T1, False))
    dstamp(a, 'g3sig')
    return va.hi

def g45_stage(a):
    va = RegAlloc(V0, 256); l = 1; vm = VM()
    map_64x64(a)
    srd(a, sWSRD, pW4, 1376 * 1024)
    srd(a, sW2SRD, pWO, 512 * 1024)
    srd(a, sAUX, pX, 2048 * 1024)
    g = WSK(a, va, sW, l, STMP, WD, vm, lds_base=B_BASE, ring_bytes=WRING)
    t0, t1, t2 = g.t
    wsk_woffs(a, g)
    wsk_xoffs(a, g, H3F, 86 * 1024)
    sO0, sO1 = 55, 56
    wsk_xoffs(a, g, OF, 32768, sO0, sO1)
    def cond(lab):
        a(f's_cmp_ge_u32 s{sW}, 2')
        a(f's_cbranch_scc1 {lab}')
    a(f's_cmp_lt_u32 s{sW}, 2')
    a(f's_cselect_b32 s{sNN}, 22, 21')
    rot8(a, sJ0, sJ1, 5)
    rot8(a, sJ2, sJ3)
    g.add_segment(22, sWS, [sX0, sX1], g.vL16, LDF, sWSRD, [sW0, sW1], sJ0, sJ1, [sNN], last_cond=cond)
    g.add_segment(8, sWS, [sO0, sO1], g.vL16, LDF, sW2SRD, [sW0, sW1], sJ2, sJ3, 8)
    vSt = va(); x1r = va(8, 4); xr = va(8, 4)
    request(a, B_C3)
    a(f'v_and_b32 v{t2}, 31, v{l}')
    a(f'v_lshlrev_b32 v{t2}, 10, v{t2}')
    a(f'v_lshrrev_b32 v{t0}, 5, v{l}')
    a(f'v_lshl_add_u32 v{t2}, v{t0}, 3, v{t2}')
    x_rowmajor_off(a, g, T0)
    for q in range(4):
        a(f'buffer_load_dwordx2 {V(xr+2*q,2)}, v{t2}, s[{sAUX}:{sAUX+3}], s{T0} offen offset:{q*16}'); vm.add('p')
    lane8_off(a, vSt, l, t0)
    frag_tile_off(a, T0, g, X1F, 32)
    for q in range(4):
        a(f'buffer_load_dwordx2 {V(x1r+2*q,2)}, v{vSt}, {ws}, s{T0} offen offset:{q*512} {LDF}'); vm.add('p')
    for i in range(WD): g.issue_w(i)
    g.nw = WD
    g.zero_acc(skip00=True)
    ac = g.acc[0][0]
    a(f's_waitcnt vmcnt({vm.wait_for("p")})')
    for j in range(8):
        a(f'v_lshlrev_b32 v{ac+2*j}, 16, v{xr+j}')
        a(f'v_and_b32 v{ac+2*j+1}, 0xffff0000, v{xr+j}')
        a(f'v_lshlrev_b32 v{t0}, 16, v{x1r+j}')
        a(f'v_and_b32 v{t1}, 0xffff0000, v{x1r+j}')
        a(f'v_add_f32 v{ac+2*j}, v{ac+2*j}, v{t0}')
        a(f'v_add_f32 v{ac+2*j+1}, v{ac+2*j+1}, v{t1}')
    dstamp(a, 'g4pre')
    wait_status(a, B_C3)
    dstamp(a, 'g4x')
    g.run(0, 22, xlimit=22)
    cstamp(a); dstamp(a, 'g4loop')
    wait_status(a, B_CA)
    dstamp(a, 'g5x')
    g.run(22, 30)
    dstamp(a, 'g5loop')
    ac = g.reduce()
    srd(a, sAUX, pOUT, 2048 * 1024)
    pk = g.acc[1][0]; vo = vSt
    a(f'v_and_b32 v{vo}, 31, v{l}')
    a(f'v_lshlrev_b32 v{vo}, 10, v{vo}')
    a(f'v_lshrrev_b32 v{t0}, 5, v{l}')
    a(f'v_lshl_add_u32 v{vo}, v{t0}, 4, v{vo}')
    x_rowmajor_off(a, g, T0)
    pack_swap(a, ac, pk)
    for pr in range(2):
        a(f'buffer_store_dwordx4 {V(pk+4*pr,4)}, v{vo}, s[{sAUX}:{sAUX+3}], s{T0} offen offset:{pr*32}')
    return va.hi

VT = 1056
ATT_BUF = 8192 + 8 * VT
NBUF = 4
def R(b, n): return V(b, n)

def att_head(a, sHead):
    a(f's_and_b32 s{T0}, s2, 7')
    a(f's_lshl_b32 s{sHead}, s{T0}, 2')
    a(f's_lshr_b32 s{T0}, s2, 3')
    a(f's_and_b32 s{T0}, s{T0}, 3')
    a(f's_add_u32 s{sHead}, s{sHead}, s{T0}')

def kv_loader(a):
    l = 1; vL16, vF, vV = 4, 6, 7
    sHead, sKoff, sVoff = sRB, sX0, sX1
    att_head(a, sHead)
    a(f'v_lshlrev_b32 v{vL16}, 4, v{l}')
    a(f's_lshl_b32 s{sKoff}, s{sHead}, 10')
    a(f's_add_u32 s{sVoff}, s{sKoff}, {hex(VF)}')
    a(f's_add_u32 s{sKoff}, s{sKoff}, {hex(KF)}')
    sLd, sCh = sW0, sW1
    a(f's_mov_b32 s{sLd}, 0')
    def lchunk(c):
        lp = a.newlabel('Lpk'); ld = a.newlabel('Lpkd')
        a.label(lp)
        a(f'ds_read_b32 v{vV}, v{vF} offset:{F_KVM}')
        a('s_waitcnt lgkmcnt(0)')
        a(f'v_readfirstlane_b32 s{T0}, v{vV}')
        a(f's_lshr_b32 s{T1}, s{T0}, 1')
        a(f's_and_b32 s{T0}, s{T0}, s{T1}')
        a(f's_and_b32 s{T0}, s{T0}, 0x5555')
        a(f's_andn2_b32 s{T0}, s{T0}, s{sLd}')
        a(f's_cbranch_scc1 {ld}')
        a('s_sleep 1')
        spin_guard(a)
        a(f's_branch {lp}')
        a.label(ld)
        a(f's_ff1_i32_b32 s{sCh}, s{T0}')
        a(f's_bitset1_b32 s{sLd}, s{sCh}')
        a(f's_lshl_b32 s{sCh}, s{sCh}, 17')
        a(f's_add_u32 s{T1}, s{sKoff}, s{sCh}')
        a(f's_add_u32 s{T2}, s{sVoff}, s{sCh}')
        b = (c % NBUF) * ATT_BUF
        for j in range(8):
            a(f's_mov_b32 m0, {b + j*1024}')
            a(f's_add_u32 s{T0}, s{T1}, {j*32768}')
            a(f'buffer_load_dwordx4 v{vL16}, {ws}, s{T0} offen {LDF} lds')
            a(f's_mov_b32 m0, {b + 8192 + j*VT}')
            a(f's_add_u32 s{T0}, s{T2}, {j*32768}')
            a(f'buffer_load_dwordx4 v{vL16}, {ws}, s{T0} offen {LDF} lds')
    def publish(c):
        a(f'v_mov_b32 v{vV}, {c + 1}')
        a(f'ds_write_b32 v{vF}, v{vV} offset:{F_KRDY}')
    a(f'v_mov_b32 v{vF}, {FL}')
    request(a, B_QKV)
    lchunk(0)
    a('s_waitcnt vmcnt(0)'); publish(0)
    lchunk(1)
    a('s_waitcnt vmcnt(0)'); publish(1)
    lchunk(2)
    lchunk(3) if False else None
    a('s_waitcnt vmcnt(0)'); publish(2)
    lchunk(3)
    if TOUCH:
        a('s_waitcnt vmcnt(0)'); publish(3)
        a('s_setprio 1')
        l2_touch(a, pW4, 1376 * 1024, 12, 13)
        l2_touch(a, pWO, 512 * 1024, 12, 13)
        a('s_setprio 3')
    for c in range(4, 8):
        wait_min4(a, F_KDONE, c - 3, 8, sleep=8)
        lchunk(c)
        a('s_waitcnt vmcnt(16)'); publish(c - 1)
    a('s_waitcnt vmcnt(0)'); publish(7)
    a('s_waitcnt lgkmcnt(0)')
    a('s_endpgm')

def att_compute(a):
    va = RegAlloc(V0, 256); l = 1
    sHead, sTT, sKoff, sVoff, sC, sBn, sFb = sRB, sCB, sX0, sX1, sW0, sW1, sRow0
    sEx = 50
    att_head(a, sHead)
    a(f's_lshr_b32 s{sTT}, s2, 5')
    a(f's_lshl_b32 s{sTT}, s{sTT}, 3')
    a(f's_lshl_b32 s{T0}, s{sW}, 1')
    a(f's_add_u32 s{sTT}, s{sTT}, s{T0}')
    a(f's_mov_b32 s{sEx}, 0x0000ffff'); a(f's_mov_b32 s{sEx+1}, 0x0000ffff')
    vL16 = va(); vVo = va(); t0 = va(); t1 = va()
    vK = [va(), va()]; vV0 = [va(), va()]; vV1 = [va(), va()]
    vV0b = va(); vV1b = va(); vF = va(); vDn = va(); vR = va(); vP = va()
    SA, SB_, NA, NB, OA, OB = [va(16, 4) for _ in range(6)]
    P = va(8, 4); QA = va(4); QB = va(4)
    K = [va(4), va(4)]; Vv = [va(8, 4), va(8, 4)]
    a(f'v_lshlrev_b32 v{vL16}, 4, v{l}')
    a(f's_mov_b32 s{sBn}, {ATT_BUF}')
    a(f'v_and_b32 v{vVo}, 15, v{l}')
    a(f'v_lshlrev_b32 v{vVo}, 4, v{vVo}')
    a(f'v_lshrrev_b32 v{t0}, 5, v{l}')
    a(f'v_lshl_add_u32 v{vVo}, v{t0}, 8, v{vVo}')
    a(f'v_and_b32 v{t0}, 31, v{l}')
    a(f'v_cmp_eq_u32 vcc, 16, v{t0}')
    a(f'v_mov_b32 v{t1}, {8192+1040}')
    a(f'v_mov_b32 v{vV0b}, {8192+1024}')
    a(f'v_cndmask_b32 v{t1}, v{t1}, v{vV0b}, vcc')
    a(f'v_cmp_gt_u32 vcc, 16, v{t0}')
    a(f'v_add_u32 v{vV0b}, 8192, v{vVo}')
    a(f'v_add_u32 v{vV1b}, {8192+512}, v{vVo}')
    a(f'v_cndmask_b32 v{vV0b}, v{t1}, v{vV0b}, vcc')
    a(f'v_cndmask_b32 v{vV1b}, v{t1}, v{vV1b}, vcc')
    a(f'v_and_b32 v{t0}, 1, v{l}')
    a(f'v_cmp_eq_u32 vcc, 0, v{t0}')
    a(f'v_mov_b32 v{t1}, 0x3f803f80')
    a(f'v_lshlrev_b32 v{t0}, 4, v{t0}')
    for i in range(4): a(f'v_cndmask_b32 v{P+i}, 0, v{t1}, vcc')
    a(f'v_lshrrev_b32 v{t1}, 4, v{l}')
    a(f's_mov_b32 s{T0}, {ATT_BUF}')
    a(f'v_mul_lo_u32 v{t1}, v{t1}, s{T0}')
    a(f'v_add_u32 v{t0}, v{t0}, v{t1}')
    a(f'v_bfe_u32 v{t1}, v{l}, 1, 3')
    a(f's_mov_b32 s{T0}, {VT}')
    a(f'v_mul_lo_u32 v{t1}, v{t1}, s{T0}')
    a(f'v_add_u32 v{t0}, v{t0}, v{t1}')
    a(f'ds_write_b128 v{t0}, {R(P,4)} offset:{8192+1024}')
    for i in range(16):
        a(f'v_mov_b32 v{OA+i}, 0'); a(f'v_mov_b32 v{OB+i}, 0')
    for i in range(4):
        a(f'v_mov_b32 v{P+4+i}, 0'); a(f'v_mov_b32 v{Vv[1]+4+i}, 0')
    a(f'v_mov_b32 v{vK[0]}, v{vL16}'); a(f'v_mov_b32 v{vV0[0]}, v{vV0b}'); a(f'v_mov_b32 v{vV1[0]}, v{vV1b}')
    a(f'v_add_u32 v{vK[1]}, {ATT_BUF}, v{vL16}')
    a(f'v_add_u32 v{vV0[1]}, {ATT_BUF}, v{vV0b}')
    a(f'v_add_u32 v{vV1[1]}, {ATT_BUF}, v{vV1b}')
    a(f's_mov_b32 s{sFb}, 0')
    a(f'v_mov_b32 v{vF}, {FL}')
    a(f's_lshl_b32 s{T0}, s{sW}, 2')
    a(f's_add_u32 s{T0}, s{T0}, {FL + F_KDONE}')
    a(f'v_mov_b32 v{vDn}, s{T0}')
    a(f'v_mov_b32 v{vP}, 0')
    request(a, B_QKV)
    lpq = a.newlabel('Lqm'); ldq = a.newlabel('Lqmd')
    a(f's_lshr_b32 s{T1}, s{sTT}, 2')
    a.label(lpq)
    a(f'ds_read_b32 v{vR}, v{vF} offset:{F_QM}')
    a('s_waitcnt lgkmcnt(0)')
    a(f'v_readfirstlane_b32 s{T0}, v{vR}')
    a(f's_bitcmp1_b32 s{T0}, s{T1}')
    a(f's_cbranch_scc1 {ldq}')
    a('s_sleep 1')
    spin_guard(a)
    a(f's_branch {lpq}')
    a.label(ldq)
    dstamp(a, 'aflag')
    a(f's_lshl_b32 s{T0}, s{sTT}, 5')
    a(f's_add_u32 s{T0}, s{T0}, s{sHead}')
    a(f's_lshl_b32 s{T0}, s{T0}, 10')
    a(f'buffer_load_dwordx4 {R(QA,4)}, v{vL16}, {ws}, s{T0} offen {LDF}')
    a(f's_add_u32 s{T0}, s{T0}, 32768')
    a(f'buffer_load_dwordx4 {R(QB,4)}, v{vL16}, {ws}, s{T0} offen {LDF}')
    def spin_ready(val):
        lp = a.newlabel('at_sp'); ld = a.newlabel('at_ok')
        a.label(lp)
        a(f'ds_read_b32 v{vR}, v{vF} offset:{F_KRDY}')
        a('s_waitcnt lgkmcnt(0)')
        a(f'v_readfirstlane_b32 s{T0}, v{vR}')
        a(f's_cmp_gt_u32 s{T0}, {val}')
        a(f's_cbranch_scc1 {ld}')
        a('s_sleep 1')
        spin_guard(a)
        a(f's_branch {lp}')
        a.label(ld)
    spin_ready('0')
    a('s_waitcnt vmcnt(0)')
    cstamp(a); dstamp(a, 'astart')
    a(f'ds_read_b128 {R(K[0],4)}, v{vK[0]}')
    a(f'ds_read_b128 {R(K[1],4)}, v{vK[0]} offset:1024')
    a(f'ds_read_b128 {R(Vv[0],4)}, v{vV0[0]}')
    a(f'ds_read_b128 {R(Vv[0]+4,4)}, v{vV1[0]}')
    a('s_waitcnt lgkmcnt(3)')
    a(f'{MF} {R(SA,16)}, {R(K[0],4)}, {R(QA,4)}, 0')
    a(f'{MF} {R(SB_,16)}, {R(K[0],4)}, {R(QB,4)}, 0')
    a('s_nop 10')
    def rowmax_to_neg(S_, N_):
        a(f'v_max3_f32 v{t0}, v{S_}, v{S_+1}, v{S_+2}')
        for i in range(3, 15, 2): a(f'v_max3_f32 v{t0}, v{t0}, v{S_+i}, v{S_+i+1}')
        a(f'v_max_f32 v{t0}, v{t0}, v{S_+15}')
        a(f'v_mov_b32 v{t1}, v{t0}')
        a('s_nop 1')
        a(f'v_permlane32_swap_b32 v{t0}, v{t1}')
        a('s_nop 1')
        a(f'v_max_f32 v{t0}, v{t0}, v{t1}')
        for i in range(16): a(f'v_sub_f32 v{N_+i}, 0, v{t0}')
    rowmax_to_neg(SA, NA)
    rowmax_to_neg(SB_, NB)
    a('s_nop 1')
    a(f'{MF} {R(SA,16)}, {R(K[0],4)}, {R(QA,4)}, {R(NA,16)}')
    a(f's_mov_b32 s{sC}, 0')
    a('s_waitcnt lgkmcnt(0)')
    a('s_nop 8')
    a('s_setprio 0')
    a.label('att_loop')
    for t in range(8):
        Kc, Kn = K[t % 2], K[(t + 1) % 2]
        Vc, Vn = Vv[t % 2], Vv[(t + 1) % 2]
        for sub in range(2):
            cur = [SA, SB_][sub]
            if sub == 0:
                qk = f'{MF} {R(SB_,16)}, {R(Kc,4)}, {R(QB,4)}, {R(NB,16)}'
                pv1 = f'{MF} {R(OB,16)}, {R(Vn+4,4)}, {R(P+4,4)}, {R(OB,16)}'
            else:
                qk = f'{MF} {R(SA,16)}, {R(Kn,4)}, {R(QA,4)}, {R(NA,16)}'
                pv1 = f'{MF} {R(OA,16)}, {R(Vc+4,4)}, {R(P+4,4)}, {R(OA,16)}'
            Oc = [OA, OB][sub]
            pv0 = f'{MF} {R(Oc,16)}, {R(Vc,4)}, {R(P,4)}, {R(Oc,16)}'
            ex = [f'v_exp_f32 v{cur+i}, v{cur+i}' for i in range(16)]
            cv = [f'v_cvt_pk_bf16_f32 v{P+i}, v{cur+2*i}, v{cur+2*i+1}' for i in range(8)]
            a(qk)
            for s in ex[0:6]: a(s)
            a(pv1)
            if sub == 0:
                a('s_waitcnt lgkmcnt(0)')
                if t == 6:
                    l1 = a.newlabel('att_rdy')
                    a(f'v_readfirstlane_b32 s{T0}, v{vR}')
                    a(f's_min_u32 s{T1}, s{sC}, 6')
                    a(f's_add_u32 s{T1}, s{T1}, 1')
                    a(f's_cmp_gt_u32 s{T0}, s{T1}')
                    a(f's_cbranch_scc1 {l1}')
                    spin_ready(f's{T1}')
                    a.label(l1)
                if t == 7:
                    a(f'v_add_u32 v{vP}, 1, v{vP}')
                    a(f'ds_write_b32 v{vDn}, v{vP}')
                if t == 5:
                    a(f'ds_read_b32 v{vR}, v{vF} offset:{F_KRDY}')
                kb = vK[0] if t + 2 < 8 else vK[1]
                b_ = 0 if t + 1 < 8 else 1
                a(f'ds_read_b128 {R(Kc,4)}, v{kb} offset:{((t+2)%8)*1024}')
                a(f'ds_read_b128 {R(Vn,4)}, v{vV0[b_]} offset:{((t+1)%8)*VT}')
                a(f'ds_read_b128 {R(Vn+4,4)}, v{vV1[b_]} offset:{((t+1)%8)*VT}')
            for s in ex[6:8] + cv[0:4] + ex[8:10]: a(s)
            a(pv0)
            for s in ex[10:16] + cv[4:8]: a(s)
    a(f'v_mov_b32 v{vK[0]}, v{vK[1]}'); a(f'v_mov_b32 v{vV0[0]}, v{vV0[1]}'); a(f'v_mov_b32 v{vV1[0]}, v{vV1[1]}')
    a(f's_add_u32 s{sBn}, s{sBn}, {ATT_BUF}')
    a(f's_cmp_eq_u32 s{sBn}, {NBUF*ATT_BUF}')
    a(f's_cselect_b32 s{sBn}, 0, s{sBn}')
    a(f'v_add_u32 v{vK[1]}, s{sBn}, v{vL16}')
    a(f'v_add_u32 v{vV0[1]}, s{sBn}, v{vV0b}')
    a(f'v_add_u32 v{vV1[1]}, s{sBn}, v{vV1b}')
    a(f's_add_u32 s{sC}, s{sC}, 1')
    a(f's_cmp_lt_u32 s{sC}, 8')
    a('s_cbranch_scc1 att_loop')
    a(f'{MF} {R(OB,16)}, {R(Vv[1]+4,4)}, {R(P+4,4)}, {R(OB,16)}')
    a('s_setprio 3')
    cstamp(a)
    a('s_waitcnt lgkmcnt(0)')
    a.label('att_fin')
    a('s_nop 12')
    LA, LB = SA, SA + 2
    for L_, O_ in ((LA, OA), (LB, OB)):
        a(f'v_mov_b32 v{L_}, v{O_+8}'); a(f'v_mov_b32 v{L_+1}, v{O_+8}')
    a('s_nop 1')
    a(f'v_permlane32_swap_b32 v{LA}, v{LA+1}')
    a(f'v_permlane32_swap_b32 v{LB}, v{LB+1}')
    lok = a.newlabel('att_ok')
    a(f's_cmp_lg_u32 s{sFb}, 0')
    a(f's_cbranch_scc1 {lok}')
    a(f's_mov_b32 s{T0}, {hex(f32bits(2.0**-60))}')
    a(f's_mov_b32 s{T1}, {hex(f32bits(2.0**60))}')
    a(f'v_cmp_nle_f32 vcc, s{T0}, v{LA}')
    a(f'v_cmp_nge_f32 s[54:55], s{T1}, v{LA}')
    a('s_or_b64 s[52:53], vcc, s[54:55]')
    a(f'v_cmp_nle_f32 vcc, s{T0}, v{LB}')
    a(f'v_cmp_nge_f32 s[54:55], s{T1}, v{LB}')
    a('s_or_b64 vcc, vcc, s[54:55]')
    a('s_or_b64 vcc, vcc, s[52:53]')
    a('s_cbranch_scc1 att_fallback')
    a.label(lok)
    a(f'v_rcp_f32 v{LA}, v{LA}')
    a(f'v_rcp_f32 v{LB}, v{LB}')
    a(f's_lshl_b32 s{T0}, s{sTT}, 5')
    a(f's_add_u32 s{T0}, s{T0}, s{sHead}')
    a(f's_lshl_b32 s{T0}, s{T0}, 10')
    a(f's_add_u32 s{T0}, s{T0}, {hex(OF)}')
    for n, (L_, O_) in enumerate(((LA, OA), (LB, OB))):
        for i in range(8): a(f'v_mul_f32 v{O_+i}, v{O_+i}, v{L_}')
        for i in range(4): a(f'v_cvt_pk_bf16_f32 v{P+4*n+i}, v{O_+2*i}, v{O_+2*i+1}')
        if n: a(f's_add_u32 s{T0}, s{T0}, 32768')
        a('s_nop 1')
        b = P + 4 * n
        a(f'v_permlane32_swap_b32 v{b}, v{b+2}')
        a(f'v_permlane32_swap_b32 v{b+1}, v{b+3}')
        a('s_nop 1')
        a(f'buffer_store_dwordx4 {R(b,4)}, v{vL16}, {ws}, s{T0} offen sc1')
    a(f's_lshr_b32 s{T1}, s{sTT}, 1')
    mb_signal(a, M_CA, 8, id_rows(a, T1, False), group=False)
    stamp_flush(a, 5, 1)
    a('s_endpgm')
    a.label('att_fallback')
    a(f's_mov_b32 s{sFb}, 1')
    a(f's_lshl_b32 s{sKoff}, s{sHead}, 10')
    a(f's_add_u32 s{sVoff}, s{sKoff}, {hex(VF)}')
    a(f's_add_u32 s{sKoff}, s{sKoff}, {hex(KF)}')
    for i in range(16):
        a(f'v_mov_b32 v{NA+i}, 0xff800000'); a(f'v_mov_b32 v{NB+i}, 0xff800000')
    a(f's_mov_b32 s{sC}, 0')
    a(f's_mov_b32 s{T0}, s{sKoff}')
    a.label('att_fb1')
    a(f'buffer_load_dwordx4 {R(K[0],4)}, v{vL16}, {ws}, s{T0} offen {LDF}')
    a('s_waitcnt vmcnt(0)')
    a(f'{MF} {R(SA,16)}, {R(K[0],4)}, {R(QA,4)}, 0')
    a(f'{MF} {R(SB_,16)}, {R(K[0],4)}, {R(QB,4)}, 0')
    a('s_nop 12')
    for i in range(16): a(f'v_max_f32 v{NA+i}, v{NA+i}, v{SA+i}')
    for i in range(16): a(f'v_max_f32 v{NB+i}, v{NB+i}, v{SB_+i}')
    a(f's_add_u32 s{T0}, s{T0}, 32768')
    a(f's_add_u32 s{sC}, s{sC}, 1')
    a(f's_cmp_lt_u32 s{sC}, 64')
    a('s_cbranch_scc1 att_fb1')
    for i in range(16):
        a(f'v_mov_b32 v{SA+i}, v{NA+i}'); a(f'v_mov_b32 v{SB_+i}, v{NB+i}')
    rowmax_to_neg(SA, NA)
    rowmax_to_neg(SB_, NB)
    for i in range(16):
        a(f'v_mov_b32 v{OA+i}, 0'); a(f'v_mov_b32 v{OB+i}, 0')
    a(f'v_and_b32 v{t0}, 31, v{l}')
    a(f'v_cmp_eq_u32 vcc, 16, v{t0}')
    a(f'v_mov_b32 v{t1}, 0x3f803f80')
    a('s_nop 0')
    for i in range(8): a(f'v_cndmask_b32 v{Vv[0]+i}, 0, v{t1}, vcc')
    a(f's_mov_b32 s{sC}, 0')
    a.label('att_fb2')
    a(f'buffer_load_dwordx4 {R(K[0],4)}, v{vL16}, {ws}, s{sKoff} offen {LDF}')
    a(f's_mov_b64 exec, s[{sEx}:{sEx+1}]')
    a(f'buffer_load_dwordx4 {R(Vv[0],4)}, v{vVo}, {ws}, s{sVoff} offen {LDF}')
    a(f'buffer_load_dwordx4 {R(Vv[0]+4,4)}, v{vVo}, {ws}, s{sVoff} offen offset:512 {LDF}')
    a('s_mov_b64 exec, -1')
    a('s_waitcnt vmcnt(0)')
    a(f'{MF} {R(SA,16)}, {R(K[0],4)}, {R(QA,4)}, {R(NA,16)}')
    a(f'{MF} {R(SB_,16)}, {R(K[0],4)}, {R(QB,4)}, {R(NB,16)}')
    a('s_nop 12')
    for S_, O_ in ((SA, OA), (SB_, OB)):
        for i in range(16): a(f'v_exp_f32 v{S_+i}, v{S_+i}')
        a('s_nop 0')
        for i in range(8): a(f'v_cvt_pk_bf16_f32 v{P+i}, v{S_+2*i}, v{S_+2*i+1}')
        a('s_nop 1')
        a(f'{MF} {R(O_,16)}, {R(Vv[0],4)}, {R(P,4)}, {R(O_,16)}')
        a(f'{MF} {R(O_,16)}, {R(Vv[0]+4,4)}, {R(P+4,4)}, {R(O_,16)}')
    a(f's_add_u32 s{sKoff}, s{sKoff}, 32768')
    a(f's_add_u32 s{sVoff}, s{sVoff}, 32768')
    a(f's_add_u32 s{sC}, s{sC}, 1')
    a(f's_cmp_lt_u32 s{sC}, 64')
    a('s_nop 7'); a('s_nop 7')
    a('s_cbranch_scc1 att_fb2')
    a('s_branch att_fin')
    return va.hi

def full_kernel(a):
    name = NAME + '_kernel'
    kernel_header(a, name)
    a('s_cmp_ge_u32 s2, 256')
    a('s_cbranch_scc1 k_end')
    stamp(a, 0)
    if os.environ.get('DBGT'):
        a('s_memtime s[64:65]'); a('s_memrealtime s[66:67]')
    a('s_mov_b32 s92, 0')
    a('s_load_dwordx4 s[24:27], s[0:1], 0')
    a('s_load_dwordx2 s[28:29], s[0:1], 16')
    a('s_load_dwordx2 s[30:31], s[0:1], 32')
    a('s_load_dwordx2 s[32:33], s[0:1], 40')
    a('s_load_dwordx8 s[84:91], s[0:1], 48')
    a('s_load_dwordx2 s[34:35], s[0:1], 80')
    SB.on = True; SB.base = FL + 64; SB.n = 0; SB.vA = vSA; SB.vB = vSB; SB.sT = T3; SB.maxn = 48
    a('v_cmp_gt_u32 vcc, 64, v0')
    a('s_and_saveexec_b64 s[36:37], vcc')
    lz = a.newlabel('Lz')
    a(f's_cbranch_execz {lz}')
    a('v_lshlrev_b32 v1, 2, v0')
    a(f'v_add_u32 v1, {FL}, v1')
    a('v_mov_b32 v2, 0')
    a('ds_write_b32 v1, v2')
    a.label(lz)
    a('s_mov_b64 exec, -1')
    sWv = 58
    wave_lane(a, sWv, 1)
    a('s_waitcnt lgkmcnt(0)')
    srd(a, sWS, pWS, WS_BYTES)
    a('s_setprio 3')
    va_ = RegAlloc(V0, 256)
    lnb = a.newlabel('Lnl')
    a(f's_sub_u32 s{sW}, s{sWv}, 5')
    a(f's_cmp_ge_u32 s{sW}, 4')
    a(f's_cbranch_scc1 {lnb}')
    ln = ln_issue(a, va_)
    a.label(lnb)
    a('s_barrier')
    a(f's_cmp_eq_u32 s{sWv}, 9')
    a('s_cbranch_scc1 k_sentinel')
    a(f's_cmp_eq_u32 s{sWv}, 4')
    a('s_cbranch_scc1 k_loader')
    a(f's_cmp_ge_u32 s{sWv}, 5')
    a('s_cbranch_scc1 k_chain')
    a(f's_mov_b32 s{sW}, s{sWv}')
    CS.n = 1
    hi = g1_stage(a)
    hi = max(hi, att_compute(a))
    a.label('k_chain')
    a(f's_sub_u32 s{sW}, s{sWv}, 5')
    a('v_subrev_u32 v0, 320, v0')
    a('s_waitcnt vmcnt(0)')
    ln_stats(a, ln, va_(40, 4))
    srd(a, sDBG, pDBG, 256)
    a('s_barrier')
    a('s_waitcnt vmcnt(0)')
    a('s_barrier')
    lsg = a.newlabel('Lls')
    a(f's_cmp_lg_u32 s{sW}, 0')
    a(f's_cbranch_scc1 {lsg}')
    a(f's_and_b32 s{T0}, s2, 0xf0')
    a(f'v_mov_b32 v{vSA}, 0'); a(f'v_mov_b32 v{vSB}, 1')
    a('s_mov_b64 exec, 1')
    a(f'buffer_atomic_add v{vSB}, v{vSA}, s[{sDBG}:{sDBG+3}], s{T0} offen sc1')
    a('s_mov_b64 exec, -1')
    a.label(lsg)
    a(f's_setprio {PRIO}')
    CS.n = 1
    hi = max(hi, g2_stage(a))
    cstamp(a)
    hi = max(hi, g3_stage(a, 'k_g4'))
    a.label('k_g4')
    cstamp(a)
    hi = max(hi, g45_stage(a))
    stamp_flush(a, 5, 2)
    if os.environ.get('DBGT'):
        lq = a.newlabel('Ldbg')
        a('s_cmp_lg_u32 s2, 8')
        a(f's_cbranch_scc1 {lq}')
        a('s_waitcnt vmcnt(0)')
        a('s_memtime s[68:69]'); a('s_memrealtime s[70:71]')
        a('s_waitcnt lgkmcnt(0)')
        a('s_sub_u32 s68, s68, s64'); a('s_sub_u32 s70, s70, s66')
        srd(a, sDBG, pDBG, 256)
        a('v_mov_b32 v4, s68'); a('v_mov_b32 v5, s70'); a('v_mov_b32 v6, 4')
        a('s_mov_b64 exec, 1')
        a(f'buffer_store_dwordx2 v[4:5], v6, s[{sDBG}:{sDBG+3}], 0 offen')
        a.label(lq)
    a('s_endpgm')
    a.label('k_loader')
    for k in range(10): a('s_barrier')
    kv_loader(a)
    a.label('k_sentinel')
    sentinel(a)
    a.label('k_end')
    a('s_endpgm')
    SB.on = False
    return name, hi, LDS_TOTAL

if __name__ == '__main__':
    build([(full_kernel, 256, 640)], sys.argv[1])
```

```python
import sys, math, os
from asmlib import *

NAME = 'parallel_sum__softmax_full_mha__mixer_s_mlp__prompt'

QF  = 0x000000
KF  = 0x200000
VF  = 0x400000
HF  = 0x600000
X1F = 0x800000
OF  = 0xA00000
H3F = 0xC00000
YF  = 0x1200000
ST  = 0x1600000
PS  = 0x1610000
CS1 = 0x1650000
CS3 = 0x1660000
FLG = 0x1680000
WS_BYTES = 0x1800000
OOB = 0x7F000000

LOG2E = 1.4426950408889634
QSCALE = 0.25 * LOG2E
EPS = 1e-5
GC1 = -2.0 * 0.7978845608028654 * LOG2E
GC2 = GC1 * 0.044715

sXSRD, sWSRD, sWS, sAUX, sDBG = 4, 8, 12, 16, 20

class Opt:
    stamps = os.environ.get('STAMPS', '0') == '1'
STAMP_OFF = 0x1700000

def srd(a, d, base, nbytes):
    a(f's_mov_b32 s{d}, s{base}')
    a(f's_and_b32 s{d+1}, s{base+1}, 0xffff')
    a(f's_mov_b32 s{d+2}, {hex(nbytes)}')
    a(f's_mov_b32 s{d+3}, 0x20000')

def bf16_round(a, v):
    a(f'v_cvt_pk_bf16_f32 v{v}, v{v}, v{v}')
    a(f'v_lshlrev_b32 v{v}, 16, v{v}')

def stamp(a, idx):
    if not Opt.stamps: return
    a(f's_memtime s[{64+4*idx}:{65+4*idx}]')
    a(f's_memrealtime s[{66+4*idx}:{67+4*idx}]')
def stamp_flush(a, n, slot):
    if not Opt.stamps: return
    a('s_waitcnt lgkmcnt(0) vmcnt(0)')
    stamp(a, n)
    a('s_waitcnt lgkmcnt(0)')
    a('s_mov_b64 exec, -1')
    a('v_cmp_eq_u32 vcc, 0, v0')
    a('s_and_saveexec_b64 s[62:63], vcc')
    lab = a.newlabel('Lstamp')
    a(f's_cbranch_execz {lab}')
    a(f's_lshl_b32 s61, s2, 6')
    a(f's_add_u32 s61, s61, {hex(STAMP_OFF + slot * 0x10000)}')
    a('v_mov_b32 v2, 0')
    for i in range(n + 1):
        a(f'v_mov_b32 v4, s{64+4*i}')
        a(f'v_mov_b32 v5, s{66+4*i}')
        a(f'buffer_store_dwordx2 v[4:5], v2, s[{sWS}:{sWS+3}], s61 offen offset:{8*i}')
        a('s_nop 1')
    a.label(lab)

class G:
    pass

def spin_guard(a):
    a('s_add_u32 s92, s92, 1')
    a('s_cmp_gt_u32 s92, 0x400000')
    a('s_cbranch_scc1 k_end')

class SB:
    on = False; base = 0; n = 0; nw = 4; vA = None; vB = None; sT = None; maxn = 0
def BAR(a):
    if not SB.on:
        a('s_barrier'); return
    off = SB.n * 4; SB.n += 1
    assert SB.n <= SB.maxn
    lp = a.newlabel('Lsb'); ld = a.newlabel('Lsbd')
    a(f'v_mov_b32 v{SB.vA}, {SB.base}')
    a(f'v_mov_b32 v{SB.vB}, 1')
    a('s_waitcnt lgkmcnt(0)')
    a('s_mov_b64 exec, 1')
    if os.environ.get('BARV', '2') == '2':
        a(f'ds_add_rtn_u32 v{SB.vB}, v{SB.vA}, v{SB.vB} offset:{off}')
        a('s_waitcnt lgkmcnt(0)')
        a(f'v_readfirstlane_b32 s{SB.sT}, v{SB.vB}')
        a(f's_cmp_ge_u32 s{SB.sT}, {SB.nw - 1}')
        a(f's_cbranch_scc1 {ld}')
        a.label(lp)
        a(f'ds_read_b32 v{SB.vB}, v{SB.vA} offset:{off}')
        spin_guard(a)
        a('s_waitcnt lgkmcnt(0)')
        a(f'v_readfirstlane_b32 s{SB.sT}, v{SB.vB}')
        a(f's_cmp_lt_u32 s{SB.sT}, {SB.nw}')
        a(f's_cbranch_scc1 {lp}')
    else:
        a(f'ds_add_u32 v{SB.vA}, v{SB.vB} offset:{off}')
        a.label(lp)
        a(f'ds_read_b32 v{SB.vB}, v{SB.vA} offset:{off}')
        a('s_waitcnt lgkmcnt(0)')
        a(f'v_readfirstlane_b32 s{SB.sT}, v{SB.vB}')
        a(f's_cmp_ge_u32 s{SB.sT}, {SB.nw}')
        a(f's_cbranch_scc1 {ld}')
        a('s_sleep 1')
        spin_guard(a)
        a(f's_branch {lp}')
    a.label(ld)
    a('s_mov_b64 exec, -1')

def wave_lane(a, sW, vLane):
    a(f'v_lshrrev_b32 v{vLane}, 6, v0')
    a('s_nop 0')
    a(f'v_readfirstlane_b32 s{sW}, v{vLane}')
    a(f'v_and_b32 v{vLane}, 63, v0')

def gemm_setup(a, va, p):
    TT, FT, WR, WC, NST = p.TT, p.FT, p.WR, p.WC, p.NST
    NW = WR * WC
    G2 = NW // 4
    TW, FW = TT // WR, FT // WC
    p.TW, p.FW, p.NW, p.G2 = TW, FW, NW, G2
    XS, WSZ = TT * 4096, FT * 4096
    XW = getattr(p, 'lds_base', 0) + NST * XS
    p.XS, p.WSZ, p.XW = XS, WSZ, XW
    p.lds_bytes = getattr(p, 'lds_base', 0) + NST * (XS + WSZ)
    sT0, sT1, sM0x, sM0w, sWr, sWc, sS, sGr = [p.stmp + i for i in range(8)]
    p.sT0, p.sT1, p.sM0x, p.sM0w, p.sWr, p.sWc, p.sS, p.sGr = sT0, sT1, sM0x, sM0w, sWr, sWc, sS, sGr
    l = p.vLane
    t0 = va(); t1 = va(); t2 = va()
    p.t = (t0, t1, t2)
    lg = int(math.log2(WC))
    a(f's_lshr_b32 s{sWr}, s{p.sW}, {lg}')
    a(f's_and_b32 s{sWc}, s{p.sW}, {WC-1}')
    a(f's_and_b32 s{sS}, s{p.sW}, 3')
    a(f's_lshr_b32 s{sGr}, s{p.sW}, 2')
    assert TT % G2 == 0
    p.TD = TT // G2
    p.FD = (FT + G2 - 1) // G2
    assert FT % G2 == 0
    a(f's_lshl_b32 s{sM0x}, s{sS}, 10')
    a(f's_add_u32 s{sM0w}, s{sM0x}, {XW}')
    if getattr(p, 'lds_base', 0): a(f's_add_u32 s{sM0x}, s{sM0x}, {p.lds_base}')
    if G2 > 1:
        a(f's_mul_i32 s{sT0}, s{sGr}, {p.TD * 4096}')
        a(f's_add_u32 s{sM0x}, s{sM0x}, s{sT0}')
        a(f's_mul_i32 s{sT0}, s{sGr}, {p.FD * 4096}')
        a(f's_add_u32 s{sM0w}, s{sM0w}, s{sT0}')
    vW = va(); p.vW = vW
    a(f'v_lshrrev_b32 v{t0}, 2, v{l}')
    a(f's_mov_b32 s{sT0}, {p.rowbytes}')
    a(f'v_mul_lo_u32 v{vW}, v{t0}, s{sT0}')
    a(f'v_and_b32 v{t0}, 3, v{l}')
    a(f'v_lshl_add_u32 v{vW}, v{t0}, 4, v{vW}')
    vL16 = va(); p.vL16 = vL16
    a(f'v_lshlrev_b32 v{vL16}, 4, v{l}')
    if p.xmode == 'row':
        vX = va(); p.vX = vX
        a(f's_and_b32 s{sT0}, s{p.sW}, 1')
        a(f's_lshl_b32 s{sT0}, s{sT0}, 2')
        a(f'v_lshrrev_b32 v{t0}, 4, v{l}')
        a(f'v_add_u32 v{t0}, s{sT0}, v{t0}')
        a(f'v_and_b32 v{t1}, 7, v{l}')
        a(f'v_xor_b32 v{t0}, v{t0}, v{t1}')
        a(f'v_lshrrev_b32 v{t1}, 3, v{l}')
        a(f'v_lshlrev_b32 v{t1}, 10, v{t1}')
        a(f'v_lshl_add_u32 v{vX}, v{t0}, 4, v{t1}')
    elif p.xmode == 'shift':
        assert G2 == 1 and p.xtile == 32768
        vSh = [[va() for g in range(4)] for T in range(TT)]
        p.vSh = vSh
        shifts = [-1, 1, -2, 2]
        a(f'v_and_b32 v{t0}, 31, v{l}')
        a(f'v_add_u32 v{t0}, s{p.sRow0}, v{t0}')
        a(f'v_lshrrev_b32 v{t1}, 5, v{l}')
        a(f'v_lshlrev_b32 v{t1}, 9, v{t1}')
        a(f's_mov_b32 s{sT0}, 2048')
        a(f's_mov_b32 s{sT1}, {hex(OOB)}')
        for T in range(TT):
            for g in range(4):
                r = vSh[T][g]
                d = 32 * T + shifts[g]
                a(f'v_add_u32 v{t2}, {d}, v{t0}')
                a(f'v_cmp_gt_u32 vcc, s{sT0}, v{t2}')
                a(f'v_lshrrev_b32 v{r}, 5, v{t2}')
                a(f'v_lshlrev_b32 v{r}, 15, v{r}')
                a(f'v_and_b32 v{t2}, 31, v{t2}')
                a(f'v_lshl_add_u32 v{r}, v{t2}, 4, v{r}')
                a(f'v_add_u32 v{r}, v{r}, v{t1}')
                a(f'v_mov_b32 v{t2}, s{sT1}')
                a(f'v_cndmask_b32 v{r}, v{t2}, v{r}, vcc')
    base = getattr(p, 'lds_base', 0)
    if p.xmode == 'row':
        vXr = [va() for s in range(4)]; p.vXr = vXr
        a(f'v_and_b32 v{t0}, 31, v{l}')
        a(f'v_lshrrev_b32 v{t1}, 1, v{t0}')
        a(f'v_and_b32 v{t1}, 7, v{t1}')
        a(f'v_lshrrev_b32 v{t2}, 5, v{l}')
        a(f'v_xor_b32 v{t1}, v{t1}, v{t2}')
        a(f'v_lshlrev_b32 v{t0}, 7, v{t0}')
        a(f's_mul_i32 s{sT0}, s{sWr}, {TW * 4096}')
        if base: a(f's_add_u32 s{sT0}, s{sT0}, {base}')
        a(f'v_add_u32 v{t0}, s{sT0}, v{t0}')
        for s in range(4):
            a(f'v_xor_b32 v{t2}, {2*s}, v{t1}')
            a(f'v_lshl_add_u32 v{vXr[s]}, v{t2}, 4, v{t0}')
    else:
        vXb = va(); p.vXb = vXb
        a(f's_mul_i32 s{sT0}, s{sWr}, {TW * 4096}')
        if base: a(f's_add_u32 s{sT0}, s{sT0}, {base}')
        a(f'v_add_u32 v{vXb}, s{sT0}, v{vL16}')
    vWb = va(); p.vWb = vWb
    a(f'v_lshrrev_b32 v{t0}, 5, v{l}')
    a(f'v_lshlrev_b32 v{t0}, 9, v{t0}')
    a(f'v_bfe_u32 v{t1}, v{l}, 2, 2')
    a(f'v_lshl_add_u32 v{t0}, v{t1}, 6, v{t0}')
    a(f'v_bfe_u32 v{t1}, v{l}, 4, 1')
    a(f'v_lshl_add_u32 v{t0}, v{t1}, 5, v{t0}')
    a(f'v_and_b32 v{t1}, 3, v{l}')
    a(f'v_lshl_add_u32 v{t0}, v{t1}, 3, v{t0}')
    a(f's_mul_i32 s{sT0}, s{sWc}, {FW * 4096}')
    a(f's_add_u32 s{sT0}, s{sT0}, {XW}')
    a(f'v_add_u32 v{vWb}, s{sT0}, v{t0}')

def gemm_main(a, va, p):
    TT, FT, WR, WC, KS, NST = p.TT, p.FT, p.WR, p.WC, p.KS, p.NST
    TW, FW, XS, WSZ = p.TW, p.FW, p.XS, p.WSZ
    NCH = (KS + 3) // 4
    sT0, sT1 = p.sT0, p.sT1
    vm = []
    p.vm = vm
    rot = getattr(p, 'sRot', None) is not None

    def dma_ops(c):
        st = c % NST
        ops = []
        for T in range(p.TD):
            def f(T=T):
                a(f's_add_u32 m0, s{p.sM0x}, {st * XS + T * 4096}')
                if p.xmode == 'row' and rot:
                    if T == 0:
                        a(f's_add_u32 s{p.sRotC}, s{p.sRot}, {c}')
                        a(f's_and_b32 s{p.sRotC}, s{p.sRotC}, {NCH-1}')
                        a(f's_lshl_b32 s{p.sRotX}, s{p.sRotC}, 7')
                        a(f's_add_u32 s{p.sRotX}, s{p.sRotX}, s{p.sXoff}')
                        a(f's_mul_i32 s{p.sRotW}, s{p.sRotC}, {64 * p.rowbytes}')
                        a(f's_add_u32 s{p.sRotW}, s{p.sRotW}, s{p.sWoff}')
                    a(f's_add_u32 s{sT0}, s{p.sRotX}, {T * 32768}'); vo = p.vX
                elif p.xmode == 'row':
                    a(f's_add_u32 s{sT0}, s{p.sXoff}, {T * 32768 + c * 128}'); vo = p.vX
                elif p.xmode == 'shift':
                    a(f's_add_u32 s{sT0}, s{p.sXoff}, {c * 4096}'); vo = p.vSh[T][c // 2]
                else:
                    a(f's_add_u32 s{sT0}, s{p.sXoff}, {T * p.xtile + c * 4096}'); vo = p.vL16
                a(f'buffer_load_dwordx4 v{vo}, s[{p.xsrd}:{p.xsrd+3}], s{sT0} offen {p.ldflags} lds')
                vm.append(c)
            ops.append(f)
        for F in range(p.FD):
            def f(F=F):
                a(f's_add_u32 m0, s{p.sM0w}, {st * WSZ + F * 4096}')
                if getattr(p, 'alt', None) and F == p.FD - 1:
                    a(f's_lshl_b32 s{sT1}, s{p.sRotC}, 16')
                    a(f's_add_u32 s{sT1}, s{sT1}, s{p.alt[2]}')
                    a(f'buffer_load_dwordx4 v{p.alt[0]}, s[{p.alt[1]}:{p.alt[1]+3}], s{sT1} offen lds')
                    vm.append(c)
                    return
                if rot: a(f's_add_u32 s{sT1}, s{p.sRotW}, {F * 64}')
                else: a(f's_add_u32 s{sT1}, s{p.sWoff}, {c * 64 * p.rowbytes + F * 64}')
                a(f'buffer_load_dwordx4 v{p.vW}, s[{sWSRD}:{sWSRD+3}], s{sT1} offen lds')
                vm.append(c)
            ops.append(f)
        return ops

    acc = [[va(16, 4) for F in range(FW)] for T in range(TW)]
    xf = [[va(4) for T in range(TW)] for b in range(2)]
    wf = [[va(4) for F in range(FW)] for b in range(2)]
    p.acc = acc; p.xf = xf; p.wf = wf
    xstats = getattr(p, 'xstats', False); wsum_on = getattr(p, 'wsum', False)
    if xstats:
        xs = [[va(), va()] for T in range(TW)]; p.xs = xs
    if wsum_on:
        wsum = [va() for F in range(FW)]; p.wsumr = wsum
    ninit = min(getattr(p, 'init_chunks', NST), NCH)
    for c in range(ninit):
        for f in dma_ops(c): f()
    nxt = ninit
    pending = []
    if getattr(p, 'c0', False):
        pass
    elif getattr(p, 'acc_init', None):
        p.acc_init(acc)
    else:
        for T in range(TW):
            for F in range(FW):
                for i in range(16):
                    a(f'v_mov_b32 v{acc[T][F]+i}, 0')
    if xstats:
        for T in range(TW):
            a(f'v_mov_b32 v{xs[T][0]}, 0'); a(f'v_mov_b32 v{xs[T][1]}, 0')
    if wsum_on:
        for F in range(FW):
            a(f'v_mov_b32 v{wsum[F]}, 0')
    sOnes = p.stmp + 8
    if xstats or wsum_on:
        a(f's_mov_b32 s{sOnes}, 0x3f803f80')
    if getattr(p, 'after_issue', None): p.after_issue()

    def read_ops(i):
        c, s = i // 4, i % 4
        st = c % NST; b = i % 2
        def rx(T):
            if p.xmode == 'row':
                return f'ds_read_b128 {V(xf[b][T],4)}, v{p.vXr[s]} offset:{st * XS + T * 4096}'
            return f'ds_read_b128 {V(xf[b][T],4)}, v{p.vXb} offset:{st * XS + T * 4096 + s * 1024}'
        ops = [(rx(0), ('x', i, 0))]
        for F in range(FW):
            o = st * WSZ + F * 4096 + s * 1024
            ops.append((f'ds_read_b64_tr_b16 {V(wf[b][F],2)}, v{p.vWb} offset:{o}', ('w', i, F)))
            ops.append((f'ds_read_b64_tr_b16 {V(wf[b][F]+2,2)}, v{p.vWb} offset:{o+256}', ('w', i, F)))
        for T in range(1, TW):
            ops.append((rx(T), ('x', i, T)))
        return ops
    lg = []
    def emit_read(op):
        a(op[0]); lg.append(op[1])
    def wait_lds(tags):
        idx = [k for k, t in enumerate(lg) if t in tags]
        if not idx: return
        n = len(lg) - 1 - max(idx)
        a(f's_waitcnt lgkmcnt({n})')
        del lg[:max(idx) + 1]

    INIT = getattr(p, 'init_chunks', NST)
    def sync(c):
        nonlocal nxt, pending
        for f in pending: f()
        pending = []
        last = max(i for i, v in enumerate(vm) if v == c)
        n = len(vm) - 1 - last
        assert n <= 63
        a(f's_waitcnt vmcnt({n}) lgkmcnt(0)')
        lg.clear()
        BAR(a)
        while nxt < NCH and nxt <= c + NST - 1 and len(pending) < (2 if c == 0 else 1) * (p.TD + p.FD):
            pending += dma_ops(nxt); nxt += 1
        if getattr(p, 'after_sync', None):
            p.after_sync(c); lg.append('other')

    def compute(i, rops):
        nonlocal pending
        b = i % 2
        nm = TW * FW
        per_r = (len(rops) + nm - 1) // nm
        ndma = (len(pending) + (3 - i % 4)) // (4 - i % 4) if pending else 0
        if (i + 1) % 4 == 0: ndma = (len(pending) + 3) // 4
        if os.environ.get('BURST') == '1': ndma = len(pending)
        if os.environ.get('BURST') == '2' and pending: ndma = max(ndma, (p.TD + p.FD + 1) // 2)
        k = 0
        for T in range(TW):
            for F in range(FW):
                wait_lds({('x', i, T), ('w', i, F)})
                ori = p.orient if len(p.orient) == 1 else p.orient[F].upper()
                A_, B_ = (wf[b][F], xf[b][T]) if ori == 'T' else (xf[b][T], wf[b][F])
                a(f'v_mfma_f32_32x32x16_bf16 {V(acc[T][F],16)}, {V(A_,4)}, {V(B_,4)}, ' + ('0' if (i == 0 and getattr(p, 'c0', False)) else V(acc[T][F],16)))
                for op in rops[k * per_r:(k + 1) * per_r]: emit_read(op)
                k += 1
                if k >= nm - 1 or nm == 1:
                    take = (ndma + 1) // 2 if k == nm - 1 else ndma
                    for f in pending[:take]: f()
                    pending = pending[take:]; ndma -= take
        if getattr(p, 'step_hook', None): p.step_hook(i, xf[b], wf[b])
        if xstats or wsum_on:
            lab = a.newlabel('Lst')
            a(f's_cmp_lg_u32 s{p.sPar}, {i % 2}')
            a(f's_cbranch_scc1 {lab}')
            for T in range(TW):
                for j in range(4):
                    a(f'v_dot2_f32_bf16 v{xs[T][0]}, v{xf[b][T]+j}, s{sOnes}, v{xs[T][0]}')
                    a(f'v_dot2_f32_bf16 v{xs[T][1]}, v{xf[b][T]+j}, v{xf[b][T]+j}, v{xs[T][1]}')
            for F in range(FW):
                for j in range(4):
                    a(f'v_dot2_f32_bf16 v{wsum[F]}, v{wf[b][F]+j}, s{sOnes}, v{wsum[F]}')
            a.label(lab)

    if xstats or wsum_on:
        assert WR == 2 and WC == 2
        p.sPar = p.stmp + 9
        a(f's_xor_b32 s{p.sPar}, s{p.sWr}, s{p.sWc}')
    sync(0)
    if getattr(p, 'stamp1', None): p.stamp1()
    else: stamp(a, 1)
    for op in read_ops(0): emit_read(op)
    for i in range(KS):
        rops = []
        if i + 1 < KS:
            if (i + 1) % 4 == 0:
                sync((i + 1) // 4)
            rops = read_ops(i + 1)
        compute(i, rops)
    assert not pending
    a('s_waitcnt lgkmcnt(0)')
    if not getattr(p, 'stamp1', None): stamp(a, 2)
    return acc

def gelu_scalar(a, base, n, tmp, sC1, vC2):
    for i in range(n):
        a(f'v_mul_f32 v{tmp+i}, v{base+i}, v{base+i}')
    for i in range(n):
        a(f'v_fma_f32 v{tmp+i}, v{tmp+i}, v{vC2}, s{sC1}')
    for i in range(n):
        a(f'v_mul_f32 v{tmp+i}, v{tmp+i}, v{base+i}')
    for i in range(n):
        a(f'v_exp_f32 v{tmp+i}, v{tmp+i}')
    a('s_nop 0')
    for i in range(n):
        a(f'v_add_f32 v{tmp+i}, 1.0, v{tmp+i}')
    for i in range(n):
        a(f'v_rcp_f32 v{tmp+i}, v{tmp+i}')
    a('s_nop 0')
    for i in range(n):
        a(f'v_mul_f32 v{base+i}, v{base+i}, v{tmp+i}')

def gelu_packed(a, base, n, tmp, c1, c2):
    for i in range(0, n, 2): a(f'v_pk_mul_f32 {V(tmp+i,2)}, {V(base+i,2)}, {V(base+i,2)}')
    for i in range(0, n, 2): a(f'v_pk_fma_f32 {V(tmp+i,2)}, {V(tmp+i,2)}, {V(c2,2)}, {V(c1,2)}')
    for i in range(0, n, 2): a(f'v_pk_mul_f32 {V(tmp+i,2)}, {V(tmp+i,2)}, {V(base+i,2)}')
    for i in range(n): a(f'v_exp_f32 v{tmp+i}, v{tmp+i}')
    a('s_nop 0')
    for i in range(0, n, 2): a(f'v_pk_add_f32 {V(tmp+i,2)}, {V(tmp+i,2)}, 1.0 op_sel_hi:[1,0]')
    for i in range(n): a(f'v_rcp_f32 v{tmp+i}, v{tmp+i}')
    a('s_nop 0')
    for i in range(0, n, 2): a(f'v_pk_mul_f32 {V(base+i,2)}, {V(base+i,2)}, {V(tmp+i,2)}')

def dpp_wave_sum(a, regs, tmp):
    steps = ['row_shr:1', 'row_shr:2', 'row_shr:4', 'row_shr:8', 'row_bcast:15 row_mask:0xa', 'row_bcast:31 row_mask:0xc']
    for st in steps:
        if len(regs) < 3: a('s_nop 1')
        for r in regs:
            m = st if 'row_mask' in st else st + ' row_mask:0xf'
            a(f'v_add_f32_dpp v{r}, v{r}, v{r} {m} bank_mask:0xf bound_ctrl:0' if False else f'v_add_f32_dpp v{r}, v{r}, v{r} {m} bank_mask:0xf')

def build(kernels, out):
    descs = []
    launches = []
    body = Asm()
    for fn, grid, block in kernels:
        name, nv, lds = fn(body)
        descs.append(kernel_desc(name, nv))
        launches.append(f'; @launch kernel={name} grid=({grid},1,1) block=({block},1,1) lds={lds}')
    txt = '\n'.join(launches) + '\n.amdgcn_target "amdgcn-amd-amdhsa--gfx950"\n' + body.text()
    txt += '.section .rodata,"a"\n' + ''.join('.p2align 6\n' + d for d in descs)
    open(out, 'w').write(txt)
```

```python
import sys
from core2 import *

XNF  = 0x1200000
XNNF = 0x1400000
CL, CQ, C1, C2, C3, CA, CC = [FLG + i * 128 for i in (0, 16, 32, 64, 96, 112, 144)]
NCNT = 192

FL = 163584
F_STATUS, F_WRDY, F_KRDY, F_REQ, F_WDONE, F_KDONE = 0, 4, 8, 12, 16, 32
B_BASE = 98304
G3_BASE = 81920
LDS_TOTAL = 163840
ZOK = 1 << 31
B_QKV, B_C1, B_C2, B_C3, B_CA, B_XA, B_XB = 1, 2, 4, 8, 16, 0x100, 0x200
ALLB = 0x1f
M_QKV, M_C1, M_C2, M_C3, M_CA = 0, 4, 8, 12, 16
F_MZ = 48
F_QM, F_KVM = 52, 56

ws = f's[{sWS}:{sWS+3}]'
PRIO = int(os.environ.get('PRIO', '2'))
WD = 7; WRING = 14336
sW, sRB, sCB, sRow0 = 36, 37, 38, 39
sX0, sX1, sW0, sW1 = 40, 41, 42, 47
T0, T1, T2, T3 = 43, 44, 45, 46
STMP = 48
sW2SRD = 20
sJ0, sJ1, sJ2, sJ3, sNN = 60, 61, 62, 63, 57
pX, pQKV, pWO, pW1, pW2, pW3, pW4, pOUT, pDBG, pWS = 24, 26, 28, 30, 32, 84, 86, 88, 90, 34
vSA, vSB = 2, 3
V0 = 4

LNST = os.environ.get('LNST', '0') == '1'
TOUCH = os.environ.get('TOUCH', '1') == '1'
LDF = os.environ.get('LDF', '')
class CS:
    n = 1
DST = [x for x in os.environ.get('DST', '').split(',') if x]
def cstamp(a):
    if DST: return
    if CS.n <= 4: stamp(a, CS.n)
    CS.n += 1
def dstamp(a, name):
    if name in DST: stamp(a, DST.index(name) + 1)

def request(a, mask):
    a(f'v_mov_b32 v{vSA}, {FL}')
    a(f'v_mov_b32 v{vSB}, {hex(mask)}')
    a('s_mov_b64 exec, 1')
    a(f'ds_or_b32 v{vSA}, v{vSB} offset:{F_REQ}')
    a('s_mov_b64 exec, -1')

def wait_status(a, mask, sleep=1):
    lp = a.newlabel('Lws'); ld = a.newlabel('Lwd')
    if mask != ZOK: request(a, mask)
    else: a(f'v_mov_b32 v{vSA}, {FL}')
    a.label(lp)
    a(f'ds_read_b32 v{vSB}, v{vSA} offset:{F_STATUS}')
    a('s_waitcnt lgkmcnt(0)')
    a(f'v_readfirstlane_b32 s{T3}, v{vSB}')
    a(f's_and_b32 s{T3}, s{T3}, {hex(mask)}')
    a(f's_cmp_eq_u32 s{T3}, {hex(mask)}')
    a(f's_cbranch_scc1 {ld}')
    a(f's_sleep {sleep}')
    spin_guard(a)
    a(f's_branch {lp}')
    a.label(ld)

def wait_lds_ge(a, off, val, sleep=1):
    lp = a.newlabel('Lwl'); ld = a.newlabel('Lwld')
    a(f'v_mov_b32 v{vSA}, {FL}')
    a.label(lp)
    a(f'ds_read_b32 v{vSB}, v{vSA} offset:{off}')
    a('s_waitcnt lgkmcnt(0)')
    a(f'v_readfirstlane_b32 s{T3}, v{vSB}')
    a(f's_cmp_ge_u32 s{T3}, {val}')
    a(f's_cbranch_scc1 {ld}')
    a(f's_sleep {sleep}')
    spin_guard(a)
    a(f's_branch {lp}')
    a.label(ld)

def wait_min4(a, off, val, q, sleep=2):
    lp = a.newlabel('Lwm'); ld = a.newlabel('Lwmd')
    a(f'v_mov_b32 v{vSA}, {FL}')
    a.label(lp)
    a(f'ds_read_b128 {V(q,4)}, v{vSA} offset:{off}')
    a('s_waitcnt lgkmcnt(0)')
    a(f'v_min_u32 v{q}, v{q}, v{q+1}')
    a(f'v_min3_u32 v{q}, v{q}, v{q+2}, v{q+3}')
    a('s_nop 0')
    a(f'v_readfirstlane_b32 s{T3}, v{q}')
    a(f's_cmp_ge_u32 s{T3}, {val}')
    a(f's_cbranch_scc1 {ld}')
    a(f's_sleep {sleep}')
    spin_guard(a)
    a(f's_branch {lp}')
    a.label(ld)

def signal(a, offs, nw=4, need_zok=False, srdn=sWS):
    a('s_waitcnt vmcnt(0)')
    SB.nw = nw; BAR(a); SB.nw = 4
    lab = a.newlabel('Lsig')
    a(f's_cmp_lg_u32 s{sW}, 0')
    a(f's_cbranch_scc1 {lab}')
    if need_zok: wait_status(a, ZOK)
    if srdn != sWS: wait_lds_ge(a, F_MZ, 1)
    a(f'v_mov_b32 v{vSA}, 0')
    a(f'v_mov_b32 v{vSB}, 1')
    a('s_mov_b64 exec, 1')
    for o in offs:
        a(f'buffer_atomic_add v{vSB}, v{vSA}, s[{srdn}:{srdn+3}], s{o} offen sc1')
    a('s_mov_b64 exec, -1')
    a.label(lab)

def mb_signal(a, word, nl, idfn, need_zok=False, group=True, hw=False):
    a('s_waitcnt vmcnt(0)')
    if word == M_QKV: dstamp(a, 'qdrain')
    lab = a.newlabel('Lsig')
    if group:
        if hw: a('s_barrier')
        else: BAR(a)
        if word == M_QKV: dstamp(a, 'qbar')
        a(f's_cmp_lg_u32 s{sW}, 0')
        a(f's_cbranch_scc1 {lab}')
    if need_zok: wait_status(a, ZOK)
    masked = idfn(vSA, vSB)
    a(f'v_lshlrev_b32 v{vSA}, 7, v{vSA}')
    if word == M_QKV:
        a(f's_lshl_b32 s{T0}, 1, s{sRB}')
        a(f'v_mov_b32 v{vSB}, s{T0}')
        a(f's_and_b32 s{T0}, s{sCB}, 12')
        a(f's_add_u32 s{T0}, s{T0}, {hex(FLG + 20)}')
    else:
        a(f'v_mov_b32 v{vSB}, 1')
        a(f's_mov_b32 s{T0}, {hex(FLG + word)}')
    a(f's_mov_b32 exec_lo, {hex((1 << min(nl, 32)) - 1)}'); a(f's_mov_b32 exec_hi, {hex((1 << max(nl - 32, 0)) - 1)}')
    if masked: a('s_and_b64 exec, exec, vcc')
    a(f'buffer_atomic_{"or" if word == M_QKV else "add"} v{vSB}, v{vSA}, {ws}, s{T0} offen sc1')
    a('s_mov_b64 exec, -1')
    a.label(lab)

def id64(a, vId, vRb, vCb):
    a(f'v_lshlrev_b32 v{vCb}, 5, v{vCb}')
    a(f'v_lshrrev_b32 v{vId if vId != vRb else vCb+0}, 0, v{vId if vId != vRb else vCb+0}') if False else None

def map_64x64(a):
    a(f's_and_b32 s{T0}, s2, 7')
    a(f's_lshr_b32 s{T1}, s2, 3')
    a(f's_lshl_b32 s{sRB}, s{T0}, 2')
    a(f's_and_b32 s{T2}, s{T1}, 3')
    a(f's_add_u32 s{sRB}, s{sRB}, s{T2}')
    a(f's_lshr_b32 s{sCB}, s{T1}, 2')
def map_g3(a):
    a(f's_and_b32 s{T0}, s2, 7')
    a(f's_lshr_b32 s{T1}, s2, 3')
    a(f's_lshl_b32 s{sRB}, s{T0}, 1')
    a(f's_and_b32 s{T2}, s{T1}, 1')
    a(f's_add_u32 s{sRB}, s{sRB}, s{T2}')
    a(f's_lshr_b32 s{sCB}, s{T1}, 1')
def map_qkv(a):
    a(f's_and_b32 s{T0}, s2, 7')
    a(f's_lshr_b32 s{T1}, s2, 3')
    a(f's_lshr_b32 s{T2}, s{T0}, 1')
    a(f's_lshl_b32 s{T2}, s{T2}, 2')
    a(f's_and_b32 s{T3}, s{T1}, 3')
    a(f's_add_u32 s{sRB}, s{T2}, s{T3}')
    a(f's_and_b32 s{T2}, s{T0}, 1')
    a(f's_lshl_b32 s{T2}, s{T2}, 3')
    a(f's_lshr_b32 s{T3}, s{T1}, 2')
    a(f's_add_u32 s{sCB}, s{T2}, s{T3}')
def rot8(a, d0, d1, mul=1):
    a(f's_and_b32 s{T0}, s{sRB}, 3')
    a(f's_lshl_b32 s{T0}, s{T0}, 1')
    a(f's_add_u32 s{T0}, s{T0}, s{sCB}')
    a(f's_and_b32 s{d0}, s{T0}, 7')
    if mul != 1:
        a(f's_mul_i32 s{d0}, s{d0}, {mul}')
        a(f's_lshr_b32 s{d0}, s{d0}, 1')
    a(f's_mov_b32 s{d1}, s{d0}')

def pack_swap(a, ac, pk):
    for i in range(8):
        a(f'v_cvt_pk_bf16_f32 v{pk+i}, v{ac+2*i}, v{ac+2*i+1}')
    a('s_nop 1')
    for pr in range(2):
        b = pk + 4 * pr
        a(f'v_permlane32_swap_b32 v{b}, v{b+2}')
        a(f'v_permlane32_swap_b32 v{b+1}, v{b+3}')
    a('s_nop 1')
def pack_swap_store(a, ac, pk, voff, sOff):
    pack_swap(a, ac, pk)
    for pr in range(2):
        a(f'buffer_store_dwordx4 {V(pk+4*pr,4)}, v{voff}, {ws}, s{sOff} offen offset:{pr*1024} sc1')

def frag_tile_off(a, sDst, g, base, nks):
    a(f's_lshl_b32 s{sDst}, s{sRB}, 1')
    a(f's_add_u32 s{sDst}, s{sDst}, s{g.sWr}')
    a(f's_mul_i32 s{sDst}, s{sDst}, {nks}')
    a(f's_lshl_b32 s{T3}, s{sCB}, 2')
    a(f's_add_u32 s{sDst}, s{sDst}, s{T3}')
    a(f's_lshl_b32 s{T3}, s{g.sWc}, 1')
    a(f's_add_u32 s{sDst}, s{sDst}, s{T3}')
    a(f's_lshl_b32 s{sDst}, s{sDst}, 10')
    a(f's_add_u32 s{sDst}, s{sDst}, {hex(base)}')
def wsk_woffs(a, g):
    a(f's_lshl_b32 s{sW0}, s{sW}, 14')
    a(f's_lshl_b32 s{T0}, s{sCB}, 7')
    a(f's_add_u32 s{sW0}, s{sW0}, s{T0}')
    a(f's_lshl_b32 s{T0}, s{g.sWc}, 6')
    a(f's_xor_b32 s{T1}, s{T0}, 64')
    a(f's_add_u32 s{sW1}, s{sW0}, s{T1}')
    a(f's_add_u32 s{sW0}, s{sW0}, s{T0}')
def wsk_xoffs(a, g, base, xtile, d0=sX0, d1=sX1):
    a(f's_lshl_b32 s{T0}, s{sRB}, 1')
    a(f's_add_u32 s{T1}, s{T0}, s{g.sWr}')
    a(f's_mul_i32 s{d0}, s{T1}, {xtile}')
    a(f's_xor_b32 s{T1}, s{T1}, 1')
    a(f's_mul_i32 s{d1}, s{T1}, {xtile}')
    a(f's_lshl_b32 s{T0}, s{sW}, 10')
    a(f's_add_u32 s{T0}, s{T0}, {hex(base)}')
    a(f's_add_u32 s{d0}, s{d0}, s{T0}')
    a(f's_add_u32 s{d1}, s{d1}, s{T0}')
def x_rowmajor_off(a, g, sDst):
    a(f's_lshl_b32 s{sDst}, s{sRB}, 16')
    a(f's_lshl_b32 s{T1}, s{g.sWr}, 15')
    a(f's_add_u32 s{sDst}, s{sDst}, s{T1}')
    a(f's_lshl_b32 s{T1}, s{sCB}, 7')
    a(f's_add_u32 s{sDst}, s{sDst}, s{T1}')
    a(f's_lshl_b32 s{T1}, s{g.sWc}, 6')
    a(f's_add_u32 s{sDst}, s{sDst}, s{T1}')
def lane8_off(a, v, l, t):
    a(f'v_and_b32 v{v}, 31, v{l}')
    a(f'v_lshlrev_b32 v{v}, 4, v{v}')
    a(f'v_lshrrev_b32 v{t}, 5, v{l}')
    a(f'v_lshl_add_u32 v{v}, v{t}, 3, v{v}')
def unpack(a, src, dst, n):
    for j in range(n):
        a(f'v_lshlrev_b32 v{dst+2*j}, 16, v{src+j}')
        a(f'v_and_b32 v{dst+2*j+1}, 0xffff0000, v{src+j}')
def ln_scalars(a, mean, ex2, q, n):
    var, m1, s1, rs = q[0], q[1], q[2], q[3]
    a(f'v_mul_f32 v{mean}, {hex(f32bits(1/n))}, v{mean}')
    a(f'v_mul_f32 v{ex2}, {hex(f32bits(1/n))}, v{ex2}')
    a(f'v_fma_f32 v{var}, -v{mean}, v{mean}, v{ex2}')
    a(f'v_max_f32 v{var}, 0, v{var}')
    a(f'v_mov_b32 v{m1}, v{mean}'); bf16_round(a, m1)
    a(f'v_mov_b32 v{s1}, v{var}'); bf16_round(a, s1)
    a(f'v_add_f32 v{s1}, {hex(f32bits(EPS))}, v{s1}'); bf16_round(a, s1)
    a(f'v_sqrt_f32 v{s1}, v{s1}'); a('s_nop 0'); bf16_round(a, s1)
    a(f'v_rcp_f32 v{rs}, v{s1}'); a('s_nop 0')

def ln_issue(a, va):
    r = G(); l = 1
    r.raw = [va(4), va(4)]; r.vL16 = va()
    a(f'v_lshlrev_b32 v{r.vL16}, 4, v{l}')
    srd(a, sAUX, pX, 2048 * 1024)
    a(f's_lshl_b32 s{T0}, s2, 3')
    a(f's_lshl_b32 s{T1}, s{sW}, 1')
    a(f's_add_u32 s{sRow0}, s{T0}, s{T1}')
    a(f's_lshl_b32 s{T0}, s{sRow0}, 10')
    for k in range(2):
        a(f'buffer_load_dwordx4 {V(r.raw[k],4)}, v{r.vL16}, s[{sAUX}:{sAUX+3}], s{T0} offen offset:{k*1024}')
    return r

def ln_stats(a, r, tmp):
    RR = range(2)
    x = [tmp, tmp + 8]; s_ = [tmp + 16, tmp + 17]; t_ = [tmp + 18, tmp + 19]
    m1 = [tmp + 20, tmp + 21]; s1 = [tmp + 22, tmp + 23]; rs = [tmp + 24, tmp + 25]; m2 = [tmp + 26, tmp + 27]; s2 = [tmp + 28, tmp + 29]
    o = [tmp + 30 + k for k in range(6)]; vZ = tmp + 36
    def each(f):
        for k in RR: f(k)
    def rnd(regs):
        for rg in regs: a(f'v_cvt_pk_bf16_f32 v{rg}, v{rg}, v{rg}')
        for rg in regs: a(f'v_lshlrev_b32 v{rg}, 16, v{rg}')
    a(f'v_mov_b32 v{vZ}, 0')
    for k in RR: unpack(a, r.raw[k], x[k], 4)
    each(lambda k: a(f'v_add_f32 v{s_[k]}, v{x[k]}, v{x[k]+1}'))
    each(lambda k: a(f'v_mul_f32 v{t_[k]}, v{x[k]}, v{x[k]}'))
    each(lambda k: a(f'v_fma_f32 v{t_[k]}, v{x[k]+1}, v{x[k]+1}, v{t_[k]}'))
    for j in range(2, 8):
        each(lambda k: a(f'v_add_f32 v{s_[k]}, v{s_[k]}, v{x[k]+j}'))
        each(lambda k: a(f'v_fma_f32 v{t_[k]}, v{x[k]+j}, v{x[k]+j}, v{t_[k]}'))
    a('s_nop 1')
    dpp_wave_sum(a, s_ + t_, None)
    for rg in s_ + t_: a(f'v_mul_f32 v{rg}, {hex(f32bits(1/512))}, v{rg}')
    each(lambda k: a(f'v_fma_f32 v{t_[k]}, -v{s_[k]}, v{s_[k]}, v{t_[k]}'))
    each(lambda k: a(f'v_max_f32 v{t_[k]}, 0, v{t_[k]}'))
    each(lambda k: a(f'v_mov_b32 v{m1[k]}, v{s_[k]}'))
    each(lambda k: a(f'v_mov_b32 v{s1[k]}, v{t_[k]}'))
    rnd(m1 + s1)
    each(lambda k: a(f'v_add_f32 v{s1[k]}, {hex(f32bits(EPS))}, v{s1[k]}')); rnd(s1)
    each(lambda k: a(f'v_sqrt_f32 v{s1[k]}, v{s1[k]}')); a('s_nop 0'); rnd(s1)
    each(lambda k: a(f'v_rcp_f32 v{rs[k]}, v{s1[k]}')); a('s_nop 0')
    each(lambda k: a(f'v_sub_f32 v{m2[k]}, v{s_[k]}, v{m1[k]}'))
    each(lambda k: a(f'v_mul_f32 v{m2[k]}, v{m2[k]}, v{rs[k]}'))
    each(lambda k: a(f'v_mul_f32 v{s2[k]}, v{t_[k]}, v{rs[k]}'))
    each(lambda k: a(f'v_mul_f32 v{s2[k]}, v{s2[k]}, v{rs[k]}'))
    rnd(m2 + s2)
    each(lambda k: a(f'v_add_f32 v{s2[k]}, {hex(f32bits(EPS))}, v{s2[k]}')); rnd(s2)
    each(lambda k: a(f'v_sqrt_f32 v{s2[k]}, v{s2[k]}')); a('s_nop 0'); rnd(s2)
    each(lambda k: a(f'v_rcp_f32 v{s2[k]}, v{s2[k]}')); a('s_nop 0')
    each(lambda k: a(f'v_mul_f32 v{o[k]}, v{m1[k]}, v{rs[k]}'))
    each(lambda k: a(f'v_sub_f32 v{o[k]}, 0, v{o[k]}'))
    each(lambda k: a(f'v_mul_f32 v{o[2+k]}, v{rs[k]}, v{s2[k]}'))
    each(lambda k: a(f'v_fma_f32 v{o[4+k]}, v{m2[k]}, v{s1[k]}, v{m1[k]}'))
    each(lambda k: a(f'v_mul_f32 v{o[4+k]}, v{o[4+k]}, v{o[2+k]}'))
    each(lambda k: a(f'v_sub_f32 v{o[4+k]}, 0, v{o[4+k]}'))
    a(f's_lshl_b32 s{T1}, s{sRow0}, 2')
    a(f's_add_u32 s{T1}, s{T1}, {hex(ST)}')
    a('s_mov_b32 exec_lo, 0'); a('s_mov_b32 exec_hi, 0x80000000')
    for idx, rg in ((0, o[0]), (1, rs[0]), (2, o[4]), (3, o[2])):
        a(f's_add_u32 s{T2}, s{T1}, {idx * 0x2000}')
        a(f'buffer_store_dwordx2 {V(rg,2)}, v{vZ}, {ws}, s{T2} offen sc1')
    a('s_mov_b64 exec, -1')

def sentinel(a):
    l = 1
    vOff, vTgt, vVal, vZ, vF, vD = 4, 5, 6, 7, 8, 9
    sDone, sAct, sMA, sMB, sMb = sX0, sX1, sW0, sW1, sRow0
    srd(a, sDBG, pDBG, 256)
    a(f'v_mov_b32 v{vZ}, 0')
    a(f'v_mov_b32 v{vF}, {FL}')
    a(f'v_lshlrev_b32 v{vOff}, 2, v{l}')
    a(f's_lshl_b32 s{sMb}, s2, 7')
    a(f's_add_u32 s{sMb}, s{sMb}, {hex(FLG)}')
    a('s_mov_b64 exec, 0xff')
    a(f'buffer_store_dword v{vZ}, v{vOff}, {ws}, s{sMb} offen sc1')
    a('s_mov_b64 exec, -1')
    a(f'v_lshlrev_b32 v{vD}, 4, v{l}')
    map_qkv(a)
    a(f's_mov_b32 s{sMA}, s{sRB}')
    map_g3(a)
    a(f's_cmp_ge_u32 s{sCB}, 15')
    a(f's_cselect_b32 s{sDone}, {hex(B_C2)}, 0')
    map_64x64(a)
    a(f's_lshr_b32 s{sMB}, s{sRB}, 1')
    a(f'v_mov_b32 v{vTgt}, 0')
    a(f's_mov_b32 s{T3}, -1')
    for ln_ in (0, 5, 6, 7): a(f'v_writelane_b32 v{vTgt}, s{T3}, {ln_}')
    a(f's_sub_u32 s{T0}, s{sRB}, 1')
    a(f's_cmp_lt_u32 s{T0}, 30')
    a(f's_cselect_b32 s{T3}, 8, 4'); a(f'v_writelane_b32 v{vTgt}, s{T3}, 1')
    a(f's_mov_b32 s{T3}, 16'); a(f'v_writelane_b32 v{vTgt}, s{T3}, 2')
    a(f's_mov_b32 s{T3}, 15'); a(f'v_writelane_b32 v{vTgt}, s{T3}, 3')
    a(f's_mov_b32 s{T3}, 32'); a(f'v_writelane_b32 v{vTgt}, s{T3}, 4')
    a(f'v_mov_b32 v{vVal}, 1')
    a('s_barrier')
    a('s_waitcnt vmcnt(0)')
    for k in range(1, 6): a('s_barrier')
    lp = a.newlabel('Lp1'); lok = a.newlabel('Lp1ok')
    a('s_mov_b64 exec, 0xffff')
    a(f'buffer_load_dword v{vVal}, v{vD}, s[{sDBG}:{sDBG+3}], 0 offen sc1')
    a('s_barrier')
    a.label(lp)
    a('s_waitcnt vmcnt(0)')
    a(f'v_cmp_le_u32 vcc, 16, v{vVal}')
    a('s_cmp_eq_u32 vcc_lo, 0xffff')
    a(f's_cbranch_scc1 {lok}')
    spin_guard(a)
    a(f's_sleep {int(os.environ.get("P1S", "4"))}')
    a(f'buffer_load_dword v{vVal}, v{vD}, s[{sDBG}:{sDBG+3}], 0 offen sc1')
    a(f's_branch {lp}')
    a.label(lok)
    for k in range(7, 10): a('s_barrier')
    lp = a.newlabel('Lp2')
    a('s_mov_b64 exec, 0xff')
    a.label(lp)
    spin_guard(a)
    a('s_sleep 1')
    a(f'ds_read_b32 v{vVal}, v{vF} offset:{F_REQ}')
    a('s_waitcnt lgkmcnt(0)')
    a(f'v_readfirstlane_b32 s{sAct}, v{vVal}')
    a(f's_andn2_b32 s{sAct}, s{sAct}, s{sDone}')
    a(f's_cbranch_scc0 {lp}')
    a(f'buffer_load_dword v{vVal}, v{vOff}, {ws}, s{sMb} offen sc1')
    a('s_waitcnt vmcnt(0)')
    a(f'v_cmp_ge_u32 vcc, v{vVal}, v{vTgt}')
    a(f'v_readlane_b32 s{T0}, v{vVal}, 5')
    a(f'v_readlane_b32 s{T1}, v{vVal}, 6')
    a(f'v_readlane_b32 s{T2}, v{vVal}, 7')
    a(f's_or_b32 s{sDone}, s{sDone}, vcc_lo')
    a(f's_and_b32 s{T1}, s{T1}, s{T2}')
    a(f'v_mov_b32 v10, s{T0}')
    a(f'v_mov_b32 v11, s{T1}')
    a(f's_and_b32 s{T0}, s{T0}, s{T1}')
    a(f's_cmp_eq_u32 s{T0}, 0xffff')
    a(f's_cselect_b32 s{T0}, {B_QKV}, 0')
    a(f's_or_b32 s{sDone}, s{sDone}, s{T0}')
    a(f'v_mov_b32 v{vVal}, s{sDone}')
    a(f'ds_write2_b32 v{vF}, v10, v11 offset0:{F_QM//4} offset1:{F_KVM//4}')
    a(f'ds_write_b32 v{vF}, v{vVal} offset:{F_STATUS}')
    a(f's_and_b32 s{T0}, s{sDone}, {hex(ALLB)}')
    a(f's_cmp_lg_u32 s{T0}, {hex(ALLB)}')
    a(f's_cbranch_scc1 {lp}')
    a('s_waitcnt lgkmcnt(0)')
    a('s_endpgm')

import k_g1
def l2_touch(a, ptr, nbytes, vT, vD):
    pass

def g1_stage(a):
    l = 1
    sCol0 = sRow0
    map_qkv(a)
    srd(a, sXSRD, pX, 2048 * 1024)
    a(f's_lshl_b32 s{sX0}, s{sRB}, 17')
    a(f's_lshl_b32 s{T0}, s{sW}, 13')
    a(f's_add_u32 s{sX0}, s{sX0}, s{T0}')
    rot8(a, sJ0, sJ1)
    a(f's_cmp_ge_u32 s{sCB}, 12')
    a('s_cbranch_scc1 g1_w1')
    srd(a, sWSRD, pQKV, 512 * 3072)
    a(f's_lshl_b32 s{sCol0}, s{sCB}, 8')
    a(f's_cmp_ge_u32 s{sCB}, 8')
    a('s_cbranch_scc1 g1_v')
    hi = 0; sb0 = SB.n; n0 = CS.n
    for kind in ('qk', 'v', 'w1'):
        if kind == 'v': a.label('g1_v')
        if kind == 'w1':
            a.label('g1_w1')
            srd(a, sWSRD, pW1, 512 * 1024)
            a(f's_sub_u32 s{sCol0}, s{sCB}, 12')
            a(f's_lshl_b32 s{sCol0}, s{sCol0}, 8')
        SB.n = sb0; CS.n = n0
        va = RegAlloc(V0, 168)
        p = G()
        p.TT, p.FT, p.WR, p.WC, p.KS, p.NST = 4, 4, 2, 2, 32, 3
        p.xmode = 'row'; p.rowbytes = 1024 if kind == 'w1' else 3072
        p.orient = 'N' if kind == 'v' else 'T'
        p.sW, p.sXoff, p.sWoff, p.vLane, p.xsrd, p.ldflags, p.stmp = sW, sX0, sW0, l, sXSRD, '', STMP
        p.xtile = 32768
        p.sRot, p.sRotC, p.sRotX, p.sRotW = sJ0, 58, 59, sJ3
        p.init_chunks = int(os.environ.get('QINIT', '2'))
        a(f's_mul_i32 s{sW0}, s{sW}, {16 * p.rowbytes}')
        a(f's_add_u32 s{sW0}, s{sW0}, s{sCol0}')
        gemm_setup(a, va, p)
        acs = va(16, 4); ones = va(4); p.tmp16 = acs
        for i in range(4): a(f'v_mov_b32 v{ones+i}, 0x3f803f80')
        def step_hook(i, xfb, wfb):
            l0 = a.newlabel('Lc0'); l1 = a.newlabel('Lc1')
            c = '0' if i == 0 else V(acs,16)
            a(f's_cmp_lg_u32 s{p.sWr}, 0')
            a(f's_cbranch_scc1 {l0}')
            a(f'{MF} {V(acs,16)}, {V(ones,4)}, {V(wfb[0],4)}, {c}')
            a(f's_branch {l1}')
            a.label(l0)
            a(f'{MF} {V(acs,16)}, {V(ones,4)}, {V(wfb[1],4)}, {c}')
            a.label(l1)
        p.step_hook = step_hook
        EB = 155648 - 8192
        p.ebase = EB
        stv = va(2); vTid = va()
        def fin(a_, va_, p_, mode, sQ, sRB_, sCB_, T):
            t0, t1, t2 = p.t
            a(f'v_and_b32 v{t0}, 31, v{l}')
            a(f'v_lshlrev_b32 v{t0}, 2, v{t0}')
            a(f's_lshl_b32 s{T0}, s{p.sWc}, 8')
            a(f's_lshl_b32 s{T1}, s{p.sWr}, 7')
            a(f's_add_u32 s{T0}, s{T0}, s{T1}')
            a(f's_add_u32 s{T0}, s{T0}, {EB}')
            a(f'v_add_u32 v{t1}, s{T0}, v{t0}')
            a(f'v_add_u32 v{vTid}, {EB}, v{vTid}')
            a('s_waitcnt vmcnt(0)')
            if sQ is not None:
                a(f'v_mul_f32 v{stv}, s{sQ}, v{stv}')
                a(f'v_mul_f32 v{stv+1}, s{sQ}, v{stv+1}')
            a('s_nop 3')
            a(f'ds_write_b32 v{t1}, v{acs} offset:9216')
            lt = a.newlabel('Ltk')
            a(f's_cmp_ge_u32 s{sW}, 2')
            a(f's_cbranch_scc1 {lt}')
            a(f'ds_write_b32 v{vTid}, v{stv} offset:8192')
            a(f'ds_write_b32 v{vTid}, v{stv+1} offset:8704')
            a.label(lt)
            a('s_waitcnt lgkmcnt(0)')
            a('s_barrier')
            dstamp(a, 'qstat')
        k_g1.ln_finalize = fin
        def after_sync(c):
            if c == 7:
                a(f'v_and_b32 v{vTid}, 127, v0')
                a(f'v_lshlrev_b32 v{vTid}, 2, v{vTid}')
                a(f's_lshl_b32 s{T0}, s{sRB}, 9')
                a(f's_add_u32 s{T0}, s{T0}, {hex(ST + (0x4000 if kind == "w1" else 0))}')
                a(f'buffer_load_dword v{stv}, v{vTid}, {ws}, s{T0} offen sc1')
                a(f's_add_u32 s{T0}, s{T0}, 0x2000')
                a(f'buffer_load_dword v{stv+1}, v{vTid}, {ws}, s{T0} offen sc1')
        p.after_sync = after_sync
        p.stamp1 = lambda: (cstamp(a), dstamp(a, 'qx'))
        SB.on = False
        acc = gemm_main(a, va, p)
        SB.on = True
        cstamp(a); dstamp(a, 'qloop')
        k_g1.g1_epilogue(a, va, p, acc, kind, sRB, sCB, (T0, T1, T2, sJ2))
        hi = max(hi, va.hi)
        dstamp(a, 'qepi')
        if kind == 'w1':
            a(f's_lshl_b32 s{T1}, s{sRB}, 1')
            a(f's_sub_u32 s{T1}, s{T1}, 1')
            mb_signal(a, M_C1, 32, id_rows(a, T1, True), hw=True)
        else:
            def idq(vI, vT):
                a(f's_and_b32 s{T0}, s{sCB}, 3')
                a(f's_lshl_b32 s{T0}, s{T0}, 3')
                a(f'v_lshrrev_b32 v{vI}, 3, v1')
                a(f'v_add_u32 v{vI}, s{T0}, v{vI}')
                a(f'v_and_b32 v{vT}, 3, v{vI}')
                a(f'v_lshrrev_b32 v{vI}, 2, v{vI}')
                a(f'v_lshl_add_u32 v{vI}, v{vT}, 3, v{vI}')
                a(f'v_and_b32 v{vT}, 7, v1')
                a(f'v_lshl_add_u32 v{vI}, v{vT}, 5, v{vI}')
                return False
            mb_signal(a, M_QKV, 64, idq, hw=True)
            a('s_branch g1_done')
    a.label('g1_done')
    a(f'v_mov_b32 v{vSA}, {FL}'); a(f'v_mov_b32 v{vSB}, 1')
    a(f'ds_write_b32 v{vSA}, v{vSB} offset:{F_WDONE}')
    dstamp(a, 'qsig')
    return hi

def id_rows(a, sBase, check):
    def f(vI, vT):
        a(f'v_lshrrev_b32 v{vI}, 3, v1')
        a(f'v_add_u32 v{vI}, s{sBase}, v{vI}')
        if check: a(f'v_cmp_gt_u32 vcc, 32, v{vI}')
        a(f'v_and_b32 v{vT}, 3, v{vI}')
        a(f'v_lshrrev_b32 v{vI}, 2, v{vI}')
        a(f'v_lshl_add_u32 v{vI}, v{vT}, 3, v{vI}')
        a(f'v_and_b32 v{vT}, 7, v1')
        a(f'v_lshl_add_u32 v{vI}, v{vT}, 5, v{vI}')
        return check
    return f

def colsum3_job_issue(a, va):
    r = G()
    r.l3 = [va(4), va(4)]; r.tA = va(); r.tB = va()
    srd(a, sAUX, pW3, 512 * 2752)
    a(f's_and_b32 s{T0}, s2, 15')
    a(f's_mul_i32 s{T0}, s{T0}, {32 * 2752}')
    a(f's_lshr_b32 s{T1}, s2, 4')
    a(f's_min_u32 s{T1}, s{T1}, 10')
    a(f's_lshl_b32 s{T1}, s{T1}, 8')
    a(f's_add_u32 s{T0}, s{T0}, s{T1}')
    a(f'v_lshrrev_b32 v{r.tA}, 4, v0')
    a(f's_mov_b32 s{T1}, 2752')
    a(f'v_mul_lo_u32 v{r.tA}, v{r.tA}, s{T1}')
    a(f'v_and_b32 v{r.tB}, 15, v0')
    a(f'v_lshl_add_u32 v{r.tA}, v{r.tB}, 4, v{r.tA}')
    a(f'buffer_load_dwordx4 {V(r.l3[0],4)}, v{r.tA}, s[{sAUX}:{sAUX+3}], s{T0} offen')
    a(f's_add_u32 s{T0}, s{T0}, {16 * 2752}')
    a(f'buffer_load_dwordx4 {V(r.l3[1],4)}, v{r.tA}, s[{sAUX}:{sAUX+3}], s{T0} offen')
    return r
def colsum3_job_finish(a, r, u):
    SCR = B_BASE + 65536
    unpack(a, r.l3[0], u, 4); unpack(a, r.l3[1], u + 8, 4)
    for j in range(8): a(f'v_add_f32 v{u+j}, v{u+j}, v{u+8+j}')
    a(f'v_lshrrev_b32 v{r.tA}, 4, v0')
    a(f'v_lshlrev_b32 v{r.tA}, 9, v{r.tA}')
    a(f'v_lshl_add_u32 v{r.tA}, v{r.tB}, 5, v{r.tA}')
    a(f'v_add_u32 v{r.tA}, {SCR}, v{r.tA}')
    a(f'ds_write_b128 v{r.tA}, {V(u,4)}')
    a(f'ds_write_b128 v{r.tA}, {V(u+4,4)} offset:16')
    BAR(a)
    lab = a.newlabel('Lc3')
    a(f's_cmp_ge_u32 s{sW}, 2')
    a(f's_cbranch_scc1 {lab}')
    a('s_cmp_ge_u32 s2, 176')
    a(f's_cbranch_scc1 {lab}')
    a(f'v_lshlrev_b32 v{r.tA}, 2, v0')
    a(f'v_add_u32 v{r.tB}, {SCR}, v{r.tA}')
    for k in range(16): a(f'ds_read_b32 v{u+k}, v{r.tB} offset:{k*512}')
    a('s_waitcnt lgkmcnt(0)')
    for k in range(1, 16): a(f'v_add_f32 v{u}, v{u}, v{u+k}')
    a(f's_and_b32 s{T0}, s2, 15')
    a(f's_mul_i32 s{T0}, s{T0}, {1408 * 4}')
    a(f's_lshr_b32 s{T1}, s2, 4')
    a(f's_lshl_b32 s{T1}, s{T1}, 9')
    a(f's_add_u32 s{T0}, s{T0}, s{T1}')
    a(f's_add_u32 s{T0}, s{T0}, {hex(CS3)}')
    a(f'buffer_store_dword v{u}, v{r.tA}, {ws}, s{T0} offen sc1')
    a.label(lab)

def g2_stage(a):
    va = RegAlloc(V0, 256); l = 1; vm = VM()
    map_64x64(a)
    srd(a, sAUX, pX, 2048 * 1024)
    srd(a, sWSRD, pW2, 512 * 1024)
    g = WSK(a, va, sW, l, STMP, WD, vm, lds_base=B_BASE, ring_bytes=WRING)
    t0, t1, t2 = g.t
    wsk_woffs(a, g)
    wsk_xoffs(a, g, HF, 32768)
    rot8(a, sJ0, sJ1)
    g.add_segment(8, sWS, [sX0, sX1], g.vL16, LDF, sWSRD, [sW0, sW1], sJ0, sJ1, 8)
    xr = va(8, 4); mr = va(); rr = va()
    B8 = int(os.environ.get('B8', '0'))
    for k in range(6 + B8): a('s_barrier')
    a(f'v_and_b32 v{t2}, 31, v{l}')
    a(f'v_lshlrev_b32 v{t2}, 10, v{t2}')
    a(f'v_lshrrev_b32 v{t0}, 5, v{l}')
    a(f'v_lshl_add_u32 v{t2}, v{t0}, 3, v{t2}')
    x_rowmajor_off(a, g, T0)
    for q in range(4):
        a(f'buffer_load_dwordx2 {V(xr+2*q,2)}, v{t2}, s[{sAUX}:{sAUX+3}], s{T0} offen offset:{q*16}'); vm.add('xn')
    for i in range(WD): g.issue_w(i)
    g.nw = WD
    g.zero_acc(skip00=True)
    dstamp(a, 'g2pre')
    for k in range(2 - B8): a('s_barrier')
    wait_status(a, B_C1)
    cstamp(a); dstamp(a, 'g2x')
    a(f'v_and_b32 v{t0}, 31, v{l}')
    a(f'v_lshlrev_b32 v{t0}, 2, v{t0}')
    a(f's_lshl_b32 s{T0}, s{sRB}, 8')
    a(f's_lshl_b32 s{T1}, s{g.sWr}, 7')
    a(f's_add_u32 s{T0}, s{T0}, s{T1}')
    a(f's_add_u32 s{T0}, s{T0}, {hex(ST)}')
    a(f'buffer_load_dword v{mr}, v{t0}, {ws}, s{T0} offen sc1'); vm.add('st')
    a(f's_add_u32 s{T0}, s{T0}, 0x2000')
    a(f'buffer_load_dword v{rr}, v{t0}, {ws}, s{T0} offen sc1'); vm.add('st')
    def after_issue():
        a(f's_waitcnt vmcnt({vm.wait_for("st")})')
        unpack(a, xr, g.acc[0][0], 8)
        for i in range(16): a(f'v_fma_f32 v{g.acc[0][0]+i}, v{g.acc[0][0]+i}, v{rr}, v{mr}')
    g.after_issue = after_issue
    g.run(0, 8)
    dstamp(a, 'g2loop')
    ac = g.reduce()
    xf = g.acc[0][1]; pk = g.acc[1][0]; s1, s2, s1b, s2b, pr = [g.acc[1][1] + i for i in (0, 1, 2, 3, 4)]
    frag_tile_off(a, T0, g, X1F, 32)
    pack_swap_store(a, ac, pk, g.vL16, T0)
    unpack(a, pk, xf, 8)
    a(f'v_add_f32 v{s1}, v{xf}, v{xf+1}')
    a(f'v_mul_f32 v{s2}, v{xf}, v{xf}')
    a(f'v_fma_f32 v{s2}, v{xf+1}, v{xf+1}, v{s2}')
    for i in range(2, 16):
        a(f'v_add_f32 v{s1}, v{s1}, v{xf+i}')
        a(f'v_fma_f32 v{s2}, v{xf+i}, v{xf+i}, v{s2}')
    a(f'v_mov_b32 v{s1b}, v{s1}'); a(f'v_mov_b32 v{s2b}, v{s2}')
    a('s_nop 1')
    a(f'v_permlane32_swap_b32 v{s1}, v{s1b}')
    a(f'v_permlane32_swap_b32 v{s2}, v{s2b}')
    a('s_nop 1')
    a(f'v_add_f32 v{pr}, v{s1}, v{s1b}')
    a(f'v_add_f32 v{pr+1}, v{s2}, v{s2b}')
    a(f's_lshl_b32 s{T0}, s{sCB}, 1')
    a(f's_add_u32 s{T0}, s{T0}, s{g.sWc}')
    a(f's_lshl_b32 s{T0}, s{T0}, 14')
    a(f's_lshl_b32 s{T1}, s{sRB}, 9')
    a(f's_add_u32 s{T0}, s{T0}, s{T1}')
    a(f's_lshl_b32 s{T1}, s{g.sWr}, 8')
    a(f's_add_u32 s{T0}, s{T0}, s{T1}')
    a(f's_add_u32 s{T0}, s{T0}, {hex(PS)}')
    a(f'v_lshlrev_b32 v{t0}, 3, v{l}')
    a('s_mov_b32 exec_hi, 0')
    a(f'buffer_store_dwordx2 {V(pr,2)}, v{t0}, {ws}, s{T0} offen sc1')
    a('s_mov_b64 exec, -1')
    dstamp(a, 'g2epi')
    def id3(vI, vT):
        a(f's_lshr_b32 s{T0}, s{sRB}, 1')
        a(f's_and_b32 s{T1}, s{T0}, 1')
        a(f's_lshl_b32 s{T1}, s{T1}, 3')
        a(f's_lshr_b32 s{T0}, s{T0}, 1')
        a(f's_or_b32 s{T0}, s{T0}, s{T1}')
        a(f'v_lshlrev_b32 v{vI}, 4, v1')
        a(f'v_or_b32 v{vI}, s{T0}, v{vI}')
        return False
    mb_signal(a, M_C2, 15, id3)
    dstamp(a, 'g2sig')
    return va.hi

def g3_stage(a, endlabel):
    va = RegAlloc(V0, 256); l = 1; vm = VM()
    map_g3(a)
    a(f's_cmp_ge_u32 s{sCB}, 15')
    a(f's_cbranch_scc1 {endlabel}')
    srd(a, sWSRD, pW3, 512 * 2752)
    D = 7; CK = 8; NST = 3; STG = CK * 3 * 1024; CSL = G3_BASE + NST * STG
    sT0, sT1, sM0 = STMP, STMP + 1, STMP + 2
    t0 = va(); t1 = va(); t2 = va(); vL16 = va(); vTr = va(); vW = va(); vTr2 = va()
    a(f'v_lshlrev_b32 v{vL16}, 4, v{l}')
    trbase(a, vTr, l, t0)
    a(f'v_add_u32 v{vTr}, {G3_BASE}, v{vTr}')
    a(f'v_add_u32 v{vTr2}, 49152, v{vTr}')
    wdma_voff(a, vW, l, t0, 2752, sT0)
    acc = [va(16, 4) for F in range(3)]
    xr = [va(4) for d in range(D)]
    wf = [[va(4) for F in range(3)] for b in range(3)]
    ps = va(16, 4); cp = va(16, 4)
    mr = va(); rr = va(); z = [va() for _ in range(4)]
    ones = va(4)
    for i in range(4): a(f'v_mov_b32 v{ones+i}, 0x3f803f80')
    a(f's_mul_i32 s{sW0}, s{sW}, {16 * 2752}')
    a(f's_mul_i32 s{T0}, s{sCB}, 192')
    a(f's_add_u32 s{sW0}, s{sW0}, s{T0}')
    a(f's_mul_i32 s{sM0}, s{sW}, 3072')
    a(f's_add_u32 s{sM0}, s{sM0}, {G3_BASE}')
    a(f's_and_b32 s{T0}, s{sRB}, 1')
    a(f's_lshl_b32 s{T0}, s{T0}, 1')
    a(f's_add_u32 s{sJ0}, s{T0}, s{sCB}')
    def wdma(c):
        a(f's_add_u32 s{sJ1}, s{sJ0}, {c}')
        a(f's_and_b32 s{sJ1}, s{sJ1}, 3')
        a(f's_mul_i32 s{sJ1}, s{sJ1}, {128 * 2752}')
        a(f's_add_u32 s{sJ1}, s{sJ1}, s{sW0}')
        for hh in range(2):
            for F in range(3):
                a(f's_add_u32 m0, s{sM0}, {(c % NST) * STG + hh * 4 * 3072 + F * 1024}')
                a(f's_add_u32 s{sT1}, s{sJ1}, {(hh * 4) * 16 * 2752 + F * 64}')
                a(f'buffer_load_dwordx4 v{vW}, s[{sWSRD}:{sWSRD+3}], s{sT1} offen lds')
                vm.add(('w', c))
    request(a, B_C2)
    for c in range(NST): wdma(c)
    a(f's_lshl_b32 s{sX0}, s{sRB}, 2')
    a(f's_add_u32 s{sX0}, s{sX0}, s{sW}')
    a(f's_lshl_b32 s{sX0}, s{sX0}, 15')
    a(f's_add_u32 s{sX0}, s{sX0}, {hex(X1F)}')
    dstamp(a, 'g3pre')
    wait_status(a, B_C2)
    dstamp(a, 'g3x')
    def xld(ks):
        if ks % 8 == 0:
            a(f's_add_u32 s{sJ2}, s{sJ0}, {ks // 8}')
            a(f's_and_b32 s{sJ2}, s{sJ2}, 3')
            a(f's_lshl_b32 s{sJ2}, s{sJ2}, 13')
            a(f's_add_u32 s{sJ2}, s{sJ2}, s{sX0}')
        a(f's_add_u32 s{sT0}, s{sJ2}, {(ks % 8) * 1024}')
        a(f'buffer_load_dwordx4 {V(xr[ks % D],4)}, v{vL16}, {ws}, s{sT0} offen {LDF}')
        vm.add(('x', ks))
    for ks in range(D): xld(ks)
    a(f'v_and_b32 v{t0}, 31, v{l}')
    a(f'v_lshlrev_b32 v{t0}, 3, v{t0}')
    a(f'v_lshrrev_b32 v{t2}, 5, v{l}')
    a(f'v_lshl_add_u32 v{t0}, v{t2}, 17, v{t0}')
    a(f's_lshl_b32 s{T0}, s{sRB}, 10')
    a(f's_lshl_b32 s{T1}, s{sW}, 8')
    a(f's_add_u32 s{T0}, s{T0}, s{T1}')
    a(f's_add_u32 s{T0}, s{T0}, {hex(PS)}')
    for f in range(8):
        a(f'buffer_load_dwordx2 {V(ps+2*f,2)}, v{t0}, {ws}, s{T0} offen {LDF}'); vm.add('ps')
        a(f's_add_u32 s{T0}, s{T0}, 16384')
    def reads(ks, only=None):
        c, s = ks // CK, ks % CK; b = ks % 3
        for F in (range(3) if only is None else [only]):
            o = (c % NST) * STG + s * 3072 + F * 1024
            base = vTr
            if o + 256 > 65535: base, o = vTr2, o - 49152
            a(f'ds_read_b64_tr_b16 {V(wf[b][F],2)}, v{base} offset:{o}')
            a(f'ds_read_b64_tr_b16 {V(wf[b][F]+2,2)}, v{base} offset:{o+256}')
    def sync(c):
        if c == 0:
            a(f's_waitcnt vmcnt({vm.wait_for(("w", 2))})'); BAR(a)
        elif c == 1:
            BAR(a); wdma(3)
        elif c == 3:
            a(f's_waitcnt vmcnt({vm.wait_for(("w", 3))})'); BAR(a)
    sync(0)
    reads(0); reads(1)
    for ks in range(32):
        nx = ks + 2
        if nx < 32 and nx % CK == 0: sync(nx // CK)
        a(f's_waitcnt vmcnt({vm.wait_for(("x", ks))}) lgkmcnt({6 if ks + 1 < 32 else 0})')
        for F in range(3):
            a(f'{MF} {V(acc[F],16)}, {V(wf[ks%3][F],4)}, {V(xr[ks%D],4)}, ' + ('0' if ks == 0 else V(acc[F],16)))
            if nx < 32: reads(nx, F)
        le = a.newlabel('Lcs')
        for F in range(3):
            ln = a.newlabel('Lcn')
            a(f's_cmp_lg_u32 s{sW}, {F}')
            a(f's_cbranch_scc1 {ln}')
            a(f'{MF} {V(cp,16)}, {V(ones,4)}, {V(wf[ks%3][F],4)}, ' + ('0' if ks == 0 else V(cp,16)))
            if F < 2: a(f's_branch {le}')
            a.label(ln)
        a.label(le)
        if ks + D < 32: xld(ks + D)
        if ks == 12:
            for f in range(1, 8):
                a(f'v_add_f32 v{ps}, v{ps}, v{ps+2*f}')
                a(f'v_add_f32 v{ps+1}, v{ps+1}, v{ps+2*f+1}')
            a(f'v_mov_b32 v{ps+2}, v{ps}'); a(f'v_mov_b32 v{ps+3}, v{ps+1}')
            a('s_nop 1')
            a(f'v_permlane32_swap_b32 v{ps}, v{ps+2}')
            a(f'v_permlane32_swap_b32 v{ps+1}, v{ps+3}')
            a('s_nop 1')
            a(f'v_add_f32 v{ps}, v{ps}, v{ps+2}')
            a(f'v_add_f32 v{ps+1}, v{ps+1}, v{ps+3}')
            ln_scalars(a, ps, ps + 1, z, 512)
            a(f'v_mov_b32 v{rr}, v{z[3]}')
            a(f'v_mul_f32 v{mr}, v{z[1]}, v{z[3]}')
            a(f'v_sub_f32 v{mr}, 0, v{mr}')
    dstamp(a, 'g3loop')
    a(f'v_and_b32 v{t1}, 31, v{l}')
    a(f'v_lshlrev_b32 v{t1}, 2, v{t1}')
    a(f's_lshl_b32 s{T0}, s{sW}, 7')
    a(f's_add_u32 s{T0}, s{T0}, {CSL}')
    a(f'v_add_u32 v{t1}, s{T0}, v{t1}')
    a('s_nop 7')
    a(f'ds_write_b32 v{t1}, v{cp}')
    BAR(a)
    tmp = ps; cs = cp
    pk = [xr[0], xr[2]]; vC2 = z[0]
    a(f'v_mov_b32 v{vC2}, {hex(f32bits(GC2))}')
    a(f's_mov_b32 s{T2}, {hex(f32bits(GC1))}')
    a(f'v_lshrrev_b32 v{t1}, 5, v{l}')
    a(f'v_lshlrev_b32 v{t1}, 4, v{t1}')
    a(f'v_add_u32 v{t1}, {CSL}, v{t1}')
    a(f's_lshl_b32 s{T0}, s{sRB}, 2')
    a(f's_add_u32 s{T0}, s{T0}, s{sW}')
    a(f's_mul_i32 s{T0}, s{T0}, 86')
    a(f's_mul_i32 s{T1}, s{sCB}, 6')
    a(f's_add_u32 s{T0}, s{T0}, s{T1}')
    a(f's_lshl_b32 s{T0}, s{T0}, 10')
    a(f's_add_u32 s{T0}, s{T0}, {hex(H3F)}')
    lskip = a.newlabel('g3_skip')
    for F in range(3):
        if F == 1:
            a(f's_cmp_eq_u32 s{sCB}, 14')
            a(f's_cbranch_scc1 {lskip}')
        for q in range(4):
            a(f'ds_read_b128 {V(cs+4*q,4)}, v{t1} offset:{F*128 + q*32}')
        ac = acc[F]
        for i in range(16): a(f'v_mul_f32 v{ac+i}, v{ac+i}, v{rr}')
        a('s_waitcnt lgkmcnt(0)')
        for i in range(16): a(f'v_fma_f32 v{ac+i}, v{mr}, v{cs+i}, v{ac+i}')
        gelu_scalar(a, ac, 16, tmp, T2, vC2)
        a(f's_add_u32 s{T1}, s{T0}, {F*2048}')
        pack_swap_store(a, ac, pk[F % 2], vL16, T1)
    a.label(lskip)
    a(f's_lshl_b32 s{T1}, s{sRB}, 1')
    dstamp(a, 'g3epi')
    mb_signal(a, M_C3, 16, id_rows(a, T1, False))
    dstamp(a, 'g3sig')
    return va.hi

def g45_stage(a):
    va = RegAlloc(V0, 256); l = 1; vm = VM()
    map_64x64(a)
    srd(a, sWSRD, pW4, 1376 * 1024)
    srd(a, sW2SRD, pWO, 512 * 1024)
    srd(a, sAUX, pX, 2048 * 1024)
    g = WSK(a, va, sW, l, STMP, WD, vm, lds_base=B_BASE, ring_bytes=WRING)
    t0, t1, t2 = g.t
    wsk_woffs(a, g)
    wsk_xoffs(a, g, H3F, 86 * 1024)
    sO0, sO1 = 55, 56
    wsk_xoffs(a, g, OF, 32768, sO0, sO1)
    def cond(lab):
        a(f's_cmp_ge_u32 s{sW}, 2')
        a(f's_cbranch_scc1 {lab}')
    a(f's_cmp_lt_u32 s{sW}, 2')
    a(f's_cselect_b32 s{sNN}, 22, 21')
    rot8(a, sJ0, sJ1, 5)
    rot8(a, sJ2, sJ3)
    g.add_segment(22, sWS, [sX0, sX1], g.vL16, LDF, sWSRD, [sW0, sW1], sJ0, sJ1, [sNN], last_cond=cond)
    g.add_segment(8, sWS, [sO0, sO1], g.vL16, LDF, sW2SRD, [sW0, sW1], sJ2, sJ3, 8)
    vSt = va(); x1r = va(8, 4); xr = va(8, 4)
    request(a, B_C3)
    a(f'v_and_b32 v{t2}, 31, v{l}')
    a(f'v_lshlrev_b32 v{t2}, 10, v{t2}')
    a(f'v_lshrrev_b32 v{t0}, 5, v{l}')
    a(f'v_lshl_add_u32 v{t2}, v{t0}, 3, v{t2}')
    x_rowmajor_off(a, g, T0)
    for q in range(4):
        a(f'buffer_load_dwordx2 {V(xr+2*q,2)}, v{t2}, s[{sAUX}:{sAUX+3}], s{T0} offen offset:{q*16}'); vm.add('p')
    lane8_off(a, vSt, l, t0)
    frag_tile_off(a, T0, g, X1F, 32)
    for q in range(4):
        a(f'buffer_load_dwordx2 {V(x1r+2*q,2)}, v{vSt}, {ws}, s{T0} offen offset:{q*512} {LDF}'); vm.add('p')
    for i in range(WD): g.issue_w(i)
    g.nw = WD
    g.zero_acc(skip00=True)
    ac = g.acc[0][0]
    a(f's_waitcnt vmcnt({vm.wait_for("p")})')
    for j in range(8):
        a(f'v_lshlrev_b32 v{ac+2*j}, 16, v{xr+j}')
        a(f'v_and_b32 v{ac+2*j+1}, 0xffff0000, v{xr+j}')
        a(f'v_lshlrev_b32 v{t0}, 16, v{x1r+j}')
        a(f'v_and_b32 v{t1}, 0xffff0000, v{x1r+j}')
        a(f'v_add_f32 v{ac+2*j}, v{ac+2*j}, v{t0}')
        a(f'v_add_f32 v{ac+2*j+1}, v{ac+2*j+1}, v{t1}')
    dstamp(a, 'g4pre')
    wait_status(a, B_C3)
    dstamp(a, 'g4x')
    g.run(0, 22, xlimit=22)
    cstamp(a); dstamp(a, 'g4loop')
    wait_status(a, B_CA)
    dstamp(a, 'g5x')
    g.run(22, 30)
    dstamp(a, 'g5loop')
    ac = g.reduce()
    srd(a, sAUX, pOUT, 2048 * 1024)
    pk = g.acc[1][0]; vo = vSt
    a(f'v_and_b32 v{vo}, 31, v{l}')
    a(f'v_lshlrev_b32 v{vo}, 10, v{vo}')
    a(f'v_lshrrev_b32 v{t0}, 5, v{l}')
    a(f'v_lshl_add_u32 v{vo}, v{t0}, 4, v{vo}')
    x_rowmajor_off(a, g, T0)
    pack_swap(a, ac, pk)
    for pr in range(2):
        a(f'buffer_store_dwordx4 {V(pk+4*pr,4)}, v{vo}, s[{sAUX}:{sAUX+3}], s{T0} offen offset:{pr*32}')
    return va.hi

VT = 1056
ATT_BUF = 8192 + 8 * VT
NBUF = 4
def R(b, n): return V(b, n)

def att_head(a, sHead):
    a(f's_and_b32 s{T0}, s2, 7')
    a(f's_lshl_b32 s{sHead}, s{T0}, 2')
    a(f's_lshr_b32 s{T0}, s2, 3')
    a(f's_and_b32 s{T0}, s{T0}, 3')
    a(f's_add_u32 s{sHead}, s{sHead}, s{T0}')

def kv_loader(a):
    l = 1; vL16, vF, vV = 4, 6, 7
    sHead, sKoff, sVoff = sRB, sX0, sX1
    att_head(a, sHead)
    a(f'v_lshlrev_b32 v{vL16}, 4, v{l}')
    a(f's_lshl_b32 s{sKoff}, s{sHead}, 10')
    a(f's_add_u32 s{sVoff}, s{sKoff}, {hex(VF)}')
    a(f's_add_u32 s{sKoff}, s{sKoff}, {hex(KF)}')
    sLd, sCh = sW0, sW1
    a(f's_mov_b32 s{sLd}, 0')
    def lchunk(c):
        lp = a.newlabel('Lpk'); ld = a.newlabel('Lpkd')
        a.label(lp)
        a(f'ds_read_b32 v{vV}, v{vF} offset:{F_KVM}')
        a('s_waitcnt lgkmcnt(0)')
        a(f'v_readfirstlane_b32 s{T0}, v{vV}')
        a(f's_lshr_b32 s{T1}, s{T0}, 1')
        a(f's_and_b32 s{T0}, s{T0}, s{T1}')
        a(f's_and_b32 s{T0}, s{T0}, 0x5555')
        a(f's_andn2_b32 s{T0}, s{T0}, s{sLd}')
        a(f's_cbranch_scc1 {ld}')
        a('s_sleep 1')
        spin_guard(a)
        a(f's_branch {lp}')
        a.label(ld)
        a(f's_ff1_i32_b32 s{sCh}, s{T0}')
        a(f's_bitset1_b32 s{sLd}, s{sCh}')
        a(f's_lshl_b32 s{sCh}, s{sCh}, 17')
        a(f's_add_u32 s{T1}, s{sKoff}, s{sCh}')
        a(f's_add_u32 s{T2}, s{sVoff}, s{sCh}')
        b = (c % NBUF) * ATT_BUF
        for j in range(8):
            a(f's_mov_b32 m0, {b + j*1024}')
            a(f's_add_u32 s{T0}, s{T1}, {j*32768}')
            a(f'buffer_load_dwordx4 v{vL16}, {ws}, s{T0} offen {LDF} lds')
            a(f's_mov_b32 m0, {b + 8192 + j*VT}')
            a(f's_add_u32 s{T0}, s{T2}, {j*32768}')
            a(f'buffer_load_dwordx4 v{vL16}, {ws}, s{T0} offen {LDF} lds')
    def publish(c):
        a(f'v_mov_b32 v{vV}, {c + 1}')
        a(f'ds_write_b32 v{vF}, v{vV} offset:{F_KRDY}')
    a(f'v_mov_b32 v{vF}, {FL}')
    request(a, B_QKV)
    lchunk(0)
    a('s_waitcnt vmcnt(0)'); publish(0)
    lchunk(1)
    a('s_waitcnt vmcnt(0)'); publish(1)
    lchunk(2)
    lchunk(3) if False else None
    a('s_waitcnt vmcnt(0)'); publish(2)
    lchunk(3)
    if TOUCH:
        a('s_waitcnt vmcnt(0)'); publish(3)
        a('s_setprio 1')
        l2_touch(a, pW4, 1376 * 1024, 12, 13)
        l2_touch(a, pWO, 512 * 1024, 12, 13)
        a('s_setprio 3')
    for c in range(4, 8):
        wait_min4(a, F_KDONE, c - 3, 8, sleep=8)
        lchunk(c)
        a('s_waitcnt vmcnt(16)'); publish(c - 1)
    a('s_waitcnt vmcnt(0)'); publish(7)
    a('s_waitcnt lgkmcnt(0)')
    a('s_endpgm')

def att_compute(a):
    va = RegAlloc(V0, 256); l = 1
    sHead, sTT, sKoff, sVoff, sC, sBn, sFb = sRB, sCB, sX0, sX1, sW0, sW1, sRow0
    sEx = 50
    att_head(a, sHead)
    a(f's_lshr_b32 s{sTT}, s2, 5')
    a(f's_lshl_b32 s{sTT}, s{sTT}, 3')
    a(f's_lshl_b32 s{T0}, s{sW}, 1')
    a(f's_add_u32 s{sTT}, s{sTT}, s{T0}')
    a(f's_mov_b32 s{sEx}, 0x0000ffff'); a(f's_mov_b32 s{sEx+1}, 0x0000ffff')
    vL16 = va(); vVo = va(); t0 = va(); t1 = va()
    vK = [va(), va()]; vV0 = [va(), va()]; vV1 = [va(), va()]
    vV0b = va(); vV1b = va(); vF = va(); vDn = va(); vR = va(); vP = va()
    SA, SB_, NA, NB, OA, OB = [va(16, 4) for _ in range(6)]
    P = va(8, 4); QA = va(4); QB = va(4)
    K = [va(4), va(4)]; Vv = [va(8, 4), va(8, 4)]
    a(f'v_lshlrev_b32 v{vL16}, 4, v{l}')
    a(f's_mov_b32 s{sBn}, {ATT_BUF}')
    a(f'v_and_b32 v{vVo}, 15, v{l}')
    a(f'v_lshlrev_b32 v{vVo}, 4, v{vVo}')
    a(f'v_lshrrev_b32 v{t0}, 5, v{l}')
    a(f'v_lshl_add_u32 v{vVo}, v{t0}, 8, v{vVo}')
    a(f'v_and_b32 v{t0}, 31, v{l}')
    a(f'v_cmp_eq_u32 vcc, 16, v{t0}')
    a(f'v_mov_b32 v{t1}, {8192+1040}')
    a(f'v_mov_b32 v{vV0b}, {8192+1024}')
    a(f'v_cndmask_b32 v{t1}, v{t1}, v{vV0b}, vcc')
    a(f'v_cmp_gt_u32 vcc, 16, v{t0}')
    a(f'v_add_u32 v{vV0b}, 8192, v{vVo}')
    a(f'v_add_u32 v{vV1b}, {8192+512}, v{vVo}')
    a(f'v_cndmask_b32 v{vV0b}, v{t1}, v{vV0b}, vcc')
    a(f'v_cndmask_b32 v{vV1b}, v{t1}, v{vV1b}, vcc')
    a(f'v_and_b32 v{t0}, 1, v{l}')
    a(f'v_cmp_eq_u32 vcc, 0, v{t0}')
    a(f'v_mov_b32 v{t1}, 0x3f803f80')
    a(f'v_lshlrev_b32 v{t0}, 4, v{t0}')
    for i in range(4): a(f'v_cndmask_b32 v{P+i}, 0, v{t1}, vcc')
    a(f'v_lshrrev_b32 v{t1}, 4, v{l}')
    a(f's_mov_b32 s{T0}, {ATT_BUF}')
    a(f'v_mul_lo_u32 v{t1}, v{t1}, s{T0}')
    a(f'v_add_u32 v{t0}, v{t0}, v{t1}')
    a(f'v_bfe_u32 v{t1}, v{l}, 1, 3')
    a(f's_mov_b32 s{T0}, {VT}')
    a(f'v_mul_lo_u32 v{t1}, v{t1}, s{T0}')
    a(f'v_add_u32 v{t0}, v{t0}, v{t1}')
    a(f'ds_write_b128 v{t0}, {R(P,4)} offset:{8192+1024}')
    for i in range(16):
        a(f'v_mov_b32 v{OA+i}, 0'); a(f'v_mov_b32 v{OB+i}, 0')
    for i in range(4):
        a(f'v_mov_b32 v{P+4+i}, 0'); a(f'v_mov_b32 v{Vv[1]+4+i}, 0')
    a(f'v_mov_b32 v{vK[0]}, v{vL16}'); a(f'v_mov_b32 v{vV0[0]}, v{vV0b}'); a(f'v_mov_b32 v{vV1[0]}, v{vV1b}')
    a(f'v_add_u32 v{vK[1]}, {ATT_BUF}, v{vL16}')
    a(f'v_add_u32 v{vV0[1]}, {ATT_BUF}, v{vV0b}')
    a(f'v_add_u32 v{vV1[1]}, {ATT_BUF}, v{vV1b}')
    a(f's_mov_b32 s{sFb}, 0')
    a(f'v_mov_b32 v{vF}, {FL}')
    a(f's_lshl_b32 s{T0}, s{sW}, 2')
    a(f's_add_u32 s{T0}, s{T0}, {FL + F_KDONE}')
    a(f'v_mov_b32 v{vDn}, s{T0}')
    a(f'v_mov_b32 v{vP}, 0')
    request(a, B_QKV)
    lpq = a.newlabel('Lqm'); ldq = a.newlabel('Lqmd')
    a(f's_lshr_b32 s{T1}, s{sTT}, 2')
    a.label(lpq)
    a(f'ds_read_b32 v{vR}, v{vF} offset:{F_QM}')
    a('s_waitcnt lgkmcnt(0)')
    a(f'v_readfirstlane_b32 s{T0}, v{vR}')
    a(f's_bitcmp1_b32 s{T0}, s{T1}')
    a(f's_cbranch_scc1 {ldq}')
    a('s_sleep 1')
    spin_guard(a)
    a(f's_branch {lpq}')
    a.label(ldq)
    dstamp(a, 'aflag')
    a(f's_lshl_b32 s{T0}, s{sTT}, 5')
    a(f's_add_u32 s{T0}, s{T0}, s{sHead}')
    a(f's_lshl_b32 s{T0}, s{T0}, 10')
    a(f'buffer_load_dwordx4 {R(QA,4)}, v{vL16}, {ws}, s{T0} offen {LDF}')
    a(f's_add_u32 s{T0}, s{T0}, 32768')
    a(f'buffer_load_dwordx4 {R(QB,4)}, v{vL16}, {ws}, s{T0} offen {LDF}')
    def spin_ready(val):
        lp = a.newlabel('at_sp'); ld = a.newlabel('at_ok')
        a.label(lp)
        a(f'ds_read_b32 v{vR}, v{vF} offset:{F_KRDY}')
        a('s_waitcnt lgkmcnt(0)')
        a(f'v_readfirstlane_b32 s{T0}, v{vR}')
        a(f's_cmp_gt_u32 s{T0}, {val}')
        a(f's_cbranch_scc1 {ld}')
        a('s_sleep 1')
        spin_guard(a)
        a(f's_branch {lp}')
        a.label(ld)
    spin_ready('0')
    a('s_waitcnt vmcnt(0)')
    cstamp(a); dstamp(a, 'astart')
    a(f'ds_read_b128 {R(K[0],4)}, v{vK[0]}')
    a(f'ds_read_b128 {R(K[1],4)}, v{vK[0]} offset:1024')
    a(f'ds_read_b128 {R(Vv[0],4)}, v{vV0[0]}')
    a(f'ds_read_b128 {R(Vv[0]+4,4)}, v{vV1[0]}')
    a('s_waitcnt lgkmcnt(3)')
    a(f'{MF} {R(SA,16)}, {R(K[0],4)}, {R(QA,4)}, 0')
    a(f'{MF} {R(SB_,16)}, {R(K[0],4)}, {R(QB,4)}, 0')
    a('s_nop 10')
    def rowmax_to_neg(S_, N_):
        a(f'v_max3_f32 v{t0}, v{S_}, v{S_+1}, v{S_+2}')
        for i in range(3, 15, 2): a(f'v_max3_f32 v{t0}, v{t0}, v{S_+i}, v{S_+i+1}')
        a(f'v_max_f32 v{t0}, v{t0}, v{S_+15}')
        a(f'v_mov_b32 v{t1}, v{t0}')
        a('s_nop 1')
        a(f'v_permlane32_swap_b32 v{t0}, v{t1}')
        a('s_nop 1')
        a(f'v_max_f32 v{t0}, v{t0}, v{t1}')
        for i in range(16): a(f'v_sub_f32 v{N_+i}, 0, v{t0}')
    rowmax_to_neg(SA, NA)
    rowmax_to_neg(SB_, NB)
    a('s_nop 1')
    a(f'{MF} {R(SA,16)}, {R(K[0],4)}, {R(QA,4)}, {R(NA,16)}')
    a(f's_mov_b32 s{sC}, 0')
    a('s_waitcnt lgkmcnt(0)')
    a('s_nop 8')
    a('s_setprio 0')
    a.label('att_loop')
    for t in range(8):
        Kc, Kn = K[t % 2], K[(t + 1) % 2]
        Vc, Vn = Vv[t % 2], Vv[(t + 1) % 2]
        for sub in range(2):
            cur = [SA, SB_][sub]
            if sub == 0:
                qk = f'{MF} {R(SB_,16)}, {R(Kc,4)}, {R(QB,4)}, {R(NB,16)}'
                pv1 = f'{MF} {R(OB,16)}, {R(Vn+4,4)}, {R(P+4,4)}, {R(OB,16)}'
            else:
                qk = f'{MF} {R(SA,16)}, {R(Kn,4)}, {R(QA,4)}, {R(NA,16)}'
                pv1 = f'{MF} {R(OA,16)}, {R(Vc+4,4)}, {R(P+4,4)}, {R(OA,16)}'
            Oc = [OA, OB][sub]
            pv0 = f'{MF} {R(Oc,16)}, {R(Vc,4)}, {R(P,4)}, {R(Oc,16)}'
            ex = [f'v_exp_f32 v{cur+i}, v{cur+i}' for i in range(16)]
            cv = [f'v_cvt_pk_bf16_f32 v{P+i}, v{cur+2*i}, v{cur+2*i+1}' for i in range(8)]
            a(qk)
            for s in ex[0:6]: a(s)
            a(pv1)
            if sub == 0:
                a('s_waitcnt lgkmcnt(0)')
                if t == 6:
                    l1 = a.newlabel('att_rdy')
                    a(f'v_readfirstlane_b32 s{T0}, v{vR}')
                    a(f's_min_u32 s{T1}, s{sC}, 6')
                    a(f's_add_u32 s{T1}, s{T1}, 1')
                    a(f's_cmp_gt_u32 s{T0}, s{T1}')
                    a(f's_cbranch_scc1 {l1}')
                    spin_ready(f's{T1}')
                    a.label(l1)
                if t == 7:
                    a(f'v_add_u32 v{vP}, 1, v{vP}')
                    a(f'ds_write_b32 v{vDn}, v{vP}')
                if t == 5:
                    a(f'ds_read_b32 v{vR}, v{vF} offset:{F_KRDY}')
                kb = vK[0] if t + 2 < 8 else vK[1]
                b_ = 0 if t + 1 < 8 else 1
                a(f'ds_read_b128 {R(Kc,4)}, v{kb} offset:{((t+2)%8)*1024}')
                a(f'ds_read_b128 {R(Vn,4)}, v{vV0[b_]} offset:{((t+1)%8)*VT}')
                a(f'ds_read_b128 {R(Vn+4,4)}, v{vV1[b_]} offset:{((t+1)%8)*VT}')
            for s in ex[6:8] + cv[0:4] + ex[8:10]: a(s)
            a(pv0)
            for s in ex[10:16] + cv[4:8]: a(s)
    a(f'v_mov_b32 v{vK[0]}, v{vK[1]}'); a(f'v_mov_b32 v{vV0[0]}, v{vV0[1]}'); a(f'v_mov_b32 v{vV1[0]}, v{vV1[1]}')
    a(f's_add_u32 s{sBn}, s{sBn}, {ATT_BUF}')
    a(f's_cmp_eq_u32 s{sBn}, {NBUF*ATT_BUF}')
    a(f's_cselect_b32 s{sBn}, 0, s{sBn}')
    a(f'v_add_u32 v{vK[1]}, s{sBn}, v{vL16}')
    a(f'v_add_u32 v{vV0[1]}, s{sBn}, v{vV0b}')
    a(f'v_add_u32 v{vV1[1]}, s{sBn}, v{vV1b}')
    a(f's_add_u32 s{sC}, s{sC}, 1')
    a(f's_cmp_lt_u32 s{sC}, 8')
    a('s_cbranch_scc1 att_loop')
    a(f'{MF} {R(OB,16)}, {R(Vv[1]+4,4)}, {R(P+4,4)}, {R(OB,16)}')
    a('s_setprio 3')
    cstamp(a)
    a('s_waitcnt lgkmcnt(0)')
    a.label('att_fin')
    a('s_nop 12')
    LA, LB = SA, SA + 2
    for L_, O_ in ((LA, OA), (LB, OB)):
        a(f'v_mov_b32 v{L_}, v{O_+8}'); a(f'v_mov_b32 v{L_+1}, v{O_+8}')
    a('s_nop 1')
    a(f'v_permlane32_swap_b32 v{LA}, v{LA+1}')
    a(f'v_permlane32_swap_b32 v{LB}, v{LB+1}')
    lok = a.newlabel('att_ok')
    a(f's_cmp_lg_u32 s{sFb}, 0')
    a(f's_cbranch_scc1 {lok}')
    a(f's_mov_b32 s{T0}, {hex(f32bits(2.0**-60))}')
    a(f's_mov_b32 s{T1}, {hex(f32bits(2.0**60))}')
    a(f'v_cmp_nle_f32 vcc, s{T0}, v{LA}')
    a(f'v_cmp_nge_f32 s[54:55], s{T1}, v{LA}')
    a('s_or_b64 s[52:53], vcc, s[54:55]')
    a(f'v_cmp_nle_f32 vcc, s{T0}, v{LB}')
    a(f'v_cmp_nge_f32 s[54:55], s{T1}, v{LB}')
    a('s_or_b64 vcc, vcc, s[54:55]')
    a('s_or_b64 vcc, vcc, s[52:53]')
    a('s_cbranch_scc1 att_fallback')
    a.label(lok)
    a(f'v_rcp_f32 v{LA}, v{LA}')
    a(f'v_rcp_f32 v{LB}, v{LB}')
    a(f's_lshl_b32 s{T0}, s{sTT}, 5')
    a(f's_add_u32 s{T0}, s{T0}, s{sHead}')
    a(f's_lshl_b32 s{T0}, s{T0}, 10')
    a(f's_add_u32 s{T0}, s{T0}, {hex(OF)}')
    for n, (L_, O_) in enumerate(((LA, OA), (LB, OB))):
        for i in range(8): a(f'v_mul_f32 v{O_+i}, v{O_+i}, v{L_}')
        for i in range(4): a(f'v_cvt_pk_bf16_f32 v{P+4*n+i}, v{O_+2*i}, v{O_+2*i+1}')
        if n: a(f's_add_u32 s{T0}, s{T0}, 32768')
        a('s_nop 1')
        b = P + 4 * n
        a(f'v_permlane32_swap_b32 v{b}, v{b+2}')
        a(f'v_permlane32_swap_b32 v{b+1}, v{b+3}')
        a('s_nop 1')
        a(f'buffer_store_dwordx4 {R(b,4)}, v{vL16}, {ws}, s{T0} offen sc1')
    a(f's_lshr_b32 s{T1}, s{sTT}, 1')
    mb_signal(a, M_CA, 8, id_rows(a, T1, False), group=False)
    stamp_flush(a, 5, 1)
    a('s_endpgm')
    a.label('att_fallback')
    a(f's_mov_b32 s{sFb}, 1')
    a(f's_lshl_b32 s{sKoff}, s{sHead}, 10')
    a(f's_add_u32 s{sVoff}, s{sKoff}, {hex(VF)}')
    a(f's_add_u32 s{sKoff}, s{sKoff}, {hex(KF)}')
    for i in range(16):
        a(f'v_mov_b32 v{NA+i}, 0xff800000'); a(f'v_mov_b32 v{NB+i}, 0xff800000')
    a(f's_mov_b32 s{sC}, 0')
    a(f's_mov_b32 s{T0}, s{sKoff}')
    a.label('att_fb1')
    a(f'buffer_load_dwordx4 {R(K[0],4)}, v{vL16}, {ws}, s{T0} offen {LDF}')
    a('s_waitcnt vmcnt(0)')
    a(f'{MF} {R(SA,16)}, {R(K[0],4)}, {R(QA,4)}, 0')
    a(f'{MF} {R(SB_,16)}, {R(K[0],4)}, {R(QB,4)}, 0')
    a('s_nop 12')
    for i in range(16): a(f'v_max_f32 v{NA+i}, v{NA+i}, v{SA+i}')
    for i in range(16): a(f'v_max_f32 v{NB+i}, v{NB+i}, v{SB_+i}')
    a(f's_add_u32 s{T0}, s{T0}, 32768')
    a(f's_add_u32 s{sC}, s{sC}, 1')
    a(f's_cmp_lt_u32 s{sC}, 64')
    a('s_cbranch_scc1 att_fb1')
    for i in range(16):
        a(f'v_mov_b32 v{SA+i}, v{NA+i}'); a(f'v_mov_b32 v{SB_+i}, v{NB+i}')
    rowmax_to_neg(SA, NA)
    rowmax_to_neg(SB_, NB)
    for i in range(16):
        a(f'v_mov_b32 v{OA+i}, 0'); a(f'v_mov_b32 v{OB+i}, 0')
    a(f'v_and_b32 v{t0}, 31, v{l}')
    a(f'v_cmp_eq_u32 vcc, 16, v{t0}')
    a(f'v_mov_b32 v{t1}, 0x3f803f80')
    a('s_nop 0')
    for i in range(8): a(f'v_cndmask_b32 v{Vv[0]+i}, 0, v{t1}, vcc')
    a(f's_mov_b32 s{sC}, 0')
    a.label('att_fb2')
    a(f'buffer_load_dwordx4 {R(K[0],4)}, v{vL16}, {ws}, s{sKoff} offen {LDF}')
    a(f's_mov_b64 exec, s[{sEx}:{sEx+1}]')
    a(f'buffer_load_dwordx4 {R(Vv[0],4)}, v{vVo}, {ws}, s{sVoff} offen {LDF}')
    a(f'buffer_load_dwordx4 {R(Vv[0]+4,4)}, v{vVo}, {ws}, s{sVoff} offen offset:512 {LDF}')
    a('s_mov_b64 exec, -1')
    a('s_waitcnt vmcnt(0)')
    a(f'{MF} {R(SA,16)}, {R(K[0],4)}, {R(QA,4)}, {R(NA,16)}')
    a(f'{MF} {R(SB_,16)}, {R(K[0],4)}, {R(QB,4)}, {R(NB,16)}')
    a('s_nop 12')
    for S_, O_ in ((SA, OA), (SB_, OB)):
        for i in range(16): a(f'v_exp_f32 v{S_+i}, v{S_+i}')
        a('s_nop 0')
        for i in range(8): a(f'v_cvt_pk_bf16_f32 v{P+i}, v{S_+2*i}, v{S_+2*i+1}')
        a('s_nop 1')
        a(f'{MF} {R(O_,16)}, {R(Vv[0],4)}, {R(P,4)}, {R(O_,16)}')
        a(f'{MF} {R(O_,16)}, {R(Vv[0]+4,4)}, {R(P+4,4)}, {R(O_,16)}')
    a(f's_add_u32 s{sKoff}, s{sKoff}, 32768')
    a(f's_add_u32 s{sVoff}, s{sVoff}, 32768')
    a(f's_add_u32 s{sC}, s{sC}, 1')
    a(f's_cmp_lt_u32 s{sC}, 64')
    a('s_nop 7'); a('s_nop 7')
    a('s_cbranch_scc1 att_fb2')
    a('s_branch att_fin')
    return va.hi

def full_kernel(a):
    name = NAME + '_kernel'
    kernel_header(a, name)
    a('s_cmp_ge_u32 s2, 256')
    a('s_cbranch_scc1 k_end')
    stamp(a, 0)
    if os.environ.get('DBGT'):
        a('s_memtime s[64:65]'); a('s_memrealtime s[66:67]')
    a('s_mov_b32 s92, 0')
    a('s_load_dwordx4 s[24:27], s[0:1], 0')
    a('s_load_dwordx2 s[28:29], s[0:1], 16')
    a('s_load_dwordx2 s[30:31], s[0:1], 32')
    a('s_load_dwordx2 s[32:33], s[0:1], 40')
    a('s_load_dwordx8 s[84:91], s[0:1], 48')
    a('s_load_dwordx2 s[34:35], s[0:1], 80')
    SB.on = True; SB.base = FL + 64; SB.n = 0; SB.vA = vSA; SB.vB = vSB; SB.sT = T3; SB.maxn = 48
    a('v_cmp_gt_u32 vcc, 64, v0')
    a('s_and_saveexec_b64 s[36:37], vcc')
    lz = a.newlabel('Lz')
    a(f's_cbranch_execz {lz}')
    a('v_lshlrev_b32 v1, 2, v0')
    a(f'v_add_u32 v1, {FL}, v1')
    a('v_mov_b32 v2, 0')
    a('ds_write_b32 v1, v2')
    a.label(lz)
    a('s_mov_b64 exec, -1')
    sWv = 58
    wave_lane(a, sWv, 1)
    a('s_waitcnt lgkmcnt(0)')
    srd(a, sWS, pWS, WS_BYTES)
    a('s_setprio 3')
    va_ = RegAlloc(V0, 256)
    lnb = a.newlabel('Lnl')
    a(f's_sub_u32 s{sW}, s{sWv}, 5')
    a(f's_cmp_ge_u32 s{sW}, 4')
    a(f's_cbranch_scc1 {lnb}')
    ln = ln_issue(a, va_)
    a.label(lnb)
    a('s_barrier')
    a(f's_cmp_eq_u32 s{sWv}, 9')
    a('s_cbranch_scc1 k_sentinel')
    a(f's_cmp_eq_u32 s{sWv}, 4')
    a('s_cbranch_scc1 k_loader')
    a(f's_cmp_ge_u32 s{sWv}, 5')
    a('s_cbranch_scc1 k_chain')
    a(f's_mov_b32 s{sW}, s{sWv}')
    CS.n = 1
    hi = g1_stage(a)
    hi = max(hi, att_compute(a))
    a.label('k_chain')
    a(f's_sub_u32 s{sW}, s{sWv}, 5')
    a('v_subrev_u32 v0, 320, v0')
    a('s_waitcnt vmcnt(0)')
    ln_stats(a, ln, va_(40, 4))
    srd(a, sDBG, pDBG, 256)
    a('s_barrier')
    a('s_waitcnt vmcnt(0)')
    a('s_barrier')
    lsg = a.newlabel('Lls')
    a(f's_cmp_lg_u32 s{sW}, 0')
    a(f's_cbranch_scc1 {lsg}')
    a(f's_and_b32 s{T0}, s2, 0xf0')
    a(f'v_mov_b32 v{vSA}, 0'); a(f'v_mov_b32 v{vSB}, 1')
    a('s_mov_b64 exec, 1')
    a(f'buffer_atomic_add v{vSB}, v{vSA}, s[{sDBG}:{sDBG+3}], s{T0} offen sc1')
    a('s_mov_b64 exec, -1')
    a.label(lsg)
    a(f's_setprio {PRIO}')
    CS.n = 1
    hi = max(hi, g2_stage(a))
    cstamp(a)
    hi = max(hi, g3_stage(a, 'k_g4'))
    a.label('k_g4')
    cstamp(a)
    hi = max(hi, g45_stage(a))
    stamp_flush(a, 5, 2)
    if os.environ.get('DBGT'):
        lq = a.newlabel('Ldbg')
        a('s_cmp_lg_u32 s2, 8')
        a(f's_cbranch_scc1 {lq}')
        a('s_waitcnt vmcnt(0)')
        a('s_memtime s[68:69]'); a('s_memrealtime s[70:71]')
        a('s_waitcnt lgkmcnt(0)')
        a('s_sub_u32 s68, s68, s64'); a('s_sub_u32 s70, s70, s66')
        srd(a, sDBG, pDBG, 256)
        a('v_mov_b32 v4, s68'); a('v_mov_b32 v5, s70'); a('v_mov_b32 v6, 4')
        a('s_mov_b64 exec, 1')
        a(f'buffer_store_dwordx2 v[4:5], v6, s[{sDBG}:{sDBG+3}], 0 offen')
        a.label(lq)
    a('s_endpgm')
    a.label('k_loader')
    CPF = int(os.environ.get('CPF', '0'))
    if CPF:
        a('s_getpc_b64 s[52:53]')
        a.label('k_pc')
        a(f's_sub_u32 s52, s52, k_pc-{NAME}_kernel')
        a('s_subb_u32 s53, s53, 0')
        a(f'v_lshlrev_b32 v4, 7, v1')
        a(f's_mov_b32 s{T1}, k_end-{NAME}_kernel')
        if CPF == 1:
            a(f's_lshr_b32 s{T0}, s2, 3')
            a(f's_and_b32 s{T0}, s{T0}, 7')
            a(f's_lshl_b32 s{T0}, s{T0}, 13')
            a(f'v_add_u32 v4, s{T0}, v4')
            a(f'v_min_u32 v4, s{T1}, v4')
            a(f'global_load_dword v10, v4, s[52:53]')
        else:
            lc = a.newlabel('Lcp')
            a('s_cmp_ge_u32 s2, 16')
            a(f's_cbranch_scc1 {lc}')
            for k in range(8):
                a(f'v_min_u32 v5, s{T1}, v4')
                a(f'global_load_dword v10, v5, s[52:53]')
                a(f'v_add_u32 v4, 8192, v4')
            a.label(lc)
    for k in range(10): a('s_barrier')
    kv_loader(a)
    a.label('k_sentinel')
    sentinel(a)
    a.label('k_end')
    a('s_endpgm')
    SB.on = False
    return name, hi, LDS_TOTAL

if __name__ == '__main__':
    build([(full_kernel, 256, 640)], sys.argv[1])
```

```python
import sys
from core2 import *

XNF  = 0x1200000
XNNF = 0x1400000
CL, CQ, C1, C2, C3, CA, CC = [FLG + i * 128 for i in (0, 16, 32, 64, 96, 112, 144)]
NCNT = 192

FL = 163584
F_STATUS, F_WRDY, F_KRDY, F_REQ, F_WDONE, F_KDONE = 0, 4, 8, 12, 16, 32
B_BASE = 98304
G3_BASE = 81920
LDS_TOTAL = 163840
ZOK = 1 << 31
B_QKV, B_C1, B_C2, B_C3, B_CA, B_XA, B_XB = 1, 2, 4, 8, 16, 0x100, 0x200
ALLB = 0x1f
M_QKV, M_C1, M_C2, M_C3, M_CA = 0, 4, 8, 12, 16
F_MZ = 48
F_QM, F_KVM = 52, 56

ws = f's[{sWS}:{sWS+3}]'
PRIO = int(os.environ.get('PRIO', '2'))
WD = 7; WRING = 14336
sW, sRB, sCB, sRow0 = 36, 37, 38, 39
sX0, sX1, sW0, sW1 = 40, 41, 42, 47
T0, T1, T2, T3 = 43, 44, 45, 46
STMP = 48
sW2SRD = 20
sJ0, sJ1, sJ2, sJ3, sNN = 60, 61, 62, 63, 57
pX, pQKV, pWO, pW1, pW2, pW3, pW4, pOUT, pDBG, pWS = 24, 26, 28, 30, 32, 84, 86, 88, 90, 34
vSA, vSB = 2, 3
V0 = 4

LNST = os.environ.get('LNST', '0') == '1'
TOUCH = os.environ.get('TOUCH', '1') == '1'
LDF = os.environ.get('LDF', '')
class CS:
    n = 1
DST = [x for x in os.environ.get('DST', '').split(',') if x]
def cstamp(a):
    if DST: return
    if CS.n <= 4: stamp(a, CS.n)
    CS.n += 1
def dstamp(a, name):
    if name in DST: stamp(a, DST.index(name) + 1)

def request(a, mask):
    a(f'v_mov_b32 v{vSA}, {FL}')
    a(f'v_mov_b32 v{vSB}, {hex(mask)}')
    a('s_mov_b64 exec, 1')
    a(f'ds_or_b32 v{vSA}, v{vSB} offset:{F_REQ}')
    a('s_mov_b64 exec, -1')

def wait_status(a, mask, sleep=int(os.environ.get('WSL', '1'))):
    lp = a.newlabel('Lws'); ld = a.newlabel('Lwd')
    if mask != ZOK: request(a, mask)
    else: a(f'v_mov_b32 v{vSA}, {FL}')
    a.label(lp)
    a(f'ds_read_b32 v{vSB}, v{vSA} offset:{F_STATUS}')
    a('s_waitcnt lgkmcnt(0)')
    a(f'v_readfirstlane_b32 s{T3}, v{vSB}')
    a(f's_and_b32 s{T3}, s{T3}, {hex(mask)}')
    a(f's_cmp_eq_u32 s{T3}, {hex(mask)}')
    a(f's_cbranch_scc1 {ld}')
    a(f's_sleep {sleep}')
    spin_guard(a)
    a(f's_branch {lp}')
    a.label(ld)

def wait_lds_ge(a, off, val, sleep=1):
    lp = a.newlabel('Lwl'); ld = a.newlabel('Lwld')
    a(f'v_mov_b32 v{vSA}, {FL}')
    a.label(lp)
    a(f'ds_read_b32 v{vSB}, v{vSA} offset:{off}')
    a('s_waitcnt lgkmcnt(0)')
    a(f'v_readfirstlane_b32 s{T3}, v{vSB}')
    a(f's_cmp_ge_u32 s{T3}, {val}')
    a(f's_cbranch_scc1 {ld}')
    a(f's_sleep {sleep}')
    spin_guard(a)
    a(f's_branch {lp}')
    a.label(ld)

def wait_min4(a, off, val, q, sleep=2):
    lp = a.newlabel('Lwm'); ld = a.newlabel('Lwmd')
    a(f'v_mov_b32 v{vSA}, {FL}')
    a.label(lp)
    a(f'ds_read_b128 {V(q,4)}, v{vSA} offset:{off}')
    a('s_waitcnt lgkmcnt(0)')
    a(f'v_min_u32 v{q}, v{q}, v{q+1}')
    a(f'v_min3_u32 v{q}, v{q}, v{q+2}, v{q+3}')
    a('s_nop 0')
    a(f'v_readfirstlane_b32 s{T3}, v{q}')
    a(f's_cmp_ge_u32 s{T3}, {val}')
    a(f's_cbranch_scc1 {ld}')
    a(f's_sleep {sleep}')
    spin_guard(a)
    a(f's_branch {lp}')
    a.label(ld)

def signal(a, offs, nw=4, need_zok=False, srdn=sWS):
    a('s_waitcnt vmcnt(0)')
    SB.nw = nw; BAR(a); SB.nw = 4
    lab = a.newlabel('Lsig')
    a(f's_cmp_lg_u32 s{sW}, 0')
    a(f's_cbranch_scc1 {lab}')
    if need_zok: wait_status(a, ZOK)
    if srdn != sWS: wait_lds_ge(a, F_MZ, 1)
    a(f'v_mov_b32 v{vSA}, 0')
    a(f'v_mov_b32 v{vSB}, 1')
    a('s_mov_b64 exec, 1')
    for o in offs:
        a(f'buffer_atomic_add v{vSB}, v{vSA}, s[{srdn}:{srdn+3}], s{o} offen sc1')
    a('s_mov_b64 exec, -1')
    a.label(lab)

def mb_signal(a, word, nl, idfn, need_zok=False, group=True, hw=False):
    a('s_waitcnt vmcnt(0)')
    if word == M_QKV: dstamp(a, 'qdrain')
    lab = a.newlabel('Lsig')
    if group:
        if hw: a('s_barrier')
        else: BAR(a)
        if word == M_QKV: dstamp(a, 'qbar')
        a(f's_cmp_lg_u32 s{sW}, 0')
        a(f's_cbranch_scc1 {lab}')
    if need_zok: wait_status(a, ZOK)
    masked = idfn(vSA, vSB)
    a(f'v_lshlrev_b32 v{vSA}, 7, v{vSA}')
    if word == M_QKV:
        a(f's_lshl_b32 s{T0}, 1, s{sRB}')
        a(f'v_mov_b32 v{vSB}, s{T0}')
        a(f's_and_b32 s{T0}, s{sCB}, 12')
        a(f's_add_u32 s{T0}, s{T0}, {hex(FLG + 20)}')
    else:
        a(f'v_mov_b32 v{vSB}, 1')
        a(f's_mov_b32 s{T0}, {hex(FLG + word)}')
    a(f's_mov_b32 exec_lo, {hex((1 << min(nl, 32)) - 1)}'); a(f's_mov_b32 exec_hi, {hex((1 << max(nl - 32, 0)) - 1)}')
    if masked: a('s_and_b64 exec, exec, vcc')
    a(f'buffer_atomic_{"or" if word == M_QKV else "add"} v{vSB}, v{vSA}, {ws}, s{T0} offen sc1')
    a('s_mov_b64 exec, -1')
    a.label(lab)

def id64(a, vId, vRb, vCb):
    a(f'v_lshlrev_b32 v{vCb}, 5, v{vCb}')
    a(f'v_lshrrev_b32 v{vId if vId != vRb else vCb+0}, 0, v{vId if vId != vRb else vCb+0}') if False else None

def map_64x64(a):
    a(f's_and_b32 s{T0}, s2, 7')
    a(f's_lshr_b32 s{T1}, s2, 3')
    a(f's_lshl_b32 s{sRB}, s{T0}, 2')
    a(f's_and_b32 s{T2}, s{T1}, 3')
    a(f's_add_u32 s{sRB}, s{sRB}, s{T2}')
    a(f's_lshr_b32 s{sCB}, s{T1}, 2')
def map_g3(a):
    a(f's_and_b32 s{T0}, s2, 7')
    a(f's_lshr_b32 s{T1}, s2, 3')
    a(f's_lshl_b32 s{sRB}, s{T0}, 1')
    a(f's_and_b32 s{T2}, s{T1}, 1')
    a(f's_add_u32 s{sRB}, s{sRB}, s{T2}')
    a(f's_lshr_b32 s{sCB}, s{T1}, 1')
def map_qkv(a):
    a(f's_and_b32 s{T0}, s2, 7')
    a(f's_lshr_b32 s{T1}, s2, 3')
    a(f's_lshr_b32 s{T2}, s{T0}, 1')
    a(f's_lshl_b32 s{T2}, s{T2}, 2')
    a(f's_and_b32 s{T3}, s{T1}, 3')
    a(f's_add_u32 s{sRB}, s{T2}, s{T3}')
    a(f's_and_b32 s{T2}, s{T0}, 1')
    a(f's_lshl_b32 s{T2}, s{T2}, 3')
    a(f's_lshr_b32 s{T3}, s{T1}, 2')
    a(f's_add_u32 s{sCB}, s{T2}, s{T3}')
def rot8(a, d0, d1, mul=1):
    a(f's_and_b32 s{T0}, s{sRB}, 3')
    a(f's_lshl_b32 s{T0}, s{T0}, 1')
    a(f's_add_u32 s{T0}, s{T0}, s{sCB}')
    a(f's_and_b32 s{d0}, s{T0}, 7')
    if mul != 1:
        a(f's_mul_i32 s{d0}, s{d0}, {mul}')
        a(f's_lshr_b32 s{d0}, s{d0}, 1')
    a(f's_mov_b32 s{d1}, s{d0}')

def pack_swap(a, ac, pk):
    for i in range(8):
        a(f'v_cvt_pk_bf16_f32 v{pk+i}, v{ac+2*i}, v{ac+2*i+1}')
    a('s_nop 1')
    for pr in range(2):
        b = pk + 4 * pr
        a(f'v_permlane32_swap_b32 v{b}, v{b+2}')
        a(f'v_permlane32_swap_b32 v{b+1}, v{b+3}')
    a('s_nop 1')
def pack_swap_store(a, ac, pk, voff, sOff):
    pack_swap(a, ac, pk)
    for pr in range(2):
        a(f'buffer_store_dwordx4 {V(pk+4*pr,4)}, v{voff}, {ws}, s{sOff} offen offset:{pr*1024} sc1')

def frag_tile_off(a, sDst, g, base, nks):
    a(f's_lshl_b32 s{sDst}, s{sRB}, 1')
    a(f's_add_u32 s{sDst}, s{sDst}, s{g.sWr}')
    a(f's_mul_i32 s{sDst}, s{sDst}, {nks}')
    a(f's_lshl_b32 s{T3}, s{sCB}, 2')
    a(f's_add_u32 s{sDst}, s{sDst}, s{T3}')
    a(f's_lshl_b32 s{T3}, s{g.sWc}, 1')
    a(f's_add_u32 s{sDst}, s{sDst}, s{T3}')
    a(f's_lshl_b32 s{sDst}, s{sDst}, 10')
    a(f's_add_u32 s{sDst}, s{sDst}, {hex(base)}')
def wsk_woffs(a, g):
    a(f's_lshl_b32 s{sW0}, s{sW}, 14')
    a(f's_lshl_b32 s{T0}, s{sCB}, 7')
    a(f's_add_u32 s{sW0}, s{sW0}, s{T0}')
    a(f's_lshl_b32 s{T0}, s{g.sWc}, 6')
    a(f's_xor_b32 s{T1}, s{T0}, 64')
    a(f's_add_u32 s{sW1}, s{sW0}, s{T1}')
    a(f's_add_u32 s{sW0}, s{sW0}, s{T0}')
def wsk_xoffs(a, g, base, xtile, d0=sX0, d1=sX1):
    a(f's_lshl_b32 s{T0}, s{sRB}, 1')
    a(f's_add_u32 s{T1}, s{T0}, s{g.sWr}')
    a(f's_mul_i32 s{d0}, s{T1}, {xtile}')
    a(f's_xor_b32 s{T1}, s{T1}, 1')
    a(f's_mul_i32 s{d1}, s{T1}, {xtile}')
    a(f's_lshl_b32 s{T0}, s{sW}, 10')
    a(f's_add_u32 s{T0}, s{T0}, {hex(base)}')
    a(f's_add_u32 s{d0}, s{d0}, s{T0}')
    a(f's_add_u32 s{d1}, s{d1}, s{T0}')
def x_rowmajor_off(a, g, sDst):
    a(f's_lshl_b32 s{sDst}, s{sRB}, 16')
    a(f's_lshl_b32 s{T1}, s{g.sWr}, 15')
    a(f's_add_u32 s{sDst}, s{sDst}, s{T1}')
    a(f's_lshl_b32 s{T1}, s{sCB}, 7')
    a(f's_add_u32 s{sDst}, s{sDst}, s{T1}')
    a(f's_lshl_b32 s{T1}, s{g.sWc}, 6')
    a(f's_add_u32 s{sDst}, s{sDst}, s{T1}')
def lane8_off(a, v, l, t):
    a(f'v_and_b32 v{v}, 31, v{l}')
    a(f'v_lshlrev_b32 v{v}, 4, v{v}')
    a(f'v_lshrrev_b32 v{t}, 5, v{l}')
    a(f'v_lshl_add_u32 v{v}, v{t}, 3, v{v}')
def unpack(a, src, dst, n):
    for j in range(n):
        a(f'v_lshlrev_b32 v{dst+2*j}, 16, v{src+j}')
        a(f'v_and_b32 v{dst+2*j+1}, 0xffff0000, v{src+j}')
def ln_scalars(a, mean, ex2, q, n):
    var, m1, s1, rs = q[0], q[1], q[2], q[3]
    a(f'v_mul_f32 v{mean}, {hex(f32bits(1/n))}, v{mean}')
    a(f'v_mul_f32 v{ex2}, {hex(f32bits(1/n))}, v{ex2}')
    a(f'v_fma_f32 v{var}, -v{mean}, v{mean}, v{ex2}')
    a(f'v_max_f32 v{var}, 0, v{var}')
    a(f'v_mov_b32 v{m1}, v{mean}'); bf16_round(a, m1)
    a(f'v_mov_b32 v{s1}, v{var}'); bf16_round(a, s1)
    a(f'v_add_f32 v{s1}, {hex(f32bits(EPS))}, v{s1}'); bf16_round(a, s1)
    a(f'v_sqrt_f32 v{s1}, v{s1}'); a('s_nop 0'); bf16_round(a, s1)
    a(f'v_rcp_f32 v{rs}, v{s1}'); a('s_nop 0')

def ln_issue(a, va):
    r = G(); l = 1
    r.raw = [va(4), va(4)]; r.vL16 = va()
    a(f'v_lshlrev_b32 v{r.vL16}, 4, v{l}')
    srd(a, sAUX, pX, 2048 * 1024)
    a(f's_lshl_b32 s{T0}, s2, 3')
    a(f's_lshl_b32 s{T1}, s{sW}, 1')
    a(f's_add_u32 s{sRow0}, s{T0}, s{T1}')
    a(f's_lshl_b32 s{T0}, s{sRow0}, 10')
    for k in range(2):
        a(f'buffer_load_dwordx4 {V(r.raw[k],4)}, v{r.vL16}, s[{sAUX}:{sAUX+3}], s{T0} offen offset:{k*1024}')
    return r

def ln_stats(a, r, tmp):
    RR = range(2)
    x = [tmp, tmp + 8]; s_ = [tmp + 16, tmp + 17]; t_ = [tmp + 18, tmp + 19]
    m1 = [tmp + 20, tmp + 21]; s1 = [tmp + 22, tmp + 23]; rs = [tmp + 24, tmp + 25]; m2 = [tmp + 26, tmp + 27]; s2 = [tmp + 28, tmp + 29]
    o = [tmp + 30 + k for k in range(6)]; vZ = tmp + 36
    def each(f):
        for k in RR: f(k)
    def rnd(regs):
        for rg in regs: a(f'v_cvt_pk_bf16_f32 v{rg}, v{rg}, v{rg}')
        for rg in regs: a(f'v_lshlrev_b32 v{rg}, 16, v{rg}')
    a(f'v_mov_b32 v{vZ}, 0')
    for k in RR: unpack(a, r.raw[k], x[k], 4)
    each(lambda k: a(f'v_add_f32 v{s_[k]}, v{x[k]}, v{x[k]+1}'))
    each(lambda k: a(f'v_mul_f32 v{t_[k]}, v{x[k]}, v{x[k]}'))
    each(lambda k: a(f'v_fma_f32 v{t_[k]}, v{x[k]+1}, v{x[k]+1}, v{t_[k]}'))
    for j in range(2, 8):
        each(lambda k: a(f'v_add_f32 v{s_[k]}, v{s_[k]}, v{x[k]+j}'))
        each(lambda k: a(f'v_fma_f32 v{t_[k]}, v{x[k]+j}, v{x[k]+j}, v{t_[k]}'))
    a('s_nop 1')
    dpp_wave_sum(a, s_ + t_, None)
    for rg in s_ + t_: a(f'v_mul_f32 v{rg}, {hex(f32bits(1/512))}, v{rg}')
    each(lambda k: a(f'v_fma_f32 v{t_[k]}, -v{s_[k]}, v{s_[k]}, v{t_[k]}'))
    each(lambda k: a(f'v_max_f32 v{t_[k]}, 0, v{t_[k]}'))
    each(lambda k: a(f'v_mov_b32 v{m1[k]}, v{s_[k]}'))
    each(lambda k: a(f'v_mov_b32 v{s1[k]}, v{t_[k]}'))
    rnd(m1 + s1)
    each(lambda k: a(f'v_add_f32 v{s1[k]}, {hex(f32bits(EPS))}, v{s1[k]}')); rnd(s1)
    each(lambda k: a(f'v_sqrt_f32 v{s1[k]}, v{s1[k]}')); a('s_nop 0'); rnd(s1)
    each(lambda k: a(f'v_rcp_f32 v{rs[k]}, v{s1[k]}')); a('s_nop 0')
    each(lambda k: a(f'v_sub_f32 v{m2[k]}, v{s_[k]}, v{m1[k]}'))
    each(lambda k: a(f'v_mul_f32 v{m2[k]}, v{m2[k]}, v{rs[k]}'))
    each(lambda k: a(f'v_mul_f32 v{s2[k]}, v{t_[k]}, v{rs[k]}'))
    each(lambda k: a(f'v_mul_f32 v{s2[k]}, v{s2[k]}, v{rs[k]}'))
    rnd(m2 + s2)
    each(lambda k: a(f'v_add_f32 v{s2[k]}, {hex(f32bits(EPS))}, v{s2[k]}')); rnd(s2)
    each(lambda k: a(f'v_sqrt_f32 v{s2[k]}, v{s2[k]}')); a('s_nop 0'); rnd(s2)
    each(lambda k: a(f'v_rcp_f32 v{s2[k]}, v{s2[k]}')); a('s_nop 0')
    each(lambda k: a(f'v_mul_f32 v{o[k]}, v{m1[k]}, v{rs[k]}'))
    each(lambda k: a(f'v_sub_f32 v{o[k]}, 0, v{o[k]}'))
    each(lambda k: a(f'v_mul_f32 v{o[2+k]}, v{rs[k]}, v{s2[k]}'))
    each(lambda k: a(f'v_fma_f32 v{o[4+k]}, v{m2[k]}, v{s1[k]}, v{m1[k]}'))
    each(lambda k: a(f'v_mul_f32 v{o[4+k]}, v{o[4+k]}, v{o[2+k]}'))
    each(lambda k: a(f'v_sub_f32 v{o[4+k]}, 0, v{o[4+k]}'))
    a(f's_lshl_b32 s{T1}, s{sRow0}, 2')
    a(f's_add_u32 s{T1}, s{T1}, {hex(ST)}')
    a('s_mov_b32 exec_lo, 0'); a('s_mov_b32 exec_hi, 0x80000000')
    for idx, rg in ((0, o[0]), (1, rs[0]), (2, o[4]), (3, o[2])):
        a(f's_add_u32 s{T2}, s{T1}, {idx * 0x2000}')
        a(f'buffer_store_dwordx2 {V(rg,2)}, v{vZ}, {ws}, s{T2} offen sc1')
    a('s_mov_b64 exec, -1')

def sentinel(a):
    l = 1
    vOff, vTgt, vVal, vZ, vF, vD = 4, 5, 6, 7, 8, 9
    sDone, sAct, sMA, sMB, sMb = sX0, sX1, sW0, sW1, sRow0
    srd(a, sDBG, pDBG, 256)
    a(f'v_mov_b32 v{vZ}, 0')
    a(f'v_mov_b32 v{vF}, {FL}')
    a(f'v_lshlrev_b32 v{vOff}, 2, v{l}')
    a(f's_lshl_b32 s{sMb}, s2, 7')
    a(f's_add_u32 s{sMb}, s{sMb}, {hex(FLG)}')
    a('s_mov_b64 exec, 0xff')
    a(f'buffer_store_dword v{vZ}, v{vOff}, {ws}, s{sMb} offen sc1')
    a('s_mov_b64 exec, -1')
    a(f'v_lshlrev_b32 v{vD}, 4, v{l}')
    map_qkv(a)
    a(f's_mov_b32 s{sMA}, s{sRB}')
    map_g3(a)
    a(f's_cmp_ge_u32 s{sCB}, 15')
    a(f's_cselect_b32 s{sDone}, {hex(B_C2)}, 0')
    map_64x64(a)
    a(f's_lshr_b32 s{sMB}, s{sRB}, 1')
    a(f'v_mov_b32 v{vTgt}, 0')
    a(f's_mov_b32 s{T3}, -1')
    for ln_ in (0, 5, 6, 7): a(f'v_writelane_b32 v{vTgt}, s{T3}, {ln_}')
    a(f's_sub_u32 s{T0}, s{sRB}, 1')
    a(f's_cmp_lt_u32 s{T0}, 30')
    a(f's_cselect_b32 s{T3}, 8, 4'); a(f'v_writelane_b32 v{vTgt}, s{T3}, 1')
    a(f's_mov_b32 s{T3}, 16'); a(f'v_writelane_b32 v{vTgt}, s{T3}, 2')
    a(f's_mov_b32 s{T3}, 15'); a(f'v_writelane_b32 v{vTgt}, s{T3}, 3')
    a(f's_mov_b32 s{T3}, 32'); a(f'v_writelane_b32 v{vTgt}, s{T3}, 4')
    a(f'v_mov_b32 v{vVal}, 1')
    a('s_barrier')
    a('s_waitcnt vmcnt(0)')
    for k in range(1, 6): a('s_barrier')
    lp = a.newlabel('Lp1'); lok = a.newlabel('Lp1ok')
    a('s_mov_b64 exec, 0xffff')
    a(f'buffer_load_dword v{vVal}, v{vD}, s[{sDBG}:{sDBG+3}], 0 offen sc1')
    a('s_barrier')
    a.label(lp)
    a('s_waitcnt vmcnt(0)')
    a(f'v_cmp_le_u32 vcc, 16, v{vVal}')
    a('s_cmp_eq_u32 vcc_lo, 0xffff')
    a(f's_cbranch_scc1 {lok}')
    spin_guard(a)
    a(f's_sleep {int(os.environ.get("P1S", "4"))}')
    a(f'buffer_load_dword v{vVal}, v{vD}, s[{sDBG}:{sDBG+3}], 0 offen sc1')
    a(f's_branch {lp}')
    a.label(lok)
    for k in range(7, 10): a('s_barrier')
    lp = a.newlabel('Lp2')
    a('s_mov_b64 exec, 0xff')
    a.label(lp)
    spin_guard(a)
    a(f's_sleep {os.environ.get("SSL", "1")}')
    a(f'ds_read_b32 v{vVal}, v{vF} offset:{F_REQ}')
    a('s_waitcnt lgkmcnt(0)')
    a(f'v_readfirstlane_b32 s{sAct}, v{vVal}')
    a(f's_andn2_b32 s{sAct}, s{sAct}, s{sDone}')
    a(f's_cbranch_scc0 {lp}')
    a(f'buffer_load_dword v{vVal}, v{vOff}, {ws}, s{sMb} offen sc1')
    a('s_waitcnt vmcnt(0)')
    a(f'v_cmp_ge_u32 vcc, v{vVal}, v{vTgt}')
    a(f'v_readlane_b32 s{T0}, v{vVal}, 5')
    a(f'v_readlane_b32 s{T1}, v{vVal}, 6')
    a(f'v_readlane_b32 s{T2}, v{vVal}, 7')
    a(f's_or_b32 s{sDone}, s{sDone}, vcc_lo')
    a(f's_and_b32 s{T1}, s{T1}, s{T2}')
    a(f'v_mov_b32 v10, s{T0}')
    a(f'v_mov_b32 v11, s{T1}')
    a(f's_and_b32 s{T0}, s{T0}, s{T1}')
    a(f's_cmp_eq_u32 s{T0}, 0xffff')
    a(f's_cselect_b32 s{T0}, {B_QKV}, 0')
    a(f's_or_b32 s{sDone}, s{sDone}, s{T0}')
    a(f'v_mov_b32 v{vVal}, s{sDone}')
    a(f'ds_write2_b32 v{vF}, v10, v11 offset0:{F_QM//4} offset1:{F_KVM//4}')
    a(f'ds_write_b32 v{vF}, v{vVal} offset:{F_STATUS}')
    a(f's_and_b32 s{T0}, s{sDone}, {hex(ALLB)}')
    a(f's_cmp_lg_u32 s{T0}, {hex(ALLB)}')
    a(f's_cbranch_scc1 {lp}')
    a('s_waitcnt lgkmcnt(0)')
    a('s_endpgm')

import k_g1
def l2_touch(a, ptr, nbytes, vT, vD):
    pass

def g1_stage(a):
    l = 1
    sCol0 = sRow0
    map_qkv(a)
    srd(a, sXSRD, pX, 2048 * 1024)
    a(f's_lshl_b32 s{sX0}, s{sRB}, 17')
    a(f's_lshl_b32 s{T0}, s{sW}, 13')
    a(f's_add_u32 s{sX0}, s{sX0}, s{T0}')
    rot8(a, sJ0, sJ1)
    a(f's_cmp_ge_u32 s{sCB}, 12')
    a('s_cbranch_scc1 g1_w1')
    srd(a, sWSRD, pQKV, 512 * 3072)
    a(f's_lshl_b32 s{sCol0}, s{sCB}, 8')
    a(f's_cmp_ge_u32 s{sCB}, 8')
    a('s_cbranch_scc1 g1_v')
    hi = 0; sb0 = SB.n; n0 = CS.n
    for kind in ('qk', 'v', 'w1'):
        if kind == 'v': a.label('g1_v')
        if kind == 'w1':
            a.label('g1_w1')
            srd(a, sWSRD, pW1, 512 * 1024)
            a(f's_sub_u32 s{sCol0}, s{sCB}, 12')
            a(f's_lshl_b32 s{sCol0}, s{sCol0}, 8')
        SB.n = sb0; CS.n = n0
        va = RegAlloc(V0, 168)
        p = G()
        p.TT, p.FT, p.WR, p.WC, p.KS, p.NST = 4, 4, 2, 2, 32, 3
        p.xmode = 'row'; p.rowbytes = 1024 if kind == 'w1' else 3072
        p.orient = 'N' if kind == 'v' else 'T'
        p.sW, p.sXoff, p.sWoff, p.vLane, p.xsrd, p.ldflags, p.stmp = sW, sX0, sW0, l, sXSRD, '', STMP
        p.xtile = 32768
        p.sRot, p.sRotC, p.sRotX, p.sRotW = sJ0, 58, 59, sJ3
        p.init_chunks = int(os.environ.get('QINIT', '2'))
        a(f's_mul_i32 s{sW0}, s{sW}, {16 * p.rowbytes}')
        a(f's_add_u32 s{sW0}, s{sW0}, s{sCol0}')
        gemm_setup(a, va, p)
        acs = va(16, 4); ones = va(4); p.tmp16 = acs
        for i in range(4): a(f'v_mov_b32 v{ones+i}, 0x3f803f80')
        def step_hook(i, xfb, wfb):
            l0 = a.newlabel('Lc0'); l1 = a.newlabel('Lc1')
            c = '0' if i == 0 else V(acs,16)
            a(f's_cmp_lg_u32 s{p.sWr}, 0')
            a(f's_cbranch_scc1 {l0}')
            a(f'{MF} {V(acs,16)}, {V(ones,4)}, {V(wfb[0],4)}, {c}')
            a(f's_branch {l1}')
            a.label(l0)
            a(f'{MF} {V(acs,16)}, {V(ones,4)}, {V(wfb[1],4)}, {c}')
            a.label(l1)
        p.step_hook = step_hook
        EB = 155648 - 8192
        p.ebase = EB
        stv = va(2); vTid = va()
        def fin(a_, va_, p_, mode, sQ, sRB_, sCB_, T):
            t0, t1, t2 = p.t
            a(f'v_and_b32 v{t0}, 31, v{l}')
            a(f'v_lshlrev_b32 v{t0}, 2, v{t0}')
            a(f's_lshl_b32 s{T0}, s{p.sWc}, 8')
            a(f's_lshl_b32 s{T1}, s{p.sWr}, 7')
            a(f's_add_u32 s{T0}, s{T0}, s{T1}')
            a(f's_add_u32 s{T0}, s{T0}, {EB}')
            a(f'v_add_u32 v{t1}, s{T0}, v{t0}')
            a(f'v_add_u32 v{vTid}, {EB}, v{vTid}')
            a('s_waitcnt vmcnt(0)')
            if sQ is not None:
                a(f'v_mul_f32 v{stv}, s{sQ}, v{stv}')
                a(f'v_mul_f32 v{stv+1}, s{sQ}, v{stv+1}')
            a('s_nop 3')
            a(f'ds_write_b32 v{t1}, v{acs} offset:9216')
            lt = a.newlabel('Ltk')
            a(f's_cmp_ge_u32 s{sW}, 2')
            a(f's_cbranch_scc1 {lt}')
            a(f'ds_write_b32 v{vTid}, v{stv} offset:8192')
            a(f'ds_write_b32 v{vTid}, v{stv+1} offset:8704')
            a.label(lt)
            a('s_waitcnt lgkmcnt(0)')
            a('s_barrier')
            dstamp(a, 'qstat')
        k_g1.ln_finalize = fin
        def after_sync(c):
            if c == 7:
                a(f'v_and_b32 v{vTid}, 127, v0')
                a(f'v_lshlrev_b32 v{vTid}, 2, v{vTid}')
                a(f's_lshl_b32 s{T0}, s{sRB}, 9')
                a(f's_add_u32 s{T0}, s{T0}, {hex(ST + (0x4000 if kind == "w1" else 0))}')
                a(f'buffer_load_dword v{stv}, v{vTid}, {ws}, s{T0} offen sc1')
                a(f's_add_u32 s{T0}, s{T0}, 0x2000')
                a(f'buffer_load_dword v{stv+1}, v{vTid}, {ws}, s{T0} offen sc1')
        p.after_sync = after_sync
        p.stamp1 = lambda: (cstamp(a), dstamp(a, 'qx'))
        SB.on = False
        acc = gemm_main(a, va, p)
        SB.on = True
        cstamp(a); dstamp(a, 'qloop')
        k_g1.g1_epilogue(a, va, p, acc, kind, sRB, sCB, (T0, T1, T2, sJ2))
        hi = max(hi, va.hi)
        dstamp(a, 'qepi')
        if kind == 'w1':
            a(f's_lshl_b32 s{T1}, s{sRB}, 1')
            a(f's_sub_u32 s{T1}, s{T1}, 1')
            mb_signal(a, M_C1, 32, id_rows(a, T1, True), hw=True)
        else:
            def idq(vI, vT):
                a(f's_and_b32 s{T0}, s{sCB}, 3')
                a(f's_lshl_b32 s{T0}, s{T0}, 3')
                a(f'v_lshrrev_b32 v{vI}, 3, v1')
                a(f'v_add_u32 v{vI}, s{T0}, v{vI}')
                a(f'v_and_b32 v{vT}, 3, v{vI}')
                a(f'v_lshrrev_b32 v{vI}, 2, v{vI}')
                a(f'v_lshl_add_u32 v{vI}, v{vT}, 3, v{vI}')
                a(f'v_and_b32 v{vT}, 7, v1')
                a(f'v_lshl_add_u32 v{vI}, v{vT}, 5, v{vI}')
                return False
            mb_signal(a, M_QKV, 64, idq, hw=True)
            a('s_branch g1_done')
    a.label('g1_done')
    a(f'v_mov_b32 v{vSA}, {FL}'); a(f'v_mov_b32 v{vSB}, 1')
    a(f'ds_write_b32 v{vSA}, v{vSB} offset:{F_WDONE}')
    dstamp(a, 'qsig')
    return hi

def id_rows(a, sBase, check):
    def f(vI, vT):
        a(f'v_lshrrev_b32 v{vI}, 3, v1')
        a(f'v_add_u32 v{vI}, s{sBase}, v{vI}')
        if check: a(f'v_cmp_gt_u32 vcc, 32, v{vI}')
        a(f'v_and_b32 v{vT}, 3, v{vI}')
        a(f'v_lshrrev_b32 v{vI}, 2, v{vI}')
        a(f'v_lshl_add_u32 v{vI}, v{vT}, 3, v{vI}')
        a(f'v_and_b32 v{vT}, 7, v1')
        a(f'v_lshl_add_u32 v{vI}, v{vT}, 5, v{vI}')
        return check
    return f

def colsum3_job_issue(a, va):
    r = G()
    r.l3 = [va(4), va(4)]; r.tA = va(); r.tB = va()
    srd(a, sAUX, pW3, 512 * 2752)
    a(f's_and_b32 s{T0}, s2, 15')
    a(f's_mul_i32 s{T0}, s{T0}, {32 * 2752}')
    a(f's_lshr_b32 s{T1}, s2, 4')
    a(f's_min_u32 s{T1}, s{T1}, 10')
    a(f's_lshl_b32 s{T1}, s{T1}, 8')
    a(f's_add_u32 s{T0}, s{T0}, s{T1}')
    a(f'v_lshrrev_b32 v{r.tA}, 4, v0')
    a(f's_mov_b32 s{T1}, 2752')
    a(f'v_mul_lo_u32 v{r.tA}, v{r.tA}, s{T1}')
    a(f'v_and_b32 v{r.tB}, 15, v0')
    a(f'v_lshl_add_u32 v{r.tA}, v{r.tB}, 4, v{r.tA}')
    a(f'buffer_load_dwordx4 {V(r.l3[0],4)}, v{r.tA}, s[{sAUX}:{sAUX+3}], s{T0} offen')
    a(f's_add_u32 s{T0}, s{T0}, {16 * 2752}')
    a(f'buffer_load_dwordx4 {V(r.l3[1],4)}, v{r.tA}, s[{sAUX}:{sAUX+3}], s{T0} offen')
    return r
def colsum3_job_finish(a, r, u):
    SCR = B_BASE + 65536
    unpack(a, r.l3[0], u, 4); unpack(a, r.l3[1], u + 8, 4)
    for j in range(8): a(f'v_add_f32 v{u+j}, v{u+j}, v{u+8+j}')
    a(f'v_lshrrev_b32 v{r.tA}, 4, v0')
    a(f'v_lshlrev_b32 v{r.tA}, 9, v{r.tA}')
    a(f'v_lshl_add_u32 v{r.tA}, v{r.tB}, 5, v{r.tA}')
    a(f'v_add_u32 v{r.tA}, {SCR}, v{r.tA}')
    a(f'ds_write_b128 v{r.tA}, {V(u,4)}')
    a(f'ds_write_b128 v{r.tA}, {V(u+4,4)} offset:16')
    BAR(a)
    lab = a.newlabel('Lc3')
    a(f's_cmp_ge_u32 s{sW}, 2')
    a(f's_cbranch_scc1 {lab}')
    a('s_cmp_ge_u32 s2, 176')
    a(f's_cbranch_scc1 {lab}')
    a(f'v_lshlrev_b32 v{r.tA}, 2, v0')
    a(f'v_add_u32 v{r.tB}, {SCR}, v{r.tA}')
    for k in range(16): a(f'ds_read_b32 v{u+k}, v{r.tB} offset:{k*512}')
    a('s_waitcnt lgkmcnt(0)')
    for k in range(1, 16): a(f'v_add_f32 v{u}, v{u}, v{u+k}')
    a(f's_and_b32 s{T0}, s2, 15')
    a(f's_mul_i32 s{T0}, s{T0}, {1408 * 4}')
    a(f's_lshr_b32 s{T1}, s2, 4')
    a(f's_lshl_b32 s{T1}, s{T1}, 9')
    a(f's_add_u32 s{T0}, s{T0}, s{T1}')
    a(f's_add_u32 s{T0}, s{T0}, {hex(CS3)}')
    a(f'buffer_store_dword v{u}, v{r.tA}, {ws}, s{T0} offen sc1')
    a.label(lab)

def g2_stage(a):
    va = RegAlloc(V0, 256); l = 1; vm = VM()
    map_64x64(a)
    srd(a, sAUX, pX, 2048 * 1024)
    srd(a, sWSRD, pW2, 512 * 1024)
    g = WSK(a, va, sW, l, STMP, WD, vm, lds_base=B_BASE, ring_bytes=WRING)
    t0, t1, t2 = g.t
    wsk_woffs(a, g)
    wsk_xoffs(a, g, HF, 32768)
    rot8(a, sJ0, sJ1)
    g.add_segment(8, sWS, [sX0, sX1], g.vL16, LDF, sWSRD, [sW0, sW1], sJ0, sJ1, 8)
    xr = va(8, 4); mr = va(); rr = va()
    B8 = int(os.environ.get('B8', '0'))
    for k in range(6 + B8): a('s_barrier')
    a(f'v_and_b32 v{t2}, 31, v{l}')
    a(f'v_lshlrev_b32 v{t2}, 10, v{t2}')
    a(f'v_lshrrev_b32 v{t0}, 5, v{l}')
    a(f'v_lshl_add_u32 v{t2}, v{t0}, 3, v{t2}')
    x_rowmajor_off(a, g, T0)
    for q in range(4):
        a(f'buffer_load_dwordx2 {V(xr+2*q,2)}, v{t2}, s[{sAUX}:{sAUX+3}], s{T0} offen offset:{q*16}'); vm.add('xn')
    for i in range(WD): g.issue_w(i)
    g.nw = WD
    g.zero_acc(skip00=True)
    dstamp(a, 'g2pre')
    for k in range(2 - B8): a('s_barrier')
    wait_status(a, B_C1)
    cstamp(a); dstamp(a, 'g2x')
    a(f'v_and_b32 v{t0}, 31, v{l}')
    a(f'v_lshlrev_b32 v{t0}, 2, v{t0}')
    a(f's_lshl_b32 s{T0}, s{sRB}, 8')
    a(f's_lshl_b32 s{T1}, s{g.sWr}, 7')
    a(f's_add_u32 s{T0}, s{T0}, s{T1}')
    a(f's_add_u32 s{T0}, s{T0}, {hex(ST)}')
    a(f'buffer_load_dword v{mr}, v{t0}, {ws}, s{T0} offen sc1'); vm.add('st')
    a(f's_add_u32 s{T0}, s{T0}, 0x2000')
    a(f'buffer_load_dword v{rr}, v{t0}, {ws}, s{T0} offen sc1'); vm.add('st')
    def after_issue():
        a(f's_waitcnt vmcnt({vm.wait_for("st")})')
        unpack(a, xr, g.acc[0][0], 8)
        for i in range(16): a(f'v_fma_f32 v{g.acc[0][0]+i}, v{g.acc[0][0]+i}, v{rr}, v{mr}')
    g.after_issue = after_issue
    g.run(0, 8)
    dstamp(a, 'g2loop')
    ac = g.reduce()
    xf = g.acc[0][1]; pk = g.acc[1][0]; s1, s2, s1b, s2b, pr = [g.acc[1][1] + i for i in (0, 1, 2, 3, 4)]
    frag_tile_off(a, T0, g, X1F, 32)
    pack_swap_store(a, ac, pk, g.vL16, T0)
    unpack(a, pk, xf, 8)
    a(f'v_add_f32 v{s1}, v{xf}, v{xf+1}')
    a(f'v_mul_f32 v{s2}, v{xf}, v{xf}')
    a(f'v_fma_f32 v{s2}, v{xf+1}, v{xf+1}, v{s2}')
    for i in range(2, 16):
        a(f'v_add_f32 v{s1}, v{s1}, v{xf+i}')
        a(f'v_fma_f32 v{s2}, v{xf+i}, v{xf+i}, v{s2}')
    a(f'v_mov_b32 v{s1b}, v{s1}'); a(f'v_mov_b32 v{s2b}, v{s2}')
    a('s_nop 1')
    a(f'v_permlane32_swap_b32 v{s1}, v{s1b}')
    a(f'v_permlane32_swap_b32 v{s2}, v{s2b}')
    a('s_nop 1')
    a(f'v_add_f32 v{pr}, v{s1}, v{s1b}')
    a(f'v_add_f32 v{pr+1}, v{s2}, v{s2b}')
    a(f's_lshl_b32 s{T0}, s{sCB}, 1')
    a(f's_add_u32 s{T0}, s{T0}, s{g.sWc}')
    a(f's_lshl_b32 s{T0}, s{T0}, 14')
    a(f's_lshl_b32 s{T1}, s{sRB}, 9')
    a(f's_add_u32 s{T0}, s{T0}, s{T1}')
    a(f's_lshl_b32 s{T1}, s{g.sWr}, 8')
    a(f's_add_u32 s{T0}, s{T0}, s{T1}')
    a(f's_add_u32 s{T0}, s{T0}, {hex(PS)}')
    a(f'v_lshlrev_b32 v{t0}, 3, v{l}')
    a('s_mov_b32 exec_hi, 0')
    a(f'buffer_store_dwordx2 {V(pr,2)}, v{t0}, {ws}, s{T0} offen sc1')
    a('s_mov_b64 exec, -1')
    dstamp(a, 'g2epi')
    def id3(vI, vT):
        a(f's_lshr_b32 s{T0}, s{sRB}, 1')
        a(f's_and_b32 s{T1}, s{T0}, 1')
        a(f's_lshl_b32 s{T1}, s{T1}, 3')
        a(f's_lshr_b32 s{T0}, s{T0}, 1')
        a(f's_or_b32 s{T0}, s{T0}, s{T1}')
        a(f'v_lshlrev_b32 v{vI}, 4, v1')
        a(f'v_or_b32 v{vI}, s{T0}, v{vI}')
        return False
    mb_signal(a, M_C2, 15, id3)
    dstamp(a, 'g2sig')
    return va.hi

def g3_stage(a, endlabel):
    va = RegAlloc(V0, 256); l = 1; vm = VM()
    map_g3(a)
    a(f's_cmp_ge_u32 s{sCB}, 15')
    a(f's_cbranch_scc1 {endlabel}')
    srd(a, sWSRD, pW3, 512 * 2752)
    D = 7; CK = 8; NST = 3; STG = CK * 3 * 1024; CSL = G3_BASE + NST * STG
    sT0, sT1, sM0 = STMP, STMP + 1, STMP + 2
    t0 = va(); t1 = va(); t2 = va(); vL16 = va(); vTr = va(); vW = va(); vTr2 = va()
    a(f'v_lshlrev_b32 v{vL16}, 4, v{l}')
    trbase(a, vTr, l, t0)
    a(f'v_add_u32 v{vTr}, {G3_BASE}, v{vTr}')
    a(f'v_add_u32 v{vTr2}, 49152, v{vTr}')
    wdma_voff(a, vW, l, t0, 2752, sT0)
    acc = [va(16, 4) for F in range(3)]
    xr = [va(4) for d in range(D)]
    wf = [[va(4) for F in range(3)] for b in range(3)]
    ps = va(16, 4); cp = va(16, 4)
    mr = va(); rr = va(); z = [va() for _ in range(4)]
    ones = va(4)
    for i in range(4): a(f'v_mov_b32 v{ones+i}, 0x3f803f80')
    a(f's_mul_i32 s{sW0}, s{sW}, {16 * 2752}')
    a(f's_mul_i32 s{T0}, s{sCB}, 192')
    a(f's_add_u32 s{sW0}, s{sW0}, s{T0}')
    a(f's_mul_i32 s{sM0}, s{sW}, 3072')
    a(f's_add_u32 s{sM0}, s{sM0}, {G3_BASE}')
    a(f's_and_b32 s{T0}, s{sRB}, 1')
    a(f's_lshl_b32 s{T0}, s{T0}, 1')
    a(f's_add_u32 s{sJ0}, s{T0}, s{sCB}')
    def wdma(c):
        a(f's_add_u32 s{sJ1}, s{sJ0}, {c}')
        a(f's_and_b32 s{sJ1}, s{sJ1}, 3')
        a(f's_mul_i32 s{sJ1}, s{sJ1}, {128 * 2752}')
        a(f's_add_u32 s{sJ1}, s{sJ1}, s{sW0}')
        for hh in range(2):
            for F in range(3):
                a(f's_add_u32 m0, s{sM0}, {(c % NST) * STG + hh * 4 * 3072 + F * 1024}')
                a(f's_add_u32 s{sT1}, s{sJ1}, {(hh * 4) * 16 * 2752 + F * 64}')
                a(f'buffer_load_dwordx4 v{vW}, s[{sWSRD}:{sWSRD+3}], s{sT1} offen lds')
                vm.add(('w', c))
    request(a, B_C2)
    for c in range(NST): wdma(c)
    a(f's_lshl_b32 s{sX0}, s{sRB}, 2')
    a(f's_add_u32 s{sX0}, s{sX0}, s{sW}')
    a(f's_lshl_b32 s{sX0}, s{sX0}, 15')
    a(f's_add_u32 s{sX0}, s{sX0}, {hex(X1F)}')
    dstamp(a, 'g3pre')
    wait_status(a, B_C2)
    dstamp(a, 'g3x')
    if os.environ.get('P3'): a(f's_setprio {os.environ["P3"]}')
    def xld(ks):
        if ks % 8 == 0:
            a(f's_add_u32 s{sJ2}, s{sJ0}, {ks // 8}')
            a(f's_and_b32 s{sJ2}, s{sJ2}, 3')
            a(f's_lshl_b32 s{sJ2}, s{sJ2}, 13')
            a(f's_add_u32 s{sJ2}, s{sJ2}, s{sX0}')
        a(f's_add_u32 s{sT0}, s{sJ2}, {(ks % 8) * 1024}')
        a(f'buffer_load_dwordx4 {V(xr[ks % D],4)}, v{vL16}, {ws}, s{sT0} offen {LDF}')
        vm.add(('x', ks))
    for ks in range(D): xld(ks)
    a(f'v_and_b32 v{t0}, 31, v{l}')
    a(f'v_lshlrev_b32 v{t0}, 3, v{t0}')
    a(f'v_lshrrev_b32 v{t2}, 5, v{l}')
    a(f'v_lshl_add_u32 v{t0}, v{t2}, 17, v{t0}')
    a(f's_lshl_b32 s{T0}, s{sRB}, 10')
    a(f's_lshl_b32 s{T1}, s{sW}, 8')
    a(f's_add_u32 s{T0}, s{T0}, s{T1}')
    a(f's_add_u32 s{T0}, s{T0}, {hex(PS)}')
    for f in range(8):
        a(f'buffer_load_dwordx2 {V(ps+2*f,2)}, v{t0}, {ws}, s{T0} offen {LDF}'); vm.add('ps')
        a(f's_add_u32 s{T0}, s{T0}, 16384')
    def reads(ks, only=None):
        c, s = ks // CK, ks % CK; b = ks % 3
        for F in (range(3) if only is None else [only]):
            o = (c % NST) * STG + s * 3072 + F * 1024
            base = vTr
            if o + 256 > 65535: base, o = vTr2, o - 49152
            a(f'ds_read_b64_tr_b16 {V(wf[b][F],2)}, v{base} offset:{o}')
            a(f'ds_read_b64_tr_b16 {V(wf[b][F]+2,2)}, v{base} offset:{o+256}')
    def sync(c):
        if c == 0:
            a(f's_waitcnt vmcnt({vm.wait_for(("w", 2))})'); BAR(a)
        elif c == 1:
            BAR(a); wdma(3)
        elif c == 3:
            a(f's_waitcnt vmcnt({vm.wait_for(("w", 3))})'); BAR(a)
    sync(0)
    reads(0); reads(1)
    for ks in range(32):
        nx = ks + 2
        if nx < 32 and nx % CK == 0: sync(nx // CK)
        a(f's_waitcnt vmcnt({vm.wait_for(("x", ks))}) lgkmcnt({6 if ks + 1 < 32 else 0})')
        for F in range(3):
            a(f'{MF} {V(acc[F],16)}, {V(wf[ks%3][F],4)}, {V(xr[ks%D],4)}, ' + ('0' if ks == 0 else V(acc[F],16)))
            if nx < 32: reads(nx, F)
        le = a.newlabel('Lcs')
        for F in range(3):
            ln = a.newlabel('Lcn')
            a(f's_cmp_lg_u32 s{sW}, {F}')
            a(f's_cbranch_scc1 {ln}')
            a(f'{MF} {V(cp,16)}, {V(ones,4)}, {V(wf[ks%3][F],4)}, ' + ('0' if ks == 0 else V(cp,16)))
            if F < 2: a(f's_branch {le}')
            a.label(ln)
        a.label(le)
        if ks + D < 32: xld(ks + D)
        if ks == 12:
            for f in range(1, 8):
                a(f'v_add_f32 v{ps}, v{ps}, v{ps+2*f}')
                a(f'v_add_f32 v{ps+1}, v{ps+1}, v{ps+2*f+1}')
            a(f'v_mov_b32 v{ps+2}, v{ps}'); a(f'v_mov_b32 v{ps+3}, v{ps+1}')
            a('s_nop 1')
            a(f'v_permlane32_swap_b32 v{ps}, v{ps+2}')
            a(f'v_permlane32_swap_b32 v{ps+1}, v{ps+3}')
            a('s_nop 1')
            a(f'v_add_f32 v{ps}, v{ps}, v{ps+2}')
            a(f'v_add_f32 v{ps+1}, v{ps+1}, v{ps+3}')
            ln_scalars(a, ps, ps + 1, z, 512)
            a(f'v_mov_b32 v{rr}, v{z[3]}')
            a(f'v_mul_f32 v{mr}, v{z[1]}, v{z[3]}')
            a(f'v_sub_f32 v{mr}, 0, v{mr}')
    dstamp(a, 'g3loop')
    if os.environ.get('P3'): a(f's_setprio {PRIO}')
    a(f'v_and_b32 v{t1}, 31, v{l}')
    a(f'v_lshlrev_b32 v{t1}, 2, v{t1}')
    a(f's_lshl_b32 s{T0}, s{sW}, 7')
    a(f's_add_u32 s{T0}, s{T0}, {CSL}')
    a(f'v_add_u32 v{t1}, s{T0}, v{t1}')
    a('s_nop 7')
    a(f'ds_write_b32 v{t1}, v{cp}')
    BAR(a)
    tmp = ps; cs = cp
    pk = [xr[0], xr[2]]; vC2 = z[0]
    a(f'v_mov_b32 v{vC2}, {hex(f32bits(GC2))}')
    a(f's_mov_b32 s{T2}, {hex(f32bits(GC1))}')
    a(f'v_lshrrev_b32 v{t1}, 5, v{l}')
    a(f'v_lshlrev_b32 v{t1}, 4, v{t1}')
    a(f'v_add_u32 v{t1}, {CSL}, v{t1}')
    a(f's_lshl_b32 s{T0}, s{sRB}, 2')
    a(f's_add_u32 s{T0}, s{T0}, s{sW}')
    a(f's_mul_i32 s{T0}, s{T0}, 86')
    a(f's_mul_i32 s{T1}, s{sCB}, 6')
    a(f's_add_u32 s{T0}, s{T0}, s{T1}')
    a(f's_lshl_b32 s{T0}, s{T0}, 10')
    a(f's_add_u32 s{T0}, s{T0}, {hex(H3F)}')
    lskip = a.newlabel('g3_skip')
    for F in range(3):
        if F == 1:
            a(f's_cmp_eq_u32 s{sCB}, 14')
            a(f's_cbranch_scc1 {lskip}')
        for q in range(4):
            a(f'ds_read_b128 {V(cs+4*q,4)}, v{t1} offset:{F*128 + q*32}')
        ac = acc[F]
        for i in range(16): a(f'v_mul_f32 v{ac+i}, v{ac+i}, v{rr}')
        a('s_waitcnt lgkmcnt(0)')
        for i in range(16): a(f'v_fma_f32 v{ac+i}, v{mr}, v{cs+i}, v{ac+i}')
        gelu_scalar(a, ac, 16, tmp, T2, vC2)
        a(f's_add_u32 s{T1}, s{T0}, {F*2048}')
        pack_swap_store(a, ac, pk[F % 2], vL16, T1)
    a.label(lskip)
    a(f's_lshl_b32 s{T1}, s{sRB}, 1')
    dstamp(a, 'g3epi')
    mb_signal(a, M_C3, 16, id_rows(a, T1, False))
    dstamp(a, 'g3sig')
    return va.hi

def g45_stage(a):
    va = RegAlloc(V0, 256); l = 1; vm = VM()
    map_64x64(a)
    srd(a, sWSRD, pW4, 1376 * 1024)
    srd(a, sW2SRD, pWO, 512 * 1024)
    srd(a, sAUX, pX, 2048 * 1024)
    g = WSK(a, va, sW, l, STMP, WD, vm, lds_base=B_BASE, ring_bytes=WRING)
    t0, t1, t2 = g.t
    wsk_woffs(a, g)
    wsk_xoffs(a, g, H3F, 86 * 1024)
    sO0, sO1 = 55, 56
    wsk_xoffs(a, g, OF, 32768, sO0, sO1)
    def cond(lab):
        a(f's_cmp_ge_u32 s{sW}, 2')
        a(f's_cbranch_scc1 {lab}')
    a(f's_cmp_lt_u32 s{sW}, 2')
    a(f's_cselect_b32 s{sNN}, 22, 21')
    rot8(a, sJ0, sJ1, 5)
    rot8(a, sJ2, sJ3)
    g.add_segment(22, sWS, [sX0, sX1], g.vL16, LDF, sWSRD, [sW0, sW1], sJ0, sJ1, [sNN], last_cond=cond)
    g.add_segment(8, sWS, [sO0, sO1], g.vL16, LDF, sW2SRD, [sW0, sW1], sJ2, sJ3, 8)
    vSt = va(); x1r = va(8, 4); xr = va(8, 4)
    request(a, B_C3)
    a(f'v_and_b32 v{t2}, 31, v{l}')
    a(f'v_lshlrev_b32 v{t2}, 10, v{t2}')
    a(f'v_lshrrev_b32 v{t0}, 5, v{l}')
    a(f'v_lshl_add_u32 v{t2}, v{t0}, 3, v{t2}')
    x_rowmajor_off(a, g, T0)
    for q in range(4):
        a(f'buffer_load_dwordx2 {V(xr+2*q,2)}, v{t2}, s[{sAUX}:{sAUX+3}], s{T0} offen offset:{q*16}'); vm.add('p')
    lane8_off(a, vSt, l, t0)
    frag_tile_off(a, T0, g, X1F, 32)
    for q in range(4):
        a(f'buffer_load_dwordx2 {V(x1r+2*q,2)}, v{vSt}, {ws}, s{T0} offen offset:{q*512} {LDF}'); vm.add('p')
    for i in range(WD): g.issue_w(i)
    g.nw = WD
    g.zero_acc(skip00=True)
    ac = g.acc[0][0]
    a(f's_waitcnt vmcnt({vm.wait_for("p")})')
    for j in range(8):
        a(f'v_lshlrev_b32 v{ac+2*j}, 16, v{xr+j}')
        a(f'v_and_b32 v{ac+2*j+1}, 0xffff0000, v{xr+j}')
        a(f'v_lshlrev_b32 v{t0}, 16, v{x1r+j}')
        a(f'v_and_b32 v{t1}, 0xffff0000, v{x1r+j}')
        a(f'v_add_f32 v{ac+2*j}, v{ac+2*j}, v{t0}')
        a(f'v_add_f32 v{ac+2*j+1}, v{ac+2*j+1}, v{t1}')
    dstamp(a, 'g4pre')
    wait_status(a, B_C3)
    dstamp(a, 'g4x')
    if os.environ.get('P4'): a(f's_setprio {os.environ["P4"]}')
    g.run(0, 22, xlimit=22)
    if os.environ.get('P4'): a('s_setprio 3')
    cstamp(a); dstamp(a, 'g4loop')
    wait_status(a, B_CA)
    dstamp(a, 'g5x')
    g.run(22, 30)
    dstamp(a, 'g5loop')
    ac = g.reduce()
    srd(a, sAUX, pOUT, 2048 * 1024)
    pk = g.acc[1][0]; vo = vSt
    a(f'v_and_b32 v{vo}, 31, v{l}')
    a(f'v_lshlrev_b32 v{vo}, 10, v{vo}')
    a(f'v_lshrrev_b32 v{t0}, 5, v{l}')
    a(f'v_lshl_add_u32 v{vo}, v{t0}, 4, v{vo}')
    x_rowmajor_off(a, g, T0)
    pack_swap(a, ac, pk)
    for pr in range(2):
        a(f'buffer_store_dwordx4 {V(pk+4*pr,4)}, v{vo}, s[{sAUX}:{sAUX+3}], s{T0} offen offset:{pr*32}')
    return va.hi

VT = 1056
ATT_BUF = 8192 + 8 * VT
NBUF = 4
def R(b, n): return V(b, n)

def att_head(a, sHead):
    a(f's_and_b32 s{T0}, s2, 7')
    a(f's_lshl_b32 s{sHead}, s{T0}, 2')
    a(f's_lshr_b32 s{T0}, s2, 3')
    a(f's_and_b32 s{T0}, s{T0}, 3')
    a(f's_add_u32 s{sHead}, s{sHead}, s{T0}')

def kv_loader(a):
    l = 1; vL16, vF, vV = 4, 6, 7
    sHead, sKoff, sVoff = sRB, sX0, sX1
    att_head(a, sHead)
    a(f'v_lshlrev_b32 v{vL16}, 4, v{l}')
    a(f's_lshl_b32 s{sKoff}, s{sHead}, 10')
    a(f's_add_u32 s{sVoff}, s{sKoff}, {hex(VF)}')
    a(f's_add_u32 s{sKoff}, s{sKoff}, {hex(KF)}')
    sLd, sCh = sW0, sW1
    a(f's_mov_b32 s{sLd}, 0')
    def lchunk(c):
        lp = a.newlabel('Lpk'); ld = a.newlabel('Lpkd')
        a.label(lp)
        a(f'ds_read_b32 v{vV}, v{vF} offset:{F_KVM}')
        a('s_waitcnt lgkmcnt(0)')
        a(f'v_readfirstlane_b32 s{T0}, v{vV}')
        a(f's_lshr_b32 s{T1}, s{T0}, 1')
        a(f's_and_b32 s{T0}, s{T0}, s{T1}')
        a(f's_and_b32 s{T0}, s{T0}, 0x5555')
        a(f's_andn2_b32 s{T0}, s{T0}, s{sLd}')
        a(f's_cbranch_scc1 {ld}')
        a('s_sleep 1')
        spin_guard(a)
        a(f's_branch {lp}')
        a.label(ld)
        a(f's_ff1_i32_b32 s{sCh}, s{T0}')
        a(f's_bitset1_b32 s{sLd}, s{sCh}')
        a(f's_lshl_b32 s{sCh}, s{sCh}, 17')
        a(f's_add_u32 s{T1}, s{sKoff}, s{sCh}')
        a(f's_add_u32 s{T2}, s{sVoff}, s{sCh}')
        b = (c % NBUF) * ATT_BUF
        for j in range(8):
            a(f's_mov_b32 m0, {b + j*1024}')
            a(f's_add_u32 s{T0}, s{T1}, {j*32768}')
            a(f'buffer_load_dwordx4 v{vL16}, {ws}, s{T0} offen {LDF} lds')
            a(f's_mov_b32 m0, {b + 8192 + j*VT}')
            a(f's_add_u32 s{T0}, s{T2}, {j*32768}')
            a(f'buffer_load_dwordx4 v{vL16}, {ws}, s{T0} offen {LDF} lds')
    def publish(c):
        a(f'v_mov_b32 v{vV}, {c + 1}')
        a(f'ds_write_b32 v{vF}, v{vV} offset:{F_KRDY}')
    a(f'v_mov_b32 v{vF}, {FL}')
    request(a, B_QKV)
    lchunk(0)
    a('s_waitcnt vmcnt(0)'); publish(0)
    lchunk(1)
    a('s_waitcnt vmcnt(0)'); publish(1)
    lchunk(2)
    lchunk(3) if False else None
    a('s_waitcnt vmcnt(0)'); publish(2)
    lchunk(3)
    if TOUCH:
        a('s_waitcnt vmcnt(0)'); publish(3)
        a('s_setprio 1')
        l2_touch(a, pW4, 1376 * 1024, 12, 13)
        l2_touch(a, pWO, 512 * 1024, 12, 13)
        a('s_setprio 3')
    for c in range(4, 8):
        wait_min4(a, F_KDONE, c - 3, 8, sleep=int(os.environ.get('LSL', '8')))
        lchunk(c)
        a('s_waitcnt vmcnt(16)'); publish(c - 1)
    a('s_waitcnt vmcnt(0)'); publish(7)
    a('s_waitcnt lgkmcnt(0)')
    a('s_endpgm')

def att_compute(a):
    va = RegAlloc(V0, 256); l = 1
    sHead, sTT, sKoff, sVoff, sC, sBn, sFb = sRB, sCB, sX0, sX1, sW0, sW1, sRow0
    sEx = 50
    att_head(a, sHead)
    a(f's_lshr_b32 s{sTT}, s2, 5')
    a(f's_lshl_b32 s{sTT}, s{sTT}, 3')
    a(f's_lshl_b32 s{T0}, s{sW}, 1')
    a(f's_add_u32 s{sTT}, s{sTT}, s{T0}')
    a(f's_mov_b32 s{sEx}, 0x0000ffff'); a(f's_mov_b32 s{sEx+1}, 0x0000ffff')
    vL16 = va(); vVo = va(); t0 = va(); t1 = va()
    vK = [va(), va()]; vV0 = [va(), va()]; vV1 = [va(), va()]
    vV0b = va(); vV1b = va(); vF = va(); vDn = va(); vR = va(); vP = va()
    SA, SB_, NA, NB, OA, OB = [va(16, 4) for _ in range(6)]
    P = va(8, 4); QA = va(4); QB = va(4)
    K = [va(4), va(4)]; Vv = [va(8, 4), va(8, 4)]
    a(f'v_lshlrev_b32 v{vL16}, 4, v{l}')
    a(f's_mov_b32 s{sBn}, {ATT_BUF}')
    a(f'v_and_b32 v{vVo}, 15, v{l}')
    a(f'v_lshlrev_b32 v{vVo}, 4, v{vVo}')
    a(f'v_lshrrev_b32 v{t0}, 5, v{l}')
    a(f'v_lshl_add_u32 v{vVo}, v{t0}, 8, v{vVo}')
    a(f'v_and_b32 v{t0}, 31, v{l}')
    a(f'v_cmp_eq_u32 vcc, 16, v{t0}')
    a(f'v_mov_b32 v{t1}, {8192+1040}')
    a(f'v_mov_b32 v{vV0b}, {8192+1024}')
    a(f'v_cndmask_b32 v{t1}, v{t1}, v{vV0b}, vcc')
    a(f'v_cmp_gt_u32 vcc, 16, v{t0}')
    a(f'v_add_u32 v{vV0b}, 8192, v{vVo}')
    a(f'v_add_u32 v{vV1b}, {8192+512}, v{vVo}')
    a(f'v_cndmask_b32 v{vV0b}, v{t1}, v{vV0b}, vcc')
    a(f'v_cndmask_b32 v{vV1b}, v{t1}, v{vV1b}, vcc')
    a(f'v_and_b32 v{t0}, 1, v{l}')
    a(f'v_cmp_eq_u32 vcc, 0, v{t0}')
    a(f'v_mov_b32 v{t1}, 0x3f803f80')
    a(f'v_lshlrev_b32 v{t0}, 4, v{t0}')
    for i in range(4): a(f'v_cndmask_b32 v{P+i}, 0, v{t1}, vcc')
    a(f'v_lshrrev_b32 v{t1}, 4, v{l}')
    a(f's_mov_b32 s{T0}, {ATT_BUF}')
    a(f'v_mul_lo_u32 v{t1}, v{t1}, s{T0}')
    a(f'v_add_u32 v{t0}, v{t0}, v{t1}')
    a(f'v_bfe_u32 v{t1}, v{l}, 1, 3')
    a(f's_mov_b32 s{T0}, {VT}')
    a(f'v_mul_lo_u32 v{t1}, v{t1}, s{T0}')
    a(f'v_add_u32 v{t0}, v{t0}, v{t1}')
    a(f'ds_write_b128 v{t0}, {R(P,4)} offset:{8192+1024}')
    for i in range(16):
        a(f'v_mov_b32 v{OA+i}, 0'); a(f'v_mov_b32 v{OB+i}, 0')
    for i in range(4):
        a(f'v_mov_b32 v{P+4+i}, 0'); a(f'v_mov_b32 v{Vv[1]+4+i}, 0')
    a(f'v_mov_b32 v{vK[0]}, v{vL16}'); a(f'v_mov_b32 v{vV0[0]}, v{vV0b}'); a(f'v_mov_b32 v{vV1[0]}, v{vV1b}')
    a(f'v_add_u32 v{vK[1]}, {ATT_BUF}, v{vL16}')
    a(f'v_add_u32 v{vV0[1]}, {ATT_BUF}, v{vV0b}')
    a(f'v_add_u32 v{vV1[1]}, {ATT_BUF}, v{vV1b}')
    a(f's_mov_b32 s{sFb}, 0')
    a(f'v_mov_b32 v{vF}, {FL}')
    a(f's_lshl_b32 s{T0}, s{sW}, 2')
    a(f's_add_u32 s{T0}, s{T0}, {FL + F_KDONE}')
    a(f'v_mov_b32 v{vDn}, s{T0}')
    a(f'v_mov_b32 v{vP}, 0')
    request(a, B_QKV)
    lpq = a.newlabel('Lqm'); ldq = a.newlabel('Lqmd')
    a(f's_lshr_b32 s{T1}, s{sTT}, 2')
    a.label(lpq)
    a(f'ds_read_b32 v{vR}, v{vF} offset:{F_QM}')
    a('s_waitcnt lgkmcnt(0)')
    a(f'v_readfirstlane_b32 s{T0}, v{vR}')
    a(f's_bitcmp1_b32 s{T0}, s{T1}')
    a(f's_cbranch_scc1 {ldq}')
    a('s_sleep 1')
    spin_guard(a)
    a(f's_branch {lpq}')
    a.label(ldq)
    dstamp(a, 'aflag')
    a(f's_lshl_b32 s{T0}, s{sTT}, 5')
    a(f's_add_u32 s{T0}, s{T0}, s{sHead}')
    a(f's_lshl_b32 s{T0}, s{T0}, 10')
    a(f'buffer_load_dwordx4 {R(QA,4)}, v{vL16}, {ws}, s{T0} offen {LDF}')
    a(f's_add_u32 s{T0}, s{T0}, 32768')
    a(f'buffer_load_dwordx4 {R(QB,4)}, v{vL16}, {ws}, s{T0} offen {LDF}')
    def spin_ready(val):
        lp = a.newlabel('at_sp'); ld = a.newlabel('at_ok')
        a.label(lp)
        a(f'ds_read_b32 v{vR}, v{vF} offset:{F_KRDY}')
        a('s_waitcnt lgkmcnt(0)')
        a(f'v_readfirstlane_b32 s{T0}, v{vR}')
        a(f's_cmp_gt_u32 s{T0}, {val}')
        a(f's_cbranch_scc1 {ld}')
        a('s_sleep 1')
        spin_guard(a)
        a(f's_branch {lp}')
        a.label(ld)
    spin_ready('0')
    a('s_waitcnt vmcnt(0)')
    cstamp(a); dstamp(a, 'astart')
    a(f'ds_read_b128 {R(K[0],4)}, v{vK[0]}')
    a(f'ds_read_b128 {R(K[1],4)}, v{vK[0]} offset:1024')
    a(f'ds_read_b128 {R(Vv[0],4)}, v{vV0[0]}')
    a(f'ds_read_b128 {R(Vv[0]+4,4)}, v{vV1[0]}')
    a('s_waitcnt lgkmcnt(3)')
    a(f'{MF} {R(SA,16)}, {R(K[0],4)}, {R(QA,4)}, 0')
    a(f'{MF} {R(SB_,16)}, {R(K[0],4)}, {R(QB,4)}, 0')
    a('s_nop 10')
    def rowmax_to_neg(S_, N_):
        a(f'v_max3_f32 v{t0}, v{S_}, v{S_+1}, v{S_+2}')
        for i in range(3, 15, 2): a(f'v_max3_f32 v{t0}, v{t0}, v{S_+i}, v{S_+i+1}')
        a(f'v_max_f32 v{t0}, v{t0}, v{S_+15}')
        a(f'v_mov_b32 v{t1}, v{t0}')
        a('s_nop 1')
        a(f'v_permlane32_swap_b32 v{t0}, v{t1}')
        a('s_nop 1')
        a(f'v_max_f32 v{t0}, v{t0}, v{t1}')
        for i in range(16): a(f'v_sub_f32 v{N_+i}, 0, v{t0}')
    rowmax_to_neg(SA, NA)
    rowmax_to_neg(SB_, NB)
    a('s_nop 1')
    a(f'{MF} {R(SA,16)}, {R(K[0],4)}, {R(QA,4)}, {R(NA,16)}')
    a(f's_mov_b32 s{sC}, 0')
    a('s_waitcnt lgkmcnt(0)')
    a('s_nop 8')
    a('s_setprio 0')
    if os.environ.get('SPINC'): a('s_mov_b32 s94, s92')
    a.label('att_loop')
    for t in range(8):
        Kc, Kn = K[t % 2], K[(t + 1) % 2]
        Vc, Vn = Vv[t % 2], Vv[(t + 1) % 2]
        for sub in range(2):
            cur = [SA, SB_][sub]
            if sub == 0:
                qk = f'{MF} {R(SB_,16)}, {R(Kc,4)}, {R(QB,4)}, {R(NB,16)}'
                pv1 = f'{MF} {R(OB,16)}, {R(Vn+4,4)}, {R(P+4,4)}, {R(OB,16)}'
            else:
                qk = f'{MF} {R(SA,16)}, {R(Kn,4)}, {R(QA,4)}, {R(NA,16)}'
                pv1 = f'{MF} {R(OA,16)}, {R(Vc+4,4)}, {R(P+4,4)}, {R(OA,16)}'
            Oc = [OA, OB][sub]
            pv0 = f'{MF} {R(Oc,16)}, {R(Vc,4)}, {R(P,4)}, {R(Oc,16)}'
            ex = [f'v_exp_f32 v{cur+i}, v{cur+i}' for i in range(16)]
            cv = [f'v_cvt_pk_bf16_f32 v{P+i}, v{cur+2*i}, v{cur+2*i+1}' for i in range(8)]
            a(qk)
            for s in ex[0:6]: a(s)
            a(pv1)
            if sub == 0:
                a('s_waitcnt lgkmcnt(0)')
                if t == 6:
                    l1 = a.newlabel('att_rdy')
                    a(f'v_readfirstlane_b32 s{T0}, v{vR}')
                    a(f's_min_u32 s{T1}, s{sC}, 6')
                    a(f's_add_u32 s{T1}, s{T1}, 1')
                    a(f's_cmp_gt_u32 s{T0}, s{T1}')
                    a(f's_cbranch_scc1 {l1}')
                    spin_ready(f's{T1}')
                    a.label(l1)
                if t == 7:
                    a(f'v_add_u32 v{vP}, 1, v{vP}')
                    a(f'ds_write_b32 v{vDn}, v{vP}')
                if t == 5:
                    a(f'ds_read_b32 v{vR}, v{vF} offset:{F_KRDY}')
                kb = vK[0] if t + 2 < 8 else vK[1]
                b_ = 0 if t + 1 < 8 else 1
                a(f'ds_read_b128 {R(Kc,4)}, v{kb} offset:{((t+2)%8)*1024}')
                a(f'ds_read_b128 {R(Vn,4)}, v{vV0[b_]} offset:{((t+1)%8)*VT}')
                a(f'ds_read_b128 {R(Vn+4,4)}, v{vV1[b_]} offset:{((t+1)%8)*VT}')
            for s in ex[6:8] + cv[0:4] + ex[8:10]: a(s)
            a(pv0)
            for s in ex[10:16] + cv[4:8]: a(s)
    a(f'v_mov_b32 v{vK[0]}, v{vK[1]}'); a(f'v_mov_b32 v{vV0[0]}, v{vV0[1]}'); a(f'v_mov_b32 v{vV1[0]}, v{vV1[1]}')
    a(f's_add_u32 s{sBn}, s{sBn}, {ATT_BUF}')
    a(f's_cmp_eq_u32 s{sBn}, {NBUF*ATT_BUF}')
    a(f's_cselect_b32 s{sBn}, 0, s{sBn}')
    a(f'v_add_u32 v{vK[1]}, s{sBn}, v{vL16}')
    a(f'v_add_u32 v{vV0[1]}, s{sBn}, v{vV0b}')
    a(f'v_add_u32 v{vV1[1]}, s{sBn}, v{vV1b}')
    a(f's_add_u32 s{sC}, s{sC}, 1')
    a(f's_cmp_lt_u32 s{sC}, 8')
    a('s_cbranch_scc1 att_loop')
    a(f'{MF} {R(OB,16)}, {R(Vv[1]+4,4)}, {R(P+4,4)}, {R(OB,16)}')
    a('s_setprio 3')
    cstamp(a)
    a('s_waitcnt lgkmcnt(0)')
    a.label('att_fin')
    a('s_nop 12')
    LA, LB = SA, SA + 2
    for L_, O_ in ((LA, OA), (LB, OB)):
        a(f'v_mov_b32 v{L_}, v{O_+8}'); a(f'v_mov_b32 v{L_+1}, v{O_+8}')
    a('s_nop 1')
    a(f'v_permlane32_swap_b32 v{LA}, v{LA+1}')
    a(f'v_permlane32_swap_b32 v{LB}, v{LB+1}')
    lok = a.newlabel('att_ok')
    a(f's_cmp_lg_u32 s{sFb}, 0')
    a(f's_cbranch_scc1 {lok}')
    a(f's_mov_b32 s{T0}, {hex(f32bits(2.0**-60))}')
    a(f's_mov_b32 s{T1}, {hex(f32bits(2.0**60))}')
    a(f'v_cmp_nle_f32 vcc, s{T0}, v{LA}')
    a(f'v_cmp_nge_f32 s[54:55], s{T1}, v{LA}')
    a('s_or_b64 s[52:53], vcc, s[54:55]')
    a(f'v_cmp_nle_f32 vcc, s{T0}, v{LB}')
    a(f'v_cmp_nge_f32 s[54:55], s{T1}, v{LB}')
    a('s_or_b64 vcc, vcc, s[54:55]')
    a('s_or_b64 vcc, vcc, s[52:53]')
    a('s_cbranch_scc1 att_fallback')
    a.label(lok)
    a(f'v_rcp_f32 v{LA}, v{LA}')
    a(f'v_rcp_f32 v{LB}, v{LB}')
    a(f's_lshl_b32 s{T0}, s{sTT}, 5')
    a(f's_add_u32 s{T0}, s{T0}, s{sHead}')
    a(f's_lshl_b32 s{T0}, s{T0}, 10')
    a(f's_add_u32 s{T0}, s{T0}, {hex(OF)}')
    for n, (L_, O_) in enumerate(((LA, OA), (LB, OB))):
        for i in range(8): a(f'v_mul_f32 v{O_+i}, v{O_+i}, v{L_}')
        for i in range(4): a(f'v_cvt_pk_bf16_f32 v{P+4*n+i}, v{O_+2*i}, v{O_+2*i+1}')
        if n: a(f's_add_u32 s{T0}, s{T0}, 32768')
        a('s_nop 1')
        b = P + 4 * n
        a(f'v_permlane32_swap_b32 v{b}, v{b+2}')
        a(f'v_permlane32_swap_b32 v{b+1}, v{b+3}')
        a('s_nop 1')
        a(f'buffer_store_dwordx4 {R(b,4)}, v{vL16}, {ws}, s{T0} offen sc1')
    a(f's_lshr_b32 s{T1}, s{sTT}, 1')
    mb_signal(a, M_CA, 8, id_rows(a, T1, False), group=False)
    if os.environ.get('SPINC'):
        a('s_waitcnt lgkmcnt(0)')
        a('s_mov_b32 s76, s94'); a('s_mov_b32 s80, s92')
    stamp_flush(a, 5, 1)
    a('s_endpgm')
    a.label('att_fallback')
    a(f's_mov_b32 s{sFb}, 1')
    a(f's_lshl_b32 s{sKoff}, s{sHead}, 10')
    a(f's_add_u32 s{sVoff}, s{sKoff}, {hex(VF)}')
    a(f's_add_u32 s{sKoff}, s{sKoff}, {hex(KF)}')
    for i in range(16):
        a(f'v_mov_b32 v{NA+i}, 0xff800000'); a(f'v_mov_b32 v{NB+i}, 0xff800000')
    a(f's_mov_b32 s{sC}, 0')
    a(f's_mov_b32 s{T0}, s{sKoff}')
    a.label('att_fb1')
    a(f'buffer_load_dwordx4 {R(K[0],4)}, v{vL16}, {ws}, s{T0} offen {LDF}')
    a('s_waitcnt vmcnt(0)')
    a(f'{MF} {R(SA,16)}, {R(K[0],4)}, {R(QA,4)}, 0')
    a(f'{MF} {R(SB_,16)}, {R(K[0],4)}, {R(QB,4)}, 0')
    a('s_nop 12')
    for i in range(16): a(f'v_max_f32 v{NA+i}, v{NA+i}, v{SA+i}')
    for i in range(16): a(f'v_max_f32 v{NB+i}, v{NB+i}, v{SB_+i}')
    a(f's_add_u32 s{T0}, s{T0}, 32768')
    a(f's_add_u32 s{sC}, s{sC}, 1')
    a(f's_cmp_lt_u32 s{sC}, 64')
    a('s_cbranch_scc1 att_fb1')
    for i in range(16):
        a(f'v_mov_b32 v{SA+i}, v{NA+i}'); a(f'v_mov_b32 v{SB_+i}, v{NB+i}')
    rowmax_to_neg(SA, NA)
    rowmax_to_neg(SB_, NB)
    for i in range(16):
        a(f'v_mov_b32 v{OA+i}, 0'); a(f'v_mov_b32 v{OB+i}, 0')
    a(f'v_and_b32 v{t0}, 31, v{l}')
    a(f'v_cmp_eq_u32 vcc, 16, v{t0}')
    a(f'v_mov_b32 v{t1}, 0x3f803f80')
    a('s_nop 0')
    for i in range(8): a(f'v_cndmask_b32 v{Vv[0]+i}, 0, v{t1}, vcc')
    a(f's_mov_b32 s{sC}, 0')
    a.label('att_fb2')
    a(f'buffer_load_dwordx4 {R(K[0],4)}, v{vL16}, {ws}, s{sKoff} offen {LDF}')
    a(f's_mov_b64 exec, s[{sEx}:{sEx+1}]')
    a(f'buffer_load_dwordx4 {R(Vv[0],4)}, v{vVo}, {ws}, s{sVoff} offen {LDF}')
    a(f'buffer_load_dwordx4 {R(Vv[0]+4,4)}, v{vVo}, {ws}, s{sVoff} offen offset:512 {LDF}')
    a('s_mov_b64 exec, -1')
    a('s_waitcnt vmcnt(0)')
    a(f'{MF} {R(SA,16)}, {R(K[0],4)}, {R(QA,4)}, {R(NA,16)}')
    a(f'{MF} {R(SB_,16)}, {R(K[0],4)}, {R(QB,4)}, {R(NB,16)}')
    a('s_nop 12')
    for S_, O_ in ((SA, OA), (SB_, OB)):
        for i in range(16): a(f'v_exp_f32 v{S_+i}, v{S_+i}')
        a('s_nop 0')
        for i in range(8): a(f'v_cvt_pk_bf16_f32 v{P+i}, v{S_+2*i}, v{S_+2*i+1}')
        a('s_nop 1')
        a(f'{MF} {R(O_,16)}, {R(Vv[0],4)}, {R(P,4)}, {R(O_,16)}')
        a(f'{MF} {R(O_,16)}, {R(Vv[0]+4,4)}, {R(P+4,4)}, {R(O_,16)}')
    a(f's_add_u32 s{sKoff}, s{sKoff}, 32768')
    a(f's_add_u32 s{sVoff}, s{sVoff}, 32768')
    a(f's_add_u32 s{sC}, s{sC}, 1')
    a(f's_cmp_lt_u32 s{sC}, 64')
    a('s_nop 7'); a('s_nop 7')
    a('s_cbranch_scc1 att_fb2')
    a('s_branch att_fin')
    return va.hi

def full_kernel(a):
    name = NAME + '_kernel'
    kernel_header(a, name)
    a('s_cmp_ge_u32 s2, 256')
    a('s_cbranch_scc1 k_end')
    stamp(a, 0)
    if os.environ.get('DBGT'):
        a('s_memtime s[64:65]'); a('s_memrealtime s[66:67]')
    a('s_mov_b32 s92, 0')
    a('s_load_dwordx4 s[24:27], s[0:1], 0')
    a('s_load_dwordx2 s[28:29], s[0:1], 16')
    a('s_load_dwordx2 s[30:31], s[0:1], 32')
    a('s_load_dwordx2 s[32:33], s[0:1], 40')
    a('s_load_dwordx8 s[84:91], s[0:1], 48')
    a('s_load_dwordx2 s[34:35], s[0:1], 80')
    SB.on = True; SB.base = FL + 64; SB.n = 0; SB.vA = vSA; SB.vB = vSB; SB.sT = T3; SB.maxn = 48
    a('v_cmp_gt_u32 vcc, 64, v0')
    a('s_and_saveexec_b64 s[36:37], vcc')
    lz = a.newlabel('Lz')
    a(f's_cbranch_execz {lz}')
    a('v_lshlrev_b32 v1, 2, v0')
    a(f'v_add_u32 v1, {FL}, v1')
    a('v_mov_b32 v2, 0')
    a('ds_write_b32 v1, v2')
    a.label(lz)
    a('s_mov_b64 exec, -1')
    sWv = 58
    wave_lane(a, sWv, 1)
    a('s_waitcnt lgkmcnt(0)')
    srd(a, sWS, pWS, WS_BYTES)
    a('s_setprio 3')
    va_ = RegAlloc(V0, 256)
    lnb = a.newlabel('Lnl')
    a(f's_sub_u32 s{sW}, s{sWv}, 5')
    a(f's_cmp_ge_u32 s{sW}, 4')
    a(f's_cbranch_scc1 {lnb}')
    ln = ln_issue(a, va_)
    a.label(lnb)
    a('s_barrier')
    a(f's_cmp_eq_u32 s{sWv}, 9')
    a('s_cbranch_scc1 k_sentinel')
    a(f's_cmp_eq_u32 s{sWv}, 4')
    a('s_cbranch_scc1 k_loader')
    a(f's_cmp_ge_u32 s{sWv}, 5')
    a('s_cbranch_scc1 k_chain')
    a(f's_mov_b32 s{sW}, s{sWv}')
    CS.n = 1
    hi = g1_stage(a)
    hi = max(hi, att_compute(a))
    a.label('k_chain')
    a(f's_sub_u32 s{sW}, s{sWv}, 5')
    a('v_subrev_u32 v0, 320, v0')
    a('s_waitcnt vmcnt(0)')
    ln_stats(a, ln, va_(40, 4))
    srd(a, sDBG, pDBG, 256)
    a('s_barrier')
    a('s_waitcnt vmcnt(0)')
    a('s_barrier')
    lsg = a.newlabel('Lls')
    a(f's_cmp_lg_u32 s{sW}, 0')
    a(f's_cbranch_scc1 {lsg}')
    a(f's_and_b32 s{T0}, s2, 0xf0')
    a(f'v_mov_b32 v{vSA}, 0'); a(f'v_mov_b32 v{vSB}, 1')
    a('s_mov_b64 exec, 1')
    a(f'buffer_atomic_add v{vSB}, v{vSA}, s[{sDBG}:{sDBG+3}], s{T0} offen sc1')
    a('s_mov_b64 exec, -1')
    a.label(lsg)
    a(f's_setprio {PRIO}')
    CS.n = 1
    hi = max(hi, g2_stage(a))
    cstamp(a)
    hi = max(hi, g3_stage(a, 'k_g4'))
    a.label('k_g4')
    cstamp(a)
    hi = max(hi, g45_stage(a))
    stamp_flush(a, 5, 2)
    if os.environ.get('DBGT'):
        lq = a.newlabel('Ldbg')
        a('s_cmp_lg_u32 s2, 8')
        a(f's_cbranch_scc1 {lq}')
        a('s_waitcnt vmcnt(0)')
        a('s_memtime s[68:69]'); a('s_memrealtime s[70:71]')
        a('s_waitcnt lgkmcnt(0)')
        a('s_sub_u32 s68, s68, s64'); a('s_sub_u32 s70, s70, s66')
        srd(a, sDBG, pDBG, 256)
        a('v_mov_b32 v4, s68'); a('v_mov_b32 v5, s70'); a('v_mov_b32 v6, 4')
        a('s_mov_b64 exec, 1')
        a(f'buffer_store_dwordx2 v[4:5], v6, s[{sDBG}:{sDBG+3}], 0 offen')
        a.label(lq)
    a('s_endpgm')
    a.label('k_loader')
    CPF = int(os.environ.get('CPF', '0'))
    if CPF:
        a('s_getpc_b64 s[52:53]')
        a.label('k_pc')
        a(f's_sub_u32 s52, s52, k_pc-{NAME}_kernel')
        a('s_subb_u32 s53, s53, 0')
        a(f'v_lshlrev_b32 v4, 7, v1')
        a(f's_mov_b32 s{T1}, k_end-{NAME}_kernel')
        if CPF == 1:
            a(f's_lshr_b32 s{T0}, s2, 3')
            a(f's_and_b32 s{T0}, s{T0}, 7')
            a(f's_lshl_b32 s{T0}, s{T0}, 13')
            a(f'v_add_u32 v4, s{T0}, v4')
            a(f'v_min_u32 v4, s{T1}, v4')
            a(f'global_load_dword v10, v4, s[52:53]')
        else:
            lc = a.newlabel('Lcp')
            a('s_cmp_ge_u32 s2, 16')
            a(f's_cbranch_scc1 {lc}')
            for k in range(8):
                a(f'v_min_u32 v5, s{T1}, v4')
                a(f'global_load_dword v10, v5, s[52:53]')
                a(f'v_add_u32 v4, 8192, v4')
            a.label(lc)
    for k in range(10): a('s_barrier')
    kv_loader(a)
    a.label('k_sentinel')
    sentinel(a)
    a.label('k_end')
    a('s_endpgm')
    SB.on = False
    return name, hi, LDS_TOTAL

if __name__ == '__main__':
    build([(full_kernel, 256, 640)], sys.argv[1])
```

```python
import sys
from core2 import *

XNF  = 0x1200000
XNNF = 0x1400000
CL, CQ, C1, C2, C3, CA, CC = [FLG + i * 128 for i in (0, 16, 32, 64, 96, 112, 144)]
NCNT = 192

FL = 163584
F_STATUS, F_WRDY, F_KRDY, F_REQ, F_WDONE, F_KDONE = 0, 4, 8, 12, 16, 32
B_BASE = 98304
G3_BASE = 81920
LDS_TOTAL = 163840
ZOK = 1 << 31
B_QKV, B_C1, B_C2, B_C3, B_CA, B_XA, B_XB = 1, 2, 4, 8, 16, 0x100, 0x200
ALLB = 0x1f
M_QKV, M_C1, M_C2, M_C3, M_CA = 0, 4, 8, 12, 16
F_MZ = 48
F_QM, F_KVM = 52, 56

ws = f's[{sWS}:{sWS+3}]'
PRIO = int(os.environ.get('PRIO', '2'))
WD = 7; WRING = 14336
sW, sRB, sCB, sRow0 = 36, 37, 38, 39
sX0, sX1, sW0, sW1 = 40, 41, 42, 47
T0, T1, T2, T3 = 43, 44, 45, 46
STMP = 48
sW2SRD = 20
sJ0, sJ1, sJ2, sJ3, sNN = 60, 61, 62, 63, 57
pX, pQKV, pWO, pW1, pW2, pW3, pW4, pOUT, pDBG, pWS = 24, 26, 28, 30, 32, 84, 86, 88, 90, 34
vSA, vSB = 2, 3
V0 = 4

LNST = os.environ.get('LNST', '0') == '1'
TOUCH = os.environ.get('TOUCH', '1') == '1'
LDF = os.environ.get('LDF', '')
class CS:
    n = 1
DST = [x for x in os.environ.get('DST', '').split(',') if x]
def cstamp(a):
    if DST: return
    if CS.n <= 4: stamp(a, CS.n)
    CS.n += 1
def dstamp(a, name):
    if name in DST: stamp(a, DST.index(name) + 1)

def request(a, mask):
    a(f'v_mov_b32 v{vSA}, {FL}')
    a(f'v_mov_b32 v{vSB}, {hex(mask)}')
    a('s_mov_b64 exec, 1')
    a(f'ds_or_b32 v{vSA}, v{vSB} offset:{F_REQ}')
    a('s_mov_b64 exec, -1')

def wait_status(a, mask, sleep=int(os.environ.get('WSL', '1'))):
    lp = a.newlabel('Lws'); ld = a.newlabel('Lwd')
    if mask != ZOK: request(a, mask)
    else: a(f'v_mov_b32 v{vSA}, {FL}')
    a.label(lp)
    a(f'ds_read_b32 v{vSB}, v{vSA} offset:{F_STATUS}')
    a('s_waitcnt lgkmcnt(0)')
    a(f'v_readfirstlane_b32 s{T3}, v{vSB}')
    a(f's_and_b32 s{T3}, s{T3}, {hex(mask)}')
    a(f's_cmp_eq_u32 s{T3}, {hex(mask)}')
    a(f's_cbranch_scc1 {ld}')
    a(f's_sleep {sleep}')
    spin_guard(a)
    a(f's_branch {lp}')
    a.label(ld)

def wait_lds_ge(a, off, val, sleep=1):
    lp = a.newlabel('Lwl'); ld = a.newlabel('Lwld')
    a(f'v_mov_b32 v{vSA}, {FL}')
    a.label(lp)
    a(f'ds_read_b32 v{vSB}, v{vSA} offset:{off}')
    a('s_waitcnt lgkmcnt(0)')
    a(f'v_readfirstlane_b32 s{T3}, v{vSB}')
    a(f's_cmp_ge_u32 s{T3}, {val}')
    a(f's_cbranch_scc1 {ld}')
    a(f's_sleep {sleep}')
    spin_guard(a)
    a(f's_branch {lp}')
    a.label(ld)

def wait_min4(a, off, val, q, sleep=2):
    lp = a.newlabel('Lwm'); ld = a.newlabel('Lwmd')
    a(f'v_mov_b32 v{vSA}, {FL}')
    a.label(lp)
    a(f'ds_read_b128 {V(q,4)}, v{vSA} offset:{off}')
    a('s_waitcnt lgkmcnt(0)')
    a(f'v_min_u32 v{q}, v{q}, v{q+1}')
    a(f'v_min3_u32 v{q}, v{q}, v{q+2}, v{q+3}')
    a('s_nop 0')
    a(f'v_readfirstlane_b32 s{T3}, v{q}')
    a(f's_cmp_ge_u32 s{T3}, {val}')
    a(f's_cbranch_scc1 {ld}')
    a(f's_sleep {sleep}')
    spin_guard(a)
    a(f's_branch {lp}')
    a.label(ld)

def signal(a, offs, nw=4, need_zok=False, srdn=sWS):
    a('s_waitcnt vmcnt(0)')
    SB.nw = nw; BAR(a); SB.nw = 4
    lab = a.newlabel('Lsig')
    a(f's_cmp_lg_u32 s{sW}, 0')
    a(f's_cbranch_scc1 {lab}')
    if need_zok: wait_status(a, ZOK)
    if srdn != sWS: wait_lds_ge(a, F_MZ, 1)
    a(f'v_mov_b32 v{vSA}, 0')
    a(f'v_mov_b32 v{vSB}, 1')
    a('s_mov_b64 exec, 1')
    for o in offs:
        a(f'buffer_atomic_add v{vSB}, v{vSA}, s[{srdn}:{srdn+3}], s{o} offen sc1')
    a('s_mov_b64 exec, -1')
    a.label(lab)

def mb_signal(a, word, nl, idfn, need_zok=False, group=True, hw=False):
    a('s_waitcnt vmcnt(0)')
    if word == M_QKV: dstamp(a, 'qdrain')
    lab = a.newlabel('Lsig')
    if group:
        if hw: a('s_barrier')
        else: BAR(a)
        if word == M_QKV: dstamp(a, 'qbar')
        a(f's_cmp_lg_u32 s{sW}, 0')
        a(f's_cbranch_scc1 {lab}')
    if need_zok: wait_status(a, ZOK)
    masked = idfn(vSA, vSB)
    a(f'v_lshlrev_b32 v{vSA}, 7, v{vSA}')
    if word == M_QKV:
        a(f's_lshl_b32 s{T0}, 1, s{sRB}')
        a(f'v_mov_b32 v{vSB}, s{T0}')
        a(f's_and_b32 s{T0}, s{sCB}, 12')
        a(f's_add_u32 s{T0}, s{T0}, {hex(FLG + 20)}')
    else:
        a(f'v_mov_b32 v{vSB}, 1')
        a(f's_mov_b32 s{T0}, {hex(FLG + word)}')
    a(f's_mov_b32 exec_lo, {hex((1 << min(nl, 32)) - 1)}'); a(f's_mov_b32 exec_hi, {hex((1 << max(nl - 32, 0)) - 1)}')
    if masked: a('s_and_b64 exec, exec, vcc')
    a(f'buffer_atomic_{"or" if word == M_QKV else "add"} v{vSB}, v{vSA}, {ws}, s{T0} offen sc1')
    a('s_mov_b64 exec, -1')
    a.label(lab)

def id64(a, vId, vRb, vCb):
    a(f'v_lshlrev_b32 v{vCb}, 5, v{vCb}')
    a(f'v_lshrrev_b32 v{vId if vId != vRb else vCb+0}, 0, v{vId if vId != vRb else vCb+0}') if False else None

def map_64x64(a):
    a(f's_and_b32 s{T0}, s2, 7')
    a(f's_lshr_b32 s{T1}, s2, 3')
    a(f's_lshl_b32 s{sRB}, s{T0}, 2')
    a(f's_and_b32 s{T2}, s{T1}, 3')
    a(f's_add_u32 s{sRB}, s{sRB}, s{T2}')
    a(f's_lshr_b32 s{sCB}, s{T1}, 2')
def map_g3(a):
    a(f's_and_b32 s{T0}, s2, 7')
    a(f's_lshr_b32 s{T1}, s2, 3')
    a(f's_lshl_b32 s{sRB}, s{T0}, 1')
    a(f's_and_b32 s{T2}, s{T1}, 1')
    a(f's_add_u32 s{sRB}, s{sRB}, s{T2}')
    a(f's_lshr_b32 s{sCB}, s{T1}, 1')
def map_qkv(a):
    a(f's_and_b32 s{T0}, s2, 7')
    a(f's_lshr_b32 s{T1}, s2, 3')
    a(f's_lshr_b32 s{T2}, s{T0}, 1')
    a(f's_lshl_b32 s{T2}, s{T2}, 2')
    a(f's_and_b32 s{T3}, s{T1}, 3')
    a(f's_add_u32 s{sRB}, s{T2}, s{T3}')
    a(f's_and_b32 s{T2}, s{T0}, 1')
    XF = os.environ.get('XFLIP', '0')
    if XF == '1': a(f's_xor_b32 s{T2}, s{T2}, 1')
    if XF == '2':
        a(f's_lshr_b32 s{T3}, s{T1}, 2')
        a(f's_lshl_b32 s{T3}, s{T3}, 1')
    else:
        a(f's_lshl_b32 s{T2}, s{T2}, 3')
        a(f's_lshr_b32 s{T3}, s{T1}, 2')
    a(f's_add_u32 s{sCB}, s{T2}, s{T3}')
def rot8(a, d0, d1, mul=1):
    a(f's_and_b32 s{T0}, s{sRB}, 3')
    a(f's_lshl_b32 s{T0}, s{T0}, 1')
    a(f's_add_u32 s{T0}, s{T0}, s{sCB}')
    a(f's_and_b32 s{d0}, s{T0}, 7')
    if mul != 1:
        a(f's_mul_i32 s{d0}, s{d0}, {mul}')
        a(f's_lshr_b32 s{d0}, s{d0}, 1')
    a(f's_mov_b32 s{d1}, s{d0}')

def pack_swap(a, ac, pk):
    for i in range(8):
        a(f'v_cvt_pk_bf16_f32 v{pk+i}, v{ac+2*i}, v{ac+2*i+1}')
    a('s_nop 1')
    for pr in range(2):
        b = pk + 4 * pr
        a(f'v_permlane32_swap_b32 v{b}, v{b+2}')
        a(f'v_permlane32_swap_b32 v{b+1}, v{b+3}')
    a('s_nop 1')
def pack_swap_store(a, ac, pk, voff, sOff):
    pack_swap(a, ac, pk)
    for pr in range(2):
        a(f'buffer_store_dwordx4 {V(pk+4*pr,4)}, v{voff}, {ws}, s{sOff} offen offset:{pr*1024} sc1')

def frag_tile_off(a, sDst, g, base, nks):
    a(f's_lshl_b32 s{sDst}, s{sRB}, 1')
    a(f's_add_u32 s{sDst}, s{sDst}, s{g.sWr}')
    a(f's_mul_i32 s{sDst}, s{sDst}, {nks}')
    a(f's_lshl_b32 s{T3}, s{sCB}, 2')
    a(f's_add_u32 s{sDst}, s{sDst}, s{T3}')
    a(f's_lshl_b32 s{T3}, s{g.sWc}, 1')
    a(f's_add_u32 s{sDst}, s{sDst}, s{T3}')
    a(f's_lshl_b32 s{sDst}, s{sDst}, 10')
    a(f's_add_u32 s{sDst}, s{sDst}, {hex(base)}')
def wsk_woffs(a, g):
    a(f's_lshl_b32 s{sW0}, s{sW}, 14')
    a(f's_lshl_b32 s{T0}, s{sCB}, 7')
    a(f's_add_u32 s{sW0}, s{sW0}, s{T0}')
    a(f's_lshl_b32 s{T0}, s{g.sWc}, 6')
    a(f's_xor_b32 s{T1}, s{T0}, 64')
    a(f's_add_u32 s{sW1}, s{sW0}, s{T1}')
    a(f's_add_u32 s{sW0}, s{sW0}, s{T0}')
def wsk_xoffs(a, g, base, xtile, d0=sX0, d1=sX1):
    a(f's_lshl_b32 s{T0}, s{sRB}, 1')
    a(f's_add_u32 s{T1}, s{T0}, s{g.sWr}')
    a(f's_mul_i32 s{d0}, s{T1}, {xtile}')
    a(f's_xor_b32 s{T1}, s{T1}, 1')
    a(f's_mul_i32 s{d1}, s{T1}, {xtile}')
    a(f's_lshl_b32 s{T0}, s{sW}, 10')
    a(f's_add_u32 s{T0}, s{T0}, {hex(base)}')
    a(f's_add_u32 s{d0}, s{d0}, s{T0}')
    a(f's_add_u32 s{d1}, s{d1}, s{T0}')
def x_rowmajor_off(a, g, sDst):
    a(f's_lshl_b32 s{sDst}, s{sRB}, 16')
    a(f's_lshl_b32 s{T1}, s{g.sWr}, 15')
    a(f's_add_u32 s{sDst}, s{sDst}, s{T1}')
    a(f's_lshl_b32 s{T1}, s{sCB}, 7')
    a(f's_add_u32 s{sDst}, s{sDst}, s{T1}')
    a(f's_lshl_b32 s{T1}, s{g.sWc}, 6')
    a(f's_add_u32 s{sDst}, s{sDst}, s{T1}')
def lane8_off(a, v, l, t):
    a(f'v_and_b32 v{v}, 31, v{l}')
    a(f'v_lshlrev_b32 v{v}, 4, v{v}')
    a(f'v_lshrrev_b32 v{t}, 5, v{l}')
    a(f'v_lshl_add_u32 v{v}, v{t}, 3, v{v}')
def unpack(a, src, dst, n):
    for j in range(n):
        a(f'v_lshlrev_b32 v{dst+2*j}, 16, v{src+j}')
        a(f'v_and_b32 v{dst+2*j+1}, 0xffff0000, v{src+j}')
def ln_scalars(a, mean, ex2, q, n):
    var, m1, s1, rs = q[0], q[1], q[2], q[3]
    a(f'v_mul_f32 v{mean}, {hex(f32bits(1/n))}, v{mean}')
    a(f'v_mul_f32 v{ex2}, {hex(f32bits(1/n))}, v{ex2}')
    a(f'v_fma_f32 v{var}, -v{mean}, v{mean}, v{ex2}')
    a(f'v_max_f32 v{var}, 0, v{var}')
    a(f'v_mov_b32 v{m1}, v{mean}'); bf16_round(a, m1)
    a(f'v_mov_b32 v{s1}, v{var}'); bf16_round(a, s1)
    a(f'v_add_f32 v{s1}, {hex(f32bits(EPS))}, v{s1}'); bf16_round(a, s1)
    a(f'v_sqrt_f32 v{s1}, v{s1}'); a('s_nop 0'); bf16_round(a, s1)
    a(f'v_rcp_f32 v{rs}, v{s1}'); a('s_nop 0')

def ln_issue(a, va):
    r = G(); l = 1
    r.raw = [va(4), va(4)]; r.vL16 = va()
    a(f'v_lshlrev_b32 v{r.vL16}, 4, v{l}')
    srd(a, sAUX, pX, 2048 * 1024)
    a(f's_lshl_b32 s{T0}, s2, 3')
    a(f's_lshl_b32 s{T1}, s{sW}, 1')
    a(f's_add_u32 s{sRow0}, s{T0}, s{T1}')
    a(f's_lshl_b32 s{T0}, s{sRow0}, 10')
    for k in range(2):
        a(f'buffer_load_dwordx4 {V(r.raw[k],4)}, v{r.vL16}, s[{sAUX}:{sAUX+3}], s{T0} offen offset:{k*1024}')
    return r

def ln_stats(a, r, tmp):
    RR = range(2)
    x = [tmp, tmp + 8]; s_ = [tmp + 16, tmp + 17]; t_ = [tmp + 18, tmp + 19]
    m1 = [tmp + 20, tmp + 21]; s1 = [tmp + 22, tmp + 23]; rs = [tmp + 24, tmp + 25]; m2 = [tmp + 26, tmp + 27]; s2 = [tmp + 28, tmp + 29]
    o = [tmp + 30 + k for k in range(6)]; vZ = tmp + 36
    def each(f):
        for k in RR: f(k)
    def rnd(regs):
        for rg in regs: a(f'v_cvt_pk_bf16_f32 v{rg}, v{rg}, v{rg}')
        for rg in regs: a(f'v_lshlrev_b32 v{rg}, 16, v{rg}')
    a(f'v_mov_b32 v{vZ}, 0')
    for k in RR: unpack(a, r.raw[k], x[k], 4)
    each(lambda k: a(f'v_add_f32 v{s_[k]}, v{x[k]}, v{x[k]+1}'))
    each(lambda k: a(f'v_mul_f32 v{t_[k]}, v{x[k]}, v{x[k]}'))
    each(lambda k: a(f'v_fma_f32 v{t_[k]}, v{x[k]+1}, v{x[k]+1}, v{t_[k]}'))
    for j in range(2, 8):
        each(lambda k: a(f'v_add_f32 v{s_[k]}, v{s_[k]}, v{x[k]+j}'))
        each(lambda k: a(f'v_fma_f32 v{t_[k]}, v{x[k]+j}, v{x[k]+j}, v{t_[k]}'))
    a('s_nop 1')
    dpp_wave_sum(a, s_ + t_, None)
    for rg in s_ + t_: a(f'v_mul_f32 v{rg}, {hex(f32bits(1/512))}, v{rg}')
    each(lambda k: a(f'v_fma_f32 v{t_[k]}, -v{s_[k]}, v{s_[k]}, v{t_[k]}'))
    each(lambda k: a(f'v_max_f32 v{t_[k]}, 0, v{t_[k]}'))
    each(lambda k: a(f'v_mov_b32 v{m1[k]}, v{s_[k]}'))
    each(lambda k: a(f'v_mov_b32 v{s1[k]}, v{t_[k]}'))
    rnd(m1 + s1)
    each(lambda k: a(f'v_add_f32 v{s1[k]}, {hex(f32bits(EPS))}, v{s1[k]}')); rnd(s1)
    each(lambda k: a(f'v_sqrt_f32 v{s1[k]}, v{s1[k]}')); a('s_nop 0'); rnd(s1)
    each(lambda k: a(f'v_rcp_f32 v{rs[k]}, v{s1[k]}')); a('s_nop 0')
    each(lambda k: a(f'v_sub_f32 v{m2[k]}, v{s_[k]}, v{m1[k]}'))
    each(lambda k: a(f'v_mul_f32 v{m2[k]}, v{m2[k]}, v{rs[k]}'))
    each(lambda k: a(f'v_mul_f32 v{s2[k]}, v{t_[k]}, v{rs[k]}'))
    each(lambda k: a(f'v_mul_f32 v{s2[k]}, v{s2[k]}, v{rs[k]}'))
    rnd(m2 + s2)
    each(lambda k: a(f'v_add_f32 v{s2[k]}, {hex(f32bits(EPS))}, v{s2[k]}')); rnd(s2)
    each(lambda k: a(f'v_sqrt_f32 v{s2[k]}, v{s2[k]}')); a('s_nop 0'); rnd(s2)
    each(lambda k: a(f'v_rcp_f32 v{s2[k]}, v{s2[k]}')); a('s_nop 0')
    each(lambda k: a(f'v_mul_f32 v{o[k]}, v{m1[k]}, v{rs[k]}'))
    each(lambda k: a(f'v_sub_f32 v{o[k]}, 0, v{o[k]}'))
    each(lambda k: a(f'v_mul_f32 v{o[2+k]}, v{rs[k]}, v{s2[k]}'))
    each(lambda k: a(f'v_fma_f32 v{o[4+k]}, v{m2[k]}, v{s1[k]}, v{m1[k]}'))
    each(lambda k: a(f'v_mul_f32 v{o[4+k]}, v{o[4+k]}, v{o[2+k]}'))
    each(lambda k: a(f'v_sub_f32 v{o[4+k]}, 0, v{o[4+k]}'))
    a(f's_lshl_b32 s{T1}, s{sRow0}, 2')
    a(f's_add_u32 s{T1}, s{T1}, {hex(ST)}')
    a('s_mov_b32 exec_lo, 0'); a('s_mov_b32 exec_hi, 0x80000000')
    for idx, rg in ((0, o[0]), (1, rs[0]), (2, o[4]), (3, o[2])):
        a(f's_add_u32 s{T2}, s{T1}, {idx * 0x2000}')
        a(f'buffer_store_dwordx2 {V(rg,2)}, v{vZ}, {ws}, s{T2} offen sc1')
    a('s_mov_b64 exec, -1')

def sentinel(a):
    l = 1
    vOff, vTgt, vVal, vZ, vF, vD = 4, 5, 6, 7, 8, 9
    sDone, sAct, sMA, sMB, sMb = sX0, sX1, sW0, sW1, sRow0
    srd(a, sDBG, pDBG, 256)
    a(f'v_mov_b32 v{vZ}, 0')
    a(f'v_mov_b32 v{vF}, {FL}')
    a(f'v_lshlrev_b32 v{vOff}, 2, v{l}')
    a(f's_lshl_b32 s{sMb}, s2, 7')
    a(f's_add_u32 s{sMb}, s{sMb}, {hex(FLG)}')
    a('s_mov_b64 exec, 0xff')
    a(f'buffer_store_dword v{vZ}, v{vOff}, {ws}, s{sMb} offen sc1')
    a('s_mov_b64 exec, -1')
    a(f'v_lshlrev_b32 v{vD}, 4, v{l}')
    map_qkv(a)
    a(f's_mov_b32 s{sMA}, s{sRB}')
    map_g3(a)
    a(f's_cmp_ge_u32 s{sCB}, 15')
    a(f's_cselect_b32 s{sDone}, {hex(B_C2)}, 0')
    map_64x64(a)
    a(f's_lshr_b32 s{sMB}, s{sRB}, 1')
    a(f'v_mov_b32 v{vTgt}, 0')
    a(f's_mov_b32 s{T3}, -1')
    for ln_ in (0, 5, 6, 7): a(f'v_writelane_b32 v{vTgt}, s{T3}, {ln_}')
    a(f's_sub_u32 s{T0}, s{sRB}, 1')
    a(f's_cmp_lt_u32 s{T0}, 30')
    a(f's_cselect_b32 s{T3}, 8, 4'); a(f'v_writelane_b32 v{vTgt}, s{T3}, 1')
    a(f's_mov_b32 s{T3}, 16'); a(f'v_writelane_b32 v{vTgt}, s{T3}, 2')
    a(f's_mov_b32 s{T3}, 15'); a(f'v_writelane_b32 v{vTgt}, s{T3}, 3')
    a(f's_mov_b32 s{T3}, 32'); a(f'v_writelane_b32 v{vTgt}, s{T3}, 4')
    a(f'v_mov_b32 v{vVal}, 1')
    a('s_barrier')
    a('s_waitcnt vmcnt(0)')
    for k in range(1, 6): a('s_barrier')
    lp = a.newlabel('Lp1'); lok = a.newlabel('Lp1ok')
    a('s_mov_b64 exec, 0xffff')
    a(f'buffer_load_dword v{vVal}, v{vD}, s[{sDBG}:{sDBG+3}], 0 offen sc1')
    a('s_barrier')
    a.label(lp)
    a('s_waitcnt vmcnt(0)')
    a(f'v_cmp_le_u32 vcc, 16, v{vVal}')
    a('s_cmp_eq_u32 vcc_lo, 0xffff')
    a(f's_cbranch_scc1 {lok}')
    spin_guard(a)
    a(f's_sleep {int(os.environ.get("P1S", "4"))}')
    a(f'buffer_load_dword v{vVal}, v{vD}, s[{sDBG}:{sDBG+3}], 0 offen sc1')
    a(f's_branch {lp}')
    a.label(lok)
    for k in range(7, 10): a('s_barrier')
    lp = a.newlabel('Lp2')
    a('s_mov_b64 exec, 0xff')
    a.label(lp)
    spin_guard(a)
    a(f's_sleep {os.environ.get("SSL", "1")}')
    a(f'ds_read_b32 v{vVal}, v{vF} offset:{F_REQ}')
    a('s_waitcnt lgkmcnt(0)')
    a(f'v_readfirstlane_b32 s{sAct}, v{vVal}')
    a(f's_andn2_b32 s{sAct}, s{sAct}, s{sDone}')
    a(f's_cbranch_scc0 {lp}')
    a(f'buffer_load_dword v{vVal}, v{vOff}, {ws}, s{sMb} offen sc1')
    a('s_waitcnt vmcnt(0)')
    a(f'v_cmp_ge_u32 vcc, v{vVal}, v{vTgt}')
    a(f'v_readlane_b32 s{T0}, v{vVal}, 5')
    a(f'v_readlane_b32 s{T1}, v{vVal}, 6')
    a(f'v_readlane_b32 s{T2}, v{vVal}, 7')
    a(f's_or_b32 s{sDone}, s{sDone}, vcc_lo')
    a(f's_and_b32 s{T1}, s{T1}, s{T2}')
    a(f'v_mov_b32 v10, s{T0}')
    a(f'v_mov_b32 v11, s{T1}')
    a(f's_and_b32 s{T0}, s{T0}, s{T1}')
    a(f's_cmp_eq_u32 s{T0}, 0xffff')
    a(f's_cselect_b32 s{T0}, {B_QKV}, 0')
    a(f's_or_b32 s{sDone}, s{sDone}, s{T0}')
    a(f'v_mov_b32 v{vVal}, s{sDone}')
    a(f'ds_write2_b32 v{vF}, v10, v11 offset0:{F_QM//4} offset1:{F_KVM//4}')
    a(f'ds_write_b32 v{vF}, v{vVal} offset:{F_STATUS}')
    a(f's_and_b32 s{T0}, s{sDone}, {hex(ALLB)}')
    a(f's_cmp_lg_u32 s{T0}, {hex(ALLB)}')
    a(f's_cbranch_scc1 {lp}')
    a('s_waitcnt lgkmcnt(0)')
    a('s_endpgm')

import k_g1
def l2_touch(a, ptr, nbytes, vT, vD):
    pass

def g1_stage(a):
    l = 1
    sCol0 = sRow0
    map_qkv(a)
    srd(a, sXSRD, pX, 2048 * 1024)
    a(f's_lshl_b32 s{sX0}, s{sRB}, 17')
    a(f's_lshl_b32 s{T0}, s{sW}, 13')
    a(f's_add_u32 s{sX0}, s{sX0}, s{T0}')
    rot8(a, sJ0, sJ1)
    a(f's_cmp_ge_u32 s{sCB}, 12')
    a('s_cbranch_scc1 g1_w1')
    srd(a, sWSRD, pQKV, 512 * 3072)
    a(f's_lshl_b32 s{sCol0}, s{sCB}, 8')
    a(f's_cmp_ge_u32 s{sCB}, 8')
    a('s_cbranch_scc1 g1_v')
    hi = 0; sb0 = SB.n; n0 = CS.n
    for kind in ('qk', 'v', 'w1'):
        if kind == 'v': a.label('g1_v')
        if kind == 'w1':
            a.label('g1_w1')
            srd(a, sWSRD, pW1, 512 * 1024)
            a(f's_sub_u32 s{sCol0}, s{sCB}, 12')
            a(f's_lshl_b32 s{sCol0}, s{sCol0}, 8')
        SB.n = sb0; CS.n = n0
        va = RegAlloc(V0, 168)
        p = G()
        p.TT, p.FT, p.WR, p.WC, p.KS, p.NST = 4, 4, 2, 2, 32, 3
        p.xmode = 'row'; p.rowbytes = 1024 if kind == 'w1' else 3072
        p.orient = 'N' if kind == 'v' else 'T'
        p.sW, p.sXoff, p.sWoff, p.vLane, p.xsrd, p.ldflags, p.stmp = sW, sX0, sW0, l, sXSRD, '', STMP
        p.xtile = 32768
        p.sRot, p.sRotC, p.sRotX, p.sRotW = sJ0, 58, 59, sJ3
        p.init_chunks = int(os.environ.get('QINIT', '2'))
        a(f's_mul_i32 s{sW0}, s{sW}, {16 * p.rowbytes}')
        a(f's_add_u32 s{sW0}, s{sW0}, s{sCol0}')
        gemm_setup(a, va, p)
        acs = va(16, 4); ones = va(4); p.tmp16 = acs
        for i in range(4): a(f'v_mov_b32 v{ones+i}, 0x3f803f80')
        def step_hook(i, xfb, wfb):
            l0 = a.newlabel('Lc0'); l1 = a.newlabel('Lc1')
            c = '0' if i == 0 else V(acs,16)
            a(f's_cmp_lg_u32 s{p.sWr}, 0')
            a(f's_cbranch_scc1 {l0}')
            a(f'{MF} {V(acs,16)}, {V(ones,4)}, {V(wfb[0],4)}, {c}')
            a(f's_branch {l1}')
            a.label(l0)
            a(f'{MF} {V(acs,16)}, {V(ones,4)}, {V(wfb[1],4)}, {c}')
            a.label(l1)
        p.step_hook = step_hook
        EB = 155648 - 8192
        p.ebase = EB
        stv = va(2); vTid = va()
        def fin(a_, va_, p_, mode, sQ, sRB_, sCB_, T):
            t0, t1, t2 = p.t
            a(f'v_and_b32 v{t0}, 31, v{l}')
            a(f'v_lshlrev_b32 v{t0}, 2, v{t0}')
            a(f's_lshl_b32 s{T0}, s{p.sWc}, 8')
            a(f's_lshl_b32 s{T1}, s{p.sWr}, 7')
            a(f's_add_u32 s{T0}, s{T0}, s{T1}')
            a(f's_add_u32 s{T0}, s{T0}, {EB}')
            a(f'v_add_u32 v{t1}, s{T0}, v{t0}')
            a(f'v_add_u32 v{vTid}, {EB}, v{vTid}')
            a('s_waitcnt vmcnt(0)')
            if sQ is not None:
                a(f'v_mul_f32 v{stv}, s{sQ}, v{stv}')
                a(f'v_mul_f32 v{stv+1}, s{sQ}, v{stv+1}')
            a('s_nop 3')
            a(f'ds_write_b32 v{t1}, v{acs} offset:9216')
            lt = a.newlabel('Ltk')
            a(f's_cmp_ge_u32 s{sW}, 2')
            a(f's_cbranch_scc1 {lt}')
            a(f'ds_write_b32 v{vTid}, v{stv} offset:8192')
            a(f'ds_write_b32 v{vTid}, v{stv+1} offset:8704')
            a.label(lt)
            a('s_waitcnt lgkmcnt(0)')
            a('s_barrier')
            dstamp(a, 'qstat')
        k_g1.ln_finalize = fin
        def after_sync(c):
            if c == 7:
                a(f'v_and_b32 v{vTid}, 127, v0')
                a(f'v_lshlrev_b32 v{vTid}, 2, v{vTid}')
                a(f's_lshl_b32 s{T0}, s{sRB}, 9')
                a(f's_add_u32 s{T0}, s{T0}, {hex(ST + (0x4000 if kind == "w1" else 0))}')
                a(f'buffer_load_dword v{stv}, v{vTid}, {ws}, s{T0} offen sc1')
                a(f's_add_u32 s{T0}, s{T0}, 0x2000')
                a(f'buffer_load_dword v{stv+1}, v{vTid}, {ws}, s{T0} offen sc1')
        p.after_sync = after_sync
        p.stamp1 = lambda: (cstamp(a), dstamp(a, 'qx'))
        SB.on = False
        acc = gemm_main(a, va, p)
        SB.on = True
        cstamp(a); dstamp(a, 'qloop')
        k_g1.g1_epilogue(a, va, p, acc, kind, sRB, sCB, (T0, T1, T2, sJ2))
        hi = max(hi, va.hi)
        dstamp(a, 'qepi')
        if kind == 'w1':
            a(f's_lshl_b32 s{T1}, s{sRB}, 1')
            a(f's_sub_u32 s{T1}, s{T1}, 1')
            mb_signal(a, M_C1, 32, id_rows(a, T1, True), hw=True)
        else:
            def idq(vI, vT):
                a(f's_and_b32 s{T0}, s{sCB}, 3')
                a(f's_lshl_b32 s{T0}, s{T0}, 3')
                a(f'v_lshrrev_b32 v{vI}, 3, v1')
                a(f'v_add_u32 v{vI}, s{T0}, v{vI}')
                a(f'v_and_b32 v{vT}, 3, v{vI}')
                a(f'v_lshrrev_b32 v{vI}, 2, v{vI}')
                a(f'v_lshl_add_u32 v{vI}, v{vT}, 3, v{vI}')
                a(f'v_and_b32 v{vT}, 7, v1')
                a(f'v_lshl_add_u32 v{vI}, v{vT}, 5, v{vI}')
                return False
            mb_signal(a, M_QKV, 64, idq, hw=True)
            a('s_branch g1_done')
    a.label('g1_done')
    a(f'v_mov_b32 v{vSA}, {FL}'); a(f'v_mov_b32 v{vSB}, 1')
    a(f'ds_write_b32 v{vSA}, v{vSB} offset:{F_WDONE}')
    dstamp(a, 'qsig')
    return hi

def id_rows(a, sBase, check):
    def f(vI, vT):
        a(f'v_lshrrev_b32 v{vI}, 3, v1')
        a(f'v_add_u32 v{vI}, s{sBase}, v{vI}')
        if check: a(f'v_cmp_gt_u32 vcc, 32, v{vI}')
        a(f'v_and_b32 v{vT}, 3, v{vI}')
        a(f'v_lshrrev_b32 v{vI}, 2, v{vI}')
        a(f'v_lshl_add_u32 v{vI}, v{vT}, 3, v{vI}')
        a(f'v_and_b32 v{vT}, 7, v1')
        a(f'v_lshl_add_u32 v{vI}, v{vT}, 5, v{vI}')
        return check
    return f

def colsum3_job_issue(a, va):
    r = G()
    r.l3 = [va(4), va(4)]; r.tA = va(); r.tB = va()
    srd(a, sAUX, pW3, 512 * 2752)
    a(f's_and_b32 s{T0}, s2, 15')
    a(f's_mul_i32 s{T0}, s{T0}, {32 * 2752}')
    a(f's_lshr_b32 s{T1}, s2, 4')
    a(f's_min_u32 s{T1}, s{T1}, 10')
    a(f's_lshl_b32 s{T1}, s{T1}, 8')
    a(f's_add_u32 s{T0}, s{T0}, s{T1}')
    a(f'v_lshrrev_b32 v{r.tA}, 4, v0')
    a(f's_mov_b32 s{T1}, 2752')
    a(f'v_mul_lo_u32 v{r.tA}, v{r.tA}, s{T1}')
    a(f'v_and_b32 v{r.tB}, 15, v0')
    a(f'v_lshl_add_u32 v{r.tA}, v{r.tB}, 4, v{r.tA}')
    a(f'buffer_load_dwordx4 {V(r.l3[0],4)}, v{r.tA}, s[{sAUX}:{sAUX+3}], s{T0} offen')
    a(f's_add_u32 s{T0}, s{T0}, {16 * 2752}')
    a(f'buffer_load_dwordx4 {V(r.l3[1],4)}, v{r.tA}, s[{sAUX}:{sAUX+3}], s{T0} offen')
    return r
def colsum3_job_finish(a, r, u):
    SCR = B_BASE + 65536
    unpack(a, r.l3[0], u, 4); unpack(a, r.l3[1], u + 8, 4)
    for j in range(8): a(f'v_add_f32 v{u+j}, v{u+j}, v{u+8+j}')
    a(f'v_lshrrev_b32 v{r.tA}, 4, v0')
    a(f'v_lshlrev_b32 v{r.tA}, 9, v{r.tA}')
    a(f'v_lshl_add_u32 v{r.tA}, v{r.tB}, 5, v{r.tA}')
    a(f'v_add_u32 v{r.tA}, {SCR}, v{r.tA}')
    a(f'ds_write_b128 v{r.tA}, {V(u,4)}')
    a(f'ds_write_b128 v{r.tA}, {V(u+4,4)} offset:16')
    BAR(a)
    lab = a.newlabel('Lc3')
    a(f's_cmp_ge_u32 s{sW}, 2')
    a(f's_cbranch_scc1 {lab}')
    a('s_cmp_ge_u32 s2, 176')
    a(f's_cbranch_scc1 {lab}')
    a(f'v_lshlrev_b32 v{r.tA}, 2, v0')
    a(f'v_add_u32 v{r.tB}, {SCR}, v{r.tA}')
    for k in range(16): a(f'ds_read_b32 v{u+k}, v{r.tB} offset:{k*512}')
    a('s_waitcnt lgkmcnt(0)')
    for k in range(1, 16): a(f'v_add_f32 v{u}, v{u}, v{u+k}')
    a(f's_and_b32 s{T0}, s2, 15')
    a(f's_mul_i32 s{T0}, s{T0}, {1408 * 4}')
    a(f's_lshr_b32 s{T1}, s2, 4')
    a(f's_lshl_b32 s{T1}, s{T1}, 9')
    a(f's_add_u32 s{T0}, s{T0}, s{T1}')
    a(f's_add_u32 s{T0}, s{T0}, {hex(CS3)}')
    a(f'buffer_store_dword v{u}, v{r.tA}, {ws}, s{T0} offen sc1')
    a.label(lab)

def g2_stage(a):
    va = RegAlloc(V0, 256); l = 1; vm = VM()
    map_64x64(a)
    srd(a, sAUX, pX, 2048 * 1024)
    srd(a, sWSRD, pW2, 512 * 1024)
    g = WSK(a, va, sW, l, STMP, WD, vm, lds_base=B_BASE, ring_bytes=WRING)
    t0, t1, t2 = g.t
    wsk_woffs(a, g)
    wsk_xoffs(a, g, HF, 32768)
    rot8(a, sJ0, sJ1)
    g.add_segment(8, sWS, [sX0, sX1], g.vL16, LDF, sWSRD, [sW0, sW1], sJ0, sJ1, 8)
    xr = va(8, 4); mr = va(); rr = va()
    B8 = int(os.environ.get('B8', '0'))
    for k in range(6 + B8): a('s_barrier')
    a(f'v_and_b32 v{t2}, 31, v{l}')
    a(f'v_lshlrev_b32 v{t2}, 10, v{t2}')
    a(f'v_lshrrev_b32 v{t0}, 5, v{l}')
    a(f'v_lshl_add_u32 v{t2}, v{t0}, 3, v{t2}')
    x_rowmajor_off(a, g, T0)
    for q in range(4):
        a(f'buffer_load_dwordx2 {V(xr+2*q,2)}, v{t2}, s[{sAUX}:{sAUX+3}], s{T0} offen offset:{q*16}'); vm.add('xn')
    for i in range(WD): g.issue_w(i)
    g.nw = WD
    g.zero_acc(skip00=True)
    dstamp(a, 'g2pre')
    for k in range(2 - B8): a('s_barrier')
    wait_status(a, B_C1)
    cstamp(a); dstamp(a, 'g2x')
    a(f'v_and_b32 v{t0}, 31, v{l}')
    a(f'v_lshlrev_b32 v{t0}, 2, v{t0}')
    a(f's_lshl_b32 s{T0}, s{sRB}, 8')
    a(f's_lshl_b32 s{T1}, s{g.sWr}, 7')
    a(f's_add_u32 s{T0}, s{T0}, s{T1}')
    a(f's_add_u32 s{T0}, s{T0}, {hex(ST)}')
    a(f'buffer_load_dword v{mr}, v{t0}, {ws}, s{T0} offen sc1'); vm.add('st')
    a(f's_add_u32 s{T0}, s{T0}, 0x2000')
    a(f'buffer_load_dword v{rr}, v{t0}, {ws}, s{T0} offen sc1'); vm.add('st')
    def after_issue():
        a(f's_waitcnt vmcnt({vm.wait_for("st")})')
        unpack(a, xr, g.acc[0][0], 8)
        for i in range(16): a(f'v_fma_f32 v{g.acc[0][0]+i}, v{g.acc[0][0]+i}, v{rr}, v{mr}')
    g.after_issue = after_issue
    g.run(0, 8)
    dstamp(a, 'g2loop')
    ac = g.reduce()
    xf = g.acc[0][1]; pk = g.acc[1][0]; s1, s2, s1b, s2b, pr = [g.acc[1][1] + i for i in (0, 1, 2, 3, 4)]
    frag_tile_off(a, T0, g, X1F, 32)
    pack_swap_store(a, ac, pk, g.vL16, T0)
    unpack(a, pk, xf, 8)
    a(f'v_add_f32 v{s1}, v{xf}, v{xf+1}')
    a(f'v_mul_f32 v{s2}, v{xf}, v{xf}')
    a(f'v_fma_f32 v{s2}, v{xf+1}, v{xf+1}, v{s2}')
    for i in range(2, 16):
        a(f'v_add_f32 v{s1}, v{s1}, v{xf+i}')
        a(f'v_fma_f32 v{s2}, v{xf+i}, v{xf+i}, v{s2}')
    a(f'v_mov_b32 v{s1b}, v{s1}'); a(f'v_mov_b32 v{s2b}, v{s2}')
    a('s_nop 1')
    a(f'v_permlane32_swap_b32 v{s1}, v{s1b}')
    a(f'v_permlane32_swap_b32 v{s2}, v{s2b}')
    a('s_nop 1')
    a(f'v_add_f32 v{pr}, v{s1}, v{s1b}')
    a(f'v_add_f32 v{pr+1}, v{s2}, v{s2b}')
    a(f's_lshl_b32 s{T0}, s{sCB}, 1')
    a(f's_add_u32 s{T0}, s{T0}, s{g.sWc}')
    a(f's_lshl_b32 s{T0}, s{T0}, 14')
    a(f's_lshl_b32 s{T1}, s{sRB}, 9')
    a(f's_add_u32 s{T0}, s{T0}, s{T1}')
    a(f's_lshl_b32 s{T1}, s{g.sWr}, 8')
    a(f's_add_u32 s{T0}, s{T0}, s{T1}')
    a(f's_add_u32 s{T0}, s{T0}, {hex(PS)}')
    a(f'v_lshlrev_b32 v{t0}, 3, v{l}')
    a('s_mov_b32 exec_hi, 0')
    a(f'buffer_store_dwordx2 {V(pr,2)}, v{t0}, {ws}, s{T0} offen sc1')
    a('s_mov_b64 exec, -1')
    dstamp(a, 'g2epi')
    def id3(vI, vT):
        a(f's_lshr_b32 s{T0}, s{sRB}, 1')
        a(f's_and_b32 s{T1}, s{T0}, 1')
        a(f's_lshl_b32 s{T1}, s{T1}, 3')
        a(f's_lshr_b32 s{T0}, s{T0}, 1')
        a(f's_or_b32 s{T0}, s{T0}, s{T1}')
        a(f'v_lshlrev_b32 v{vI}, 4, v1')
        a(f'v_or_b32 v{vI}, s{T0}, v{vI}')
        return False
    mb_signal(a, M_C2, 15, id3)
    dstamp(a, 'g2sig')
    return va.hi

def g3_stage(a, endlabel):
    va = RegAlloc(V0, 256); l = 1; vm = VM()
    map_g3(a)
    a(f's_cmp_ge_u32 s{sCB}, 15')
    a(f's_cbranch_scc1 {endlabel}')
    srd(a, sWSRD, pW3, 512 * 2752)
    D = 7; CK = 8; NST = 3; STG = CK * 3 * 1024; CSL = G3_BASE + NST * STG
    sT0, sT1, sM0 = STMP, STMP + 1, STMP + 2
    t0 = va(); t1 = va(); t2 = va(); vL16 = va(); vTr = va(); vW = va(); vTr2 = va()
    a(f'v_lshlrev_b32 v{vL16}, 4, v{l}')
    trbase(a, vTr, l, t0)
    a(f'v_add_u32 v{vTr}, {G3_BASE}, v{vTr}')
    a(f'v_add_u32 v{vTr2}, 49152, v{vTr}')
    wdma_voff(a, vW, l, t0, 2752, sT0)
    acc = [va(16, 4) for F in range(3)]
    xr = [va(4) for d in range(D)]
    wf = [[va(4) for F in range(3)] for b in range(3)]
    ps = va(16, 4); cp = va(16, 4)
    mr = va(); rr = va(); z = [va() for _ in range(4)]
    ones = va(4)
    for i in range(4): a(f'v_mov_b32 v{ones+i}, 0x3f803f80')
    a(f's_mul_i32 s{sW0}, s{sW}, {16 * 2752}')
    a(f's_mul_i32 s{T0}, s{sCB}, 192')
    a(f's_add_u32 s{sW0}, s{sW0}, s{T0}')
    a(f's_mul_i32 s{sM0}, s{sW}, 3072')
    a(f's_add_u32 s{sM0}, s{sM0}, {G3_BASE}')
    a(f's_and_b32 s{T0}, s{sRB}, 1')
    a(f's_lshl_b32 s{T0}, s{T0}, 1')
    a(f's_add_u32 s{sJ0}, s{T0}, s{sCB}')
    def wdma(c):
        a(f's_add_u32 s{sJ1}, s{sJ0}, {c}')
        a(f's_and_b32 s{sJ1}, s{sJ1}, 3')
        a(f's_mul_i32 s{sJ1}, s{sJ1}, {128 * 2752}')
        a(f's_add_u32 s{sJ1}, s{sJ1}, s{sW0}')
        for hh in range(2):
            for F in range(3):
                a(f's_add_u32 m0, s{sM0}, {(c % NST) * STG + hh * 4 * 3072 + F * 1024}')
                a(f's_add_u32 s{sT1}, s{sJ1}, {(hh * 4) * 16 * 2752 + F * 64}')
                a(f'buffer_load_dwordx4 v{vW}, s[{sWSRD}:{sWSRD+3}], s{sT1} offen lds')
                vm.add(('w', c))
    request(a, B_C2)
    for c in range(NST): wdma(c)
    a(f's_lshl_b32 s{sX0}, s{sRB}, 2')
    a(f's_add_u32 s{sX0}, s{sX0}, s{sW}')
    a(f's_lshl_b32 s{sX0}, s{sX0}, 15')
    a(f's_add_u32 s{sX0}, s{sX0}, {hex(X1F)}')
    dstamp(a, 'g3pre')
    wait_status(a, B_C2)
    dstamp(a, 'g3x')
    if os.environ.get('P3'): a(f's_setprio {os.environ["P3"]}')
    def xld(ks):
        if ks % 8 == 0:
            a(f's_add_u32 s{sJ2}, s{sJ0}, {ks // 8}')
            a(f's_and_b32 s{sJ2}, s{sJ2}, 3')
            a(f's_lshl_b32 s{sJ2}, s{sJ2}, 13')
            a(f's_add_u32 s{sJ2}, s{sJ2}, s{sX0}')
        a(f's_add_u32 s{sT0}, s{sJ2}, {(ks % 8) * 1024}')
        a(f'buffer_load_dwordx4 {V(xr[ks % D],4)}, v{vL16}, {ws}, s{sT0} offen {LDF}')
        vm.add(('x', ks))
    for ks in range(D): xld(ks)
    a(f'v_and_b32 v{t0}, 31, v{l}')
    a(f'v_lshlrev_b32 v{t0}, 3, v{t0}')
    a(f'v_lshrrev_b32 v{t2}, 5, v{l}')
    a(f'v_lshl_add_u32 v{t0}, v{t2}, 17, v{t0}')
    a(f's_lshl_b32 s{T0}, s{sRB}, 10')
    a(f's_lshl_b32 s{T1}, s{sW}, 8')
    a(f's_add_u32 s{T0}, s{T0}, s{T1}')
    a(f's_add_u32 s{T0}, s{T0}, {hex(PS)}')
    for f in range(8):
        a(f'buffer_load_dwordx2 {V(ps+2*f,2)}, v{t0}, {ws}, s{T0} offen {LDF}'); vm.add('ps')
        a(f's_add_u32 s{T0}, s{T0}, 16384')
    def reads(ks, only=None):
        c, s = ks // CK, ks % CK; b = ks % 3
        for F in (range(3) if only is None else [only]):
            o = (c % NST) * STG + s * 3072 + F * 1024
            base = vTr
            if o + 256 > 65535: base, o = vTr2, o - 49152
            a(f'ds_read_b64_tr_b16 {V(wf[b][F],2)}, v{base} offset:{o}')
            a(f'ds_read_b64_tr_b16 {V(wf[b][F]+2,2)}, v{base} offset:{o+256}')
    def sync(c):
        if c == 0:
            a(f's_waitcnt vmcnt({vm.wait_for(("w", 2))})'); BAR(a)
        elif c == 1:
            BAR(a); wdma(3)
        elif c == 3:
            a(f's_waitcnt vmcnt({vm.wait_for(("w", 3))})'); BAR(a)
    sync(0)
    reads(0); reads(1)
    for ks in range(32):
        nx = ks + 2
        if nx < 32 and nx % CK == 0: sync(nx // CK)
        a(f's_waitcnt vmcnt({vm.wait_for(("x", ks))}) lgkmcnt({6 if ks + 1 < 32 else 0})')
        for F in range(3):
            a(f'{MF} {V(acc[F],16)}, {V(wf[ks%3][F],4)}, {V(xr[ks%D],4)}, ' + ('0' if ks == 0 else V(acc[F],16)))
            if nx < 32: reads(nx, F)
        le = a.newlabel('Lcs')
        for F in range(3):
            ln = a.newlabel('Lcn')
            a(f's_cmp_lg_u32 s{sW}, {F}')
            a(f's_cbranch_scc1 {ln}')
            a(f'{MF} {V(cp,16)}, {V(ones,4)}, {V(wf[ks%3][F],4)}, ' + ('0' if ks == 0 else V(cp,16)))
            if F < 2: a(f's_branch {le}')
            a.label(ln)
        a.label(le)
        if ks + D < 32: xld(ks + D)
        if ks == 12:
            for f in range(1, 8):
                a(f'v_add_f32 v{ps}, v{ps}, v{ps+2*f}')
                a(f'v_add_f32 v{ps+1}, v{ps+1}, v{ps+2*f+1}')
            a(f'v_mov_b32 v{ps+2}, v{ps}'); a(f'v_mov_b32 v{ps+3}, v{ps+1}')
            a('s_nop 1')
            a(f'v_permlane32_swap_b32 v{ps}, v{ps+2}')
            a(f'v_permlane32_swap_b32 v{ps+1}, v{ps+3}')
            a('s_nop 1')
            a(f'v_add_f32 v{ps}, v{ps}, v{ps+2}')
            a(f'v_add_f32 v{ps+1}, v{ps+1}, v{ps+3}')
            ln_scalars(a, ps, ps + 1, z, 512)
            a(f'v_mov_b32 v{rr}, v{z[3]}')
            a(f'v_mul_f32 v{mr}, v{z[1]}, v{z[3]}')
            a(f'v_sub_f32 v{mr}, 0, v{mr}')
    dstamp(a, 'g3loop')
    if os.environ.get('P3'): a(f's_setprio {PRIO}')
    a(f'v_and_b32 v{t1}, 31, v{l}')
    a(f'v_lshlrev_b32 v{t1}, 2, v{t1}')
    a(f's_lshl_b32 s{T0}, s{sW}, 7')
    a(f's_add_u32 s{T0}, s{T0}, {CSL}')
    a(f'v_add_u32 v{t1}, s{T0}, v{t1}')
    a('s_nop 7')
    a(f'ds_write_b32 v{t1}, v{cp}')
    BAR(a)
    tmp = ps; cs = cp
    pk = [xr[0], xr[2]]; vC2 = z[0]
    a(f'v_mov_b32 v{vC2}, {hex(f32bits(GC2))}')
    a(f's_mov_b32 s{T2}, {hex(f32bits(GC1))}')
    a(f'v_lshrrev_b32 v{t1}, 5, v{l}')
    a(f'v_lshlrev_b32 v{t1}, 4, v{t1}')
    a(f'v_add_u32 v{t1}, {CSL}, v{t1}')
    a(f's_lshl_b32 s{T0}, s{sRB}, 2')
    a(f's_add_u32 s{T0}, s{T0}, s{sW}')
    a(f's_mul_i32 s{T0}, s{T0}, 86')
    a(f's_mul_i32 s{T1}, s{sCB}, 6')
    a(f's_add_u32 s{T0}, s{T0}, s{T1}')
    a(f's_lshl_b32 s{T0}, s{T0}, 10')
    a(f's_add_u32 s{T0}, s{T0}, {hex(H3F)}')
    lskip = a.newlabel('g3_skip')
    for F in range(3):
        if F == 1:
            a(f's_cmp_eq_u32 s{sCB}, 14')
            a(f's_cbranch_scc1 {lskip}')
        for q in range(4):
            a(f'ds_read_b128 {V(cs+4*q,4)}, v{t1} offset:{F*128 + q*32}')
        ac = acc[F]
        for i in range(16): a(f'v_mul_f32 v{ac+i}, v{ac+i}, v{rr}')
        a('s_waitcnt lgkmcnt(0)')
        for i in range(16): a(f'v_fma_f32 v{ac+i}, v{mr}, v{cs+i}, v{ac+i}')
        gelu_scalar(a, ac, 16, tmp, T2, vC2)
        a(f's_add_u32 s{T1}, s{T0}, {F*2048}')
        pack_swap_store(a, ac, pk[F % 2], vL16, T1)
    a.label(lskip)
    a(f's_lshl_b32 s{T1}, s{sRB}, 1')
    dstamp(a, 'g3epi')
    mb_signal(a, M_C3, 16, id_rows(a, T1, False))
    dstamp(a, 'g3sig')
    return va.hi

def g45_stage(a):
    va = RegAlloc(V0, 256); l = 1; vm = VM()
    map_64x64(a)
    srd(a, sWSRD, pW4, 1376 * 1024)
    srd(a, sW2SRD, pWO, 512 * 1024)
    srd(a, sAUX, pX, 2048 * 1024)
    g = WSK(a, va, sW, l, STMP, WD, vm, lds_base=B_BASE, ring_bytes=WRING)
    t0, t1, t2 = g.t
    wsk_woffs(a, g)
    wsk_xoffs(a, g, H3F, 86 * 1024)
    sO0, sO1 = 55, 56
    wsk_xoffs(a, g, OF, 32768, sO0, sO1)
    def cond(lab):
        a(f's_cmp_ge_u32 s{sW}, 2')
        a(f's_cbranch_scc1 {lab}')
    a(f's_cmp_lt_u32 s{sW}, 2')
    a(f's_cselect_b32 s{sNN}, 22, 21')
    rot8(a, sJ0, sJ1, 5)
    rot8(a, sJ2, sJ3)
    g.add_segment(22, sWS, [sX0, sX1], g.vL16, LDF, sWSRD, [sW0, sW1], sJ0, sJ1, [sNN], last_cond=cond)
    g.add_segment(8, sWS, [sO0, sO1], g.vL16, LDF, sW2SRD, [sW0, sW1], sJ2, sJ3, 8)
    vSt = va(); x1r = va(8, 4); xr = va(8, 4)
    request(a, B_C3)
    a(f'v_and_b32 v{t2}, 31, v{l}')
    a(f'v_lshlrev_b32 v{t2}, 10, v{t2}')
    a(f'v_lshrrev_b32 v{t0}, 5, v{l}')
    a(f'v_lshl_add_u32 v{t2}, v{t0}, 3, v{t2}')
    x_rowmajor_off(a, g, T0)
    for q in range(4):
        a(f'buffer_load_dwordx2 {V(xr+2*q,2)}, v{t2}, s[{sAUX}:{sAUX+3}], s{T0} offen offset:{q*16}'); vm.add('p')
    lane8_off(a, vSt, l, t0)
    frag_tile_off(a, T0, g, X1F, 32)
    for q in range(4):
        a(f'buffer_load_dwordx2 {V(x1r+2*q,2)}, v{vSt}, {ws}, s{T0} offen offset:{q*512} {LDF}'); vm.add('p')
    for i in range(WD): g.issue_w(i)
    g.nw = WD
    g.zero_acc(skip00=True)
    ac = g.acc[0][0]
    a(f's_waitcnt vmcnt({vm.wait_for("p")})')
    for j in range(8):
        a(f'v_lshlrev_b32 v{ac+2*j}, 16, v{xr+j}')
        a(f'v_and_b32 v{ac+2*j+1}, 0xffff0000, v{xr+j}')
        a(f'v_lshlrev_b32 v{t0}, 16, v{x1r+j}')
        a(f'v_and_b32 v{t1}, 0xffff0000, v{x1r+j}')
        a(f'v_add_f32 v{ac+2*j}, v{ac+2*j}, v{t0}')
        a(f'v_add_f32 v{ac+2*j+1}, v{ac+2*j+1}, v{t1}')
    dstamp(a, 'g4pre')
    wait_status(a, B_C3)
    dstamp(a, 'g4x')
    if os.environ.get('P4'): a(f's_setprio {os.environ["P4"]}')
    g.run(0, 22, xlimit=22)
    if os.environ.get('P4'): a('s_setprio 3')
    cstamp(a); dstamp(a, 'g4loop')
    wait_status(a, B_CA)
    dstamp(a, 'g5x')
    g.run(22, 30)
    dstamp(a, 'g5loop')
    ac = g.reduce()
    srd(a, sAUX, pOUT, 2048 * 1024)
    pk = g.acc[1][0]; vo = vSt
    a(f'v_and_b32 v{vo}, 31, v{l}')
    a(f'v_lshlrev_b32 v{vo}, 10, v{vo}')
    a(f'v_lshrrev_b32 v{t0}, 5, v{l}')
    a(f'v_lshl_add_u32 v{vo}, v{t0}, 4, v{vo}')
    x_rowmajor_off(a, g, T0)
    pack_swap(a, ac, pk)
    for pr in range(2):
        a(f'buffer_store_dwordx4 {V(pk+4*pr,4)}, v{vo}, s[{sAUX}:{sAUX+3}], s{T0} offen offset:{pr*32}')
    return va.hi

VT = 1056
ATT_BUF = 8192 + 8 * VT
NBUF = 4
def R(b, n): return V(b, n)

def att_head(a, sHead):
    a(f's_and_b32 s{T0}, s2, 7')
    a(f's_lshl_b32 s{sHead}, s{T0}, 2')
    a(f's_lshr_b32 s{T0}, s2, 3')
    a(f's_and_b32 s{T0}, s{T0}, 3')
    a(f's_add_u32 s{sHead}, s{sHead}, s{T0}')

def kv_loader(a):
    l = 1; vL16, vF, vV = 4, 6, 7
    sHead, sKoff, sVoff = sRB, sX0, sX1
    att_head(a, sHead)
    a(f'v_lshlrev_b32 v{vL16}, 4, v{l}')
    a(f's_lshl_b32 s{sKoff}, s{sHead}, 10')
    a(f's_add_u32 s{sVoff}, s{sKoff}, {hex(VF)}')
    a(f's_add_u32 s{sKoff}, s{sKoff}, {hex(KF)}')
    sLd, sCh = sW0, sW1
    a(f's_mov_b32 s{sLd}, 0')
    def lchunk(c):
        lp = a.newlabel('Lpk'); ld = a.newlabel('Lpkd')
        a.label(lp)
        a(f'ds_read_b32 v{vV}, v{vF} offset:{F_KVM}')
        a('s_waitcnt lgkmcnt(0)')
        a(f'v_readfirstlane_b32 s{T0}, v{vV}')
        a(f's_lshr_b32 s{T1}, s{T0}, 1')
        a(f's_and_b32 s{T0}, s{T0}, s{T1}')
        a(f's_and_b32 s{T0}, s{T0}, 0x5555')
        a(f's_andn2_b32 s{T0}, s{T0}, s{sLd}')
        a(f's_cbranch_scc1 {ld}')
        a('s_sleep 1')
        spin_guard(a)
        a(f's_branch {lp}')
        a.label(ld)
        a(f's_ff1_i32_b32 s{sCh}, s{T0}')
        a(f's_bitset1_b32 s{sLd}, s{sCh}')
        a(f's_lshl_b32 s{sCh}, s{sCh}, 17')
        a(f's_add_u32 s{T1}, s{sKoff}, s{sCh}')
        a(f's_add_u32 s{T2}, s{sVoff}, s{sCh}')
        b = (c % NBUF) * ATT_BUF
        for j in range(8):
            a(f's_mov_b32 m0, {b + j*1024}')
            a(f's_add_u32 s{T0}, s{T1}, {j*32768}')
            a(f'buffer_load_dwordx4 v{vL16}, {ws}, s{T0} offen {LDF} lds')
            a(f's_mov_b32 m0, {b + 8192 + j*VT}')
            a(f's_add_u32 s{T0}, s{T2}, {j*32768}')
            a(f'buffer_load_dwordx4 v{vL16}, {ws}, s{T0} offen {LDF} lds')
    def publish(c):
        a(f'v_mov_b32 v{vV}, {c + 1}')
        a(f'ds_write_b32 v{vF}, v{vV} offset:{F_KRDY}')
    a(f'v_mov_b32 v{vF}, {FL}')
    request(a, B_QKV)
    lchunk(0)
    a('s_waitcnt vmcnt(0)'); publish(0)
    lchunk(1)
    a('s_waitcnt vmcnt(0)'); publish(1)
    lchunk(2)
    lchunk(3) if False else None
    a('s_waitcnt vmcnt(0)'); publish(2)
    lchunk(3)
    if TOUCH:
        a('s_waitcnt vmcnt(0)'); publish(3)
        a('s_setprio 1')
        l2_touch(a, pW4, 1376 * 1024, 12, 13)
        l2_touch(a, pWO, 512 * 1024, 12, 13)
        a('s_setprio 3')
    for c in range(4, 8):
        wait_min4(a, F_KDONE, c - 3, 8, sleep=int(os.environ.get('LSL', '8')))
        lchunk(c)
        a('s_waitcnt vmcnt(16)'); publish(c - 1)
    a('s_waitcnt vmcnt(0)'); publish(7)
    a('s_waitcnt lgkmcnt(0)')
    a('s_endpgm')

def att_compute(a):
    va = RegAlloc(V0, 256); l = 1
    sHead, sTT, sKoff, sVoff, sC, sBn, sFb = sRB, sCB, sX0, sX1, sW0, sW1, sRow0
    sEx = 50
    att_head(a, sHead)
    a(f's_lshr_b32 s{sTT}, s2, 5')
    a(f's_lshl_b32 s{sTT}, s{sTT}, 3')
    a(f's_lshl_b32 s{T0}, s{sW}, 1')
    a(f's_add_u32 s{sTT}, s{sTT}, s{T0}')
    a(f's_mov_b32 s{sEx}, 0x0000ffff'); a(f's_mov_b32 s{sEx+1}, 0x0000ffff')
    vL16 = va(); vVo = va(); t0 = va(); t1 = va()
    vK = [va(), va()]; vV0 = [va(), va()]; vV1 = [va(), va()]
    vV0b = va(); vV1b = va(); vF = va(); vDn = va(); vR = va(); vP = va()
    SA, SB_, NA, NB, OA, OB = [va(16, 4) for _ in range(6)]
    P = va(8, 4); QA = va(4); QB = va(4)
    K = [va(4), va(4)]; Vv = [va(8, 4), va(8, 4)]
    a(f'v_lshlrev_b32 v{vL16}, 4, v{l}')
    a(f's_mov_b32 s{sBn}, {ATT_BUF}')
    a(f'v_and_b32 v{vVo}, 15, v{l}')
    a(f'v_lshlrev_b32 v{vVo}, 4, v{vVo}')
    a(f'v_lshrrev_b32 v{t0}, 5, v{l}')
    a(f'v_lshl_add_u32 v{vVo}, v{t0}, 8, v{vVo}')
    a(f'v_and_b32 v{t0}, 31, v{l}')
    a(f'v_cmp_eq_u32 vcc, 16, v{t0}')
    a(f'v_mov_b32 v{t1}, {8192+1040}')
    a(f'v_mov_b32 v{vV0b}, {8192+1024}')
    a(f'v_cndmask_b32 v{t1}, v{t1}, v{vV0b}, vcc')
    a(f'v_cmp_gt_u32 vcc, 16, v{t0}')
    a(f'v_add_u32 v{vV0b}, 8192, v{vVo}')
    a(f'v_add_u32 v{vV1b}, {8192+512}, v{vVo}')
    a(f'v_cndmask_b32 v{vV0b}, v{t1}, v{vV0b}, vcc')
    a(f'v_cndmask_b32 v{vV1b}, v{t1}, v{vV1b}, vcc')
    a(f'v_and_b32 v{t0}, 1, v{l}')
    a(f'v_cmp_eq_u32 vcc, 0, v{t0}')
    a(f'v_mov_b32 v{t1}, 0x3f803f80')
    a(f'v_lshlrev_b32 v{t0}, 4, v{t0}')
    for i in range(4): a(f'v_cndmask_b32 v{P+i}, 0, v{t1}, vcc')
    a(f'v_lshrrev_b32 v{t1}, 4, v{l}')
    a(f's_mov_b32 s{T0}, {ATT_BUF}')
    a(f'v_mul_lo_u32 v{t1}, v{t1}, s{T0}')
    a(f'v_add_u32 v{t0}, v{t0}, v{t1}')
    a(f'v_bfe_u32 v{t1}, v{l}, 1, 3')
    a(f's_mov_b32 s{T0}, {VT}')
    a(f'v_mul_lo_u32 v{t1}, v{t1}, s{T0}')
    a(f'v_add_u32 v{t0}, v{t0}, v{t1}')
    a(f'ds_write_b128 v{t0}, {R(P,4)} offset:{8192+1024}')
    for i in range(16):
        a(f'v_mov_b32 v{OA+i}, 0'); a(f'v_mov_b32 v{OB+i}, 0')
    for i in range(4):
        a(f'v_mov_b32 v{P+4+i}, 0'); a(f'v_mov_b32 v{Vv[1]+4+i}, 0')
    a(f'v_mov_b32 v{vK[0]}, v{vL16}'); a(f'v_mov_b32 v{vV0[0]}, v{vV0b}'); a(f'v_mov_b32 v{vV1[0]}, v{vV1b}')
    a(f'v_add_u32 v{vK[1]}, {ATT_BUF}, v{vL16}')
    a(f'v_add_u32 v{vV0[1]}, {ATT_BUF}, v{vV0b}')
    a(f'v_add_u32 v{vV1[1]}, {ATT_BUF}, v{vV1b}')
    a(f's_mov_b32 s{sFb}, 0')
    a(f'v_mov_b32 v{vF}, {FL}')
    a(f's_lshl_b32 s{T0}, s{sW}, 2')
    a(f's_add_u32 s{T0}, s{T0}, {FL + F_KDONE}')
    a(f'v_mov_b32 v{vDn}, s{T0}')
    a(f'v_mov_b32 v{vP}, 0')
    request(a, B_QKV)
    lpq = a.newlabel('Lqm'); ldq = a.newlabel('Lqmd')
    a(f's_lshr_b32 s{T1}, s{sTT}, 2')
    a.label(lpq)
    a(f'ds_read_b32 v{vR}, v{vF} offset:{F_QM}')
    a('s_waitcnt lgkmcnt(0)')
    a(f'v_readfirstlane_b32 s{T0}, v{vR}')
    a(f's_bitcmp1_b32 s{T0}, s{T1}')
    a(f's_cbranch_scc1 {ldq}')
    a('s_sleep 1')
    spin_guard(a)
    a(f's_branch {lpq}')
    a.label(ldq)
    dstamp(a, 'aflag')
    a(f's_lshl_b32 s{T0}, s{sTT}, 5')
    a(f's_add_u32 s{T0}, s{T0}, s{sHead}')
    a(f's_lshl_b32 s{T0}, s{T0}, 10')
    a(f'buffer_load_dwordx4 {R(QA,4)}, v{vL16}, {ws}, s{T0} offen {LDF}')
    a(f's_add_u32 s{T0}, s{T0}, 32768')
    a(f'buffer_load_dwordx4 {R(QB,4)}, v{vL16}, {ws}, s{T0} offen {LDF}')
    def spin_ready(val):
        lp = a.newlabel('at_sp'); ld = a.newlabel('at_ok')
        a.label(lp)
        a(f'ds_read_b32 v{vR}, v{vF} offset:{F_KRDY}')
        a('s_waitcnt lgkmcnt(0)')
        a(f'v_readfirstlane_b32 s{T0}, v{vR}')
        a(f's_cmp_gt_u32 s{T0}, {val}')
        a(f's_cbranch_scc1 {ld}')
        a('s_sleep 1')
        spin_guard(a)
        a(f's_branch {lp}')
        a.label(ld)
    spin_ready('0')
    a('s_waitcnt vmcnt(0)')
    cstamp(a); dstamp(a, 'astart')
    a(f'ds_read_b128 {R(K[0],4)}, v{vK[0]}')
    a(f'ds_read_b128 {R(K[1],4)}, v{vK[0]} offset:1024')
    a(f'ds_read_b128 {R(Vv[0],4)}, v{vV0[0]}')
    a(f'ds_read_b128 {R(Vv[0]+4,4)}, v{vV1[0]}')
    a('s_waitcnt lgkmcnt(3)')
    a(f'{MF} {R(SA,16)}, {R(K[0],4)}, {R(QA,4)}, 0')
    a(f'{MF} {R(SB_,16)}, {R(K[0],4)}, {R(QB,4)}, 0')
    a('s_nop 10')
    def rowmax_to_neg(S_, N_):
        a(f'v_max3_f32 v{t0}, v{S_}, v{S_+1}, v{S_+2}')
        for i in range(3, 15, 2): a(f'v_max3_f32 v{t0}, v{t0}, v{S_+i}, v{S_+i+1}')
        a(f'v_max_f32 v{t0}, v{t0}, v{S_+15}')
        a(f'v_mov_b32 v{t1}, v{t0}')
        a('s_nop 1')
        a(f'v_permlane32_swap_b32 v{t0}, v{t1}')
        a('s_nop 1')
        a(f'v_max_f32 v{t0}, v{t0}, v{t1}')
        for i in range(16): a(f'v_sub_f32 v{N_+i}, 0, v{t0}')
    rowmax_to_neg(SA, NA)
    rowmax_to_neg(SB_, NB)
    a('s_nop 1')
    a(f'{MF} {R(SA,16)}, {R(K[0],4)}, {R(QA,4)}, {R(NA,16)}')
    a(f's_mov_b32 s{sC}, 0')
    a('s_waitcnt lgkmcnt(0)')
    a('s_nop 8')
    a('s_setprio 0')
    if os.environ.get('SPINC'): a('s_mov_b32 s94, s92')
    a.label('att_loop')
    for t in range(8):
        Kc, Kn = K[t % 2], K[(t + 1) % 2]
        Vc, Vn = Vv[t % 2], Vv[(t + 1) % 2]
        for sub in range(2):
            cur = [SA, SB_][sub]
            if sub == 0:
                qk = f'{MF} {R(SB_,16)}, {R(Kc,4)}, {R(QB,4)}, {R(NB,16)}'
                pv1 = f'{MF} {R(OB,16)}, {R(Vn+4,4)}, {R(P+4,4)}, {R(OB,16)}'
            else:
                qk = f'{MF} {R(SA,16)}, {R(Kn,4)}, {R(QA,4)}, {R(NA,16)}'
                pv1 = f'{MF} {R(OA,16)}, {R(Vc+4,4)}, {R(P+4,4)}, {R(OA,16)}'
            Oc = [OA, OB][sub]
            pv0 = f'{MF} {R(Oc,16)}, {R(Vc,4)}, {R(P,4)}, {R(Oc,16)}'
            ex = [f'v_exp_f32 v{cur+i}, v{cur+i}' for i in range(16)]
            cv = [f'v_cvt_pk_bf16_f32 v{P+i}, v{cur+2*i}, v{cur+2*i+1}' for i in range(8)]
            a(qk)
            for s in ex[0:6]: a(s)
            a(pv1)
            if sub == 0:
                a('s_waitcnt lgkmcnt(0)')
                if t == 6:
                    l1 = a.newlabel('att_rdy')
                    a(f'v_readfirstlane_b32 s{T0}, v{vR}')
                    a(f's_min_u32 s{T1}, s{sC}, 6')
                    a(f's_add_u32 s{T1}, s{T1}, 1')
                    a(f's_cmp_gt_u32 s{T0}, s{T1}')
                    a(f's_cbranch_scc1 {l1}')
                    spin_ready(f's{T1}')
                    a.label(l1)
                if t == 7:
                    a(f'v_add_u32 v{vP}, 1, v{vP}')
                    a(f'ds_write_b32 v{vDn}, v{vP}')
                if t == 5:
                    a(f'ds_read_b32 v{vR}, v{vF} offset:{F_KRDY}')
                kb = vK[0] if t + 2 < 8 else vK[1]
                b_ = 0 if t + 1 < 8 else 1
                a(f'ds_read_b128 {R(Kc,4)}, v{kb} offset:{((t+2)%8)*1024}')
                a(f'ds_read_b128 {R(Vn,4)}, v{vV0[b_]} offset:{((t+1)%8)*VT}')
                a(f'ds_read_b128 {R(Vn+4,4)}, v{vV1[b_]} offset:{((t+1)%8)*VT}')
            for s in ex[6:8] + cv[0:4] + ex[8:10]: a(s)
            a(pv0)
            for s in ex[10:16] + cv[4:8]: a(s)
    a(f'v_mov_b32 v{vK[0]}, v{vK[1]}'); a(f'v_mov_b32 v{vV0[0]}, v{vV0[1]}'); a(f'v_mov_b32 v{vV1[0]}, v{vV1[1]}')
    a(f's_add_u32 s{sBn}, s{sBn}, {ATT_BUF}')
    a(f's_cmp_eq_u32 s{sBn}, {NBUF*ATT_BUF}')
    a(f's_cselect_b32 s{sBn}, 0, s{sBn}')
    a(f'v_add_u32 v{vK[1]}, s{sBn}, v{vL16}')
    a(f'v_add_u32 v{vV0[1]}, s{sBn}, v{vV0b}')
    a(f'v_add_u32 v{vV1[1]}, s{sBn}, v{vV1b}')
    a(f's_add_u32 s{sC}, s{sC}, 1')
    a(f's_cmp_lt_u32 s{sC}, 8')
    a('s_cbranch_scc1 att_loop')
    a(f'{MF} {R(OB,16)}, {R(Vv[1]+4,4)}, {R(P+4,4)}, {R(OB,16)}')
    a('s_setprio 3')
    cstamp(a)
    a('s_waitcnt lgkmcnt(0)')
    a.label('att_fin')
    a('s_nop 12')
    LA, LB = SA, SA + 2
    for L_, O_ in ((LA, OA), (LB, OB)):
        a(f'v_mov_b32 v{L_}, v{O_+8}'); a(f'v_mov_b32 v{L_+1}, v{O_+8}')
    a('s_nop 1')
    a(f'v_permlane32_swap_b32 v{LA}, v{LA+1}')
    a(f'v_permlane32_swap_b32 v{LB}, v{LB+1}')
    lok = a.newlabel('att_ok')
    a(f's_cmp_lg_u32 s{sFb}, 0')
    a(f's_cbranch_scc1 {lok}')
    a(f's_mov_b32 s{T0}, {hex(f32bits(2.0**-60))}')
    a(f's_mov_b32 s{T1}, {hex(f32bits(2.0**60))}')
    a(f'v_cmp_nle_f32 vcc, s{T0}, v{LA}')
    a(f'v_cmp_nge_f32 s[54:55], s{T1}, v{LA}')
    a('s_or_b64 s[52:53], vcc, s[54:55]')
    a(f'v_cmp_nle_f32 vcc, s{T0}, v{LB}')
    a(f'v_cmp_nge_f32 s[54:55], s{T1}, v{LB}')
    a('s_or_b64 vcc, vcc, s[54:55]')
    a('s_or_b64 vcc, vcc, s[52:53]')
    a('s_cbranch_scc1 att_fallback')
    a.label(lok)
    a(f'v_rcp_f32 v{LA}, v{LA}')
    a(f'v_rcp_f32 v{LB}, v{LB}')
    a(f's_lshl_b32 s{T0}, s{sTT}, 5')
    a(f's_add_u32 s{T0}, s{T0}, s{sHead}')
    a(f's_lshl_b32 s{T0}, s{T0}, 10')
    a(f's_add_u32 s{T0}, s{T0}, {hex(OF)}')
    for n, (L_, O_) in enumerate(((LA, OA), (LB, OB))):
        for i in range(8): a(f'v_mul_f32 v{O_+i}, v{O_+i}, v{L_}')
        for i in range(4): a(f'v_cvt_pk_bf16_f32 v{P+4*n+i}, v{O_+2*i}, v{O_+2*i+1}')
        if n: a(f's_add_u32 s{T0}, s{T0}, 32768')
        a('s_nop 1')
        b = P + 4 * n
        a(f'v_permlane32_swap_b32 v{b}, v{b+2}')
        a(f'v_permlane32_swap_b32 v{b+1}, v{b+3}')
        a('s_nop 1')
        a(f'buffer_store_dwordx4 {R(b,4)}, v{vL16}, {ws}, s{T0} offen sc1')
    a(f's_lshr_b32 s{T1}, s{sTT}, 1')
    mb_signal(a, M_CA, 8, id_rows(a, T1, False), group=False)
    if os.environ.get('SPINC'):
        a('s_waitcnt lgkmcnt(0)')
        a('s_mov_b32 s76, s94'); a('s_mov_b32 s80, s92')
    stamp_flush(a, 5, 1)
    a('s_endpgm')
    a.label('att_fallback')
    a(f's_mov_b32 s{sFb}, 1')
    a(f's_lshl_b32 s{sKoff}, s{sHead}, 10')
    a(f's_add_u32 s{sVoff}, s{sKoff}, {hex(VF)}')
    a(f's_add_u32 s{sKoff}, s{sKoff}, {hex(KF)}')
    for i in range(16):
        a(f'v_mov_b32 v{NA+i}, 0xff800000'); a(f'v_mov_b32 v{NB+i}, 0xff800000')
    a(f's_mov_b32 s{sC}, 0')
    a(f's_mov_b32 s{T0}, s{sKoff}')
    a.label('att_fb1')
    a(f'buffer_load_dwordx4 {R(K[0],4)}, v{vL16}, {ws}, s{T0} offen {LDF}')
    a('s_waitcnt vmcnt(0)')
    a(f'{MF} {R(SA,16)}, {R(K[0],4)}, {R(QA,4)}, 0')
    a(f'{MF} {R(SB_,16)}, {R(K[0],4)}, {R(QB,4)}, 0')
    a('s_nop 12')
    for i in range(16): a(f'v_max_f32 v{NA+i}, v{NA+i}, v{SA+i}')
    for i in range(16): a(f'v_max_f32 v{NB+i}, v{NB+i}, v{SB_+i}')
    a(f's_add_u32 s{T0}, s{T0}, 32768')
    a(f's_add_u32 s{sC}, s{sC}, 1')
    a(f's_cmp_lt_u32 s{sC}, 64')
    a('s_cbranch_scc1 att_fb1')
    for i in range(16):
        a(f'v_mov_b32 v{SA+i}, v{NA+i}'); a(f'v_mov_b32 v{SB_+i}, v{NB+i}')
    rowmax_to_neg(SA, NA)
    rowmax_to_neg(SB_, NB)
    for i in range(16):
        a(f'v_mov_b32 v{OA+i}, 0'); a(f'v_mov_b32 v{OB+i}, 0')
    a(f'v_and_b32 v{t0}, 31, v{l}')
    a(f'v_cmp_eq_u32 vcc, 16, v{t0}')
    a(f'v_mov_b32 v{t1}, 0x3f803f80')
    a('s_nop 0')
    for i in range(8): a(f'v_cndmask_b32 v{Vv[0]+i}, 0, v{t1}, vcc')
    a(f's_mov_b32 s{sC}, 0')
    a.label('att_fb2')
    a(f'buffer_load_dwordx4 {R(K[0],4)}, v{vL16}, {ws}, s{sKoff} offen {LDF}')
    a(f's_mov_b64 exec, s[{sEx}:{sEx+1}]')
    a(f'buffer_load_dwordx4 {R(Vv[0],4)}, v{vVo}, {ws}, s{sVoff} offen {LDF}')
    a(f'buffer_load_dwordx4 {R(Vv[0]+4,4)}, v{vVo}, {ws}, s{sVoff} offen offset:512 {LDF}')
    a('s_mov_b64 exec, -1')
    a('s_waitcnt vmcnt(0)')
    a(f'{MF} {R(SA,16)}, {R(K[0],4)}, {R(QA,4)}, {R(NA,16)}')
    a(f'{MF} {R(SB_,16)}, {R(K[0],4)}, {R(QB,4)}, {R(NB,16)}')
    a('s_nop 12')
    for S_, O_ in ((SA, OA), (SB_, OB)):
        for i in range(16): a(f'v_exp_f32 v{S_+i}, v{S_+i}')
        a('s_nop 0')
        for i in range(8): a(f'v_cvt_pk_bf16_f32 v{P+i}, v{S_+2*i}, v{S_+2*i+1}')
        a('s_nop 1')
        a(f'{MF} {R(O_,16)}, {R(Vv[0],4)}, {R(P,4)}, {R(O_,16)}')
        a(f'{MF} {R(O_,16)}, {R(Vv[0]+4,4)}, {R(P+4,4)}, {R(O_,16)}')
    a(f's_add_u32 s{sKoff}, s{sKoff}, 32768')
    a(f's_add_u32 s{sVoff}, s{sVoff}, 32768')
    a(f's_add_u32 s{sC}, s{sC}, 1')
    a(f's_cmp_lt_u32 s{sC}, 64')
    a('s_nop 7'); a('s_nop 7')
    a('s_cbranch_scc1 att_fb2')
    a('s_branch att_fin')
    return va.hi

def full_kernel(a):
    name = NAME + '_kernel'
    kernel_header(a, name)
    a('s_cmp_ge_u32 s2, 256')
    a('s_cbranch_scc1 k_end')
    stamp(a, 0)
    if os.environ.get('DBGT'):
        a('s_memtime s[64:65]'); a('s_memrealtime s[66:67]')
    a('s_mov_b32 s92, 0')
    a('s_load_dwordx4 s[24:27], s[0:1], 0')
    a('s_load_dwordx2 s[28:29], s[0:1], 16')
    a('s_load_dwordx2 s[30:31], s[0:1], 32')
    a('s_load_dwordx2 s[32:33], s[0:1], 40')
    a('s_load_dwordx8 s[84:91], s[0:1], 48')
    a('s_load_dwordx2 s[34:35], s[0:1], 80')
    SB.on = True; SB.base = FL + 64; SB.n = 0; SB.vA = vSA; SB.vB = vSB; SB.sT = T3; SB.maxn = 48
    a('v_cmp_gt_u32 vcc, 64, v0')
    a('s_and_saveexec_b64 s[36:37], vcc')
    lz = a.newlabel('Lz')
    a(f's_cbranch_execz {lz}')
    a('v_lshlrev_b32 v1, 2, v0')
    a(f'v_add_u32 v1, {FL}, v1')
    a('v_mov_b32 v2, 0')
    a('ds_write_b32 v1, v2')
    a.label(lz)
    a('s_mov_b64 exec, -1')
    sWv = 58
    wave_lane(a, sWv, 1)
    a('s_waitcnt lgkmcnt(0)')
    srd(a, sWS, pWS, WS_BYTES)
    a('s_setprio 3')
    va_ = RegAlloc(V0, 256)
    lnb = a.newlabel('Lnl')
    a(f's_sub_u32 s{sW}, s{sWv}, 5')
    a(f's_cmp_ge_u32 s{sW}, 4')
    a(f's_cbranch_scc1 {lnb}')
    ln = ln_issue(a, va_)
    a.label(lnb)
    a('s_barrier')
    a(f's_cmp_eq_u32 s{sWv}, 9')
    a('s_cbranch_scc1 k_sentinel')
    a(f's_cmp_eq_u32 s{sWv}, 4')
    a('s_cbranch_scc1 k_loader')
    a(f's_cmp_ge_u32 s{sWv}, 5')
    a('s_cbranch_scc1 k_chain')
    a(f's_mov_b32 s{sW}, s{sWv}')
    CS.n = 1
    hi = g1_stage(a)
    hi = max(hi, att_compute(a))
    a.label('k_chain')
    a(f's_sub_u32 s{sW}, s{sWv}, 5')
    a('v_subrev_u32 v0, 320, v0')
    a('s_waitcnt vmcnt(0)')
    ln_stats(a, ln, va_(40, 4))
    srd(a, sDBG, pDBG, 256)
    a('s_barrier')
    a('s_waitcnt vmcnt(0)')
    a('s_barrier')
    lsg = a.newlabel('Lls')
    a(f's_cmp_lg_u32 s{sW}, 0')
    a(f's_cbranch_scc1 {lsg}')
    a(f's_and_b32 s{T0}, s2, 0xf0')
    a(f'v_mov_b32 v{vSA}, 0'); a(f'v_mov_b32 v{vSB}, 1')
    a('s_mov_b64 exec, 1')
    a(f'buffer_atomic_add v{vSB}, v{vSA}, s[{sDBG}:{sDBG+3}], s{T0} offen sc1')
    a('s_mov_b64 exec, -1')
    a.label(lsg)
    a(f's_setprio {PRIO}')
    CS.n = 1
    hi = max(hi, g2_stage(a))
    cstamp(a)
    hi = max(hi, g3_stage(a, 'k_g4'))
    a.label('k_g4')
    cstamp(a)
    hi = max(hi, g45_stage(a))
    stamp_flush(a, 5, 2)
    if os.environ.get('DBGT'):
        lq = a.newlabel('Ldbg')
        a('s_cmp_lg_u32 s2, 8')
        a(f's_cbranch_scc1 {lq}')
        a('s_waitcnt vmcnt(0)')
        a('s_memtime s[68:69]'); a('s_memrealtime s[70:71]')
        a('s_waitcnt lgkmcnt(0)')
        a('s_sub_u32 s68, s68, s64'); a('s_sub_u32 s70, s70, s66')
        srd(a, sDBG, pDBG, 256)
        a('v_mov_b32 v4, s68'); a('v_mov_b32 v5, s70'); a('v_mov_b32 v6, 4')
        a('s_mov_b64 exec, 1')
        a(f'buffer_store_dwordx2 v[4:5], v6, s[{sDBG}:{sDBG+3}], 0 offen')
        a.label(lq)
    a('s_endpgm')
    a.label('k_loader')
    CPF = int(os.environ.get('CPF', '0'))
    if CPF:
        a('s_getpc_b64 s[52:53]')
        a.label('k_pc')
        a(f's_sub_u32 s52, s52, k_pc-{NAME}_kernel')
        a('s_subb_u32 s53, s53, 0')
        a(f'v_lshlrev_b32 v4, 7, v1')
        a(f's_mov_b32 s{T1}, k_end-{NAME}_kernel')
        if CPF == 1:
            a(f's_lshr_b32 s{T0}, s2, 3')
            a(f's_and_b32 s{T0}, s{T0}, 7')
            a(f's_lshl_b32 s{T0}, s{T0}, 13')
            a(f'v_add_u32 v4, s{T0}, v4')
            a(f'v_min_u32 v4, s{T1}, v4')
            a(f'global_load_dword v10, v4, s[52:53]')
        else:
            lc = a.newlabel('Lcp')
            a('s_cmp_ge_u32 s2, 16')
            a(f's_cbranch_scc1 {lc}')
            for k in range(8):
                a(f'v_min_u32 v5, s{T1}, v4')
                a(f'global_load_dword v10, v5, s[52:53]')
                a(f'v_add_u32 v4, 8192, v4')
            a.label(lc)
    for k in range(10): a('s_barrier')
    kv_loader(a)
    a.label('k_sentinel')
    sentinel(a)
    a.label('k_end')
    a('s_endpgm')
    SB.on = False
    return name, hi, LDS_TOTAL

if __name__ == '__main__':
    build([(full_kernel, 256, 640)], sys.argv[1])
```
